```python
import torch

def _softmax(x, axis=-1):
    return torch.softmax(x, dim=axis)
def _gelu(x):
    return torch.nn.functional.gelu(x, approximate="tanh")
def _silu(x):
    return torch.nn.functional.silu(x)
def _sigmoid(x):
    return torch.sigmoid(x)
def _layernorm(x, axis=-1, eps=1e-5):
    m = x.mean(dim=axis, keepdim=True)
    v = x.var(dim=axis, keepdim=True, unbiased=False)
    return (x - m) / torch.sqrt(v + eps)
def _scatter_add(tgt, idx, src, axis=0):
    return tgt.clone().index_add_(axis, idx, src)
def _segment_sum(src, seg, n):
    out = torch.zeros((n,) + src.shape[1:], dtype=src.dtype)
    return out.index_add_(0, seg, src)
def _pad(x, pw):
    flat = tuple(v for pair in reversed(pw) for v in pair)
    return torch.nn.functional.pad(x, flat)

kernel_name = 'sequential_preLN__mha_block_cached__glu_gated_geglu__decode'

def setup_inputs():

    _w = (lambda a: (lambda t: t.to(torch.bfloat16) if t.is_floating_point() else t)(torch.as_tensor(a)))
    def _A_setup():
        B, Sq, D = 4, 1, 576
        H, Sk, Dh = 32, 8192, 128
        return {
            "x": _w((lambda *s: torch.randn(*s, dtype=torch.bfloat16) * 0.05)(B, Sq, D)),
            "k_cache": _w((lambda *s: torch.randn(*s, dtype=torch.bfloat16) * 1.6)(B, H, Sk, Dh)),
            "v_cache": _w((lambda *s: torch.randn(*s, dtype=torch.bfloat16) * 0.8)(B, H, Sk, Dh)),
            "wq": _w((lambda *s: torch.randn(*s, dtype=torch.bfloat16) * 1.6)(D, H * Dh) * (D ** -0.5)),
            "wo": _w((lambda *s: torch.randn(*s, dtype=torch.bfloat16) * 0.8)(H * Dh, D) * ((H * Dh) ** -0.5)),
        }
    _A_in = _A_setup()

    def _B_setup():
        B, S, Dm, Df = 4, 1, 576, 4608
        return {
            "x": _w((lambda *s: torch.randn(*s, dtype=torch.bfloat16) * 0.05)(B, S, Dm)),
            "w_gate": _w((lambda *s: torch.randn(*s, dtype=torch.bfloat16) * 0.8)(Dm, Df) * (Dm ** -0.5)),
            "w_up": _w((lambda *s: torch.randn(*s, dtype=torch.bfloat16) * 0.8)(Dm, Df) * (Dm ** -0.5)),
            "w_down": _w((lambda *s: torch.randn(*s, dtype=torch.bfloat16) * 0.8)(Df, Dm) * (Df ** -0.5)),
        }
    _B_in = _B_setup()

    return {
        "A_x": _A_in["x"],
        "A_k_cache": _A_in["k_cache"],
        "A_v_cache": _A_in["v_cache"],
        "A_wq": _A_in["wq"],
        "A_wo": _A_in["wo"],
        "B_x": _B_in["x"],
        "B_w_gate": _B_in["w_gate"],
        "B_w_up": _B_in["w_up"],
        "B_w_down": _B_in["w_down"],
    }

def reference(A_x, A_k_cache, A_v_cache, A_wq, A_wo, B_x, B_w_gate, B_w_up, B_w_down):
    def _A_ref(x, k_cache, v_cache, wq, wo):
        B, Sq, D = x.shape
        H, Dh = 32, 128
        q = (lambda x, *d: x.permute(*d))((x @ wq).reshape(B, Sq, H, Dh), 0, 2, 1, 3)
        scores = torch.einsum("bhqd,bhkd->bhqk", q, k_cache) * (Dh ** -0.5)
        p = _softmax(scores, axis=-1)
        o = torch.einsum("bhqk,bhkd->bhqd", p, v_cache)
        return (lambda x, *d: x.permute(*d))(o, 0, 2, 1, 3).reshape(B, Sq, H * Dh) @ wo

    def _B_ref(x, w_gate, w_up, w_down):
        g = torch.einsum("bsd,df->bsf", x, w_gate)
        u = torch.einsum("bsd,df->bsf", x, w_up)
        h = _gelu(g) * u
        return torch.einsum("bsf,fd->bsd", h, w_down)

    x = A_x
    h = x + _A_ref(_layernorm(x, axis=-1), A_k_cache, A_v_cache, A_wq, A_wo)
    h2 = h + _B_ref(_layernorm(h, axis=-1), B_w_gate, B_w_up, B_w_down)
    return h2
```

```python
KNAME = "sequential_preLN__mha_block_cached__glu_gated_geglu__decode_kernel"

class Asm:
    def __init__(self):
        self.L = []
        self.uid = 0
    def __call__(self, s):
        for line in s.split("\n"):
            line = line.strip()
            if line:
                self.L.append(("" if line.endswith(":") else "    ") + line)
    def label(self, base="L"):
        self.uid += 1
        return f"{base}_{self.uid}"
    def c(self, s):
        self.L.append("    ; " + s)
    def text(self):
        return "\n".join(self.L) + "\n"

def header(launch_lines, comment=""):
    s = ""
    for l in launch_lines:
        s += l + "\n"
    s += '.amdgcn_target "amdgcn-amd-amdhsa--gfx950"\n.text\n'
    return s

def kernel_begin(name):
    return f".globl {name}\n.p2align 8\n.type {name},@function\n{name}:\n"

def kernel_desc(name, nvgpr, nsgpr, accum=None, lds=0):
    if accum is None:
        accum = (nvgpr + 3) // 4 * 4
    return f""".section .rodata,"a"
.p2align 6
.amdhsa_kernel {name}
  .amdhsa_next_free_vgpr {nvgpr}
  .amdhsa_next_free_sgpr {nsgpr}
  .amdhsa_accum_offset {accum}
  .amdhsa_group_segment_fixed_size {lds}
  .amdhsa_kernarg_size 96
  .amdhsa_user_sgpr_count 2
  .amdhsa_user_sgpr_kernarg_segment_ptr 1
  .amdhsa_system_sgpr_workgroup_id_x 1
.end_amdhsa_kernel
.text
"""
```

```python
from asmlib import *

WS_E    = 0x0
WS_QP   = 0x10000
WS_AP   = 0xA0000
WS_Y    = 0xD0000
WS_HB   = 0x120000
WS_Z    = 0x130000
WS_STAMP= 0x300000
WS_SIZE = 0x400000

L_XD = 0
L_QB = L_XD + 9216
L_MRG = L_QB + 256
L_ML = L_MRG + 4096
L_OB = L_ML + 64
L_HB = L_OB + 1024
L_GUF = L_HB + 5760
L_GR = L_GUF + 8192
L_HF = L_GR + 2048
L_SMALL_END = L_HF + 256
L_WG = 32768
L_WU = L_WG + 36864
L_WD = L_WU + 36864
L_END = L_WD + 36864
assert L_SMALL_END <= L_WG
LDS_BYTES = 143360
assert L_END <= LDS_BYTES, L_END

LOG2E = 0x3fb8aa3b
SCALE = 0x3db504f3
INV576 = 0x3ae38e39
EPS = 0x3727c5ac

sWAVE = 3
sK, sV, sWS, sT, sU = 8, 12, 16, 20, 24
pX, pK, pV, pWQ, pWO, pBX, pWG, pWU = 32, 34, 36, 38, 40, 42, 44, 46
pWD, pOUT, pDBG, pWSP = 48, 50, 52, 54
sE, sW, sB, sH, sJ, sTO, sKV, sIT = 56, 57, 58, 59, 60, 61, 62, 63
sROW = 64
sOFF = 67
sL2E, sSCALE, sHI = 68, 69, 70
sCNT = 71
sST = 74
NSTAMP = 16
vLANE, vN, vG, vOFFK, vOFFV = 0, 1, 2, 3, 4
vMASK = 5
vM, vL = 9, 10
vO = 12
vS = 16
vQ = 20
vTAG, vFF = 36, 37
vT = 38
vSTG = 64
vWQ = 192
vP = 172
vPP = 204


def srd(a, s, ptr, nbytes):
    a(f"""
    s_mov_b32 s{s}, s{ptr}
    s_and_b32 s{s+1}, s{ptr+1}, 0xffff
    s_mov_b32 s{s+2}, {nbytes}
    s_mov_b32 s{s+3}, 0x00020000
    """)


def row16(a, regs, op="add", ctrls=("quad_perm:[1,0,3,2]", "quad_perm:[2,3,0,1]", "row_half_mirror", "row_mirror")):
    ins = "v_add_f32" if op == "add" else "v_max_f32"
    n = len(regs)
    a("s_nop 1")
    for ctrl in ctrls:
        for r in regs:
            a(f"{ins}_dpp v{r}, v{r}, v{r} {ctrl} row_mask:0xf bank_mask:0xf")
        if n < 3:
            a(f"s_nop {2 - n}")


def xrow(a, regs, tmp, op="add", only32=False):
    ins = "v_add_f32" if op == "add" else "v_max_f32"
    sws = ("v_permlane16_swap_b32", "v_permlane32_swap_b32")
    if only32:
        sws = sws[1:]
    for sw in sws:
        for r, t in zip(regs, tmp):
            a(f"v_mov_b32 v{t}, v{r}")
        a("s_nop 1")
        for r, t in zip(regs, tmp):
            a(f"{sw} v{r}, v{t}")
        a("s_nop 1")
        for r, t in zip(regs, tmp):
            a(f"{ins} v{r}, v{r}, v{t}")


def wavesum(a, regs, tmp, op="add"):
    row16(a, regs, op)
    xrow(a, regs, tmp, op)


def rbf(a, pairs, t):
    for (x, y), tt in zip(pairs, t):
        a(f"v_cvt_pk_bf16_f32 v{tt}, v{x}, v{y}")
    for (x, y), tt in zip(pairs, t):
        a(f"v_lshlrev_b32 v{x}, 16, v{tt}")
        if y != x:
            a(f"v_and_b32 v{y}, s{sHI}, v{tt}")


def tagcheck(a, regs, acc, retry):
    a(f"v_xor_b32 v{acc}, v{regs[0]}, v{vTAG}")
    for r in regs[1:]:
        a(f"v_bitop3_b32 v{acc}, v{acc}, v{r}, v{vTAG} bitop3:0xf6")
    a(f"v_and_b32 v{acc}, v{acc}, v{vFF}")
    a(f"v_cmp_ne_u32 vcc, 0, v{acc}")
    a(f"s_cbranch_vccnz {retry}")


def addtag(a, regs):
    for r in regs:
        a(f"v_bfi_b32 v{r}, v{vFF}, v{vTAG}, v{r}")


def poll_head(a, name, bail="L_end"):
    a(f"{name}:")
    a(f"s_sub_u32 s{sTO}, s{sTO}, 1")
    a(f"s_cbranch_scc1 {bail}")


def ppoll(a, name, nsets, nloads, issue, regs, acc, consume, sleep=0, stagger=0, probe=None, presleep=0):
    if presleep:
        n = presleep
        while n > 0:
            a(f"s_sleep {min(n, 100)}")
            n -= 100
    if probe:
        emit, preg, mask = probe
        a(f"s_mov_b64 exec, {mask}")
        a(f"{name}_probe:")
        a(f"s_sub_u32 s{sTO}, s{sTO}, 1")
        a(f"s_cbranch_scc1 L_end")
        emit()
        a("s_waitcnt vmcnt(0)")
        a(f"v_xor_b32 v{acc}, v{preg}, v{vTAG}")
        a(f"v_and_b32 v{acc}, v{acc}, v{vFF}")
        a(f"v_cmp_ne_u32 vcc, 0, v{acc}")
        a(f"s_cbranch_vccnz {name}_probe")
        a("s_mov_b64 exec, -1")
    for k in range(nsets):
        issue(k)
        if stagger and k != nsets - 1:
            a(f"s_sleep {stagger}")
    a(f"{name}:")
    a(f"s_sub_u32 s{sTO}, s{sTO}, 1")
    a(f"s_cbranch_scc1 L_end")
    for k in range(nsets):
        a(f"s_waitcnt vmcnt({(nsets-1)*nloads})")
        r = regs(k)
        a(f"v_xor_b32 v{acc}, v{r[0]}, v{vTAG}")
        for x in r[1:]:
            a(f"v_bitop3_b32 v{acc}, v{acc}, v{x}, v{vTAG} bitop3:0xf6")
        a(f"v_and_b32 v{acc}, v{acc}, v{vFF}")
        a(f"v_cmp_ne_u32 vcc, 0, v{acc}")
        a(f"s_cbranch_vccz {name}_ok{k}")
        if sleep:
            a(f"s_sleep {sleep}")
        issue(k)
    a(f"s_branch {name}")
    for k in range(nsets):
        a(f"{name}_ok{k}:")
        consume(k)
        if k != nsets - 1:
            a(f"s_branch {name}_done")
    a(f"{name}_done:")


def fdiv(a, out, num, den_rcp, den, t):
    a(f"v_mul_f32 v{out}, v{num}, v{den_rcp}")
    a(f"v_fma_f32 v{t}, -v{out}, v{den}, v{num}")
    a(f"v_fma_f32 v{out}, v{t}, v{den_rcp}, v{out}")


def gen(D=3, stamps=False, stop=None, kvflags="nt", wflags="nt", late_w=False, pollsleep=0, codepf=True, xflags="nt", cyc=False, pre=(0, 1, 3, 0), no_w=False, no_compute=False, no_q=False, early='', wo_late=False, gate=False, bare=False, tailst=False, ns=(1, 1, 1, 1), stg=0, probe=(0, 0, 0, 0), presl=(0, 0, 0, 0)):
    a = Asm()
    NT = 32
    KV_OOB = 0x10000000
    P = vPP

    def tstamp(idx):
        if tailst:
            stamp(idx, True)

    def stamp(idx, force=False):
        if tailst and idx in (9, 10, 11, 12, 13, 14) and not force:
            return
        if stamps:
            ins = "s_memtime" if cyc else "s_memrealtime"
            a(f"{ins} s[90:91]\n s_waitcnt lgkmcnt(0)\n s_mov_b32 s{sST+idx}, s90")

    def psleep():
        if pollsleep:
            a(f"s_sleep {pollsleep}")

    def code_prefetch(nwaves, lo, hi, tmp):
        a(f"""
        s_getpc_b64 s[92:93]
        {a.label("L_pc")}:
        """)
        lab = a.L[-1].strip()[:-1]
        a(f"""
        s_add_u32 s92, s92, {lo}-{lab}
        s_addc_u32 s93, s93, {-1 if lo == "L_code0" else 0}
        s_lshl_b32 s28, s{sWAVE}, 10
        v_lshlrev_b32 v{tmp+4}, 4, v{vLANE}
        v_add_u32 v{tmp+4}, s28, v{tmp+4}
        s_mov_b32 s29, {hi}-{lo}-16
        """)
        for i in range(NPF[(lo, hi)]):
            a(f"v_min_u32 v{tmp+5}, s29, v{tmp+4}")
            a(f"global_load_dwordx4 v[{tmp}:{tmp+3}], v{tmp+5}, s[92:93]")
            a(f"v_add_u32 v{tmp+4}, {1024*nwaves}, v{tmp+4}")
    NPF = {("L_code0", "L_code_end"): 2, ("L_tail0", "L_code_end"): 2}
    a(f"""
    L_code0:
    s_cmp_ge_u32 s2, 256
    s_cbranch_scc1 L_end
    s_load_dwordx16 s[32:47], s[0:1], 0
    s_load_dwordx8 s[48:55], s[0:1], 64
    v_lshrrev_b32 v{P}, 6, v0
    v_and_b32 v{vLANE}, 63, v0
    v_readfirstlane_b32 s{sWAVE}, v{P}
    v_and_b32 v{vN}, 15, v{vLANE}
    v_lshrrev_b32 v{vG}, 4, v{vLANE}
    v_lshlrev_b32 v{vOFFK}, 8, v{vN}
    v_lshl_add_u32 v{vOFFK}, v{vG}, 4, v{vOFFK}
    v_lshlrev_b32 v{vOFFV}, 10, v{vG}
    v_lshl_add_u32 v{vOFFV}, v{vN}, 4, v{vOFFV}
    s_mov_b32 s{sW}, s2
    s_lshr_b32 s{sB}, s2, 6
    s_lshr_b32 s{sH}, s2, 1
    s_and_b32 s{sH}, s{sH}, 31
    s_and_b32 s28, s2, 1
    s_lshl_b32 s{sJ}, s{sB}, 1
    s_add_u32 s{sJ}, s{sJ}, s28
    s_mov_b32 s{sTO}, 200000
    s_mov_b32 s{sL2E}, {LOG2E}
    s_mov_b32 s{sSCALE}, {SCALE}
    s_mov_b32 s{sHI}, 0xffff0000
    """)
    if stamps:
        for i in range(NSTAMP):
            a(f"s_mov_b32 s{sST+i}, 0")
    stamp(0)
    if codepf:
        code_prefetch(8, "L_code0", "L_code_end", vPP + 44)
    a("s_waitcnt lgkmcnt(0)")
    stamp(9)
    a(f"s_load_dword s{sE}, s[{pWSP}:{pWSP+1}], 0")
    srd(a, sK, pK, 0x10000000)
    srd(a, sV, pV, 0x10000000)
    srd(a, sWS, pWSP, WS_SIZE)
    srd(a, sT, pX, 4608)
    srd(a, sU, pWQ, 576 * 8192)
    X = P
    a(f"""
    s_cmp_ge_u32 s{sWAVE}, 4
    s_cbranch_scc1 L_nox
    v_lshlrev_b32 v{vT}, 1, v{vLANE}
    s_mul_i32 s28, s{sWAVE}, 1152
    """)
    for i in range(9):
        a(f"buffer_load_ushort v{X+i}, v{vT}, s[{sT}:{sT+3}], s28 offen offset:{128*i} {xflags}")
    a("L_nox:")
    a(f"""
    v_lshlrev_b32 v{vT+1}, 13, v{vG}
    v_lshl_add_u32 v{vT+1}, v{vN}, 4, v{vT+1}        ; g*8192 + c*16
    """)
    for u in range(3):
        a(f"""
        s_add_u32 s29, s{sWAVE}, {8*u}
        s_lshl_b32 s30, s29, 2
        s_mul_i32 s28, s{sJ}, 72
        s_add_u32 s30, s30, s28
        s_mov_b32 s{sROW+u}, s30
        s_lshl_b32 s30, s30, 13
        s_lshl_b32 s31, s{sH}, 8
        s_add_u32 s30, s30, s31
        s_cmp_ge_u32 s29, 18
        s_cselect_b32 s30, {576*8192}, s30
        s_cselect_b32 s{sROW+u}, s28, s{sROW+u}
        buffer_load_dwordx4 v[{vWQ+4*u}:{vWQ+4*u+3}], v{vT+1}, s[{sU}:{sU+3}], s30 offen {wflags}
        """)
    a(f"""
    s_lshl_b32 s{sKV}, s{sW}, 20
    s_lshl_b32 s28, s{sWAVE}, 12
    s_add_u32 s{sKV}, s{sKV}, s28
    s_mov_b32 s{sIT}, 0
    """)

    def kloads(s):
        r = vSTG + 32 * s
        for j in range(4):
            a(f"buffer_load_dwordx4 v[{r+4*j}:{r+4*j+3}], v{vOFFK}, s[{sK}:{sK+3}], s{sOFF} offen offset:{64*j} {kvflags}")

    def vloads(s):
        r = vSTG + 32 * s + 16
        for j in range(4):
            a(f"buffer_load_dwordx4 v[{r+4*j}:{r+4*j+3}], v{vOFFV}, s[{sV}:{sV+3}], s{sOFF} offen offset:{256*j} {kvflags}")

    def nextoff():
        a(f"""
        s_cmp_ge_u32 s{sIT}, {NT}
        s_cselect_b32 s{sOFF}, {KV_OOB}, s{sKV}
        s_add_u32 s{sKV}, s{sKV}, 32768
        s_add_u32 s{sIT}, s{sIT}, 1
        """)

    def prefetch(lo=0, hi=D):
        for s in range(lo, hi):
            nextoff(); kloads(s); vloads(s)

    a0, a1, b0, b1 = pre

    def by_class(fa, fb, f7=None):
        la, lb, le = a.label("L_cA"), a.label("L_cB"), a.label("L_cE")
        a(f"s_cmp_lt_u32 s{sWAVE}, 4\n s_cbranch_scc1 {la}")
        a(f"s_cmp_lt_u32 s{sWAVE}, 7\n s_cbranch_scc1 {lb}")
        if f7: f7()
        a(f"s_branch {le}\n {la}:")
        fa()
        a(f"s_branch {le}\n {lb}:")
        fb()
        a(f"{le}:")

    if bare:
        prefetch(0, D)
        a("s_branch L_bare")
    by_class(lambda: prefetch(0, a0), lambda: prefetch(0, b0))
    t0, t1, t2 = vT + 2, vT + 3, vT + 4
    a(f"""
    v_and_b32 v{t0}, 7, v{vN}
    v_and_b32 v{t1}, 1, v{t0}
    v_lshlrev_b32 v{t1}, 4, v{t1}
    v_mov_b32 v{t2}, 0xffff
    v_lshlrev_b32 v{t1}, v{t1}, v{t2}
    v_lshrrev_b32 v{t0}, 1, v{t0}
    v_mov_b32 v{vFF}, 0xff
    """)
    for d in range(4):
        a(f"v_cmp_eq_u32 vcc, {d}, v{t0}\n s_nop 1\n v_cndmask_b32 v{vMASK+d}, 0, v{t1}, vcc")
    a(f"""
    s_waitcnt lgkmcnt(0)
    s_add_u32 s{sE}, s{sE}, 1
    s_and_b32 s28, s{sE}, 0xff
    v_mov_b32 v{vTAG}, s28
    """)
    Dv = P + 10
    A0, A1, A2, A3, A4, A5 = (P + 20 + i for i in range(6))
    a(f"""
    s_cmp_ge_u32 s{sWAVE}, 4
    s_cbranch_scc1 L_noln
    s_waitcnt vmcnt({3 + 8*a0})
    """)
    stamp(10)
    for i in range(9):
        a(f"v_lshlrev_b32 v{X+i}, 16, v{X+i}")
    a(f"v_add_f32 v{A0}, v{X}, v{X+1}")
    for i in range(2, 9):
        a(f"v_add_f32 v{A0}, v{A0}, v{X+i}")
    wavesum(a, [A0], [A1])
    a(f"v_mul_f32 v{A0}, {INV576}, v{A0}")
    for i in range(9):
        a(f"v_sub_f32 v{Dv+i}, v{X+i}, v{A0}")
    a(f"v_mul_f32 v{A2}, v{Dv}, v{Dv}")
    for i in range(1, 9):
        a(f"v_fmac_f32 v{A2}, v{Dv+i}, v{Dv+i}")
    wavesum(a, [A2], [A1])
    a(f"v_mul_f32 v{A2}, {INV576}, v{A2}")
    rbf(a, [(A0, A2)], [A1])
    a(f"v_add_f32 v{A2}, {EPS}, v{A2}")
    rbf(a, [(A2, A2)], [A1])
    a(f"v_sqrt_f32 v{A2}, v{A2}\n s_nop 0")
    rbf(a, [(A2, A2)], [A1])
    a(f"v_rcp_f32 v{A3}, v{A2}")
    for i in range(9):
        a(f"v_sub_f32 v{Dv+i}, v{X+i}, v{A0}")
    rbf(a, [(Dv, Dv+1), (Dv+2, Dv+3), (Dv+4, Dv+5), (Dv+6, Dv+7), (Dv+8, Dv+8)], [X, X+1, X+2, X+3, X+4])
    for i in range(9):
        fdiv(a, X + i, Dv + i, A3, A2, A4)
    for i in range(9):
        a(f"v_cvt_pk_bf16_f32 v{X+i}, v{X+i}, v{X+i}")
    a(f"""
    s_mul_i32 s28, s{sWAVE}, {576*4}
    v_lshlrev_b32 v{A4}, 2, v{vLANE}
    v_add_u32 v{A4}, s28, v{A4}
    """)
    for i in range(9):
        a(f"ds_write_b32 v{A4}, v{X+i} offset:{L_XD + 256*i}")
    a("L_noln:")
    a("s_waitcnt lgkmcnt(0)\n s_barrier")
    stamp(11)
    AX = P
    AO = P + 8
    QA = P + 12
    a(f"""
    v_lshrrev_b32 v{vT}, 3, v{vN}                 ; m>>3
    v_mul_u32_u24 v{vT}, 576, v{vT}
    v_add_u32 v{vT}, v{vT}, v{vG}
    v_lshlrev_b32 v{vT}, 2, v{vT}                 ; ((m>>3)*576 + g)*4
    """)
    for u in range(3):
        a(f"""
        s_lshl_b32 s28, s{sROW+u}, 2
        v_add_u32 v{vT+1}, s28, v{vT}
        ds_read_b32 v{AX+2*u}, v{vT+1} offset:{L_XD}
        ds_read_b32 v{AX+2*u+1}, v{vT+1} offset:{L_XD + 2*576*4}
        """)
    by_class(lambda: a(f"s_waitcnt vmcnt({8*a0})"), lambda: a(f"s_waitcnt vmcnt({8*b0})"), lambda: a("s_waitcnt vmcnt(0)"))
    a("s_waitcnt lgkmcnt(0)")
    stamp(12)
    for u in range(3):
        for pp in range(2):
            for d in range(4):
                a(f"v_and_b32 v{AO+d}, v{AX+2*u+pp}, v{vMASK+d}")
            a("s_nop 1")
            c = "0" if u == 0 else f"v[{QA+4*pp}:{QA+4*pp+3}]"
            a(f"v_mfma_f32_16x16x32_bf16 v[{QA+4*pp}:{QA+4*pp+3}], v[{AO}:{AO+3}], v[{vWQ+4*u}:{vWQ+4*u+3}], {c}")
            a("s_nop 1")
    a(f"""
    v_lshrrev_b32 v{vT}, 1, v{vG}
    v_lshlrev_b32 v{vT}, 9, v{vT}
    v_lshl_add_u32 v{vT}, v{vN}, 5, v{vT}
    v_and_b32 v{vT+1}, 1, v{vG}
    v_lshl_add_u32 v{vT}, v{vT+1}, 4, v{vT}
    s_nop 7
    """)
    a(f"s_lshl_b32 s28, s{sWAVE}, 11\n s_add_u32 s28, s28, {L_WG}\n v_add_u32 v{vT}, s28, v{vT}")
    for pp in range(2):
        a(f"ds_write_b128 v{vT}, v[{QA+4*pp}:{QA+4*pp+3}] offset:{pp*1024}")
    a("s_waitcnt lgkmcnt(0)\n s_barrier")
    stamp(13)
    by_class(lambda: prefetch(a0, a0 + a1), lambda: prefetch(b0, b0 + b1))
    G0 = P
    a(f"""
    s_cmp_lg_u32 s{sWAVE}, 7
    s_cbranch_scc1 L_qwait
    v_lshlrev_b32 v{vT}, 4, v{vLANE}
    v_add_u32 v{vT+1}, {L_WG}, v{vT}
    """)
    for half in range(2):
        base = G0 + 8 if half == 0 else G0 + 8
        for w in range(8):
            dst = (G0 + 4*half) if w == 0 else (G0 + 8 + 4*(w-1))
            a(f"ds_read_b128 v[{dst}:{dst+3}], v{vT+1} offset:{2048*w + 1024*half}")
        a("s_waitcnt lgkmcnt(0)")
        for w in range(1, 8):
            for r in range(4):
                a(f"v_add_f32 v{G0+4*half+r}, v{G0+4*half+r}, v{G0+8+4*(w-1)+r}")
    a(f"""
    s_lshl_b32 s28, s{sH}, 3
    s_add_u32 s28, s28, s{sJ}
    s_lshl_b32 s28, s28, 11
    s_add_u32 s28, s28, {WS_QP}
    """)
    addtag(a, range(G0, G0 + 8))
    a(f"""
    buffer_store_dwordx4 v[{G0}:{G0+3}], v{vT}, s[{sWS}:{sWS+3}], s28 offen sc1
    buffer_store_dwordx4 v[{G0+4}:{G0+7}], v{vT}, s[{sWS}:{sWS+3}], s28 offen offset:1024 sc1
    v_lshrrev_b32 v{vT+1}, 5, v{vLANE}
    v_lshlrev_b32 v{vT+1}, 11, v{vT+1}
    v_and_b32 v{vT+2}, 31, v{vLANE}
    v_lshl_add_u32 v{vT+1}, v{vT+2}, 4, v{vT+1}      ; jj*2048 + c4*16
    s_lshl_b32 s28, s{sH}, 14
    s_lshl_b32 s29, s{sB}, 9
    s_add_u32 s28, s28, s29
    s_add_u32 s28, s28, {WS_QP}
    s_add_u32 s29, s28, 4096
    s_add_u32 s30, s28, 8192
    s_add_u32 s31, s28, 12288
    s_nop 1
    """)
    G1 = P + 8
    poll_head(a, "L_qpoll")
    psleep()
    for i in range(4):
        a(f"buffer_load_dwordx4 v[{G1+4*i}:{G1+4*i+3}], v{vT+1}, s[{sWS}:{sWS+3}], s{28+i} offen sc1")
    a("s_waitcnt vmcnt(0)")
    if not no_q:
        tagcheck(a, list(range(G1, G1 + 16)), vT + 3, "L_qpoll")
    stamp(14)
    for r in range(4):
        a(f"v_add_f32 v{G1+r}, v{G1+r}, v{G1+4+r}")
        a(f"v_add_f32 v{G1+8+r}, v{G1+8+r}, v{G1+12+r}")
    for r in range(4):
        a(f"v_add_f32 v{G1+r}, v{G1+r}, v{G1+8+r}")
    xrow(a, [G1, G1+1, G1+2, G1+3], [G1+4, G1+5, G1+6, G1+7], only32=True)
    a(f"""
    v_cvt_pk_bf16_f32 v{G1+8}, v{G1}, v{G1+1}
    v_cvt_pk_bf16_f32 v{G1+9}, v{G1+2}, v{G1+3}
    v_lshlrev_b32 v{vT+2}, 3, v{vT+2}
    ds_write_b64 v{vT+2}, v[{G1+8}:{G1+9}] offset:{L_QB}
    """)
    a(f"""
    s_waitcnt lgkmcnt(0)
    L_qwait:
    s_barrier
    """)
    by_class(lambda: prefetch(a0 + a1, D), lambda: prefetch(b0 + b1, D), lambda: prefetch(0, D))
    a(f"v_lshlrev_b32 v{vT}, 4, v{vG}")
    a("L_bare:")
    for j in range(4):
        a(f"ds_read_b128 v[{vQ+4*j}:{vQ+4*j+3}], v{vT} offset:{L_QB + 64*j}")
    a(f"""
    v_mov_b32 v{vM}, 0xff800000
    v_mov_b32 v{vL}, 0
    v_mov_b32 v{vO}, 0
    v_mov_b32 v{vO+1}, 0
    v_mov_b32 v{vO+2}, 0
    v_mov_b32 v{vO+3}, 0
    s_mov_b32 s{sCNT}, {NT}
    s_waitcnt lgkmcnt(0)
    """)
    stamp(1)
    if stop == "q":
        a("s_branch L_fin")

    P = vP
    s0, s1, s2, s3 = vT, vT + 1, vT + 2, vT + 3
    u0, u1 = vT + 4, vT + 5
    mx, mt, al, nm = vT + 6, vT + 7, vT + 8, vT + 9
    pk = vT + 10
    Aop = vT + 14
    assert Aop % 2 == 0
    a("L_loop:")
    for s in range(D):
        kb = vSTG + 32 * s
        vb = kb + 16
        a(f"s_waitcnt vmcnt({8*(D-1)+4})")
        for j in range(4):
            c = "0" if j == 0 else f"v[{vS}:{vS+3}]"
            a(f"v_mfma_f32_16x16x32_bf16 v[{vS}:{vS+3}], v[{kb+4*j}:{kb+4*j+3}], v[{vQ+4*j}:{vQ+4*j+3}], {c}")
        nextoff()
        kloads(s)
        a("s_nop 3")
        if no_compute:
            a(f"s_waitcnt vmcnt({8*(D-1)+4})")
            vloads(s)
            a(f"""
            s_sub_u32 s{sCNT}, s{sCNT}, 1
            s_cmp_eq_u32 s{sCNT}, 0
            s_cbranch_scc1 L_loop_end
            """)
            continue
        a(f"""
        v_cvt_pk_bf16_f32 v{u0}, v{vS}, v{vS+1}
        v_cvt_pk_bf16_f32 v{u1}, v{vS+2}, v{vS+3}
        v_lshlrev_b32 v{s0}, 16, v{u0}
        v_and_b32 v{s1}, s{sHI}, v{u0}
        v_lshlrev_b32 v{s2}, 16, v{u1}
        v_and_b32 v{s3}, s{sHI}, v{u1}
        v_mul_f32 v{s0}, s{sSCALE}, v{s0}
        v_mul_f32 v{s1}, s{sSCALE}, v{s1}
        v_mul_f32 v{s2}, s{sSCALE}, v{s2}
        v_mul_f32 v{s3}, s{sSCALE}, v{s3}
        v_cvt_pk_bf16_f32 v{u0}, v{s0}, v{s1}
        v_cvt_pk_bf16_f32 v{u1}, v{s2}, v{s3}
        v_lshlrev_b32 v{s0}, 16, v{u0}
        v_and_b32 v{s1}, s{sHI}, v{u0}
        v_lshlrev_b32 v{s2}, 16, v{u1}
        v_and_b32 v{s3}, s{sHI}, v{u1}
        v_max3_f32 v{mx}, v{s0}, v{s1}, v{s2}
        v_max3_f32 v{mx}, v{mx}, v{s3}, v{vM}
        v_mov_b32 v{mt}, v{mx}
        s_nop 1
        v_permlane16_swap_b32 v{mx}, v{mt}
        s_nop 1
        v_max_f32 v{mx}, v{mx}, v{mt}
        v_mov_b32 v{mt}, v{mx}
        s_nop 1
        v_permlane32_swap_b32 v{mx}, v{mt}
        s_nop 1
        v_max_f32 v{mx}, v{mx}, v{mt}
        v_sub_f32 v{al}, v{vM}, v{mx}
        v_mul_f32 v{nm}, s{sL2E}, v{mx}
        v_mul_f32 v{al}, s{sL2E}, v{al}
        v_fma_f32 v{s0}, v{s0}, s{sL2E}, -v{nm}
        v_fma_f32 v{s1}, v{s1}, s{sL2E}, -v{nm}
        v_fma_f32 v{s2}, v{s2}, s{sL2E}, -v{nm}
        v_fma_f32 v{s3}, v{s3}, s{sL2E}, -v{nm}
        v_exp_f32 v{al}, v{al}
        v_exp_f32 v{s0}, v{s0}
        v_exp_f32 v{s1}, v{s1}
        v_exp_f32 v{s2}, v{s2}
        v_exp_f32 v{s3}, v{s3}
        v_mov_b32 v{vM}, v{mx}
        v_mul_f32 v{vO}, v{vO}, v{al}
        v_mul_f32 v{vO+1}, v{vO+1}, v{al}
        v_mul_f32 v{vO+2}, v{vO+2}, v{al}
        v_mul_f32 v{vO+3}, v{vO+3}, v{al}
        v_cvt_pk_bf16_f32 v{pk}, v{s0}, v{s0}
        v_cvt_pk_bf16_f32 v{pk+1}, v{s1}, v{s1}
        v_cvt_pk_bf16_f32 v{pk+2}, v{s2}, v{s2}
        v_cvt_pk_bf16_f32 v{pk+3}, v{s3}, v{s3}
        v_fma_f32 v{vL}, v{vL}, v{al}, v{s0}
        v_add_f32 v{s1}, v{s1}, v{s2}
        v_add_f32 v{vL}, v{vL}, v{s3}
        v_add_f32 v{vL}, v{vL}, v{s1}
        s_waitcnt vmcnt({8*(D-1)+4})
        """)
        for r in range(4):
            ao = Aop + 4 * (r & 1)
            for d in range(4):
                a(f"v_and_b32 v{ao+d}, v{pk+r}, v{vMASK+d}")
            a("s_nop 1")
            a(f"v_mfma_f32_16x16x32_bf16 v[{vO}:{vO+3}], v[{ao}:{ao+3}], v[{vb+4*r}:{vb+4*r+3}], v[{vO}:{vO+3}]")
        vloads(s)
        a(f"""
        s_sub_u32 s{sCNT}, s{sCNT}, 1
        s_cmp_eq_u32 s{sCNT}, 0
        s_cbranch_scc1 L_loop_end
        """)
    a("s_branch L_loop\n L_loop_end:")
    stamp(2)
    xrow(a, [vL], [vT])
    a(f"""
    s_nop 7
    v_lshlrev_b32 v{vT}, 5, v{vN}                 ; c*32
    v_and_b32 v{vT+1}, 1, v{vG}
    v_lshl_add_u32 v{vT}, v{vT+1}, 4, v{vT}       ; + (g&1)*16
    s_lshl_b32 s28, s{sWAVE}, 9
    v_add_u32 v{vT}, s28, v{vT}
    ds_write_b128 v{vT}, v[{vO}:{vO+3}] offset:{L_MRG}
    s_lshl_b32 s28, s{sWAVE}, 3
    v_mov_b32 v{vT+2}, s28
    v_mov_b32 v{vT+4}, v{vM}
    v_mov_b32 v{vT+5}, v{vL}
    ds_write_b64 v{vT+2}, v[{vT+4}:{vT+5}] offset:{L_ML}
    """)

    def slice_idx():
        a(f"""
        s_lshr_b32 s29, s{sW}, 4
        s_lshl_b32 s29, s29, 3
        s_and_b32 s30, s{sW}, 7
        s_add_u32 s29, s29, s30
        s_lshl_b32 s29, s29, 1
        s_lshr_b32 s30, s{sW}, 3
        s_and_b32 s30, s30, 1
        s_add_u32 s29, s29, s30            ; slice i
        v_lshrrev_b32 v{vT}, 2, v{vLANE}
        v_mul_u32_u24 v{vT}, 9216, v{vT}
        v_and_b32 v{vT+1}, 3, v{vLANE}
        v_lshl_add_u32 v{vT}, v{vT+1}, 4, v{vT}
        v_lshlrev_b32 v{vT+1}, 4, v{vLANE}
        """)

    def dma_mat(which, sq):
        cnt = 9
        if which in "gu":
            ptr, lds0 = (pWG, L_WG) if which == "g" else (pWU, L_WU)
            srd(a, sT, ptr, 576 * 9216)
            a(f"""
            s_mul_i32 s28, s{sq}, {cnt*16*9216}
            s_lshl_b32 s30, s29, 6
            s_add_u32 s28, s28, s30
            s_mul_i32 s31, s{sq}, {cnt*1024}
            """)
            for i in range(cnt):
                a(f"s_add_u32 m0, s31, {lds0 + i*1024}\n s_nop 0")
                a(f"buffer_load_dwordx4 v{vT}, s[{sT}:{sT+3}], s28 offen {wflags} lds")
                a(f"s_add_u32 s28, s28, {16*9216}")
        else:
            srd(a, sT, pWD, 4608 * 1152)
            a(f"""
            s_mul_i32 s28, s29, {32*1152}
            s_mul_i32 s31, s{sq}, {cnt*1024}
            s_add_u32 s28, s28, s31
            """)
            for i in range(cnt):
                a(f"s_add_u32 m0, s31, {L_WD + i*1024}\n s_nop 0")
                a(f"buffer_load_dwordx4 v{vT+1}, s[{sT}:{sT+3}], s28 offen {wflags} lds")
                a(f"s_add_u32 s28, s28, 1024")

    def wo_dma(nw):
        ngrp = 16 // nw
        a(f"""
        s_sub_u32 s29, s{sW}, 144
        s_mul_i32 s30, s29, 21846
        s_lshr_b32 s30, s30, 16            ; h'
        s_mul_i32 s31, s30, 3
        s_sub_u32 s31, s29, s31            ; c
        """)
        srd(a, sT, pWO, 4096 * 1152)
        for q in range(3):
            a(f"""
            v_add_u32 v{vT+3}, {64*q}, v{vLANE}
            v_mul_u32_u24 v{vT+4}, 2731, v{vT+3}
            v_lshrrev_b32 v{vT+4}, 16, v{vT+4}          ; row = l0/24
            v_mul_u32_u24 v{vT+5}, 24, v{vT+4}
            v_sub_u32 v{vT+5}, v{vT+3}, v{vT+5}         ; piece
            v_mul_u32_u24 v{vT+4}, 1152, v{vT+4}
            v_lshl_add_u32 v{vT+q}, v{vT+5}, 4, v{vT+4}
            """)
        a(f"""
        s_lshl_b32 s28, s30, 7
        s_mul_i32 s29, s{sWAVE}, {8*ngrp}
        s_add_u32 s28, s28, s29
        s_mul_i32 s28, s28, 1152
        s_mul_i32 s31, s31, 384
        s_add_u32 s28, s28, s31
        s_mul_i32 s31, s{sWAVE}, {3*ngrp*1024}
        """)
        for grp in range(ngrp):
            for q in range(3):
                a(f"s_add_u32 m0, s31, {L_WG + (grp*3+q)*1024}\n s_nop 0")
                a(f"buffer_load_dwordx4 v{vT+q}, s[{sT}:{sT+3}], s28 offen {wflags} lds")
            a(f"s_add_u32 s28, s28, {8*1152}")

    def weights_early():
        lab_wo, lab_done = a.label("L_wwo"), a.label("L_wdone")
        a(f"s_cmp_ge_u32 s{sW}, 144\n s_cbranch_scc1 {lab_wo}")
        if early:
            slice_idx()
            for m in early:
                dma_mat(m, sWAVE)
        a(f"s_branch {lab_done}")
        a(f"{lab_wo}:")
        a(f"s_cmp_ge_u32 s{sW}, 240\n s_cbranch_scc1 {lab_done}")
        if not wo_late:
            wo_dma(4)
        a(f"{lab_done}:")

    def weights_late():
        late = [m for m in "gud" if m not in early]
        if not late:
            return
        slice_idx()
        sQ = 73
        a(f"s_and_b32 s{sQ}, s{sWAVE}, 3")
        lo, hi = late[:(len(late) + 1) // 2], late[(len(late) + 1) // 2:]
        lh, le = a.label("L_lateh"), a.label("L_latee")
        a(f"s_cmp_ge_u32 s{sWAVE}, 4\n s_cbranch_scc1 {lh}")
        for m in lo:
            dma_mat(m, sQ)
        a(f"s_branch {le}\n {lh}:")
        for m in hi:
            dma_mat(m, sQ)
        a(f"{le}:")
        a("s_waitcnt vmcnt(0)\n s_barrier")

    a(f"s_cmp_ge_u32 s{sWAVE}, 4\n s_cbranch_scc1 L_now")
    if not no_w:
        weights_early()
    if codepf:
        code_prefetch(4, "L_tail0", "L_code_end", vT + 8)
    a("L_now:")
    a("L_tail0:")
    a("s_waitcnt vmcnt(0) lgkmcnt(0)\n s_barrier")
    stamp(3)

    MO = P
    MM = P + 32
    a(f"s_cmp_lg_u32 s{sWAVE}, 0\n s_cbranch_scc1 L_nomerge")
    a(f"""
    v_and_b32 v{vT}, 31, v{vLANE}
    v_lshlrev_b32 v{vT}, 4, v{vT}
    v_mov_b32 v{vT+1}, 0
    """)
    for i in range(4):
        a(f"ds_read_b128 v[{MM+4*i}:{MM+4*i+3}], v{vT+1} offset:{L_ML + 16*i}")
    for w in range(8):
        a(f"ds_read_b128 v[{MO+4*w}:{MO+4*w+3}], v{vT} offset:{L_MRG + 512*w}")
    a("s_waitcnt lgkmcnt(8)")
    ms = [MM + 2 * w for w in range(8)]
    mstar = vT + 2
    a(f"v_max3_f32 v{mstar}, v{ms[0]}, v{ms[1]}, v{ms[2]}")
    a(f"v_max3_f32 v{mstar}, v{mstar}, v{ms[3]}, v{ms[4]}")
    a(f"v_max3_f32 v{mstar}, v{mstar}, v{ms[5]}, v{ms[6]}")
    a(f"v_max_f32 v{mstar}, v{mstar}, v{ms[7]}")
    for w in range(8):
        a(f"v_sub_f32 v{ms[w]}, v{ms[w]}, v{mstar}")
    for w in range(8):
        a(f"v_mul_f32 v{ms[w]}, s{sL2E}, v{ms[w]}")
    for w in range(8):
        a(f"v_exp_f32 v{ms[w]}, v{ms[w]}")
    Lt = vT + 3
    a(f"s_nop 0\n v_mul_f32 v{Lt}, v{ms[0]}, v{ms[0]+1}")
    for w in range(1, 8):
        a(f"v_fmac_f32 v{Lt}, v{ms[w]}, v{ms[w]+1}")
    a("s_waitcnt lgkmcnt(0)")
    R = vT + 6
    assert R % 2 == 0
    for r in range(4):
        a(f"v_mul_f32 v{R+r}, v{ms[0]}, v{MO+r}")
    for w in range(1, 8):
        for r in range(4):
            a(f"v_fmac_f32 v{R+r}, v{ms[w]}, v{MO+4*w+r}")
    a(f"""
    v_cmp_eq_u32 vcc, 32, v{vLANE}
    v_mov_b32 v{vT+4}, 0
    s_nop 0
    v_cndmask_b32 v{R}, v{R}, v{mstar}, vcc
    v_cndmask_b32 v{R+1}, v{R+1}, v{Lt}, vcc
    v_cndmask_b32 v{R+2}, v{R+2}, v{vT+4}, vcc
    v_cndmask_b32 v{R+3}, v{R+3}, v{vT+4}, vcc
    """)
    addtag(a, range(R, R + 4))
    a(f"""
    v_lshlrev_b32 v{vT}, 4, v{vLANE}
    s_mul_i32 s28, s{sW}, 640
    s_add_u32 s28, s28, {WS_AP}
    v_cmp_gt_u32 vcc, 33, v{vLANE}
    s_and_saveexec_b64 s[30:31], vcc
    buffer_store_dwordx4 v[{R}:{R+3}], v{vT}, s[{sWS}:{sWS+3}], s28 offen sc1
    s_mov_b64 exec, s[30:31]
    L_nomerge:
    """)
    stamp(4)
    if stop == "attn":
        a("s_branch L_fin")

    a(f"s_cmp_lt_u32 s{sW}, 144\n s_cbranch_scc1 L_stageB")
    a(f"s_cmp_ge_u32 s{sW}, 240\n s_cbranch_scc1 L_reduce")
    if wo_late and not no_w:
        wo_dma(8)
        a("s_waitcnt vmcnt(0)\n s_barrier")
    a(f"""
    s_sub_u32 s29, s{sW}, 144
    s_mul_i32 s{sH}, s29, 21846
    s_lshr_b32 s{sH}, s{sH}, 16         ; h'
    s_mul_i32 s31, s{sH}, 3
    s_sub_u32 s{sJ}, s29, s31           ; c
    """)
    WB = 64
    a(f"""
    v_lshrrev_b32 v{vT}, 2, v{vN}                    ; r
    v_lshl_add_u32 v{vT}, v{vG}, 3, v{vT}            ; 8g + r
    v_mul_u32_u24 v{vT}, 384, v{vT}
    v_and_b32 v{vT+1}, 3, v{vLANE}
    v_lshl_add_u32 v{vT}, v{vT+1}, 3, v{vT}          ; + cc*8
    s_lshl_b32 s28, s{sWAVE}, 5
    s_add_u32 s28, s28, {L_WG}
    v_add_u32 v{vT}, s28, v{vT}                      ; + T*32 + base
    """)
    for ks in range(4):
        a(f"ds_read_b64_tr_b16 v[{WB+4*ks}:{WB+4*ks+1}], v{vT} offset:{ks*32*384}")
        a(f"ds_read_b64_tr_b16 v[{WB+4*ks+2}:{WB+4*ks+3}], v{vT} offset:{ks*32*384 + 4*384}")
    a(f"s_cmp_ge_u32 s{sWAVE}, 4\n s_cbranch_scc1 L_wo_gather_skip")
    a("s_waitcnt lgkmcnt(0)")
    for ks in range(4):
        a(f"ds_read_b64_tr_b16 v[{WB+16+4*ks}:{WB+16+4*ks+1}], v{vT} offset:{ks*32*384 + 256}")
        a(f"ds_read_b64_tr_b16 v[{WB+16+4*ks+2}:{WB+16+4*ks+3}], v{vT} offset:{ks*32*384 + 4*384 + 256}")
    GA = P
    a(f"""
    v_lshrrev_b32 v{vT+1}, 5, v{vLANE}               ; s
    v_mul_u32_u24 v{vT+2}, 640, v{vT+1}
    v_and_b32 v{vT+3}, 31, v{vLANE}                  ; c4
    v_lshl_add_u32 v{vT+4}, v{vT+3}, 4, v{vT+2}      ; s*640 + c4*16
    v_add_u32 v{vT+5}, 512, v{vT+2}                  ; s*640 + 512
    s_lshl_b32 s28, s{sWAVE}, 6
    s_lshl_b32 s29, s{sH}, 1
    s_add_u32 s28, s28, s29
    s_mul_i32 s28, s28, 640
    s_add_u32 s28, s28, {WS_AP}
    """)
    GAs = [96 + 8 * k for k in range(3)]
    def ap_issue(k):
        a(f"buffer_load_dwordx4 v[{GAs[k]}:{GAs[k]+3}], v{vT+4}, s[{sWS}:{sWS+3}], s28 offen sc1")
        a(f"buffer_load_dwordx2 v[{GAs[k]+4}:{GAs[k]+5}], v{vT+5}, s[{sWS}:{sWS+3}], s28 offen sc1")
    def ap_consume(k):
        for r in range(6):
            a(f"v_mov_b32 v{GA+r}, v{GAs[k]+r}")
    ppoll(a, "L_apoll", ns[0], 2, ap_issue, lambda k: list(range(GAs[k], GAs[k] + 6)), vT + 6, ap_consume, pollsleep, stg)
    tstamp(9)
    mm, ll = GA + 4, GA + 5
    a(f"""
    v_and_b32 v{mm}, s{sHI}, v{mm}
    v_mov_b32 v{vT+6}, v{mm}
    v_mov_b32 v{vT+7}, v{mm}
    s_nop 1
    v_permlane32_swap_b32 v{vT+6}, v{vT+7}
    s_nop 1
    v_max_f32 v{vT+6}, v{vT+6}, v{vT+7}             ; m*
    v_sub_f32 v{mm}, v{mm}, v{vT+6}
    v_mul_f32 v{mm}, s{sL2E}, v{mm}
    v_exp_f32 v{mm}, v{mm}                           ; a
    s_nop 0
    v_mul_f32 v{ll}, v{ll}, v{mm}
    v_mul_f32 v{GA}, v{GA}, v{mm}
    v_mul_f32 v{GA+1}, v{GA+1}, v{mm}
    v_mul_f32 v{GA+2}, v{GA+2}, v{mm}
    v_mul_f32 v{GA+3}, v{GA+3}, v{mm}
    """)
    xrow(a, [GA, GA+1, GA+2, GA+3, ll], [GA+8, GA+9, GA+10, GA+11, GA+12], only32=True)
    a(f"v_rcp_f32 v{vT+6}, v{ll}\n s_nop 0")
    for r in range(4):
        fdiv(a, GA + 8 + r, GA + r, vT + 6, ll, vT + 7)
    a(f"""
    v_cvt_pk_bf16_f32 v{GA+12}, v{GA+8}, v{GA+9}
    v_cvt_pk_bf16_f32 v{GA+13}, v{GA+10}, v{GA+11}
    v_lshlrev_b32 v{vT+3}, 3, v{vT+3}
    s_lshl_b32 s28, s{sWAVE}, 8
    v_add_u32 v{vT+3}, s28, v{vT+3}
    ds_write_b64 v{vT+3}, v[{GA+12}:{GA+13}] offset:{L_OB}
    L_wo_gather_skip:
    s_waitcnt lgkmcnt(0)
    s_barrier
    """)
    AOP = P + 16
    a(f"""
    v_and_b32 v{vT}, 3, v{vN}
    v_lshlrev_b32 v{vT}, 8, v{vT}
    v_lshl_add_u32 v{vT}, v{vG}, 4, v{vT}           ; (m&3)*256 + g*16
    """)
    for ks in range(4):
        a(f"ds_read_b128 v[{AOP+4*ks}:{AOP+4*ks+3}], v{vT} offset:{L_OB + 64*ks}")
    YD = P + 32
    a("s_waitcnt lgkmcnt(0)")
    for ks in range(4):
        c = "0" if ks == 0 else f"v[{YD}:{YD+3}]"
        a(f"v_mfma_f32_16x16x32_bf16 v[{YD}:{YD+3}], v[{AOP+4*ks}:{AOP+4*ks+3}], v[{WB+4*ks}:{WB+4*ks+3}], {c}")
    a(f"s_cmp_ge_u32 s{sWAVE}, 4\n s_cbranch_scc1 L_wo_one")
    for ks in range(4):
        c = "0" if ks == 0 else f"v[{YD+4}:{YD+7}]"
        a(f"v_mfma_f32_16x16x32_bf16 v[{YD+4}:{YD+7}], v[{AOP+4*ks}:{AOP+4*ks+3}], v[{WB+16+4*ks}:{WB+16+4*ks+3}], {c}")
    a("L_wo_one:")
    a(f"""
    s_mul_i32 s28, s{sH}, 9216
    s_mul_i32 s29, s{sJ}, {192*16}
    s_add_u32 s28, s28, s29
    s_lshl_b32 s29, s{sWAVE}, 8
    s_add_u32 s28, s28, s29
    s_add_u32 s28, s28, {WS_Y}
    v_lshlrev_b32 v{vT}, 4, v{vN}
    s_nop 7
    """)
    addtag(a, range(YD, YD + 4))
    a(f"""
    s_mov_b64 exec, 0xffff
    buffer_store_dwordx4 v[{YD}:{YD+3}], v{vT}, s[{sWS}:{sWS+3}], s28 offen sc1
    s_mov_b64 exec, -1
    s_cmp_ge_u32 s{sWAVE}, 4
    s_cbranch_scc1 L_reduce
    """)
    addtag(a, range(YD + 4, YD + 8))
    a(f"""
    s_mov_b64 exec, 0xffff
    buffer_store_dwordx4 v[{YD+4}:{YD+7}], v{vT}, s[{sWS}:{sWS+3}], s28 offen offset:2048 sc1
    s_mov_b64 exec, -1
    """)
    a("L_reduce:")
    tstamp(10)
    sTASK = 72
    a(f"""
    s_sub_u32 s{sTASK}, s{sW}, 144
    s_mul_i32 s28, s{sWAVE}, 112
    s_add_u32 s{sTASK}, s{sTASK}, s28
    s_cmp_ge_u32 s{sTASK}, 144
    s_cbranch_scc1 L_fin
    s_cmp_ge_u32 s{sWAVE}, 2
    s_cbranch_scc1 L_fin
    """)
    XR = P
    srd(a, sT, pX, 4608)
    a(f"""
    v_and_b32 v{vT}, 3, v{vLANE}                     ; col
    v_lshlrev_b32 v{vT+1}, 1, v{vT}
    s_lshl_b32 s28, s{sTASK}, 3
    """)
    for b in range(4):
        a(f"buffer_load_ushort v{XR+b}, v{vT+1}, s[{sT}:{sT+3}], s28 offen offset:{1152*b}")
    a(f"""
    v_lshrrev_b32 v{vT+2}, 2, v{vLANE}               ; hh
    v_mul_u32_u24 v{vT+2}, 9216, v{vT+2}
    v_lshl_add_u32 v{vT+2}, v{vT}, 4, v{vT+2}
    s_lshl_b32 s28, s{sTASK}, 6
    s_add_u32 s28, s28, {WS_Y}
    s_add_u32 s29, s28, {16*9216}
    """)
    YG = P + 4
    YGs = [P + 60 + 8 * k for k in range(3)]
    def y_issue(k):
        a(f"buffer_load_dwordx4 v[{YGs[k]}:{YGs[k]+3}], v{vT+2}, s[{sWS}:{sWS+3}], s28 offen sc1")
        a(f"buffer_load_dwordx4 v[{YGs[k]+4}:{YGs[k]+7}], v{vT+2}, s[{sWS}:{sWS+3}], s29 offen sc1")
    def y_consume(k):
        for r in range(4):
            a(f"v_add_f32 v{YG+r}, v{YGs[k]+r}, v{YGs[k]+4+r}")
    ppoll(a, "L_ypoll", ns[1], 2, y_issue, lambda k: list(range(YGs[k], YGs[k] + 8)), vT + 3, y_consume, pollsleep, stg,
          probe=((lambda: a(f"buffer_load_dword v{YGs[0]}, v{vT+2}, s[{sWS}:{sWS+3}], s28 offen sc1")), YGs[0], "1") if probe[1] else None, presleep=presl[1])
    tstamp(11)
    hs = [YG, YG + 1, YG + 2, YG + 3]
    row16(a, hs, ctrls=("row_ror:4", "row_ror:8"))
    xrow(a, hs, [YG + 4, YG + 5, YG + 6, YG + 7])
    rbf(a, [(YG, YG+1), (YG+2, YG+3)], [YG+4, YG+5])
    for b in range(4):
        a(f"v_lshlrev_b32 v{XR+b}, 16, v{XR+b}")
        a(f"v_add_f32 v{YG+b}, v{YG+b}, v{XR+b}")
    rbf(a, [(YG, YG+1), (YG+2, YG+3)], [YG+4, YG+5])
    HK = P + 16
    for b in range(4):
        a(f"v_mov_b32 v{HK+b}, v{YG+b}")
    addtag(a, hs)
    a(f"""
    s_lshl_b32 s28, s{sTASK}, 6
    s_add_u32 s28, s28, {WS_HB}
    v_lshlrev_b32 v{vT+3}, 4, v{vT}
    s_mov_b64 exec, 0xf
    buffer_store_dwordx4 v[{YG}:{YG+3}], v{vT+3}, s[{sWS}:{sWS+3}], s28 offen sc1
    s_mov_b64 exec, -1
    """)
    stamp(7)
    ZG = P + 20
    a(f"""
    s_lshl_b32 s28, s{sTASK}, 6
    s_add_u32 s28, s28, {WS_Z}
    """)
    ZGs = [64, 100, 136]
    sPZ = 49
    a(f"s_mul_i32 s{sPZ}, s{sTASK}, 9216\n s_add_u32 s{sPZ}, s{sPZ}, s28")
    for i in range(9):
        a(f"s_add_u32 s{40+i}, s28, {i*16*9216}")
    def z_issue(k):
        for i in range(9):
            a(f"buffer_load_dwordx4 v[{ZGs[k]+4*i}:{ZGs[k]+4*i+3}], v{vT+2}, s[{sWS}:{sWS+3}], s{40+i} offen sc1")
    def z_consume(k):
        z = ZGs[k]
        for (x, y) in ((0, 1), (2, 3), (4, 5), (6, 7), (0, 2), (4, 6), (0, 4)):
            for r in range(0, 4, 2):
                a(f"v_pk_add_f32 v[{z+4*x+r}:{z+4*x+r+1}], v[{z+4*x+r}:{z+4*x+r+1}], v[{z+4*y+r}:{z+4*y+r+1}]")
        for r in range(0, 4, 2):
            a(f"v_pk_add_f32 v[{ZG+r}:{ZG+r+1}], v[{z+r}:{z+r+1}], v[{z+32+r}:{z+32+r+1}]")
    ppoll(a, "L_zpoll", ns[3], 9, z_issue, lambda k: list(range(ZGs[k], ZGs[k] + 36)), vT + 3, z_consume, pollsleep, stg,
          probe=((lambda: a(f"buffer_load_dword v{ZGs[0]}, v{vT+2}, s[{sWS}:{sWS+3}], s{sPZ} offen sc1")), ZGs[0], "1") if probe[3] else None, presleep=presl[3])
    tstamp(12)
    zs = [ZG, ZG + 1, ZG + 2, ZG + 3]
    row16(a, zs, ctrls=("row_ror:4", "row_ror:8"))
    xrow(a, zs, [ZG + 4, ZG + 5, ZG + 6, ZG + 7])
    rbf(a, [(ZG, ZG+1), (ZG+2, ZG+3)], [ZG+4, ZG+5])
    for b in range(4):
        a(f"v_add_f32 v{ZG+b}, v{ZG+b}, v{HK+b}")
    a(f"v_cvt_pk_bf16_f32 v{ZG+4}, v{ZG}, v{ZG+1}")
    a(f"v_cvt_pk_bf16_f32 v{ZG+5}, v{ZG+2}, v{ZG+3}")
    srd(a, sT, pOUT, 4608)
    a(f"""
    s_lshl_b32 s28, s{sTASK}, 3
    s_mov_b64 exec, 0xf
    buffer_store_short v{ZG+4}, v{vT+1}, s[{sT}:{sT+3}], s28 offen
    buffer_store_short_d16_hi v{ZG+4}, v{vT+1}, s[{sT}:{sT+3}], s28 offen offset:1152
    buffer_store_short v{ZG+5}, v{vT+1}, s[{sT}:{sT+3}], s28 offen offset:2304
    buffer_store_short_d16_hi v{ZG+5}, v{vT+1}, s[{sT}:{sT+3}], s28 offen offset:3456
    s_mov_b64 exec, -1
    s_cmp_lg_u32 s{sTASK}, 0
    s_cbranch_scc1 L_fin
    v_mov_b32 v{ZG+6}, s{sE}
    v_mov_b32 v{ZG+7}, 0
    s_mov_b64 exec, 1
    buffer_store_dword v{ZG+6}, v{ZG+7}, s[{sWS}:{sWS+3}], 0 offen sc1
    s_mov_b64 exec, -1
    s_branch L_fin
    """)

    a("L_stageB:")
    if gate:
        a(f"s_cmp_lg_u32 s{sWAVE}, 1\n s_cbranch_scc1 L_gate_done")
        a(f"""
        v_mul_u32_u24 v{vT}, 640, v{vLANE}
        s_mov_b32 s28, {WS_AP + 512}
        s_mov_b32 s29, {WS_AP + 512 + 64*640}
        s_mov_b32 s30, {WS_AP + 512 + 128*640}
        s_mov_b32 s31, {WS_AP + 512 + 192*640}
        """)
        poll_head(a, "L_gpoll")
        for i in range(4):
            a(f"buffer_load_dword v{vT+2+i}, v{vT}, s[{sWS}:{sWS+3}], s{28+i} offen sc1")
        a("s_waitcnt vmcnt(0)")
        tagcheck(a, [vT+2, vT+3, vT+4, vT+5], vT + 6, "L_gpoll")
        a("L_gate_done:\n s_barrier")
    a(f"""
    s_cmp_lg_u32 s{sWAVE}, 7
    s_cbranch_scc1 L_noones
    v_mov_b32 v{P}, 0x3f803f80
    v_mov_b32 v{P+1}, 0x3f803f80
    v_mov_b32 v{P+2}, 0x3f803f80
    v_mov_b32 v{P+3}, 0x3f803f80
    v_lshlrev_b32 v{vT}, 4, v{vLANE}
    ds_write_b128 v{vT}, v[{P}:{P+3}] offset:{L_HB + 4*1152}
    s_mov_b64 exec, 0xff
    ds_write_b128 v{vT}, v[{P}:{P+3}] offset:{L_HB + 4*1152 + 1024}
    s_mov_b64 exec, -1
    L_noones:
    """)
    if not no_w:
        weights_late()
    stamp(15)
    BB = 64
    WDd = 100
    a(f"""
    v_lshrrev_b32 v{vT}, 2, v{vN}
    v_lshl_add_u32 v{vT}, v{vG}, 3, v{vT}            ; 8g + r
    v_and_b32 v{vT+1}, 3, v{vLANE}                   ; cc
    v_lshlrev_b32 v{vT+2}, 6, v{vT}
    v_lshl_add_u32 v{vT+2}, v{vT+1}, 3, v{vT+2}      ; (8g+r)*64 + cc*8
    s_and_b32 s28, s{sWAVE}, 1
    s_lshl_b32 s28, s28, 5                           ; t*32
    s_bfe_u32 s29, s{sWAVE}, 0x10001
    s_mul_i32 s29, s29, {L_WU - L_WG}
    s_add_u32 s28, s28, s29
    s_add_u32 s28, s28, {L_WG}
    s_lshr_b32 s29, s{sWAVE}, 2
    s_mul_i32 s29, s29, {9*2048}
    s_add_u32 s28, s28, s29
    v_add_u32 v{vT+2}, s28, v{vT+2}
    """)
    for ks in range(9):
        a(f"ds_read_b64_tr_b16 v[{BB+4*ks}:{BB+4*ks+1}], v{vT+2} offset:{ks*2048}")
        a(f"ds_read_b64_tr_b16 v[{BB+4*ks+2}:{BB+4*ks+3}], v{vT+2} offset:{ks*2048+256}")
        if ks == 5:
            a("s_waitcnt lgkmcnt(0)")
    a(f"""
    v_mul_u32_u24 v{vT+3}, 1152, v{vT}
    v_lshl_add_u32 v{vT+3}, v{vT+1}, 3, v{vT+3}
    s_lshl_b32 s28, s{sWAVE}, 5
    s_add_u32 s28, s28, {L_WD}
    v_add_u32 v{vT+3}, s28, v{vT+3}
    s_waitcnt lgkmcnt(0)
    """)
    for i in range(5):
        if i == 4:
            a(f"s_cmp_ge_u32 s{sWAVE}, 4\n s_cbranch_scc1 L_no5th")
        a(f"ds_read_b64_tr_b16 v[{WDd+4*i}:{WDd+4*i+1}], v{vT+3} offset:{i*256}")
        a(f"ds_read_b64_tr_b16 v[{WDd+4*i+2}:{WDd+4*i+3}], v{vT+3} offset:{i*256 + 4*1152}")
    a("L_no5th:")
    aH, aA, aG, aR, aF1, aF2, aF3, aW = (vT + 4 + i for i in range(8))
    aP = vT + 12
    a(f"""
    s_lshl_b32 s28, s{sWAVE}, 7
    v_lshlrev_b32 v{aH}, 1, v{vLANE}
    v_add_u32 v{aH}, s28, v{aH}
    v_and_b32 v{aA}, 3, v{vN}
    v_cmp_eq_u32 vcc, 4, v{vN}
    v_mov_b32 v{aG}, 4
    s_lshr_b32 s28, s{sWAVE}, 2
    v_cndmask_b32 v{aA}, v{aA}, v{aG}, vcc           ; row(m)
    v_mul_u32_u24 v{aA}, 1152, v{aA}
    s_mul_i32 s28, s28, {9*64}
    v_lshl_add_u32 v{aA}, v{vG}, 4, v{aA}
    v_add_u32 v{aA}, s28, v{aA}
    s_lshl_b32 s28, s{sWAVE}, 10
    v_lshlrev_b32 v{aG}, 4, v{vLANE}
    v_add_u32 v{aG}, s28, v{aG}
    s_lshl_b32 s28, s{sWAVE}, 8
    v_lshlrev_b32 v{aR}, 4, v{vN}
    v_add_u32 v{aR}, s28, v{aR}                      ; wave*256 + n*16
    v_lshrrev_b32 v{aW}, 2, v{vLANE}                 ; f'
    v_and_b32 v{aF3}, 3, v{vLANE}                    ; b
    s_lshl_b32 s28, s{sWAVE}, 10
    v_lshlrev_b32 v{aF2}, 4, v{aW}
    v_add_u32 v{aF2}, s28, v{aF2}                    ; tile*1024 + f'*16
    v_lshl_add_u32 v{aF1}, v{aF3}, 2, v{aF2}         ; + b*4
    s_lshl_b32 s28, s{sWAVE}, 5
    v_lshlrev_b32 v{aW}, 1, v{aW}
    v_add_u32 v{aW}, s28, v{aW}                      ; (tile*16 + f')*2
    v_lshl_add_u32 v{aW}, v{aF3}, 6, v{aW}           ; + b*64
    v_lshlrev_b32 v{vT}, 4, v{aF3}                   ; b*16
    v_mov_b32 v{vT+1}, 64
    v_and_b32 v{vT+2}, 4, v{vLANE}
    v_cmp_ne_u32 vcc, 0, v{vT+2}
    v_lshrrev_b32 v{vT+2}, 3, v{vLANE}
    v_lshlrev_b32 v{vT+2}, 8, v{vT+2}                ; (l>>3)*256
    v_cndmask_b32 v{vT}, v{vT}, v{vT+1}, vcc
    v_lshl_add_u32 v{aF3}, v{aF3}, 2, v{vT}
    v_add_u32 v{aF3}, v{aF3}, v{vT+2}
    s_mov_b32 s64, 0xf0f0f0f0
    s_mov_b32 s65, 0xf0f0f0f0
    v_lshlrev_b32 v{aP}, 4, v{vLANE}
    s_lshl_b32 s28, s{sWAVE}, 10
    s_add_u32 s28, s28, {WS_HB}
    s_mov_b32 s29, {WS_HB + 8192}
    """)
    HGs = [P + 48 + 8 * k for k in range(3)]
    for k in range(3):
        for r in range(4):
            a(f"v_mov_b32 v{HGs[k]+4+r}, v{vTAG}")
    def h_issue2(k):
        a(f"buffer_load_dwordx4 v[{HGs[k]}:{HGs[k]+3}], v{aP}, s[{sWS}:{sWS+3}], s28 offen sc1")
        a(f"buffer_load_dwordx4 v[{HGs[k]+4}:{HGs[k]+7}], v{aP}, s[{sWS}:{sWS+3}], s29 offen sc1")
    def h_issue1(k):
        a(f"buffer_load_dwordx4 v[{HGs[k]}:{HGs[k]+3}], v{aP}, s[{sWS}:{sWS+3}], s28 offen sc1")
    def h_consume2(k):
        for b in range(4):
            a(f"ds_write_b16_d16_hi v{aH}, v{HGs[k]+b} offset:{L_HB + 1152*b}")
        for b in range(4):
            a(f"ds_write_b16_d16_hi v{aH}, v{HGs[k]+4+b} offset:{L_HB + 1152*b + 1024}")
    def h_consume1(k):
        for b in range(4):
            a(f"ds_write_b16_d16_hi v{aH}, v{HGs[k]+b} offset:{L_HB + 1152*b}")
    a(f"s_cmp_lg_u32 s{sWAVE}, 0\n s_cbranch_scc1 L_h1")
    ppoll(a, "L_hpoll2", ns[2], 2, h_issue2, lambda k: list(range(HGs[k], HGs[k] + 8)), vT + 13, h_consume2, pollsleep, stg,
          probe=((lambda: a(f"buffer_load_dword v{HGs[0]}, v{aP}, s[{sWS}:{sWS+3}], s28 offen sc1")), HGs[0], "1") if probe[2] else None, presleep=presl[2])
    a("s_branch L_h2\n L_h1:")
    ppoll(a, "L_hpoll1", ns[2], 1, h_issue1, lambda k: list(range(HGs[k], HGs[k] + 4)), vT + 13, h_consume1, pollsleep, stg,
          probe=((lambda: a(f"buffer_load_dword v{HGs[0]}, v{aP}, s[{sWS}:{sWS+3}], s28 offen sc1")), HGs[0], "1") if probe[2] else None, presleep=presl[2])
    a("L_h2:")
    stamp(5)
    a("s_waitcnt lgkmcnt(0)\n s_barrier")
    AB = P
    for ks in range(9):
        a(f"ds_read_b128 v[{AB+4*ks}:{AB+4*ks+3}], v{aA} offset:{L_HB + 64*ks}")
    GD = P + 40
    GRm = P + 44
    for ks in range(9):
        a(f"s_waitcnt lgkmcnt({8-ks})")
        c = "0" if ks == 0 else f"v[{GD}:{GD+3}]"
        a(f"v_mfma_f32_16x16x32_bf16 v[{GD}:{GD+3}], v[{AB+4*ks}:{AB+4*ks+3}], v[{BB+4*ks}:{BB+4*ks+3}], {c}")
    a(f"s_and_b32 s28, s{sWAVE}, 3")
    lg = [a.label("L_gr") for _ in range(4)]; lge = a.label("L_gre")
    for t in range(1, 4):
        a(f"s_cmp_eq_u32 s28, {t}\n s_cbranch_scc1 {lg[t]}")
    for t in range(4):
        a(f"{lg[t]}:")
        kss = [t, t + 4] + ([8] if t == 0 else [])
        for i, ks in enumerate(kss):
            c = "0" if i == 0 else f"v[{GRm}:{GRm+3}]"
            a(f"v_mfma_f32_16x16x32_bf16 v[{GRm}:{GRm+3}], v[{AB+4*ks}:{AB+4*ks+3}], v[{AB+4*ks}:{AB+4*ks+3}], {c}")
        if t != 3:
            a(f"s_branch {lge}")
    a(f"""
    {lge}:
    s_nop 2
    ds_write_b128 v{aG}, v[{GD}:{GD+3}] offset:{L_GUF}
    s_nop 6
    s_mov_b64 exec, 0xffff
    ds_write_b128 v{aR}, v[{GRm}:{GRm+3}] offset:{L_GR}
    s_mov_b64 exec, -1
    s_waitcnt lgkmcnt(0)
    s_barrier
    """)
    stamp(6)
    a(f"s_cmp_ge_u32 s{sWAVE}, 2\n s_cbranch_scc1 L_nogelu")
    GE = P
    a(f"""
    ds_read_b32 v{GE+8}, v{aF3} offset:{L_GR}
    ds_read_b32 v{GE}, v{aF1} offset:{L_GUF}
    ds_read_b32 v{GE+1}, v{aF1} offset:{L_GUF+4096}
    ds_read_b32 v{GE+2}, v{aF1} offset:{L_GUF+2048}
    ds_read_b32 v{GE+3}, v{aF1} offset:{L_GUF+2048+4096}
    ds_read_b32 v{GE+4}, v{aF2} offset:{L_GUF+256}
    ds_read_b32 v{GE+5}, v{aF2} offset:{L_GUF+256+4096}
    ds_read_b32 v{GE+6}, v{aF2} offset:{L_GUF+256+2048}
    ds_read_b32 v{GE+7}, v{aF2} offset:{L_GUF+256+2048+4096}
    s_waitcnt lgkmcnt(8)
    """)
    X_, Y_, T_ = GE + 8, GE + 9, GE + 10
    a(f"""
    s_nop 1
    v_add_f32_dpp v{X_}, v{X_}, v{X_} row_ror:8 row_mask:0xf bank_mask:0xf
    """)
    xrow(a, [X_], [T_])
    a(f"""
    s_nop 0
    v_mov_b32_dpp v{Y_}, v{X_} row_ror:4 row_mask:0xf bank_mask:0xf
    s_nop 0
    v_cndmask_b32 v{T_}, v{Y_}, v{X_}, s[64:65]      ; sum
    v_cndmask_b32 v{Y_}, v{X_}, v{Y_}, s[64:65]      ; sumsq
    v_mul_f32 v{T_}, {INV576}, v{T_}                 ; mu
    v_mul_f32 v{Y_}, {INV576}, v{Y_}
    v_fma_f32 v{Y_}, -v{T_}, v{T_}, v{Y_}            ; var
    """)
    rbf(a, [(T_, Y_)], [X_])
    a(f"v_add_f32 v{Y_}, {EPS}, v{Y_}")
    rbf(a, [(Y_, Y_)], [X_])
    a(f"v_sqrt_f32 v{Y_}, v{Y_}\n s_nop 0")
    rbf(a, [(Y_, Y_)], [X_])
    a(f"""
    v_rcp_f32 v{X_}, v{Y_}
    s_waitcnt lgkmcnt(0)
    v_add_f32 v{GE}, v{GE}, v{GE+1}
    v_add_f32 v{GE+2}, v{GE+2}, v{GE+3}
    v_add_f32 v{GE+4}, v{GE+4}, v{GE+5}
    v_add_f32 v{GE+6}, v{GE+6}, v{GE+7}
    v_fma_f32 v{GE}, -v{T_}, v{GE+4}, v{GE}
    v_fma_f32 v{GE+2}, -v{T_}, v{GE+6}, v{GE+2}
    """)
    fdiv(a, GE + 1, GE, X_, Y_, GE + 4)
    fdiv(a, GE + 3, GE + 2, X_, Y_, GE + 5)
    rbf(a, [(GE + 1, GE + 3)], [GE + 4])
    C1, C2 = 0x3d372713, 0x3f4c422a
    TWO_L2E = 0x4038aa3b
    g, t = GE + 1, GE + 4
    a(f"""
    v_mul_f32 v{t}, v{g}, v{g}
    v_mul_f32 v{t}, v{t}, v{g}
    v_mov_b32 v{t+1}, {C1}
    v_fma_f32 v{t}, v{t}, v{t+1}, v{g}
    v_mul_f32 v{t}, {C2}, v{t}
    v_mul_f32 v{t}, {TWO_L2E}, v{t}
    v_exp_f32 v{t}, v{t}
    v_mul_f32 v{t+2}, 0.5, v{g}
    v_add_f32 v{t}, 1.0, v{t}
    v_rcp_f32 v{t}, v{t}
    s_nop 0
    v_fma_f32 v{t}, -2.0, v{t}, 1.0
    v_add_f32 v{t}, 1.0, v{t}
    v_mul_f32 v{g}, v{t+2}, v{t}
    """)
    rbf(a, [(g, g)], [t])
    a(f"""
    v_mul_f32 v{g}, v{g}, v{GE+3}
    v_cvt_pk_bf16_f32 v{t}, v{g}, v{g}
    ds_write_b16 v{aW}, v{t} offset:{L_HF}
    s_waitcnt lgkmcnt(0)
    L_nogelu:
    s_barrier
    """)
    tstamp(14)
    a(f"""
    v_and_b32 v{vT+5}, 3, v{vN}
    v_lshlrev_b32 v{vT+5}, 6, v{vT+5}
    v_lshl_add_u32 v{vT+5}, v{vG}, 4, v{vT+5}
    ds_read_b128 v[{P}:{P+3}], v{vT+5} offset:{L_HF}
    s_mul_i32 s28, s{sW}, 9216
    s_add_u32 s28, s28, {WS_Z}
    s_lshl_b32 s29, s{sWAVE}, 8
    s_add_u32 s28, s28, s29
    v_lshlrev_b32 v{vT+6}, 4, v{vN}
    s_waitcnt lgkmcnt(0)
    """)
    ZD = P + 8
    for i in range(5):
        if i == 4:
            a(f"s_cmp_ge_u32 s{sWAVE}, 4\n s_cbranch_scc1 L_z4")
        a(f"v_mfma_f32_16x16x32_bf16 v[{ZD+4*i}:{ZD+4*i+3}], v[{P}:{P+3}], v[{WDd+4*i}:{WDd+4*i+3}], 0")
    a("L_z4:\n s_nop 7")
    for i in range(5):
        if i == 4:
            a(f"s_cmp_ge_u32 s{sWAVE}, 4\n s_cbranch_scc1 L_fin")
        addtag(a, range(ZD + 4*i, ZD + 4*i + 4))
        a(f"""
        s_mov_b64 exec, 0xffff
        buffer_store_dwordx4 v[{ZD+4*i}:{ZD+4*i+3}], v{vT+6}, s[{sWS}:{sWS+3}], s28 offen offset:{2048*i if i < 2 else 0} sc1
        s_mov_b64 exec, -1
        """ if i < 2 else f"""
        s_add_u32 s29, s28, {2048*i}
        s_mov_b64 exec, 0xffff
        buffer_store_dwordx4 v[{ZD+4*i}:{ZD+4*i+3}], v{vT+6}, s[{sWS}:{sWS+3}], s29 offen sc1
        s_mov_b64 exec, -1
        """)

    tstamp(13)
    a("L_fin:")
    if stamps:
        a("s_waitcnt vmcnt(0)")
        stamp(8)
        a(f"""
        s_lshl_b32 s28, s{sW}, 3
        s_add_u32 s28, s28, s{sWAVE}
        s_lshl_b32 s28, s28, 6
        s_add_u32 s28, s28, {WS_STAMP}
        v_mov_b32 v{vT}, 0
        s_mov_b64 exec, 1
        """)
        for i in range(0, NSTAMP, 4):
            for r in range(4):
                a(f"v_mov_b32 v{vT+2+r}, s{sST+i+r}")
            a(f"buffer_store_dwordx4 v[{vT+2}:{vT+5}], v{vT}, s[{sWS}:{sWS+3}], s28 offen offset:{4*i}")
            a("s_nop 1")
        a("s_waitcnt vmcnt(0)")
    a("L_end:\n s_endpgm\n L_code_end:")

    hdr = HEADER + f"; @launch grid=(256,1,1) block=(512,1,1) lds={LDS_BYTES}\n"
    hdr += '.amdgcn_target "amdgcn-amd-amdhsa--gfx950"\n.text\n'
    return hdr + kernel_begin(KNAME) + a.text() + kernel_desc(KNAME, 256, 96, 256)


HEADER = """; Fused pre-LN MHA decode (KV cache) + pre-LN GEGLU MLP, one persistent launch of 256 workgroups (one per CU).
"""

if __name__ == "__main__":
    import sys
    kw = eval(sys.argv[2]) if len(sys.argv) > 2 else {}
    open(sys.argv[1], "w").write(gen(**kw))
```

```python
import sys
sys.path.insert(0,'tools')
import gen_main as G
hdr = open('sequential_preLN__mha_block_cached__glu_gated_geglu__decode.s.ref').read().split('\n')
lay = [l for l in hdr if l.startswith(';') and '@launch' not in l and 'Override' not in l and 'grid=ceil' not in l]
G.HEADER = "\n".join(lay[:14]) + "\n" + G.HEADER
kw = eval(sys.argv[1]) if len(sys.argv) > 1 else {}
out = sys.argv[2] if len(sys.argv) > 2 else 'sequential_preLN__mha_block_cached__glu_gated_geglu__decode.s'
open(out,'w').write(G.gen(**kw))
```

```python
from asmlib import *

WS_E    = 0x0
WS_QP   = 0x10000
WS_AP   = 0xA0000
WS_Y    = 0xD0000
WS_HB   = 0x120000
WS_Z    = 0x130000
WS_STAMP= 0x300000
WS_SIZE = 0x400000

L_XD = 0
L_QB = L_XD + 9216
L_MRG = L_QB + 256
L_ML = L_MRG + 4096
L_OB = L_ML + 64
L_HB = L_OB + 1024
L_GUF = L_HB + 5760
L_GR = L_GUF + 8192
L_HF = L_GR + 2048
L_SMALL_END = L_HF + 256
L_WG = 32768
L_WU = L_WG + 36864
L_WD = L_WU + 36864
L_END = L_WD + 36864
assert L_SMALL_END <= L_WG
LDS_BYTES = 143360
assert L_END <= LDS_BYTES, L_END

LOG2E = 0x3fb8aa3b
SCALE = 0x3db504f3
INV576 = 0x3ae38e39
EPS = 0x3727c5ac

sWAVE = 3
sK, sV, sWS, sT, sU = 8, 12, 16, 20, 24
pX, pK, pV, pWQ, pWO, pBX, pWG, pWU = 32, 34, 36, 38, 40, 42, 44, 46
pWD, pOUT, pDBG, pWSP = 48, 50, 52, 54
sE, sW, sB, sH, sJ, sTO, sKV, sIT = 56, 57, 58, 59, 60, 61, 62, 63
sROW = 64
sOFF = 67
sL2E, sSCALE, sHI = 68, 69, 70
sCNT = 71
sDRY, sOUTN = 94, 95
sROLE, sIDX, sSLICE, sNT, sROT = 96, 97, 98, 99, 100
sST = 74
NSTAMP = 16
vLANE, vN, vG, vOFFK, vOFFV = 0, 1, 2, 3, 4
vMASK = 5
vM, vL = 9, 10
vO = 12
vS = 16
vQ = 20
vTAG, vFF = 36, 37
vT = 38
vSTG = 64
vWQ = 192
vP = 172
vPP = 204


def srd(a, s, ptr, nbytes):
    a(f"""
    s_mov_b32 s{s}, s{ptr}
    s_and_b32 s{s+1}, s{ptr+1}, 0xffff
    s_mov_b32 s{s+2}, {nbytes}
    s_mov_b32 s{s+3}, 0x00020000
    """)


def row16(a, regs, op="add", ctrls=("quad_perm:[1,0,3,2]", "quad_perm:[2,3,0,1]", "row_half_mirror", "row_mirror")):
    ins = "v_add_f32" if op == "add" else "v_max_f32"
    n = len(regs)
    a("s_nop 1")
    for ctrl in ctrls:
        for r in regs:
            a(f"{ins}_dpp v{r}, v{r}, v{r} {ctrl} row_mask:0xf bank_mask:0xf")
        if n < 3:
            a(f"s_nop {2 - n}")


def xrow(a, regs, tmp, op="add", only32=False):
    ins = "v_add_f32" if op == "add" else "v_max_f32"
    sws = ("v_permlane16_swap_b32", "v_permlane32_swap_b32")
    if only32:
        sws = sws[1:]
    for sw in sws:
        for r, t in zip(regs, tmp):
            a(f"v_mov_b32 v{t}, v{r}")
        a("s_nop 1")
        for r, t in zip(regs, tmp):
            a(f"{sw} v{r}, v{t}")
        a("s_nop 1")
        for r, t in zip(regs, tmp):
            a(f"{ins} v{r}, v{r}, v{t}")


def wavesum(a, regs, tmp, op="add"):
    row16(a, regs, op)
    xrow(a, regs, tmp, op)


def rbf(a, pairs, t):
    for (x, y), tt in zip(pairs, t):
        a(f"v_cvt_pk_bf16_f32 v{tt}, v{x}, v{y}")
    for (x, y), tt in zip(pairs, t):
        a(f"v_lshlrev_b32 v{x}, 16, v{tt}")
        if y != x:
            a(f"v_and_b32 v{y}, s{sHI}, v{tt}")


def tagcheck(a, regs, acc, retry):
    a(f"v_xor_b32 v{acc}, v{regs[0]}, v{vTAG}")
    for r in regs[1:]:
        a(f"v_bitop3_b32 v{acc}, v{acc}, v{r}, v{vTAG} bitop3:0xf6")
    a(f"v_and_b32 v{acc}, v{acc}, v{vFF}")
    a(f"v_cmp_ne_u32 vcc, 0, v{acc}")
    a(f"s_cbranch_vccnz {retry}")


def addtag(a, regs):
    for r in regs:
        a(f"v_bfi_b32 v{r}, v{vFF}, v{vTAG}, v{r}")


def poll_head(a, name, bail="L_end"):
    a(f"{name}:")
    a(f"s_sub_u32 s{sTO}, s{sTO}, 1")
    a(f"s_cbranch_scc1 {bail}")


def ppoll(a, name, nsets, nloads, issue, regs, acc, consume, sleep=0, stagger=0, probe=None, presleep=0):
    a(f"s_cmp_eq_u32 s{sDRY}, 1\n s_cbranch_scc1 {name}_ok0")
    if presleep:
        n = presleep
        while n > 0:
            a(f"s_sleep {min(n, 100)}")
            n -= 100
    if probe:
        emit, preg, mask = probe
        a(f"s_mov_b64 exec, {mask}")
        a(f"{name}_probe:")
        a(f"s_sub_u32 s{sTO}, s{sTO}, 1")
        a(f"s_cbranch_scc1 L_end")
        emit()
        a("s_waitcnt vmcnt(0)")
        a(f"v_xor_b32 v{acc}, v{preg}, v{vTAG}")
        a(f"v_and_b32 v{acc}, v{acc}, v{vFF}")
        a(f"v_cmp_ne_u32 vcc, 0, v{acc}")
        a(f"s_cbranch_vccnz {name}_probe")
        a("s_mov_b64 exec, -1")
    for k in range(nsets):
        issue(k)
        if stagger and k != nsets - 1:
            a(f"s_sleep {stagger}")
    a(f"{name}:")
    a(f"s_sub_u32 s{sTO}, s{sTO}, 1")
    a(f"s_cbranch_scc1 L_end")
    for k in range(nsets):
        a(f"s_waitcnt vmcnt({(nsets-1)*nloads})")
        r = regs(k)
        a(f"v_xor_b32 v{acc}, v{r[0]}, v{vTAG}")
        for x in r[1:]:
            a(f"v_bitop3_b32 v{acc}, v{acc}, v{x}, v{vTAG} bitop3:0xf6")
        a(f"v_and_b32 v{acc}, v{acc}, v{vFF}")
        a(f"v_cmp_ne_u32 vcc, 0, v{acc}")
        a(f"s_cbranch_vccz {name}_ok{k}")
        if sleep:
            a(f"s_sleep {sleep}")
        issue(k)
    a(f"s_branch {name}")
    for k in range(nsets):
        a(f"{name}_ok{k}:")
        consume(k)
        if k != nsets - 1:
            a(f"s_branch {name}_done")
    a(f"{name}_done:")


def fdiv(a, out, num, den_rcp, den, t):
    a(f"v_mul_f32 v{out}, v{num}, v{den_rcp}")
    a(f"v_fma_f32 v{t}, -v{out}, v{den}, v{num}")
    a(f"v_fma_f32 v{out}, v{t}, v{den_rcp}, v{out}")


def gen(D=3, stamps=False, stop=None, kvflags="nt", wflags="nt", late_w=False, pollsleep=0, codepf=True, xflags="nt", cyc=False, pre=(0, 1, 3, 0), no_w=False, no_compute=False, no_q=False, early='', wo_late=False, gate=False, bare=False, tailst=False, ns=(1, 1, 1, 1), stg=0, probe=(0, 0, 0, 0), presl=(0, 0, 0, 0), dry=False, shift=3, rotw=True):
    a = Asm()
    NT = 32
    KV_OOB = 0x10000000
    P = vPP

    def tstamp(idx):
        if tailst:
            stamp(idx, True)

    def stamp(idx, force=False):
        if tailst and idx in (9, 10, 11, 12, 13, 14) and not force:
            return
        if stamps:
            ins = "s_memtime" if cyc else "s_memrealtime"
            a(f"{ins} s[90:91]\n s_waitcnt lgkmcnt(0)\n s_mov_b32 s{sST+idx}, s90")

    def psleep():
        if pollsleep:
            a(f"s_sleep {pollsleep}")

    def code_prefetch(nwaves, lo, hi, tmp):
        a(f"""
        s_getpc_b64 s[92:93]
        {a.label("L_pc")}:
        """)
        lab = a.L[-1].strip()[:-1]
        a(f"""
        s_add_u32 s92, s92, {lo}-{lab}
        s_addc_u32 s93, s93, {-1 if lo == "L_code0" else 0}
        s_lshl_b32 s28, s{sWAVE}, 10
        v_lshlrev_b32 v{tmp+4}, 4, v{vLANE}
        v_add_u32 v{tmp+4}, s28, v{tmp+4}
        s_mov_b32 s29, {hi}-{lo}-16
        """)
        for i in range(NPF[(lo, hi)]):
            a(f"v_min_u32 v{tmp+5}, s29, v{tmp+4}")
            a(f"global_load_dwordx4 v[{tmp}:{tmp+3}], v{tmp+5}, s[92:93]")
            a(f"v_add_u32 v{tmp+4}, {1024*nwaves}, v{tmp+4}")
    NPF = {("L_code0", "L_code_end"): 2, ("L_tail0", "L_code_end"): 2}
    a(f"""
    L_code0:
    s_cmp_ge_u32 s2, 256
    s_cbranch_scc1 L_end
    s_load_dwordx16 s[32:47], s[0:1], 0
    s_load_dwordx8 s[48:55], s[0:1], 64
    v_lshrrev_b32 v{P}, 6, v0
    v_and_b32 v{vLANE}, 63, v0
    v_readfirstlane_b32 s{sWAVE}, v{P}
    v_and_b32 v{vN}, 15, v{vLANE}
    v_lshrrev_b32 v{vG}, 4, v{vLANE}
    v_lshlrev_b32 v{vOFFK}, 8, v{vN}
    v_lshl_add_u32 v{vOFFK}, v{vG}, 4, v{vOFFK}
    v_lshlrev_b32 v{vOFFV}, 10, v{vG}
    v_lshl_add_u32 v{vOFFV}, v{vN}, 4, v{vOFFV}
    s_mov_b32 s{sW}, s2
    s_lshr_b32 s{sB}, s2, 6
    s_lshr_b32 s{sH}, s2, 1
    s_and_b32 s{sH}, s{sH}, 31
    s_and_b32 s28, s2, 1
    s_lshl_b32 s{sJ}, s{sB}, 1
    s_add_u32 s{sJ}, s{sJ}, s28
    s_mov_b32 s{sTO}, 200000
    s_lshr_b32 s29, s2, 1                  ; P
    s_mov_b32 s{sIDX}, s29
    s_cmp_lt_u32 s29, 96
    s_cselect_b32 s{sROLE}, 1, 2
    s_cselect_b32 s30, {shift}, 0
    s_cmp_eq_u32 s28, 1
    s_cselect_b32 s{sROLE}, 0, s{sROLE}
    s_lshr_b32 s31, s29, 3
    s_lshl_b32 s31, s31, 2
    s_and_b32 s4, s29, 3
    s_add_u32 s31, s31, s4
    s_lshl_b32 s31, s31, 1
    s_bfe_u32 s4, s29, 0x10002
    s_add_u32 s{sSLICE}, s31, s4
    s_cmp_lt_u32 s2, 224
    s_cbranch_scc1 L_role_done
    s_mov_b32 s{sROLE}, 0
    s_sub_u32 s4, s2, 224                  ; p'
    s_add_u32 s{sIDX}, s4, 112
    s_lshr_b32 s31, s4, 4
    s_lshl_b32 s31, s31, 3
    s_and_b32 s5, s4, 7
    s_add_u32 s31, s31, s5
    s_lshl_b32 s31, s31, 1
    s_bfe_u32 s5, s4, 0x10003
    s_add_u32 s31, s31, s5
    s_add_u32 s{sSLICE}, s31, 112
    L_role_done:
    s_sub_u32 s30, 256, s30
    s_cmp_eq_u32 s28, 1
    s_cselect_b32 s4, s30, 0               ; t0
    s_cselect_b32 s5, 512, s30             ; t1
    s_mov_b32 s{sL2E}, {LOG2E}
    s_mov_b32 s{sSCALE}, {SCALE}
    s_mov_b32 s{sHI}, 0xffff0000
    s_mov_b32 s{sDRY}, 0
    s_mov_b32 s{sOUTN}, 4608
    """)
    if stamps:
        for i in range(NSTAMP):
            a(f"s_mov_b32 s{sST+i}, 0")
    stamp(0)
    if codepf:
        code_prefetch(8, "L_code0", "L_code_end", vPP + 44)
    a("s_waitcnt lgkmcnt(0)")
    stamp(9)
    a(f"s_load_dword s{sE}, s[{pWSP}:{pWSP+1}], 0")
    srd(a, sK, pK, 0x10000000)
    srd(a, sV, pV, 0x10000000)
    srd(a, sWS, pWSP, WS_SIZE)
    srd(a, sT, pX, 4608)
    srd(a, sU, pWQ, 576 * 8192)
    X = P
    a(f"""
    s_cmp_ge_u32 s{sWAVE}, 4
    s_cbranch_scc1 L_nox
    v_lshlrev_b32 v{vT}, 1, v{vLANE}
    s_mul_i32 s28, s{sWAVE}, 1152
    """)
    for i in range(9):
        a(f"buffer_load_ushort v{X+i}, v{vT}, s[{sT}:{sT+3}], s28 offen offset:{128*i} {xflags}")
    a("L_nox:")
    a(f"""
    v_lshlrev_b32 v{vT+1}, 13, v{vG}
    v_lshl_add_u32 v{vT+1}, v{vN}, 4, v{vT+1}        ; g*8192 + c*16
    """)
    for u in range(3):
        a(f"""
        s_add_u32 s29, s{sWAVE}, {8*u}
        s_lshl_b32 s30, s29, 2
        s_mul_i32 s28, s{sJ}, 72
        s_add_u32 s30, s30, s28
        s_mov_b32 s{sROW+u}, s30
        s_lshl_b32 s30, s30, 13
        s_lshl_b32 s31, s{sH}, 8
        s_add_u32 s30, s30, s31
        s_cmp_ge_u32 s29, 18
        s_cselect_b32 s30, {576*8192}, s30
        s_cselect_b32 s{sROW+u}, s28, s{sROW+u}
        buffer_load_dwordx4 v[{vWQ+4*u}:{vWQ+4*u+3}], v{vT+1}, s[{sU}:{sU+3}], s30 offen {wflags}
        """)
    a(f"""
    s_lshr_b32 s{sKV}, s{sW}, 1
    s_lshl_b32 s{sKV}, s{sKV}, 21
    s_lshl_b32 s28, s4, 12
    s_add_u32 s{sKV}, s{sKV}, s28
    s_sub_u32 s29, s5, s4                  ; L
    s_lshr_b32 s{sNT}, s29, 3
    s_and_b32 s29, s29, 7                  ; remainder
    {'s_add_u32 s28, s%d, s%d' % (sNT, sWAVE) if rotw else 's_mov_b32 s28, s%d' % sWAVE}
    s_and_b32 s28, s28, 7
    s_cmp_lt_u32 s28, s29
    s_addc_u32 s{sNT}, s{sNT}, 0
    s_mov_b32 s{sIT}, 0
    """)

    def kloads(s):
        r = vSTG + 32 * s
        for j in range(4):
            a(f"buffer_load_dwordx4 v[{r+4*j}:{r+4*j+3}], v{vOFFK}, s[{sK}:{sK+3}], s{sOFF} offen offset:{64*j} {kvflags}")

    def vloads(s):
        r = vSTG + 32 * s + 16
        for j in range(4):
            a(f"buffer_load_dwordx4 v[{r+4*j}:{r+4*j+3}], v{vOFFV}, s[{sV}:{sV+3}], s{sOFF} offen offset:{256*j} {kvflags}")

    def nextoff():
        if rotw:
            a(f"""
            s_add_u32 s{sOFF}, s{sIT}, s{sWAVE}
            s_and_b32 s{sOFF}, s{sOFF}, 7
            s_lshl_b32 s{sOFF}, s{sOFF}, 12
            s_add_u32 s{sOFF}, s{sOFF}, s{sKV}
            """)
        else:
            a(f"""
            s_lshl_b32 s{sOFF}, s{sWAVE}, 12
            s_add_u32 s{sOFF}, s{sOFF}, s{sKV}
            """)
        a(f"""
        s_cmp_ge_u32 s{sIT}, s{sNT}
        s_cselect_b32 s{sOFF}, {KV_OOB}, s{sOFF}
        s_add_u32 s{sKV}, s{sKV}, 32768
        s_add_u32 s{sIT}, s{sIT}, 1
        """)

    def prefetch(lo=0, hi=D):
        for s in range(lo, hi):
            nextoff(); kloads(s); vloads(s)

    a0, a1, b0, b1 = pre

    def by_class(fa, fb, f7=None):
        la, lb, le = a.label("L_cA"), a.label("L_cB"), a.label("L_cE")
        a(f"s_cmp_lt_u32 s{sWAVE}, 4\n s_cbranch_scc1 {la}")
        a(f"s_cmp_lt_u32 s{sWAVE}, 7\n s_cbranch_scc1 {lb}")
        if f7: f7()
        a(f"s_branch {le}\n {la}:")
        fa()
        a(f"s_branch {le}\n {lb}:")
        fb()
        a(f"{le}:")

    if bare:
        prefetch(0, D)
        a("s_branch L_bare")
    by_class(lambda: prefetch(0, a0), lambda: prefetch(0, b0))
    t0, t1, t2 = vT + 2, vT + 3, vT + 4
    a(f"""
    v_and_b32 v{t0}, 7, v{vN}
    v_and_b32 v{t1}, 1, v{t0}
    v_lshlrev_b32 v{t1}, 4, v{t1}
    v_mov_b32 v{t2}, 0xffff
    v_lshlrev_b32 v{t1}, v{t1}, v{t2}
    v_lshrrev_b32 v{t0}, 1, v{t0}
    v_mov_b32 v{vFF}, 0xff
    """)
    for d in range(4):
        a(f"v_cmp_eq_u32 vcc, {d}, v{t0}\n s_nop 1\n v_cndmask_b32 v{vMASK+d}, 0, v{t1}, vcc")
    a(f"""
    s_waitcnt lgkmcnt(0)
    s_add_u32 s{sE}, s{sE}, 1
    s_and_b32 s28, s{sE}, 0xff
    v_mov_b32 v{vTAG}, s28
    """)
    Dv = P + 10
    A0, A1, A2, A3, A4, A5 = (P + 20 + i for i in range(6))
    a(f"""
    s_cmp_ge_u32 s{sWAVE}, 4
    s_cbranch_scc1 L_noln
    s_waitcnt vmcnt({3 + 8*a0})
    """)
    stamp(10)
    for i in range(9):
        a(f"v_lshlrev_b32 v{X+i}, 16, v{X+i}")
    a(f"v_add_f32 v{A0}, v{X}, v{X+1}")
    for i in range(2, 9):
        a(f"v_add_f32 v{A0}, v{A0}, v{X+i}")
    wavesum(a, [A0], [A1])
    a(f"v_mul_f32 v{A0}, {INV576}, v{A0}")
    for i in range(9):
        a(f"v_sub_f32 v{Dv+i}, v{X+i}, v{A0}")
    a(f"v_mul_f32 v{A2}, v{Dv}, v{Dv}")
    for i in range(1, 9):
        a(f"v_fmac_f32 v{A2}, v{Dv+i}, v{Dv+i}")
    wavesum(a, [A2], [A1])
    a(f"v_mul_f32 v{A2}, {INV576}, v{A2}")
    rbf(a, [(A0, A2)], [A1])
    a(f"v_add_f32 v{A2}, {EPS}, v{A2}")
    rbf(a, [(A2, A2)], [A1])
    a(f"v_sqrt_f32 v{A2}, v{A2}\n s_nop 0")
    rbf(a, [(A2, A2)], [A1])
    a(f"v_rcp_f32 v{A3}, v{A2}")
    for i in range(9):
        a(f"v_sub_f32 v{Dv+i}, v{X+i}, v{A0}")
    rbf(a, [(Dv, Dv+1), (Dv+2, Dv+3), (Dv+4, Dv+5), (Dv+6, Dv+7), (Dv+8, Dv+8)], [X, X+1, X+2, X+3, X+4])
    for i in range(9):
        fdiv(a, X + i, Dv + i, A3, A2, A4)
    for i in range(9):
        a(f"v_cvt_pk_bf16_f32 v{X+i}, v{X+i}, v{X+i}")
    a(f"""
    s_mul_i32 s28, s{sWAVE}, {576*4}
    v_lshlrev_b32 v{A4}, 2, v{vLANE}
    v_add_u32 v{A4}, s28, v{A4}
    """)
    for i in range(9):
        a(f"ds_write_b32 v{A4}, v{X+i} offset:{L_XD + 256*i}")
    a("L_noln:")
    a("s_waitcnt lgkmcnt(0)\n s_barrier")
    stamp(11)
    AX = P
    AO = P + 8
    QA = P + 12
    a(f"""
    v_lshrrev_b32 v{vT}, 3, v{vN}                 ; m>>3
    v_mul_u32_u24 v{vT}, 576, v{vT}
    v_add_u32 v{vT}, v{vT}, v{vG}
    v_lshlrev_b32 v{vT}, 2, v{vT}                 ; ((m>>3)*576 + g)*4
    """)
    for u in range(3):
        a(f"""
        s_lshl_b32 s28, s{sROW+u}, 2
        v_add_u32 v{vT+1}, s28, v{vT}
        ds_read_b32 v{AX+2*u}, v{vT+1} offset:{L_XD}
        ds_read_b32 v{AX+2*u+1}, v{vT+1} offset:{L_XD + 2*576*4}
        """)
    by_class(lambda: a(f"s_waitcnt vmcnt({8*a0})"), lambda: a(f"s_waitcnt vmcnt({8*b0})"), lambda: a("s_waitcnt vmcnt(0)"))
    a("s_waitcnt lgkmcnt(0)")
    stamp(12)
    for u in range(3):
        for pp in range(2):
            for d in range(4):
                a(f"v_and_b32 v{AO+d}, v{AX+2*u+pp}, v{vMASK+d}")
            a("s_nop 1")
            c = "0" if u == 0 else f"v[{QA+4*pp}:{QA+4*pp+3}]"
            a(f"v_mfma_f32_16x16x32_bf16 v[{QA+4*pp}:{QA+4*pp+3}], v[{AO}:{AO+3}], v[{vWQ+4*u}:{vWQ+4*u+3}], {c}")
            a("s_nop 1")
    a(f"""
    v_lshrrev_b32 v{vT}, 1, v{vG}
    v_lshlrev_b32 v{vT}, 9, v{vT}
    v_lshl_add_u32 v{vT}, v{vN}, 5, v{vT}
    v_and_b32 v{vT+1}, 1, v{vG}
    v_lshl_add_u32 v{vT}, v{vT+1}, 4, v{vT}
    s_nop 7
    """)
    a(f"s_lshl_b32 s28, s{sWAVE}, 11\n s_add_u32 s28, s28, {L_WG}\n v_add_u32 v{vT}, s28, v{vT}")
    for pp in range(2):
        a(f"ds_write_b128 v{vT}, v[{QA+4*pp}:{QA+4*pp+3}] offset:{pp*1024}")
    a("s_waitcnt lgkmcnt(0)\n s_barrier")
    stamp(13)
    by_class(lambda: prefetch(a0, a0 + a1), lambda: prefetch(b0, b0 + b1))
    G0 = P
    a(f"""
    s_cmp_lg_u32 s{sWAVE}, 7
    s_cbranch_scc1 L_qwait
    v_lshlrev_b32 v{vT}, 4, v{vLANE}
    v_add_u32 v{vT+1}, {L_WG}, v{vT}
    """)
    for half in range(2):
        base = G0 + 8 if half == 0 else G0 + 8
        for w in range(8):
            dst = (G0 + 4*half) if w == 0 else (G0 + 8 + 4*(w-1))
            a(f"ds_read_b128 v[{dst}:{dst+3}], v{vT+1} offset:{2048*w + 1024*half}")
        a("s_waitcnt lgkmcnt(0)")
        for w in range(1, 8):
            for r in range(4):
                a(f"v_add_f32 v{G0+4*half+r}, v{G0+4*half+r}, v{G0+8+4*(w-1)+r}")
    a(f"""
    s_lshl_b32 s28, s{sH}, 3
    s_add_u32 s28, s28, s{sJ}
    s_lshl_b32 s28, s28, 11
    s_add_u32 s28, s28, {WS_QP}
    """)
    addtag(a, range(G0, G0 + 8))
    a(f"""
    buffer_store_dwordx4 v[{G0}:{G0+3}], v{vT}, s[{sWS}:{sWS+3}], s28 offen sc1
    buffer_store_dwordx4 v[{G0+4}:{G0+7}], v{vT}, s[{sWS}:{sWS+3}], s28 offen offset:1024 sc1
    v_lshrrev_b32 v{vT+1}, 5, v{vLANE}
    v_lshlrev_b32 v{vT+1}, 11, v{vT+1}
    v_and_b32 v{vT+2}, 31, v{vLANE}
    v_lshl_add_u32 v{vT+1}, v{vT+2}, 4, v{vT+1}      ; jj*2048 + c4*16
    s_lshl_b32 s28, s{sH}, 14
    s_lshl_b32 s29, s{sB}, 9
    s_add_u32 s28, s28, s29
    s_add_u32 s28, s28, {WS_QP}
    s_add_u32 s29, s28, 4096
    s_add_u32 s30, s28, 8192
    s_add_u32 s31, s28, 12288
    s_nop 1
    """)
    G1 = P + 8
    poll_head(a, "L_qpoll")
    psleep()
    for i in range(4):
        a(f"buffer_load_dwordx4 v[{G1+4*i}:{G1+4*i+3}], v{vT+1}, s[{sWS}:{sWS+3}], s{28+i} offen sc1")
    a("s_waitcnt vmcnt(0)")
    if not no_q:
        tagcheck(a, list(range(G1, G1 + 16)), vT + 3, "L_qpoll")
    stamp(14)
    for r in range(4):
        a(f"v_add_f32 v{G1+r}, v{G1+r}, v{G1+4+r}")
        a(f"v_add_f32 v{G1+8+r}, v{G1+8+r}, v{G1+12+r}")
    for r in range(4):
        a(f"v_add_f32 v{G1+r}, v{G1+r}, v{G1+8+r}")
    xrow(a, [G1, G1+1, G1+2, G1+3], [G1+4, G1+5, G1+6, G1+7], only32=True)
    a(f"""
    v_cvt_pk_bf16_f32 v{G1+8}, v{G1}, v{G1+1}
    v_cvt_pk_bf16_f32 v{G1+9}, v{G1+2}, v{G1+3}
    v_lshlrev_b32 v{vT+2}, 3, v{vT+2}
    ds_write_b64 v{vT+2}, v[{G1+8}:{G1+9}] offset:{L_QB}
    """)
    a(f"""
    s_waitcnt lgkmcnt(0)
    L_qwait:
    s_barrier
    """)
    by_class(lambda: prefetch(a0 + a1, D), lambda: prefetch(b0 + b1, D), lambda: prefetch(0, D))
    a(f"v_lshlrev_b32 v{vT}, 4, v{vG}")
    a("L_bare:")
    for j in range(4):
        a(f"ds_read_b128 v[{vQ+4*j}:{vQ+4*j+3}], v{vT} offset:{L_QB + 64*j}")
    a(f"""
    v_mov_b32 v{vM}, 0xff800000
    v_mov_b32 v{vL}, 0
    v_mov_b32 v{vO}, 0
    v_mov_b32 v{vO+1}, 0
    v_mov_b32 v{vO+2}, 0
    v_mov_b32 v{vO+3}, 0
    s_mov_b32 s{sCNT}, s{sNT}
    s_waitcnt lgkmcnt(0)
    """)
    stamp(1)
    if stop == "q":
        a("s_branch L_fin")

    P = vP
    s0, s1, s2, s3 = vT, vT + 1, vT + 2, vT + 3
    u0, u1 = vT + 4, vT + 5
    mx, mt, al, nm = vT + 6, vT + 7, vT + 8, vT + 9
    pk = vT + 10
    Aop = vT + 14
    assert Aop % 2 == 0
    a("L_loop:")
    for s in range(D):
        kb = vSTG + 32 * s
        vb = kb + 16
        a(f"s_waitcnt vmcnt({8*(D-1)+4})")
        for j in range(4):
            c = "0" if j == 0 else f"v[{vS}:{vS+3}]"
            a(f"v_mfma_f32_16x16x32_bf16 v[{vS}:{vS+3}], v[{kb+4*j}:{kb+4*j+3}], v[{vQ+4*j}:{vQ+4*j+3}], {c}")
        nextoff()
        kloads(s)
        a("s_nop 3")
        if no_compute:
            a(f"s_waitcnt vmcnt({8*(D-1)+4})")
            vloads(s)
            a(f"""
            s_sub_u32 s{sCNT}, s{sCNT}, 1
            s_cmp_eq_u32 s{sCNT}, 0
            s_cbranch_scc1 L_loop_end
            """)
            continue
        a(f"""
        v_cvt_pk_bf16_f32 v{u0}, v{vS}, v{vS+1}
        v_cvt_pk_bf16_f32 v{u1}, v{vS+2}, v{vS+3}
        v_lshlrev_b32 v{s0}, 16, v{u0}
        v_and_b32 v{s1}, s{sHI}, v{u0}
        v_lshlrev_b32 v{s2}, 16, v{u1}
        v_and_b32 v{s3}, s{sHI}, v{u1}
        v_mul_f32 v{s0}, s{sSCALE}, v{s0}
        v_mul_f32 v{s1}, s{sSCALE}, v{s1}
        v_mul_f32 v{s2}, s{sSCALE}, v{s2}
        v_mul_f32 v{s3}, s{sSCALE}, v{s3}
        v_cvt_pk_bf16_f32 v{u0}, v{s0}, v{s1}
        v_cvt_pk_bf16_f32 v{u1}, v{s2}, v{s3}
        v_lshlrev_b32 v{s0}, 16, v{u0}
        v_and_b32 v{s1}, s{sHI}, v{u0}
        v_lshlrev_b32 v{s2}, 16, v{u1}
        v_and_b32 v{s3}, s{sHI}, v{u1}
        v_max3_f32 v{mx}, v{s0}, v{s1}, v{s2}
        v_max3_f32 v{mx}, v{mx}, v{s3}, v{vM}
        v_mov_b32 v{mt}, v{mx}
        s_nop 1
        v_permlane16_swap_b32 v{mx}, v{mt}
        s_nop 1
        v_max_f32 v{mx}, v{mx}, v{mt}
        v_mov_b32 v{mt}, v{mx}
        s_nop 1
        v_permlane32_swap_b32 v{mx}, v{mt}
        s_nop 1
        v_max_f32 v{mx}, v{mx}, v{mt}
        v_sub_f32 v{al}, v{vM}, v{mx}
        v_mul_f32 v{nm}, s{sL2E}, v{mx}
        v_mul_f32 v{al}, s{sL2E}, v{al}
        v_fma_f32 v{s0}, v{s0}, s{sL2E}, -v{nm}
        v_fma_f32 v{s1}, v{s1}, s{sL2E}, -v{nm}
        v_fma_f32 v{s2}, v{s2}, s{sL2E}, -v{nm}
        v_fma_f32 v{s3}, v{s3}, s{sL2E}, -v{nm}
        v_exp_f32 v{al}, v{al}
        v_exp_f32 v{s0}, v{s0}
        v_exp_f32 v{s1}, v{s1}
        v_exp_f32 v{s2}, v{s2}
        v_exp_f32 v{s3}, v{s3}
        v_mov_b32 v{vM}, v{mx}
        v_mul_f32 v{vO}, v{vO}, v{al}
        v_mul_f32 v{vO+1}, v{vO+1}, v{al}
        v_mul_f32 v{vO+2}, v{vO+2}, v{al}
        v_mul_f32 v{vO+3}, v{vO+3}, v{al}
        v_cvt_pk_bf16_f32 v{pk}, v{s0}, v{s0}
        v_cvt_pk_bf16_f32 v{pk+1}, v{s1}, v{s1}
        v_cvt_pk_bf16_f32 v{pk+2}, v{s2}, v{s2}
        v_cvt_pk_bf16_f32 v{pk+3}, v{s3}, v{s3}
        v_fma_f32 v{vL}, v{vL}, v{al}, v{s0}
        v_add_f32 v{s1}, v{s1}, v{s2}
        v_add_f32 v{vL}, v{vL}, v{s3}
        v_add_f32 v{vL}, v{vL}, v{s1}
        s_waitcnt vmcnt({8*(D-1)+4})
        """)
        for r in range(4):
            ao = Aop + 4 * (r & 1)
            for d in range(4):
                a(f"v_and_b32 v{ao+d}, v{pk+r}, v{vMASK+d}")
            a("s_nop 1")
            a(f"v_mfma_f32_16x16x32_bf16 v[{vO}:{vO+3}], v[{ao}:{ao+3}], v[{vb+4*r}:{vb+4*r+3}], v[{vO}:{vO+3}]")
        vloads(s)
        a(f"""
        s_sub_u32 s{sCNT}, s{sCNT}, 1
        s_cmp_eq_u32 s{sCNT}, 0
        s_cbranch_scc1 L_loop_end
        """)
    a("s_branch L_loop\n L_loop_end:")
    stamp(2)
    xrow(a, [vL], [vT])
    a(f"""
    s_nop 7
    v_lshlrev_b32 v{vT}, 5, v{vN}                 ; c*32
    v_and_b32 v{vT+1}, 1, v{vG}
    v_lshl_add_u32 v{vT}, v{vT+1}, 4, v{vT}       ; + (g&1)*16
    s_lshl_b32 s28, s{sWAVE}, 9
    v_add_u32 v{vT}, s28, v{vT}
    ds_write_b128 v{vT}, v[{vO}:{vO+3}] offset:{L_MRG}
    s_lshl_b32 s28, s{sWAVE}, 3
    v_mov_b32 v{vT+2}, s28
    v_mov_b32 v{vT+4}, v{vM}
    v_mov_b32 v{vT+5}, v{vL}
    ds_write_b64 v{vT+2}, v[{vT+4}:{vT+5}] offset:{L_ML}
    """)

    def slice_idx():
        a(f"""
        s_mov_b32 s29, s{sSLICE}
        v_lshrrev_b32 v{vT}, 2, v{vLANE}
        v_mul_u32_u24 v{vT}, 9216, v{vT}
        v_and_b32 v{vT+1}, 3, v{vLANE}
        v_lshl_add_u32 v{vT}, v{vT+1}, 4, v{vT}
        v_lshlrev_b32 v{vT+1}, 4, v{vLANE}
        """)

    def dma_mat(which, sq):
        cnt = 9
        if which in "gu":
            ptr, lds0 = (pWG, L_WG) if which == "g" else (pWU, L_WU)
            srd(a, sT, ptr, 576 * 9216)
            a(f"""
            s_mul_i32 s28, s{sq}, {cnt*16*9216}
            s_lshl_b32 s30, s29, 6
            s_add_u32 s28, s28, s30
            s_mul_i32 s31, s{sq}, {cnt*1024}
            """)
            for i in range(cnt):
                a(f"s_add_u32 m0, s31, {lds0 + i*1024}\n s_nop 0")
                a(f"buffer_load_dwordx4 v{vT}, s[{sT}:{sT+3}], s28 offen {wflags} lds")
                a(f"s_add_u32 s28, s28, {16*9216}")
        else:
            srd(a, sT, pWD, 4608 * 1152)
            a(f"""
            s_mul_i32 s28, s29, {32*1152}
            s_mul_i32 s31, s{sq}, {cnt*1024}
            s_add_u32 s28, s28, s31
            """)
            for i in range(cnt):
                a(f"s_add_u32 m0, s31, {L_WD + i*1024}\n s_nop 0")
                a(f"buffer_load_dwordx4 v{vT+1}, s[{sT}:{sT+3}], s28 offen {wflags} lds")
                a(f"s_add_u32 s28, s28, 1024")

    def wo_dma(nw):
        ngrp = 16 // nw
        a(f"""
        s_mov_b32 s29, s{sIDX}
        s_mul_i32 s30, s29, 21846
        s_lshr_b32 s30, s30, 16            ; h'
        s_mul_i32 s31, s30, 3
        s_sub_u32 s31, s29, s31            ; c
        """)
        srd(a, sT, pWO, 4096 * 1152)
        for q in range(3):
            a(f"""
            v_add_u32 v{vT+3}, {64*q}, v{vLANE}
            v_mul_u32_u24 v{vT+4}, 2731, v{vT+3}
            v_lshrrev_b32 v{vT+4}, 16, v{vT+4}          ; row = l0/24
            v_mul_u32_u24 v{vT+5}, 24, v{vT+4}
            v_sub_u32 v{vT+5}, v{vT+3}, v{vT+5}         ; piece
            v_mul_u32_u24 v{vT+4}, 1152, v{vT+4}
            v_lshl_add_u32 v{vT+q}, v{vT+5}, 4, v{vT+4}
            """)
        a(f"""
        s_lshl_b32 s28, s30, 7
        s_mul_i32 s29, s{sWAVE}, {8*ngrp}
        s_add_u32 s28, s28, s29
        s_mul_i32 s28, s28, 1152
        s_mul_i32 s31, s31, 384
        s_add_u32 s28, s28, s31
        s_mul_i32 s31, s{sWAVE}, {3*ngrp*1024}
        """)
        for grp in range(ngrp):
            for q in range(3):
                a(f"s_add_u32 m0, s31, {L_WG + (grp*3+q)*1024}\n s_nop 0")
                a(f"buffer_load_dwordx4 v{vT+q}, s[{sT}:{sT+3}], s28 offen {wflags} lds")
            a(f"s_add_u32 s28, s28, {8*1152}")

    def weights_early():
        lab_wo, lab_done = a.label("L_wwo"), a.label("L_wdone")
        a(f"s_cmp_lg_u32 s{sROLE}, 0\n s_cbranch_scc1 {lab_wo}")
        if early:
            slice_idx()
            for m in early:
                dma_mat(m, sWAVE)
        a(f"s_branch {lab_done}")
        a(f"{lab_wo}:")
        a(f"s_cmp_eq_u32 s{sROLE}, 2\n s_cbranch_scc1 {lab_done}")
        if not wo_late:
            wo_dma(4)
        a(f"{lab_done}:")

    def weights_late():
        late = [m for m in "gud" if m not in early]
        if not late:
            return
        slice_idx()
        sQ = 73
        a(f"s_and_b32 s{sQ}, s{sWAVE}, 3")
        lo, hi = late[:(len(late) + 1) // 2], late[(len(late) + 1) // 2:]
        lh, le = a.label("L_lateh"), a.label("L_latee")
        a(f"s_cmp_ge_u32 s{sWAVE}, 4\n s_cbranch_scc1 {lh}")
        for m in lo:
            dma_mat(m, sQ)
        a(f"s_branch {le}\n {lh}:")
        for m in hi:
            dma_mat(m, sQ)
        a(f"{le}:")
        a("s_waitcnt vmcnt(0)\n s_barrier")

    a(f"s_cmp_ge_u32 s{sWAVE}, 4\n s_cbranch_scc1 L_now")
    if not no_w:
        weights_early()
    if codepf:
        code_prefetch(4, "L_tail0", "L_code_end", vT + 8)
    if dry:
        a(f"""
        s_waitcnt vmcnt(0) lgkmcnt(0)
        s_mov_b32 s{sDRY}, 1
        s_mov_b32 s{sWS+2}, 0
        s_mov_b32 s{sOUTN}, 0
        s_branch L_tail_dry
        L_dry_done:
        s_mov_b32 s{sDRY}, 0
        s_mov_b32 s{sWS+2}, {WS_SIZE}
        s_mov_b32 s{sOUTN}, 4608
        s_mov_b64 exec, -1
        """)
    a("L_now:")
    a("L_tail0:")
    a("s_waitcnt vmcnt(0) lgkmcnt(0)\n s_barrier")
    a("L_tail_dry:")
    mark_tail = len(a.L)
    stamp(3)

    MO = P
    MM = P + 32
    a(f"s_cmp_lg_u32 s{sWAVE}, 0\n s_cbranch_scc1 L_nomerge")
    a(f"""
    v_and_b32 v{vT}, 31, v{vLANE}
    v_lshlrev_b32 v{vT}, 4, v{vT}
    v_mov_b32 v{vT+1}, 0
    """)
    for i in range(4):
        a(f"ds_read_b128 v[{MM+4*i}:{MM+4*i+3}], v{vT+1} offset:{L_ML + 16*i}")
    for w in range(8):
        a(f"ds_read_b128 v[{MO+4*w}:{MO+4*w+3}], v{vT} offset:{L_MRG + 512*w}")
    a("s_waitcnt lgkmcnt(8)")
    ms = [MM + 2 * w for w in range(8)]
    mstar = vT + 2
    a(f"v_max3_f32 v{mstar}, v{ms[0]}, v{ms[1]}, v{ms[2]}")
    a(f"v_max3_f32 v{mstar}, v{mstar}, v{ms[3]}, v{ms[4]}")
    a(f"v_max3_f32 v{mstar}, v{mstar}, v{ms[5]}, v{ms[6]}")
    a(f"v_max_f32 v{mstar}, v{mstar}, v{ms[7]}")
    for w in range(8):
        a(f"v_sub_f32 v{ms[w]}, v{ms[w]}, v{mstar}")
    for w in range(8):
        a(f"v_mul_f32 v{ms[w]}, s{sL2E}, v{ms[w]}")
    for w in range(8):
        a(f"v_exp_f32 v{ms[w]}, v{ms[w]}")
    Lt = vT + 3
    a(f"s_nop 0\n v_mul_f32 v{Lt}, v{ms[0]}, v{ms[0]+1}")
    for w in range(1, 8):
        a(f"v_fmac_f32 v{Lt}, v{ms[w]}, v{ms[w]+1}")
    a("s_waitcnt lgkmcnt(0)")
    R = vT + 6
    assert R % 2 == 0
    for r in range(4):
        a(f"v_mul_f32 v{R+r}, v{ms[0]}, v{MO+r}")
    for w in range(1, 8):
        for r in range(4):
            a(f"v_fmac_f32 v{R+r}, v{ms[w]}, v{MO+4*w+r}")
    a(f"""
    v_cmp_eq_u32 vcc, 32, v{vLANE}
    v_mov_b32 v{vT+4}, 0
    s_nop 0
    v_cndmask_b32 v{R}, v{R}, v{mstar}, vcc
    v_cndmask_b32 v{R+1}, v{R+1}, v{Lt}, vcc
    v_cndmask_b32 v{R+2}, v{R+2}, v{vT+4}, vcc
    v_cndmask_b32 v{R+3}, v{R+3}, v{vT+4}, vcc
    """)
    addtag(a, range(R, R + 4))
    a(f"""
    v_lshlrev_b32 v{vT}, 4, v{vLANE}
    s_mul_i32 s28, s{sW}, 640
    s_add_u32 s28, s28, {WS_AP}
    v_cmp_gt_u32 vcc, 33, v{vLANE}
    s_and_saveexec_b64 s[30:31], vcc
    buffer_store_dwordx4 v[{R}:{R+3}], v{vT}, s[{sWS}:{sWS+3}], s28 offen sc1
    s_mov_b64 exec, s[30:31]
    L_nomerge:
    """)
    stamp(4)
    if stop == "attn":
        a("s_branch L_fin")

    a(f"s_cmp_eq_u32 s{sROLE}, 0\n s_cbranch_scc1 L_stageB")
    a(f"s_cmp_eq_u32 s{sROLE}, 2\n s_cbranch_scc1 L_reduce")
    if wo_late and not no_w:
        wo_dma(8)
        a("s_waitcnt vmcnt(0)\n s_barrier")
    a(f"""
    s_mov_b32 s29, s{sIDX}
    s_mul_i32 s{sH}, s29, 21846
    s_lshr_b32 s{sH}, s{sH}, 16         ; h'
    s_mul_i32 s31, s{sH}, 3
    s_sub_u32 s{sJ}, s29, s31           ; c
    """)
    WB = 64
    a(f"""
    v_lshrrev_b32 v{vT}, 2, v{vN}                    ; r
    v_lshl_add_u32 v{vT}, v{vG}, 3, v{vT}            ; 8g + r
    v_mul_u32_u24 v{vT}, 384, v{vT}
    v_and_b32 v{vT+1}, 3, v{vLANE}
    v_lshl_add_u32 v{vT}, v{vT+1}, 3, v{vT}          ; + cc*8
    s_lshl_b32 s28, s{sWAVE}, 5
    s_add_u32 s28, s28, {L_WG}
    v_add_u32 v{vT}, s28, v{vT}                      ; + T*32 + base
    """)
    for ks in range(4):
        a(f"ds_read_b64_tr_b16 v[{WB+4*ks}:{WB+4*ks+1}], v{vT} offset:{ks*32*384}")
        a(f"ds_read_b64_tr_b16 v[{WB+4*ks+2}:{WB+4*ks+3}], v{vT} offset:{ks*32*384 + 4*384}")
    a(f"s_cmp_ge_u32 s{sWAVE}, 4\n s_cbranch_scc1 L_wo_gather_skip")
    a("s_waitcnt lgkmcnt(0)")
    for ks in range(4):
        a(f"ds_read_b64_tr_b16 v[{WB+16+4*ks}:{WB+16+4*ks+1}], v{vT} offset:{ks*32*384 + 256}")
        a(f"ds_read_b64_tr_b16 v[{WB+16+4*ks+2}:{WB+16+4*ks+3}], v{vT} offset:{ks*32*384 + 4*384 + 256}")
    GA = P
    a(f"""
    v_lshrrev_b32 v{vT+1}, 5, v{vLANE}               ; s
    v_mul_u32_u24 v{vT+2}, 640, v{vT+1}
    v_and_b32 v{vT+3}, 31, v{vLANE}                  ; c4
    v_lshl_add_u32 v{vT+4}, v{vT+3}, 4, v{vT+2}      ; s*640 + c4*16
    v_add_u32 v{vT+5}, 512, v{vT+2}                  ; s*640 + 512
    s_lshl_b32 s28, s{sWAVE}, 6
    s_lshl_b32 s29, s{sH}, 1
    s_add_u32 s28, s28, s29
    s_mul_i32 s28, s28, 640
    s_add_u32 s28, s28, {WS_AP}
    """)
    GAs = [96 + 8 * k for k in range(3)]
    def ap_issue(k):
        a(f"buffer_load_dwordx4 v[{GAs[k]}:{GAs[k]+3}], v{vT+4}, s[{sWS}:{sWS+3}], s28 offen sc1")
        a(f"buffer_load_dwordx2 v[{GAs[k]+4}:{GAs[k]+5}], v{vT+5}, s[{sWS}:{sWS+3}], s28 offen sc1")
    def ap_consume(k):
        for r in range(6):
            a(f"v_mov_b32 v{GA+r}, v{GAs[k]+r}")
    ppoll(a, "L_apoll", ns[0], 2, ap_issue, lambda k: list(range(GAs[k], GAs[k] + 6)), vT + 6, ap_consume, pollsleep, stg)
    tstamp(9)
    mm, ll = GA + 4, GA + 5
    a(f"""
    v_and_b32 v{mm}, s{sHI}, v{mm}
    v_mov_b32 v{vT+6}, v{mm}
    v_mov_b32 v{vT+7}, v{mm}
    s_nop 1
    v_permlane32_swap_b32 v{vT+6}, v{vT+7}
    s_nop 1
    v_max_f32 v{vT+6}, v{vT+6}, v{vT+7}             ; m*
    v_sub_f32 v{mm}, v{mm}, v{vT+6}
    v_mul_f32 v{mm}, s{sL2E}, v{mm}
    v_exp_f32 v{mm}, v{mm}                           ; a
    s_nop 0
    v_mul_f32 v{ll}, v{ll}, v{mm}
    v_mul_f32 v{GA}, v{GA}, v{mm}
    v_mul_f32 v{GA+1}, v{GA+1}, v{mm}
    v_mul_f32 v{GA+2}, v{GA+2}, v{mm}
    v_mul_f32 v{GA+3}, v{GA+3}, v{mm}
    """)
    xrow(a, [GA, GA+1, GA+2, GA+3, ll], [GA+8, GA+9, GA+10, GA+11, GA+12], only32=True)
    a(f"v_rcp_f32 v{vT+6}, v{ll}\n s_nop 0")
    for r in range(4):
        fdiv(a, GA + 8 + r, GA + r, vT + 6, ll, vT + 7)
    a(f"""
    v_cvt_pk_bf16_f32 v{GA+12}, v{GA+8}, v{GA+9}
    v_cvt_pk_bf16_f32 v{GA+13}, v{GA+10}, v{GA+11}
    v_lshlrev_b32 v{vT+3}, 3, v{vT+3}
    s_lshl_b32 s28, s{sWAVE}, 8
    v_add_u32 v{vT+3}, s28, v{vT+3}
    ds_write_b64 v{vT+3}, v[{GA+12}:{GA+13}] offset:{L_OB}
    L_wo_gather_skip:
    s_waitcnt lgkmcnt(0)
    s_barrier
    """)
    AOP = P + 16
    a(f"""
    v_and_b32 v{vT}, 3, v{vN}
    v_lshlrev_b32 v{vT}, 8, v{vT}
    v_lshl_add_u32 v{vT}, v{vG}, 4, v{vT}           ; (m&3)*256 + g*16
    """)
    for ks in range(4):
        a(f"ds_read_b128 v[{AOP+4*ks}:{AOP+4*ks+3}], v{vT} offset:{L_OB + 64*ks}")
    YD = P + 32
    a("s_waitcnt lgkmcnt(0)")
    for ks in range(4):
        c = "0" if ks == 0 else f"v[{YD}:{YD+3}]"
        a(f"v_mfma_f32_16x16x32_bf16 v[{YD}:{YD+3}], v[{AOP+4*ks}:{AOP+4*ks+3}], v[{WB+4*ks}:{WB+4*ks+3}], {c}")
    a(f"s_cmp_ge_u32 s{sWAVE}, 4\n s_cbranch_scc1 L_wo_one")
    for ks in range(4):
        c = "0" if ks == 0 else f"v[{YD+4}:{YD+7}]"
        a(f"v_mfma_f32_16x16x32_bf16 v[{YD+4}:{YD+7}], v[{AOP+4*ks}:{AOP+4*ks+3}], v[{WB+16+4*ks}:{WB+16+4*ks+3}], {c}")
    a("L_wo_one:")
    a(f"""
    s_mul_i32 s28, s{sH}, 9216
    s_mul_i32 s29, s{sJ}, {192*16}
    s_add_u32 s28, s28, s29
    s_lshl_b32 s29, s{sWAVE}, 8
    s_add_u32 s28, s28, s29
    s_add_u32 s28, s28, {WS_Y}
    v_lshlrev_b32 v{vT}, 4, v{vN}
    s_nop 7
    """)
    addtag(a, range(YD, YD + 4))
    a(f"""
    s_mov_b64 exec, 0xffff
    buffer_store_dwordx4 v[{YD}:{YD+3}], v{vT}, s[{sWS}:{sWS+3}], s28 offen sc1
    s_mov_b64 exec, -1
    s_cmp_ge_u32 s{sWAVE}, 4
    s_cbranch_scc1 L_reduce
    """)
    addtag(a, range(YD + 4, YD + 8))
    a(f"""
    s_mov_b64 exec, 0xffff
    buffer_store_dwordx4 v[{YD+4}:{YD+7}], v{vT}, s[{sWS}:{sWS+3}], s28 offen offset:2048 sc1
    s_mov_b64 exec, -1
    """)
    a("L_reduce:")
    tstamp(10)
    sTASK = 72
    a(f"""
    s_mov_b32 s{sTASK}, s{sIDX}
    s_mul_i32 s28, s{sWAVE}, 112
    s_add_u32 s{sTASK}, s{sTASK}, s28
    s_cmp_ge_u32 s{sTASK}, 144
    s_cbranch_scc1 L_fin
    s_cmp_ge_u32 s{sWAVE}, 2
    s_cbranch_scc1 L_fin
    """)
    XR = P
    srd(a, sT, pX, 4608)
    a(f"""
    v_and_b32 v{vT}, 3, v{vLANE}                     ; col
    v_lshlrev_b32 v{vT+1}, 1, v{vT}
    s_lshl_b32 s28, s{sTASK}, 3
    """)
    for b in range(4):
        a(f"buffer_load_ushort v{XR+b}, v{vT+1}, s[{sT}:{sT+3}], s28 offen offset:{1152*b}")
    a(f"""
    v_lshrrev_b32 v{vT+2}, 2, v{vLANE}               ; hh
    v_mul_u32_u24 v{vT+2}, 9216, v{vT+2}
    v_lshl_add_u32 v{vT+2}, v{vT}, 4, v{vT+2}
    s_lshl_b32 s28, s{sTASK}, 6
    s_add_u32 s28, s28, {WS_Y}
    s_add_u32 s29, s28, {16*9216}
    """)
    YG = P + 4
    YGs = [P + 60 + 8 * k for k in range(3)]
    def y_issue(k):
        a(f"buffer_load_dwordx4 v[{YGs[k]}:{YGs[k]+3}], v{vT+2}, s[{sWS}:{sWS+3}], s28 offen sc1")
        a(f"buffer_load_dwordx4 v[{YGs[k]+4}:{YGs[k]+7}], v{vT+2}, s[{sWS}:{sWS+3}], s29 offen sc1")
    def y_consume(k):
        for r in range(4):
            a(f"v_add_f32 v{YG+r}, v{YGs[k]+r}, v{YGs[k]+4+r}")
    ppoll(a, "L_ypoll", ns[1], 2, y_issue, lambda k: list(range(YGs[k], YGs[k] + 8)), vT + 3, y_consume, pollsleep, stg,
          probe=((lambda: a(f"buffer_load_dword v{YGs[0]}, v{vT+2}, s[{sWS}:{sWS+3}], s28 offen sc1")), YGs[0], "1") if probe[1] else None, presleep=presl[1])
    tstamp(11)
    hs = [YG, YG + 1, YG + 2, YG + 3]
    row16(a, hs, ctrls=("row_ror:4", "row_ror:8"))
    xrow(a, hs, [YG + 4, YG + 5, YG + 6, YG + 7])
    rbf(a, [(YG, YG+1), (YG+2, YG+3)], [YG+4, YG+5])
    for b in range(4):
        a(f"v_lshlrev_b32 v{XR+b}, 16, v{XR+b}")
        a(f"v_add_f32 v{YG+b}, v{YG+b}, v{XR+b}")
    rbf(a, [(YG, YG+1), (YG+2, YG+3)], [YG+4, YG+5])
    HK = P + 16
    for b in range(4):
        a(f"v_mov_b32 v{HK+b}, v{YG+b}")
    addtag(a, hs)
    a(f"""
    s_lshl_b32 s28, s{sTASK}, 6
    s_add_u32 s28, s28, {WS_HB}
    v_lshlrev_b32 v{vT+3}, 4, v{vT}
    s_mov_b64 exec, 0xf
    buffer_store_dwordx4 v[{YG}:{YG+3}], v{vT+3}, s[{sWS}:{sWS+3}], s28 offen sc1
    s_mov_b64 exec, -1
    """)
    stamp(7)
    ZG = P + 20
    a(f"""
    s_lshl_b32 s28, s{sTASK}, 6
    s_add_u32 s28, s28, {WS_Z}
    """)
    ZGs = [64, 100, 136]
    sPZ = 73
    a(f"s_mul_i32 s{sPZ}, s{sTASK}, 9216\n s_add_u32 s{sPZ}, s{sPZ}, s28")
    ZS = [4, 5, 6, 7, 62, 63, 66, 67, 71]
    for i in range(9):
        a(f"s_add_u32 s{ZS[i]}, s28, {i*16*9216}")
    def z_issue(k):
        for i in range(9):
            a(f"buffer_load_dwordx4 v[{ZGs[k]+4*i}:{ZGs[k]+4*i+3}], v{vT+2}, s[{sWS}:{sWS+3}], s{ZS[i]} offen sc1")
    def z_consume(k):
        z = ZGs[k]
        for (x, y) in ((0, 1), (2, 3), (4, 5), (6, 7), (0, 2), (4, 6), (0, 4)):
            for r in range(0, 4, 2):
                a(f"v_pk_add_f32 v[{z+4*x+r}:{z+4*x+r+1}], v[{z+4*x+r}:{z+4*x+r+1}], v[{z+4*y+r}:{z+4*y+r+1}]")
        for r in range(0, 4, 2):
            a(f"v_pk_add_f32 v[{ZG+r}:{ZG+r+1}], v[{z+r}:{z+r+1}], v[{z+32+r}:{z+32+r+1}]")
    ppoll(a, "L_zpoll", ns[3], 9, z_issue, lambda k: list(range(ZGs[k], ZGs[k] + 36)), vT + 3, z_consume, pollsleep, stg,
          probe=((lambda: a(f"buffer_load_dword v{ZGs[0]}, v{vT+2}, s[{sWS}:{sWS+3}], s{sPZ} offen sc1")), ZGs[0], "1") if probe[3] else None, presleep=presl[3])
    tstamp(12)
    zs = [ZG, ZG + 1, ZG + 2, ZG + 3]
    row16(a, zs, ctrls=("row_ror:4", "row_ror:8"))
    xrow(a, zs, [ZG + 4, ZG + 5, ZG + 6, ZG + 7])
    rbf(a, [(ZG, ZG+1), (ZG+2, ZG+3)], [ZG+4, ZG+5])
    for b in range(4):
        a(f"v_add_f32 v{ZG+b}, v{ZG+b}, v{HK+b}")
    a(f"v_cvt_pk_bf16_f32 v{ZG+4}, v{ZG}, v{ZG+1}")
    a(f"v_cvt_pk_bf16_f32 v{ZG+5}, v{ZG+2}, v{ZG+3}")
    srd(a, sT, pOUT, f"s{sOUTN}")
    a(f"""
    s_lshl_b32 s28, s{sTASK}, 3
    s_mov_b64 exec, 0xf
    buffer_store_short v{ZG+4}, v{vT+1}, s[{sT}:{sT+3}], s28 offen
    buffer_store_short_d16_hi v{ZG+4}, v{vT+1}, s[{sT}:{sT+3}], s28 offen offset:1152
    buffer_store_short v{ZG+5}, v{vT+1}, s[{sT}:{sT+3}], s28 offen offset:2304
    buffer_store_short_d16_hi v{ZG+5}, v{vT+1}, s[{sT}:{sT+3}], s28 offen offset:3456
    s_mov_b64 exec, -1
    s_cmp_lg_u32 s{sTASK}, 0
    s_cbranch_scc1 L_fin
    v_mov_b32 v{ZG+6}, s{sE}
    v_mov_b32 v{ZG+7}, 0
    s_mov_b64 exec, 1
    buffer_store_dword v{ZG+6}, v{ZG+7}, s[{sWS}:{sWS+3}], 0 offen sc1
    s_mov_b64 exec, -1
    s_branch L_fin
    """)

    a("L_stageB:")
    if gate:
        a(f"s_cmp_lg_u32 s{sWAVE}, 1\n s_cbranch_scc1 L_gate_done")
        a(f"""
        v_mul_u32_u24 v{vT}, 640, v{vLANE}
        s_mov_b32 s28, {WS_AP + 512}
        s_mov_b32 s29, {WS_AP + 512 + 64*640}
        s_mov_b32 s30, {WS_AP + 512 + 128*640}
        s_mov_b32 s31, {WS_AP + 512 + 192*640}
        """)
        poll_head(a, "L_gpoll")
        for i in range(4):
            a(f"buffer_load_dword v{vT+2+i}, v{vT}, s[{sWS}:{sWS+3}], s{28+i} offen sc1")
        a("s_waitcnt vmcnt(0)")
        tagcheck(a, [vT+2, vT+3, vT+4, vT+5], vT + 6, "L_gpoll")
        a("L_gate_done:\n s_barrier")
    a(f"""
    s_cmp_lg_u32 s{sWAVE}, 7
    s_cbranch_scc1 L_noones
    v_mov_b32 v{P}, 0x3f803f80
    v_mov_b32 v{P+1}, 0x3f803f80
    v_mov_b32 v{P+2}, 0x3f803f80
    v_mov_b32 v{P+3}, 0x3f803f80
    v_lshlrev_b32 v{vT}, 4, v{vLANE}
    ds_write_b128 v{vT}, v[{P}:{P+3}] offset:{L_HB + 4*1152}
    s_mov_b64 exec, 0xff
    ds_write_b128 v{vT}, v[{P}:{P+3}] offset:{L_HB + 4*1152 + 1024}
    s_mov_b64 exec, -1
    L_noones:
    """)
    if not no_w:
        a(f"s_cmp_eq_u32 s{sDRY}, 1\n s_cbranch_scc1 L_skip_late")
        weights_late()
        a("L_skip_late:")
    stamp(15)
    BB = 64
    WDd = 100
    a(f"""
    v_lshrrev_b32 v{vT}, 2, v{vN}
    v_lshl_add_u32 v{vT}, v{vG}, 3, v{vT}            ; 8g + r
    v_and_b32 v{vT+1}, 3, v{vLANE}                   ; cc
    v_lshlrev_b32 v{vT+2}, 6, v{vT}
    v_lshl_add_u32 v{vT+2}, v{vT+1}, 3, v{vT+2}      ; (8g+r)*64 + cc*8
    s_and_b32 s28, s{sWAVE}, 1
    s_lshl_b32 s28, s28, 5                           ; t*32
    s_bfe_u32 s29, s{sWAVE}, 0x10001
    s_mul_i32 s29, s29, {L_WU - L_WG}
    s_add_u32 s28, s28, s29
    s_add_u32 s28, s28, {L_WG}
    s_lshr_b32 s29, s{sWAVE}, 2
    s_mul_i32 s29, s29, {9*2048}
    s_add_u32 s28, s28, s29
    v_add_u32 v{vT+2}, s28, v{vT+2}
    """)
    for ks in range(9):
        a(f"ds_read_b64_tr_b16 v[{BB+4*ks}:{BB+4*ks+1}], v{vT+2} offset:{ks*2048}")
        a(f"ds_read_b64_tr_b16 v[{BB+4*ks+2}:{BB+4*ks+3}], v{vT+2} offset:{ks*2048+256}")
        if ks == 5:
            a("s_waitcnt lgkmcnt(0)")
    a(f"""
    v_mul_u32_u24 v{vT+3}, 1152, v{vT}
    v_lshl_add_u32 v{vT+3}, v{vT+1}, 3, v{vT+3}
    s_lshl_b32 s28, s{sWAVE}, 5
    s_add_u32 s28, s28, {L_WD}
    v_add_u32 v{vT+3}, s28, v{vT+3}
    s_waitcnt lgkmcnt(0)
    """)
    for i in range(5):
        if i == 4:
            a(f"s_cmp_ge_u32 s{sWAVE}, 4\n s_cbranch_scc1 L_no5th")
        a(f"ds_read_b64_tr_b16 v[{WDd+4*i}:{WDd+4*i+1}], v{vT+3} offset:{i*256}")
        a(f"ds_read_b64_tr_b16 v[{WDd+4*i+2}:{WDd+4*i+3}], v{vT+3} offset:{i*256 + 4*1152}")
    a("L_no5th:")
    aH, aA, aG, aR, aF1, aF2, aF3, aW = (vT + 4 + i for i in range(8))
    aP = vT + 12
    a(f"""
    s_lshl_b32 s28, s{sWAVE}, 7
    v_lshlrev_b32 v{aH}, 1, v{vLANE}
    v_add_u32 v{aH}, s28, v{aH}
    v_and_b32 v{aA}, 3, v{vN}
    v_cmp_eq_u32 vcc, 4, v{vN}
    v_mov_b32 v{aG}, 4
    s_lshr_b32 s28, s{sWAVE}, 2
    v_cndmask_b32 v{aA}, v{aA}, v{aG}, vcc           ; row(m)
    v_mul_u32_u24 v{aA}, 1152, v{aA}
    s_mul_i32 s28, s28, {9*64}
    v_lshl_add_u32 v{aA}, v{vG}, 4, v{aA}
    v_add_u32 v{aA}, s28, v{aA}
    s_lshl_b32 s28, s{sWAVE}, 10
    v_lshlrev_b32 v{aG}, 4, v{vLANE}
    v_add_u32 v{aG}, s28, v{aG}
    s_lshl_b32 s28, s{sWAVE}, 8
    v_lshlrev_b32 v{aR}, 4, v{vN}
    v_add_u32 v{aR}, s28, v{aR}                      ; wave*256 + n*16
    v_lshrrev_b32 v{aW}, 2, v{vLANE}                 ; f'
    v_and_b32 v{aF3}, 3, v{vLANE}                    ; b
    s_lshl_b32 s28, s{sWAVE}, 10
    v_lshlrev_b32 v{aF2}, 4, v{aW}
    v_add_u32 v{aF2}, s28, v{aF2}                    ; tile*1024 + f'*16
    v_lshl_add_u32 v{aF1}, v{aF3}, 2, v{aF2}         ; + b*4
    s_lshl_b32 s28, s{sWAVE}, 5
    v_lshlrev_b32 v{aW}, 1, v{aW}
    v_add_u32 v{aW}, s28, v{aW}                      ; (tile*16 + f')*2
    v_lshl_add_u32 v{aW}, v{aF3}, 6, v{aW}           ; + b*64
    v_lshlrev_b32 v{vT}, 4, v{aF3}                   ; b*16
    v_mov_b32 v{vT+1}, 64
    v_and_b32 v{vT+2}, 4, v{vLANE}
    v_cmp_ne_u32 vcc, 0, v{vT+2}
    v_lshrrev_b32 v{vT+2}, 3, v{vLANE}
    v_lshlrev_b32 v{vT+2}, 8, v{vT+2}                ; (l>>3)*256
    v_cndmask_b32 v{vT}, v{vT}, v{vT+1}, vcc
    v_lshl_add_u32 v{aF3}, v{aF3}, 2, v{vT}
    v_add_u32 v{aF3}, v{aF3}, v{vT+2}
    s_mov_b32 s64, 0xf0f0f0f0
    s_mov_b32 s65, 0xf0f0f0f0
    v_lshlrev_b32 v{aP}, 4, v{vLANE}
    s_lshl_b32 s28, s{sWAVE}, 10
    s_add_u32 s28, s28, {WS_HB}
    s_mov_b32 s29, {WS_HB + 8192}
    """)
    HGs = [P + 48 + 8 * k for k in range(3)]
    for k in range(3):
        for r in range(4):
            a(f"v_mov_b32 v{HGs[k]+4+r}, v{vTAG}")
    def h_issue2(k):
        a(f"buffer_load_dwordx4 v[{HGs[k]}:{HGs[k]+3}], v{aP}, s[{sWS}:{sWS+3}], s28 offen sc1")
        a(f"buffer_load_dwordx4 v[{HGs[k]+4}:{HGs[k]+7}], v{aP}, s[{sWS}:{sWS+3}], s29 offen sc1")
    def h_issue1(k):
        a(f"buffer_load_dwordx4 v[{HGs[k]}:{HGs[k]+3}], v{aP}, s[{sWS}:{sWS+3}], s28 offen sc1")
    def h_consume2(k):
        for b in range(4):
            a(f"ds_write_b16_d16_hi v{aH}, v{HGs[k]+b} offset:{L_HB + 1152*b}")
        for b in range(4):
            a(f"ds_write_b16_d16_hi v{aH}, v{HGs[k]+4+b} offset:{L_HB + 1152*b + 1024}")
    def h_consume1(k):
        for b in range(4):
            a(f"ds_write_b16_d16_hi v{aH}, v{HGs[k]+b} offset:{L_HB + 1152*b}")
    a(f"s_cmp_lg_u32 s{sWAVE}, 0\n s_cbranch_scc1 L_h1")
    ppoll(a, "L_hpoll2", ns[2], 2, h_issue2, lambda k: list(range(HGs[k], HGs[k] + 8)), vT + 13, h_consume2, pollsleep, stg,
          probe=((lambda: a(f"buffer_load_dword v{HGs[0]}, v{aP}, s[{sWS}:{sWS+3}], s28 offen sc1")), HGs[0], "1") if probe[2] else None, presleep=presl[2])
    a("s_branch L_h2\n L_h1:")
    ppoll(a, "L_hpoll1", ns[2], 1, h_issue1, lambda k: list(range(HGs[k], HGs[k] + 4)), vT + 13, h_consume1, pollsleep, stg,
          probe=((lambda: a(f"buffer_load_dword v{HGs[0]}, v{aP}, s[{sWS}:{sWS+3}], s28 offen sc1")), HGs[0], "1") if probe[2] else None, presleep=presl[2])
    a("L_h2:")
    stamp(5)
    a("s_waitcnt lgkmcnt(0)\n s_barrier")
    AB = P
    for ks in range(9):
        a(f"ds_read_b128 v[{AB+4*ks}:{AB+4*ks+3}], v{aA} offset:{L_HB + 64*ks}")
    GD = P + 40
    GRm = P + 44
    for ks in range(9):
        a(f"s_waitcnt lgkmcnt({8-ks})")
        c = "0" if ks == 0 else f"v[{GD}:{GD+3}]"
        a(f"v_mfma_f32_16x16x32_bf16 v[{GD}:{GD+3}], v[{AB+4*ks}:{AB+4*ks+3}], v[{BB+4*ks}:{BB+4*ks+3}], {c}")
    a(f"s_and_b32 s28, s{sWAVE}, 3")
    lg = [a.label("L_gr") for _ in range(4)]; lge = a.label("L_gre")
    for t in range(1, 4):
        a(f"s_cmp_eq_u32 s28, {t}\n s_cbranch_scc1 {lg[t]}")
    for t in range(4):
        a(f"{lg[t]}:")
        kss = [t, t + 4] + ([8] if t == 0 else [])
        for i, ks in enumerate(kss):
            c = "0" if i == 0 else f"v[{GRm}:{GRm+3}]"
            a(f"v_mfma_f32_16x16x32_bf16 v[{GRm}:{GRm+3}], v[{AB+4*ks}:{AB+4*ks+3}], v[{AB+4*ks}:{AB+4*ks+3}], {c}")
        if t != 3:
            a(f"s_branch {lge}")
    a(f"""
    {lge}:
    s_nop 2
    ds_write_b128 v{aG}, v[{GD}:{GD+3}] offset:{L_GUF}
    s_nop 6
    s_mov_b64 exec, 0xffff
    ds_write_b128 v{aR}, v[{GRm}:{GRm+3}] offset:{L_GR}
    s_mov_b64 exec, -1
    s_waitcnt lgkmcnt(0)
    s_barrier
    """)
    stamp(6)
    a(f"s_cmp_ge_u32 s{sWAVE}, 2\n s_cbranch_scc1 L_nogelu")
    GE = P
    a(f"""
    ds_read_b32 v{GE+8}, v{aF3} offset:{L_GR}
    ds_read_b32 v{GE}, v{aF1} offset:{L_GUF}
    ds_read_b32 v{GE+1}, v{aF1} offset:{L_GUF+4096}
    ds_read_b32 v{GE+2}, v{aF1} offset:{L_GUF+2048}
    ds_read_b32 v{GE+3}, v{aF1} offset:{L_GUF+2048+4096}
    ds_read_b32 v{GE+4}, v{aF2} offset:{L_GUF+256}
    ds_read_b32 v{GE+5}, v{aF2} offset:{L_GUF+256+4096}
    ds_read_b32 v{GE+6}, v{aF2} offset:{L_GUF+256+2048}
    ds_read_b32 v{GE+7}, v{aF2} offset:{L_GUF+256+2048+4096}
    s_waitcnt lgkmcnt(8)
    """)
    X_, Y_, T_ = GE + 8, GE + 9, GE + 10
    a(f"""
    s_nop 1
    v_add_f32_dpp v{X_}, v{X_}, v{X_} row_ror:8 row_mask:0xf bank_mask:0xf
    """)
    xrow(a, [X_], [T_])
    a(f"""
    s_nop 0
    v_mov_b32_dpp v{Y_}, v{X_} row_ror:4 row_mask:0xf bank_mask:0xf
    s_nop 0
    v_cndmask_b32 v{T_}, v{Y_}, v{X_}, s[64:65]      ; sum
    v_cndmask_b32 v{Y_}, v{X_}, v{Y_}, s[64:65]      ; sumsq
    v_mul_f32 v{T_}, {INV576}, v{T_}                 ; mu
    v_mul_f32 v{Y_}, {INV576}, v{Y_}
    v_fma_f32 v{Y_}, -v{T_}, v{T_}, v{Y_}            ; var
    """)
    rbf(a, [(T_, Y_)], [X_])
    a(f"v_add_f32 v{Y_}, {EPS}, v{Y_}")
    rbf(a, [(Y_, Y_)], [X_])
    a(f"v_sqrt_f32 v{Y_}, v{Y_}\n s_nop 0")
    rbf(a, [(Y_, Y_)], [X_])
    a(f"""
    v_rcp_f32 v{X_}, v{Y_}
    s_waitcnt lgkmcnt(0)
    v_add_f32 v{GE}, v{GE}, v{GE+1}
    v_add_f32 v{GE+2}, v{GE+2}, v{GE+3}
    v_add_f32 v{GE+4}, v{GE+4}, v{GE+5}
    v_add_f32 v{GE+6}, v{GE+6}, v{GE+7}
    v_fma_f32 v{GE}, -v{T_}, v{GE+4}, v{GE}
    v_fma_f32 v{GE+2}, -v{T_}, v{GE+6}, v{GE+2}
    """)
    fdiv(a, GE + 1, GE, X_, Y_, GE + 4)
    fdiv(a, GE + 3, GE + 2, X_, Y_, GE + 5)
    rbf(a, [(GE + 1, GE + 3)], [GE + 4])
    C1, C2 = 0x3d372713, 0x3f4c422a
    TWO_L2E = 0x4038aa3b
    g, t = GE + 1, GE + 4
    a(f"""
    v_mul_f32 v{t}, v{g}, v{g}
    v_mul_f32 v{t}, v{t}, v{g}
    v_mov_b32 v{t+1}, {C1}
    v_fma_f32 v{t}, v{t}, v{t+1}, v{g}
    v_mul_f32 v{t}, {C2}, v{t}
    v_mul_f32 v{t}, {TWO_L2E}, v{t}
    v_exp_f32 v{t}, v{t}
    v_mul_f32 v{t+2}, 0.5, v{g}
    v_add_f32 v{t}, 1.0, v{t}
    v_rcp_f32 v{t}, v{t}
    s_nop 0
    v_fma_f32 v{t}, -2.0, v{t}, 1.0
    v_add_f32 v{t}, 1.0, v{t}
    v_mul_f32 v{g}, v{t+2}, v{t}
    """)
    rbf(a, [(g, g)], [t])
    a(f"""
    v_mul_f32 v{g}, v{g}, v{GE+3}
    v_cvt_pk_bf16_f32 v{t}, v{g}, v{g}
    ds_write_b16 v{aW}, v{t} offset:{L_HF}
    s_waitcnt lgkmcnt(0)
    L_nogelu:
    s_barrier
    """)
    tstamp(14)
    a(f"""
    v_and_b32 v{vT+5}, 3, v{vN}
    v_lshlrev_b32 v{vT+5}, 6, v{vT+5}
    v_lshl_add_u32 v{vT+5}, v{vG}, 4, v{vT+5}
    ds_read_b128 v[{P}:{P+3}], v{vT+5} offset:{L_HF}
    s_mul_i32 s28, s{sIDX}, 9216
    s_add_u32 s28, s28, {WS_Z}
    s_lshl_b32 s29, s{sWAVE}, 8
    s_add_u32 s28, s28, s29
    v_lshlrev_b32 v{vT+6}, 4, v{vN}
    s_waitcnt lgkmcnt(0)
    """)
    ZD = P + 8
    for i in range(5):
        if i == 4:
            a(f"s_cmp_ge_u32 s{sWAVE}, 4\n s_cbranch_scc1 L_z4")
        a(f"v_mfma_f32_16x16x32_bf16 v[{ZD+4*i}:{ZD+4*i+3}], v[{P}:{P+3}], v[{WDd+4*i}:{WDd+4*i+3}], 0")
    a("L_z4:\n s_nop 7")
    for i in range(5):
        if i == 4:
            a(f"s_cmp_ge_u32 s{sWAVE}, 4\n s_cbranch_scc1 L_fin")
        addtag(a, range(ZD + 4*i, ZD + 4*i + 4))
        a(f"""
        s_mov_b64 exec, 0xffff
        buffer_store_dwordx4 v[{ZD+4*i}:{ZD+4*i+3}], v{vT+6}, s[{sWS}:{sWS+3}], s28 offen offset:{2048*i if i < 2 else 0} sc1
        s_mov_b64 exec, -1
        """ if i < 2 else f"""
        s_add_u32 s29, s28, {2048*i}
        s_mov_b64 exec, 0xffff
        buffer_store_dwordx4 v[{ZD+4*i}:{ZD+4*i+3}], v{vT+6}, s[{sWS}:{sWS+3}], s29 offen sc1
        s_mov_b64 exec, -1
        """)

    tstamp(13)
    a("L_fin:")
    for i in range(mark_tail, len(a.L)):
        if a.L[i].strip() == "s_barrier" and "noguard" not in a.L[i]:
            lab = a.label("L_nb")
            a.L[i] = f"    s_cmp_eq_u32 s{sDRY}, 1\n    s_cbranch_scc1 {lab}\n    s_barrier\n{lab}:"
    a(f"s_cmp_eq_u32 s{sDRY}, 1\n s_cbranch_scc1 L_dry_done" if dry else "")
    if stamps:
        a("s_waitcnt vmcnt(0)")
        stamp(8)
        a(f"""
        s_lshl_b32 s28, s{sW}, 3
        s_add_u32 s28, s28, s{sWAVE}
        s_lshl_b32 s28, s28, 6
        s_add_u32 s28, s28, {WS_STAMP}
        v_mov_b32 v{vT}, 0
        s_mov_b64 exec, 1
        """)
        for i in range(0, NSTAMP, 4):
            for r in range(4):
                a(f"v_mov_b32 v{vT+2+r}, s{sST+i+r}")
            a(f"buffer_store_dwordx4 v[{vT+2}:{vT+5}], v{vT}, s[{sWS}:{sWS+3}], s28 offen offset:{4*i}")
            a("s_nop 1")
        a("s_waitcnt vmcnt(0)")
    a("L_end:\n s_endpgm\n L_code_end:")

    hdr = HEADER + f"; @launch grid=(256,1,1) block=(512,1,1) lds={LDS_BYTES}\n"
    hdr += '.amdgcn_target "amdgcn-amd-amdhsa--gfx950"\n.text\n'
    return hdr + kernel_begin(KNAME) + a.text() + kernel_desc(KNAME, 256, 102, 256)


HEADER = """; Fused pre-LN MHA decode (KV cache) + pre-LN GEGLU MLP, one persistent launch of 256 workgroups (one per CU).
"""

if __name__ == "__main__":
    import sys
    kw = eval(sys.argv[2]) if len(sys.argv) > 2 else {}
    open(sys.argv[1], "w").write(gen(**kw))
```

```python
from asmlib import *

WS_E    = 0x0
WS_QP   = 0x10000
WS_AP   = 0xA0000
WS_Y    = 0xD0000
WS_HB   = 0x120000
WS_Z    = 0x130000
WS_CANB = 0x280000
WS_CANC = 0x288000
WS_STAMP= 0x300000
WS_SIZE = 0x400000

L_XD = 0
L_QB = L_XD + 9216
L_MRG = L_QB + 256
L_ML = L_MRG + 4096
L_OB = L_ML + 64
L_HB = L_OB + 1024
L_GUF = L_HB + 5760
L_GR = L_GUF + 8192
L_HF = L_GR + 2048
L_SMALL_END = L_HF + 256
L_WG = 32768
L_WU = L_WG + 36864
L_WD = L_WU + 36864
L_END = L_WD + 36864
assert L_SMALL_END <= L_WG
LDS_BYTES = 143360
assert L_END <= LDS_BYTES, L_END

LOG2E = 0x3fb8aa3b
SCALE = 0x3db504f3
INV576 = 0x3ae38e39
EPS = 0x3727c5ac

sWAVE = 3
sK, sV, sWS, sT, sU = 8, 12, 16, 20, 24
pX, pK, pV, pWQ, pWO, pBX, pWG, pWU = 32, 34, 36, 38, 40, 42, 44, 46
pWD, pOUT, pDBG, pWSP = 48, 50, 52, 54
sE, sW, sB, sH, sJ, sTO, sKV, sIT = 56, 57, 58, 59, 60, 61, 62, 63
sROW = 64
sOFF = 67
sL2E, sSCALE, sHI = 68, 69, 70
sCNT = 71
sDRY, sOUTN = 94, 95
sROLE, sIDX, sSLICE, sNT, sROT = 96, 97, 98, 99, 100
sST = 74
NSTAMP = 16
vLANE, vN, vG, vOFFK, vOFFV = 0, 1, 2, 3, 4
vMASK = 5
vM, vL = 9, 10
vO = 12
vS = 16
vQ = 20
vTAG, vFF = 36, 37
vT = 38
vSTG = 64
vWQ = 192
vP = 172
vPP = 204


def srd(a, s, ptr, nbytes):
    a(f"""
    s_mov_b32 s{s}, s{ptr}
    s_and_b32 s{s+1}, s{ptr+1}, 0xffff
    s_mov_b32 s{s+2}, {nbytes}
    s_mov_b32 s{s+3}, 0x00020000
    """)


def row16(a, regs, op="add", ctrls=("quad_perm:[1,0,3,2]", "quad_perm:[2,3,0,1]", "row_half_mirror", "row_mirror")):
    ins = "v_add_f32" if op == "add" else "v_max_f32"
    n = len(regs)
    a("s_nop 1")
    for ctrl in ctrls:
        for r in regs:
            a(f"{ins}_dpp v{r}, v{r}, v{r} {ctrl} row_mask:0xf bank_mask:0xf")
        if n < 3:
            a(f"s_nop {2 - n}")


def xrow(a, regs, tmp, op="add", only32=False):
    ins = "v_add_f32" if op == "add" else "v_max_f32"
    sws = ("v_permlane16_swap_b32", "v_permlane32_swap_b32")
    if only32:
        sws = sws[1:]
    for sw in sws:
        for r, t in zip(regs, tmp):
            a(f"v_mov_b32 v{t}, v{r}")
        a("s_nop 1")
        for r, t in zip(regs, tmp):
            a(f"{sw} v{r}, v{t}")
        a("s_nop 1")
        for r, t in zip(regs, tmp):
            a(f"{ins} v{r}, v{r}, v{t}")


def wavesum(a, regs, tmp, op="add"):
    row16(a, regs, op)
    xrow(a, regs, tmp, op)


def rbf(a, pairs, t):
    for (x, y), tt in zip(pairs, t):
        a(f"v_cvt_pk_bf16_f32 v{tt}, v{x}, v{y}")
    for (x, y), tt in zip(pairs, t):
        a(f"v_lshlrev_b32 v{x}, 16, v{tt}")
        if y != x:
            a(f"v_and_b32 v{y}, s{sHI}, v{tt}")


def tagcheck(a, regs, acc, retry):
    a(f"v_xor_b32 v{acc}, v{regs[0]}, v{vTAG}")
    for r in regs[1:]:
        a(f"v_bitop3_b32 v{acc}, v{acc}, v{r}, v{vTAG} bitop3:0xf6")
    a(f"v_and_b32 v{acc}, v{acc}, v{vFF}")
    a(f"v_cmp_ne_u32 vcc, 0, v{acc}")
    a(f"s_cbranch_vccnz {retry}")


def addtag(a, regs):
    for r in regs:
        a(f"v_bfi_b32 v{r}, v{vFF}, v{vTAG}, v{r}")


def poll_head(a, name, bail="L_end"):
    a(f"{name}:")
    a(f"s_sub_u32 s{sTO}, s{sTO}, 1")
    a(f"s_cbranch_scc1 {bail}")


def ppoll(a, name, nsets, nloads, issue, regs, acc, consume, sleep=0, stagger=0, probe=None, presleep=0):
    a(f"s_cmp_eq_u32 s{sDRY}, 1\n s_cbranch_scc1 {name}_ok0")
    if presleep:
        n = presleep
        while n > 0:
            a(f"s_sleep {min(n, 100)}")
            n -= 100
    if probe:
        emit, preg, mask = probe
        a(f"s_mov_b64 exec, {mask}")
        a(f"{name}_probe:")
        a(f"s_sub_u32 s{sTO}, s{sTO}, 1")
        a(f"s_cbranch_scc1 L_end")
        emit()
        a("s_waitcnt vmcnt(0)")
        a(f"v_xor_b32 v{acc}, v{preg}, v{vTAG}")
        a(f"v_and_b32 v{acc}, v{acc}, v{vFF}")
        a(f"v_cmp_ne_u32 vcc, 0, v{acc}")
        a(f"s_cbranch_vccnz {name}_probe")
        a("s_mov_b64 exec, -1")
    for k in range(nsets):
        issue(k)
        if stagger and k != nsets - 1:
            a(f"s_sleep {stagger}")
    a(f"{name}:")
    a(f"s_sub_u32 s{sTO}, s{sTO}, 1")
    a(f"s_cbranch_scc1 L_end")
    for k in range(nsets):
        a(f"s_waitcnt vmcnt({(nsets-1)*nloads})")
        r = regs(k)
        a(f"v_xor_b32 v{acc}, v{r[0]}, v{vTAG}")
        for x in r[1:]:
            a(f"v_bitop3_b32 v{acc}, v{acc}, v{x}, v{vTAG} bitop3:0xf6")
        a(f"v_and_b32 v{acc}, v{acc}, v{vFF}")
        a(f"v_cmp_ne_u32 vcc, 0, v{acc}")
        a(f"s_cbranch_vccz {name}_ok{k}")
        if sleep:
            a(f"s_sleep {sleep}")
        issue(k)
    a(f"s_branch {name}")
    for k in range(nsets):
        a(f"{name}_ok{k}:")
        consume(k)
        if k != nsets - 1:
            a(f"s_branch {name}_done")
    a(f"{name}_done:")


def fdiv(a, out, num, den_rcp, den, t):
    a(f"v_mul_f32 v{out}, v{num}, v{den_rcp}")
    a(f"v_fma_f32 v{t}, -v{out}, v{den}, v{num}")
    a(f"v_fma_f32 v{out}, v{t}, v{den_rcp}, v{out}")


def gen(D=3, stamps=False, stop=None, kvflags="nt", wflags="nt", late_w=False, pollsleep=0, codepf=True, xflags="nt", cyc=False, pre=(0, 1, 2, 0), no_w=False, no_compute=False, no_q=False, early='', wo_late=False, gate=False, bare=False, tailst=False, ns=(1, 1, 1, 1), stg=0, probe=(0, 1, 1, 1), presl=(0, 0, 0, 0), dry=False, shift=0, rotw=False, only=None, canB=False, canC=0, outfl=''):
    a = Asm()
    NT = 32
    KV_OOB = 0x10000000
    P = vPP

    def tstamp(idx):
        if tailst:
            stamp(idx, True)

    def stamp(idx, force=False):
        if only is not None and idx not in only:
            return
        if tailst and idx in (9, 10, 11, 12, 13, 14) and not force:
            return
        if stamps:
            ins = "s_memtime" if cyc else "s_memrealtime"
            a(f"{ins} s[90:91]\n s_waitcnt lgkmcnt(0)\n s_mov_b32 s{sST+idx}, s90")

    def psleep():
        if pollsleep:
            a(f"s_sleep {pollsleep}")

    def code_prefetch(nwaves, lo, hi, tmp):
        a(f"""
        s_getpc_b64 s[92:93]
        {a.label("L_pc")}:
        """)
        lab = a.L[-1].strip()[:-1]
        a(f"""
        s_add_u32 s92, s92, {lo}-{lab}
        s_addc_u32 s93, s93, {-1 if lo == "L_code0" else 0}
        s_lshl_b32 s28, s{sWAVE}, 10
        v_lshlrev_b32 v{tmp+4}, 4, v{vLANE}
        v_add_u32 v{tmp+4}, s28, v{tmp+4}
        s_mov_b32 s29, {hi}-{lo}-16
        """)
        for i in range(NPF[(lo, hi)]):
            a(f"v_min_u32 v{tmp+5}, s29, v{tmp+4}")
            a(f"global_load_dwordx4 v[{tmp}:{tmp+3}], v{tmp+5}, s[92:93]")
            a(f"v_add_u32 v{tmp+4}, {1024*nwaves}, v{tmp+4}")
    NPF = {("L_code0", "L_code_end"): 2, ("L_tail0", "L_code_end"): 2}
    a(f"""
    L_code0:
    s_cmp_ge_u32 s2, 256
    s_cbranch_scc1 L_end
    s_load_dwordx16 s[32:47], s[0:1], 0
    s_load_dwordx8 s[48:55], s[0:1], 64
    v_lshrrev_b32 v{P}, 6, v0
    v_and_b32 v{vLANE}, 63, v0
    v_readfirstlane_b32 s{sWAVE}, v{P}
    v_and_b32 v{vN}, 15, v{vLANE}
    v_lshrrev_b32 v{vG}, 4, v{vLANE}
    v_lshlrev_b32 v{vOFFK}, 8, v{vN}
    v_lshl_add_u32 v{vOFFK}, v{vG}, 4, v{vOFFK}
    v_lshlrev_b32 v{vOFFV}, 10, v{vG}
    v_lshl_add_u32 v{vOFFV}, v{vN}, 4, v{vOFFV}
    s_mov_b32 s{sW}, s2
    s_lshr_b32 s{sB}, s2, 6
    s_lshr_b32 s{sH}, s2, 1
    s_and_b32 s{sH}, s{sH}, 31
    s_and_b32 s28, s2, 1
    s_lshl_b32 s{sJ}, s{sB}, 1
    s_add_u32 s{sJ}, s{sJ}, s28
    s_mov_b32 s{sTO}, 200000
    s_lshr_b32 s29, s2, 1                  ; P
    s_mov_b32 s{sIDX}, s29
    s_cmp_lt_u32 s29, 96
    s_cselect_b32 s{sROLE}, 1, 2
    s_cselect_b32 s30, {shift}, 0
    s_cmp_eq_u32 s28, 1
    s_cselect_b32 s{sROLE}, 0, s{sROLE}
    s_lshr_b32 s31, s29, 3
    s_lshl_b32 s31, s31, 2
    s_and_b32 s4, s29, 3
    s_add_u32 s31, s31, s4
    s_lshl_b32 s31, s31, 1
    s_bfe_u32 s4, s29, 0x10002
    s_add_u32 s{sSLICE}, s31, s4
    s_cmp_lt_u32 s2, 224
    s_cbranch_scc1 L_role_done
    s_mov_b32 s{sROLE}, 0
    s_sub_u32 s4, s2, 224                  ; p'
    s_add_u32 s{sIDX}, s4, 112
    s_lshr_b32 s31, s4, 4
    s_lshl_b32 s31, s31, 3
    s_and_b32 s5, s4, 7
    s_add_u32 s31, s31, s5
    s_lshl_b32 s31, s31, 1
    s_bfe_u32 s5, s4, 0x10003
    s_add_u32 s31, s31, s5
    s_add_u32 s{sSLICE}, s31, 112
    L_role_done:
    s_sub_u32 s30, 256, s30
    s_cmp_eq_u32 s28, 1
    s_cselect_b32 s4, s30, 0               ; t0
    s_cselect_b32 s5, 512, s30             ; t1
    s_mov_b32 s{sL2E}, {LOG2E}
    s_mov_b32 s{sSCALE}, {SCALE}
    s_mov_b32 s{sHI}, 0xffff0000
    s_mov_b32 s{sDRY}, 0
    s_mov_b32 s{sOUTN}, 4608
    """)
    if stamps:
        for i in range(NSTAMP):
            a(f"s_mov_b32 s{sST+i}, 0")
    stamp(0)
    if codepf:
        code_prefetch(8, "L_code0", "L_code_end", vPP + 44)
    a("s_waitcnt lgkmcnt(0)")
    stamp(9)
    a(f"s_load_dword s{sE}, s[{pWSP}:{pWSP+1}], 0")
    srd(a, sK, pK, 0x10000000)
    srd(a, sV, pV, 0x10000000)
    srd(a, sWS, pWSP, WS_SIZE)
    srd(a, sT, pX, 4608)
    srd(a, sU, pWQ, 576 * 8192)
    X = P
    a(f"""
    s_cmp_ge_u32 s{sWAVE}, 4
    s_cbranch_scc1 L_nox
    v_lshlrev_b32 v{vT}, 1, v{vLANE}
    s_mul_i32 s28, s{sWAVE}, 1152
    """)
    for i in range(9):
        a(f"buffer_load_ushort v{X+i}, v{vT}, s[{sT}:{sT+3}], s28 offen offset:{128*i} {xflags}")
    a("L_nox:")
    a(f"""
    v_lshlrev_b32 v{vT+1}, 13, v{vG}
    v_lshl_add_u32 v{vT+1}, v{vN}, 4, v{vT+1}        ; g*8192 + c*16
    """)
    for u in range(3):
        a(f"""
        s_add_u32 s29, s{sWAVE}, {8*u}
        s_lshl_b32 s30, s29, 2
        s_mul_i32 s28, s{sJ}, 72
        s_add_u32 s30, s30, s28
        s_mov_b32 s{sROW+u}, s30
        s_lshl_b32 s30, s30, 13
        s_lshl_b32 s31, s{sH}, 8
        s_add_u32 s30, s30, s31
        s_cmp_ge_u32 s29, 18
        s_cselect_b32 s30, {576*8192}, s30
        s_cselect_b32 s{sROW+u}, s28, s{sROW+u}
        buffer_load_dwordx4 v[{vWQ+4*u}:{vWQ+4*u+3}], v{vT+1}, s[{sU}:{sU+3}], s30 offen {wflags}
        """)
    a(f"""
    s_lshr_b32 s{sKV}, s{sW}, 1
    s_lshl_b32 s{sKV}, s{sKV}, 21
    s_lshl_b32 s28, s4, 12
    s_add_u32 s{sKV}, s{sKV}, s28
    s_sub_u32 s29, s5, s4                  ; L
    s_lshr_b32 s{sNT}, s29, 3
    s_and_b32 s29, s29, 7                  ; remainder
    {'s_add_u32 s28, s%d, s%d' % (sNT, sWAVE) if rotw else 's_mov_b32 s28, s%d' % sWAVE}
    s_and_b32 s28, s28, 7
    s_cmp_lt_u32 s28, s29
    s_addc_u32 s{sNT}, s{sNT}, 0
    s_mov_b32 s{sIT}, 0
    """)

    def kloads(s):
        r = vSTG + 32 * s
        for j in range(4):
            a(f"buffer_load_dwordx4 v[{r+4*j}:{r+4*j+3}], v{vOFFK}, s[{sK}:{sK+3}], s{sOFF} offen offset:{64*j} {kvflags}")

    def vloads(s):
        r = vSTG + 32 * s + 16
        for j in range(4):
            a(f"buffer_load_dwordx4 v[{r+4*j}:{r+4*j+3}], v{vOFFV}, s[{sV}:{sV+3}], s{sOFF} offen offset:{256*j} {kvflags}")

    def nextoff():
        if rotw:
            a(f"""
            s_add_u32 s{sOFF}, s{sIT}, s{sWAVE}
            s_and_b32 s{sOFF}, s{sOFF}, 7
            s_lshl_b32 s{sOFF}, s{sOFF}, 12
            s_add_u32 s{sOFF}, s{sOFF}, s{sKV}
            """)
        else:
            a(f"""
            s_lshl_b32 s{sOFF}, s{sWAVE}, 12
            s_add_u32 s{sOFF}, s{sOFF}, s{sKV}
            """)
        a(f"""
        s_cmp_ge_u32 s{sIT}, s{sNT}
        s_cselect_b32 s{sOFF}, {KV_OOB}, s{sOFF}
        s_add_u32 s{sKV}, s{sKV}, 32768
        s_add_u32 s{sIT}, s{sIT}, 1
        """)

    def prefetch(lo=0, hi=D):
        for s in range(lo, hi):
            nextoff(); kloads(s); vloads(s)

    a0, a1, b0, b1 = pre

    def by_class(fa, fb, f7=None):
        la, lb, le = a.label("L_cA"), a.label("L_cB"), a.label("L_cE")
        a(f"s_cmp_lt_u32 s{sWAVE}, 4\n s_cbranch_scc1 {la}")
        a(f"s_cmp_lt_u32 s{sWAVE}, 7\n s_cbranch_scc1 {lb}")
        if f7: f7()
        a(f"s_branch {le}\n {la}:")
        fa()
        a(f"s_branch {le}\n {lb}:")
        fb()
        a(f"{le}:")

    if bare:
        prefetch(0, D)
        a("s_branch L_bare")
    by_class(lambda: prefetch(0, a0), lambda: prefetch(0, b0))
    t0, t1, t2 = vT + 2, vT + 3, vT + 4
    a(f"""
    v_and_b32 v{t0}, 7, v{vN}
    v_and_b32 v{t1}, 1, v{t0}
    v_lshlrev_b32 v{t1}, 4, v{t1}
    v_mov_b32 v{t2}, 0xffff
    v_lshlrev_b32 v{t1}, v{t1}, v{t2}
    v_lshrrev_b32 v{t0}, 1, v{t0}
    v_mov_b32 v{vFF}, 0xff
    """)
    for d in range(4):
        a(f"v_cmp_eq_u32 vcc, {d}, v{t0}\n s_nop 1\n v_cndmask_b32 v{vMASK+d}, 0, v{t1}, vcc")
    a(f"""
    s_waitcnt lgkmcnt(0)
    s_add_u32 s{sE}, s{sE}, 1
    s_and_b32 s28, s{sE}, 0xff
    v_mov_b32 v{vTAG}, s28
    """)
    Dv = P + 10
    A0, A1, A2, A3, A4, A5 = (P + 20 + i for i in range(6))
    a(f"""
    s_cmp_ge_u32 s{sWAVE}, 4
    s_cbranch_scc1 L_noln
    s_waitcnt vmcnt({3 + 8*a0})
    """)
    stamp(10)
    for i in range(9):
        a(f"v_lshlrev_b32 v{X+i}, 16, v{X+i}")
    a(f"v_add_f32 v{A0}, v{X}, v{X+1}")
    for i in range(2, 9):
        a(f"v_add_f32 v{A0}, v{A0}, v{X+i}")
    wavesum(a, [A0], [A1])
    a(f"v_mul_f32 v{A0}, {INV576}, v{A0}")
    for i in range(9):
        a(f"v_sub_f32 v{Dv+i}, v{X+i}, v{A0}")
    a(f"v_mul_f32 v{A2}, v{Dv}, v{Dv}")
    for i in range(1, 9):
        a(f"v_fmac_f32 v{A2}, v{Dv+i}, v{Dv+i}")
    wavesum(a, [A2], [A1])
    a(f"v_mul_f32 v{A2}, {INV576}, v{A2}")
    rbf(a, [(A0, A2)], [A1])
    a(f"v_add_f32 v{A2}, {EPS}, v{A2}")
    rbf(a, [(A2, A2)], [A1])
    a(f"v_sqrt_f32 v{A2}, v{A2}\n s_nop 0")
    rbf(a, [(A2, A2)], [A1])
    a(f"v_rcp_f32 v{A3}, v{A2}")
    for i in range(9):
        a(f"v_sub_f32 v{Dv+i}, v{X+i}, v{A0}")
    rbf(a, [(Dv, Dv+1), (Dv+2, Dv+3), (Dv+4, Dv+5), (Dv+6, Dv+7), (Dv+8, Dv+8)], [X, X+1, X+2, X+3, X+4])
    for i in range(9):
        fdiv(a, X + i, Dv + i, A3, A2, A4)
    for i in range(9):
        a(f"v_cvt_pk_bf16_f32 v{X+i}, v{X+i}, v{X+i}")
    a(f"""
    s_mul_i32 s28, s{sWAVE}, {576*4}
    v_lshlrev_b32 v{A4}, 2, v{vLANE}
    v_add_u32 v{A4}, s28, v{A4}
    """)
    for i in range(9):
        a(f"ds_write_b32 v{A4}, v{X+i} offset:{L_XD + 256*i}")
    a("L_noln:")
    a("s_waitcnt lgkmcnt(0)\n s_barrier")
    stamp(11)
    AX = P
    AO = P + 8
    QA = P + 12
    a(f"""
    v_lshrrev_b32 v{vT}, 3, v{vN}                 ; m>>3
    v_mul_u32_u24 v{vT}, 576, v{vT}
    v_add_u32 v{vT}, v{vT}, v{vG}
    v_lshlrev_b32 v{vT}, 2, v{vT}                 ; ((m>>3)*576 + g)*4
    """)
    for u in range(3):
        a(f"""
        s_lshl_b32 s28, s{sROW+u}, 2
        v_add_u32 v{vT+1}, s28, v{vT}
        ds_read_b32 v{AX+2*u}, v{vT+1} offset:{L_XD}
        ds_read_b32 v{AX+2*u+1}, v{vT+1} offset:{L_XD + 2*576*4}
        """)
    by_class(lambda: a(f"s_waitcnt vmcnt({8*a0})"), lambda: a(f"s_waitcnt vmcnt({8*b0})"), lambda: a("s_waitcnt vmcnt(0)"))
    a("s_waitcnt lgkmcnt(0)")
    stamp(12)
    for u in range(3):
        for pp in range(2):
            for d in range(4):
                a(f"v_and_b32 v{AO+d}, v{AX+2*u+pp}, v{vMASK+d}")
            a("s_nop 1")
            c = "0" if u == 0 else f"v[{QA+4*pp}:{QA+4*pp+3}]"
            a(f"v_mfma_f32_16x16x32_bf16 v[{QA+4*pp}:{QA+4*pp+3}], v[{AO}:{AO+3}], v[{vWQ+4*u}:{vWQ+4*u+3}], {c}")
            a("s_nop 1")
    a(f"""
    v_lshrrev_b32 v{vT}, 1, v{vG}
    v_lshlrev_b32 v{vT}, 9, v{vT}
    v_lshl_add_u32 v{vT}, v{vN}, 5, v{vT}
    v_and_b32 v{vT+1}, 1, v{vG}
    v_lshl_add_u32 v{vT}, v{vT+1}, 4, v{vT}
    s_nop 7
    """)
    a(f"s_lshl_b32 s28, s{sWAVE}, 11\n s_add_u32 s28, s28, {L_WG}\n v_add_u32 v{vT}, s28, v{vT}")
    for pp in range(2):
        a(f"ds_write_b128 v{vT}, v[{QA+4*pp}:{QA+4*pp+3}] offset:{pp*1024}")
    a("s_waitcnt lgkmcnt(0)\n s_barrier")
    stamp(13)
    by_class(lambda: prefetch(a0, a0 + a1), lambda: prefetch(b0, b0 + b1))
    G0 = P
    a(f"""
    s_cmp_lg_u32 s{sWAVE}, 7
    s_cbranch_scc1 L_qwait
    v_lshlrev_b32 v{vT}, 4, v{vLANE}
    v_add_u32 v{vT+1}, {L_WG}, v{vT}
    """)
    for half in range(2):
        base = G0 + 8 if half == 0 else G0 + 8
        for w in range(8):
            dst = (G0 + 4*half) if w == 0 else (G0 + 8 + 4*(w-1))
            a(f"ds_read_b128 v[{dst}:{dst+3}], v{vT+1} offset:{2048*w + 1024*half}")
        a("s_waitcnt lgkmcnt(0)")
        for w in range(1, 8):
            for r in range(4):
                a(f"v_add_f32 v{G0+4*half+r}, v{G0+4*half+r}, v{G0+8+4*(w-1)+r}")
    a(f"""
    s_lshl_b32 s28, s{sH}, 3
    s_add_u32 s28, s28, s{sJ}
    s_lshl_b32 s28, s28, 11
    s_add_u32 s28, s28, {WS_QP}
    """)
    addtag(a, range(G0, G0 + 8))
    a(f"""
    buffer_store_dwordx4 v[{G0}:{G0+3}], v{vT}, s[{sWS}:{sWS+3}], s28 offen sc1
    buffer_store_dwordx4 v[{G0+4}:{G0+7}], v{vT}, s[{sWS}:{sWS+3}], s28 offen offset:1024 sc1
    v_lshrrev_b32 v{vT+1}, 5, v{vLANE}
    v_lshlrev_b32 v{vT+1}, 11, v{vT+1}
    v_and_b32 v{vT+2}, 31, v{vLANE}
    v_lshl_add_u32 v{vT+1}, v{vT+2}, 4, v{vT+1}      ; jj*2048 + c4*16
    s_lshl_b32 s28, s{sH}, 14
    s_lshl_b32 s29, s{sB}, 9
    s_add_u32 s28, s28, s29
    s_add_u32 s28, s28, {WS_QP}
    s_add_u32 s29, s28, 4096
    s_add_u32 s30, s28, 8192
    s_add_u32 s31, s28, 12288
    s_nop 1
    """)
    G1 = P + 8
    poll_head(a, "L_qpoll")
    psleep()
    for i in range(4):
        a(f"buffer_load_dwordx4 v[{G1+4*i}:{G1+4*i+3}], v{vT+1}, s[{sWS}:{sWS+3}], s{28+i} offen sc1")
    a("s_waitcnt vmcnt(0)")
    if not no_q:
        tagcheck(a, list(range(G1, G1 + 16)), vT + 3, "L_qpoll")
    stamp(14)
    for r in range(4):
        a(f"v_add_f32 v{G1+r}, v{G1+r}, v{G1+4+r}")
        a(f"v_add_f32 v{G1+8+r}, v{G1+8+r}, v{G1+12+r}")
    for r in range(4):
        a(f"v_add_f32 v{G1+r}, v{G1+r}, v{G1+8+r}")
    xrow(a, [G1, G1+1, G1+2, G1+3], [G1+4, G1+5, G1+6, G1+7], only32=True)
    a(f"""
    v_cvt_pk_bf16_f32 v{G1+8}, v{G1}, v{G1+1}
    v_cvt_pk_bf16_f32 v{G1+9}, v{G1+2}, v{G1+3}
    v_lshlrev_b32 v{vT+2}, 3, v{vT+2}
    ds_write_b64 v{vT+2}, v[{G1+8}:{G1+9}] offset:{L_QB}
    """)
    a(f"""
    s_waitcnt lgkmcnt(0)
    L_qwait:
    s_barrier
    """)
    by_class(lambda: prefetch(a0 + a1, D), lambda: prefetch(b0 + b1, D), lambda: prefetch(0, D))
    a(f"v_lshlrev_b32 v{vT}, 4, v{vG}")
    a("L_bare:")
    for j in range(4):
        a(f"ds_read_b128 v[{vQ+4*j}:{vQ+4*j+3}], v{vT} offset:{L_QB + 64*j}")
    a(f"""
    v_mov_b32 v{vM}, 0xff800000
    v_mov_b32 v{vL}, 0
    v_mov_b32 v{vO}, 0
    v_mov_b32 v{vO+1}, 0
    v_mov_b32 v{vO+2}, 0
    v_mov_b32 v{vO+3}, 0
    s_mov_b32 s{sCNT}, s{sNT}
    s_waitcnt lgkmcnt(0)
    """)
    stamp(1)
    if stop == "q":
        a("s_branch L_fin")

    P = vP
    s0, s1, s2, s3 = vT, vT + 1, vT + 2, vT + 3
    u0, u1 = vT + 4, vT + 5
    mx, mt, al, nm = vT + 6, vT + 7, vT + 8, vT + 9
    pk = vT + 10
    Aop = vT + 14
    assert Aop % 2 == 0
    a("L_loop:")
    for s in range(D):
        kb = vSTG + 32 * s
        vb = kb + 16
        a(f"s_waitcnt vmcnt({8*(D-1)+4})")
        for j in range(4):
            c = "0" if j == 0 else f"v[{vS}:{vS+3}]"
            a(f"v_mfma_f32_16x16x32_bf16 v[{vS}:{vS+3}], v[{kb+4*j}:{kb+4*j+3}], v[{vQ+4*j}:{vQ+4*j+3}], {c}")
        nextoff()
        kloads(s)
        a("s_nop 3")
        if no_compute:
            a(f"s_waitcnt vmcnt({8*(D-1)+4})")
            vloads(s)
            a(f"""
            s_sub_u32 s{sCNT}, s{sCNT}, 1
            s_cmp_eq_u32 s{sCNT}, 0
            s_cbranch_scc1 L_loop_end
            """)
            continue
        a(f"""
        v_cvt_pk_bf16_f32 v{u0}, v{vS}, v{vS+1}
        v_cvt_pk_bf16_f32 v{u1}, v{vS+2}, v{vS+3}
        v_lshlrev_b32 v{s0}, 16, v{u0}
        v_and_b32 v{s1}, s{sHI}, v{u0}
        v_lshlrev_b32 v{s2}, 16, v{u1}
        v_and_b32 v{s3}, s{sHI}, v{u1}
        v_mul_f32 v{s0}, s{sSCALE}, v{s0}
        v_mul_f32 v{s1}, s{sSCALE}, v{s1}
        v_mul_f32 v{s2}, s{sSCALE}, v{s2}
        v_mul_f32 v{s3}, s{sSCALE}, v{s3}
        v_cvt_pk_bf16_f32 v{u0}, v{s0}, v{s1}
        v_cvt_pk_bf16_f32 v{u1}, v{s2}, v{s3}
        v_lshlrev_b32 v{s0}, 16, v{u0}
        v_and_b32 v{s1}, s{sHI}, v{u0}
        v_lshlrev_b32 v{s2}, 16, v{u1}
        v_and_b32 v{s3}, s{sHI}, v{u1}
        v_max3_f32 v{mx}, v{s0}, v{s1}, v{s2}
        v_max3_f32 v{mx}, v{mx}, v{s3}, v{vM}
        v_mov_b32 v{mt}, v{mx}
        s_nop 1
        v_permlane16_swap_b32 v{mx}, v{mt}
        s_nop 1
        v_max_f32 v{mx}, v{mx}, v{mt}
        v_mov_b32 v{mt}, v{mx}
        s_nop 1
        v_permlane32_swap_b32 v{mx}, v{mt}
        s_nop 1
        v_max_f32 v{mx}, v{mx}, v{mt}
        v_sub_f32 v{al}, v{vM}, v{mx}
        v_mul_f32 v{nm}, s{sL2E}, v{mx}
        v_mul_f32 v{al}, s{sL2E}, v{al}
        v_fma_f32 v{s0}, v{s0}, s{sL2E}, -v{nm}
        v_fma_f32 v{s1}, v{s1}, s{sL2E}, -v{nm}
        v_fma_f32 v{s2}, v{s2}, s{sL2E}, -v{nm}
        v_fma_f32 v{s3}, v{s3}, s{sL2E}, -v{nm}
        v_exp_f32 v{al}, v{al}
        v_exp_f32 v{s0}, v{s0}
        v_exp_f32 v{s1}, v{s1}
        v_exp_f32 v{s2}, v{s2}
        v_exp_f32 v{s3}, v{s3}
        v_mov_b32 v{vM}, v{mx}
        v_mul_f32 v{vO}, v{vO}, v{al}
        v_mul_f32 v{vO+1}, v{vO+1}, v{al}
        v_mul_f32 v{vO+2}, v{vO+2}, v{al}
        v_mul_f32 v{vO+3}, v{vO+3}, v{al}
        v_cvt_pk_bf16_f32 v{pk}, v{s0}, v{s0}
        v_cvt_pk_bf16_f32 v{pk+1}, v{s1}, v{s1}
        v_cvt_pk_bf16_f32 v{pk+2}, v{s2}, v{s2}
        v_cvt_pk_bf16_f32 v{pk+3}, v{s3}, v{s3}
        v_fma_f32 v{vL}, v{vL}, v{al}, v{s0}
        v_add_f32 v{s1}, v{s1}, v{s2}
        v_add_f32 v{vL}, v{vL}, v{s3}
        v_add_f32 v{vL}, v{vL}, v{s1}
        s_waitcnt vmcnt({8*(D-1)+4})
        """)
        for r in range(4):
            ao = Aop + 4 * (r & 1)
            for d in range(4):
                a(f"v_and_b32 v{ao+d}, v{pk+r}, v{vMASK+d}")
            a("s_nop 1")
            a(f"v_mfma_f32_16x16x32_bf16 v[{vO}:{vO+3}], v[{ao}:{ao+3}], v[{vb+4*r}:{vb+4*r+3}], v[{vO}:{vO+3}]")
        vloads(s)
        a(f"""
        s_sub_u32 s{sCNT}, s{sCNT}, 1
        s_cmp_eq_u32 s{sCNT}, 0
        s_cbranch_scc1 L_loop_end
        """)
    a("s_branch L_loop\n L_loop_end:")
    stamp(2)
    xrow(a, [vL], [vT])
    a(f"""
    s_nop 7
    v_lshlrev_b32 v{vT}, 5, v{vN}                 ; c*32
    v_and_b32 v{vT+1}, 1, v{vG}
    v_lshl_add_u32 v{vT}, v{vT+1}, 4, v{vT}       ; + (g&1)*16
    s_lshl_b32 s28, s{sWAVE}, 9
    v_add_u32 v{vT}, s28, v{vT}
    ds_write_b128 v{vT}, v[{vO}:{vO+3}] offset:{L_MRG}
    s_lshl_b32 s28, s{sWAVE}, 3
    v_mov_b32 v{vT+2}, s28
    v_mov_b32 v{vT+4}, v{vM}
    v_mov_b32 v{vT+5}, v{vL}
    ds_write_b64 v{vT+2}, v[{vT+4}:{vT+5}] offset:{L_ML}
    """)

    def slice_idx():
        a(f"""
        s_mov_b32 s29, s{sSLICE}
        v_lshrrev_b32 v{vT}, 2, v{vLANE}
        v_mul_u32_u24 v{vT}, 9216, v{vT}
        v_and_b32 v{vT+1}, 3, v{vLANE}
        v_lshl_add_u32 v{vT}, v{vT+1}, 4, v{vT}
        v_lshlrev_b32 v{vT+1}, 4, v{vLANE}
        """)

    def dma_mat(which, sq):
        cnt = 9
        if which in "gu":
            ptr, lds0 = (pWG, L_WG) if which == "g" else (pWU, L_WU)
            srd(a, sT, ptr, 576 * 9216)
            a(f"""
            s_mul_i32 s28, s{sq}, {cnt*16*9216}
            s_lshl_b32 s30, s29, 6
            s_add_u32 s28, s28, s30
            s_mul_i32 s31, s{sq}, {cnt*1024}
            """)
            for i in range(cnt):
                a(f"s_add_u32 m0, s31, {lds0 + i*1024}\n s_nop 0")
                a(f"buffer_load_dwordx4 v{vT}, s[{sT}:{sT+3}], s28 offen {wflags} lds")
                a(f"s_add_u32 s28, s28, {16*9216}")
        else:
            srd(a, sT, pWD, 4608 * 1152)
            a(f"""
            s_mul_i32 s28, s29, {32*1152}
            s_mul_i32 s31, s{sq}, {cnt*1024}
            s_add_u32 s28, s28, s31
            """)
            for i in range(cnt):
                a(f"s_add_u32 m0, s31, {L_WD + i*1024}\n s_nop 0")
                a(f"buffer_load_dwordx4 v{vT+1}, s[{sT}:{sT+3}], s28 offen {wflags} lds")
                a(f"s_add_u32 s28, s28, 1024")

    def wo_dma(nw):
        ngrp = 16 // nw
        a(f"""
        s_mov_b32 s29, s{sIDX}
        s_mul_i32 s30, s29, 21846
        s_lshr_b32 s30, s30, 16            ; h'
        s_mul_i32 s31, s30, 3
        s_sub_u32 s31, s29, s31            ; c
        """)
        srd(a, sT, pWO, 4096 * 1152)
        for q in range(3):
            a(f"""
            v_add_u32 v{vT+3}, {64*q}, v{vLANE}
            v_mul_u32_u24 v{vT+4}, 2731, v{vT+3}
            v_lshrrev_b32 v{vT+4}, 16, v{vT+4}          ; row = l0/24
            v_mul_u32_u24 v{vT+5}, 24, v{vT+4}
            v_sub_u32 v{vT+5}, v{vT+3}, v{vT+5}         ; piece
            v_mul_u32_u24 v{vT+4}, 1152, v{vT+4}
            v_lshl_add_u32 v{vT+q}, v{vT+5}, 4, v{vT+4}
            """)
        a(f"""
        s_lshl_b32 s28, s30, 7
        s_mul_i32 s29, s{sWAVE}, {8*ngrp}
        s_add_u32 s28, s28, s29
        s_mul_i32 s28, s28, 1152
        s_mul_i32 s31, s31, 384
        s_add_u32 s28, s28, s31
        s_mul_i32 s31, s{sWAVE}, {3*ngrp*1024}
        """)
        for grp in range(ngrp):
            for q in range(3):
                a(f"s_add_u32 m0, s31, {L_WG + (grp*3+q)*1024}\n s_nop 0")
                a(f"buffer_load_dwordx4 v{vT+q}, s[{sT}:{sT+3}], s28 offen {wflags} lds")
            a(f"s_add_u32 s28, s28, {8*1152}")

    def weights_early():
        lab_wo, lab_done = a.label("L_wwo"), a.label("L_wdone")
        a(f"s_cmp_lg_u32 s{sROLE}, 0\n s_cbranch_scc1 {lab_wo}")
        if early:
            slice_idx()
            for m in early:
                dma_mat(m, sWAVE)
        a(f"s_branch {lab_done}")
        a(f"{lab_wo}:")
        a(f"s_cmp_eq_u32 s{sROLE}, 2\n s_cbranch_scc1 {lab_done}")
        if not wo_late:
            wo_dma(4)
        a(f"{lab_done}:")

    def weights_late():
        late = [m for m in "gud" if m not in early]
        if not late:
            return
        slice_idx()
        sQ = 73
        a(f"s_and_b32 s{sQ}, s{sWAVE}, 3")
        lo, hi = late[:(len(late) + 1) // 2], late[(len(late) + 1) // 2:]
        lh, le = a.label("L_lateh"), a.label("L_latee")
        a(f"s_cmp_ge_u32 s{sWAVE}, 4\n s_cbranch_scc1 {lh}")
        for m in lo:
            dma_mat(m, sQ)
        a(f"s_branch {le}\n {lh}:")
        for m in hi:
            dma_mat(m, sQ)
        a(f"{le}:")
        a("s_waitcnt vmcnt(0)\n s_barrier")

    a(f"s_cmp_ge_u32 s{sWAVE}, 4\n s_cbranch_scc1 L_now")
    if not no_w:
        weights_early()
    if codepf:
        code_prefetch(4, "L_tail0", "L_code_end", vT + 8)
    if dry:
        a(f"""
        s_waitcnt vmcnt(0) lgkmcnt(0)
        s_mov_b32 s{sDRY}, 1
        s_mov_b32 s{sWS+2}, 0
        s_mov_b32 s{sOUTN}, 0
        s_branch L_tail_dry
        L_dry_done:
        s_mov_b32 s{sDRY}, 0
        s_mov_b32 s{sWS+2}, {WS_SIZE}
        s_mov_b32 s{sOUTN}, 4608
        s_mov_b64 exec, -1
        """)
    a("L_now:")
    a("L_tail0:")
    a("s_waitcnt vmcnt(0) lgkmcnt(0)\n s_barrier")
    a("L_tail_dry:")
    mark_tail = len(a.L)
    stamp(3)

    MO = P
    MM = P + 32
    a(f"s_cmp_lg_u32 s{sWAVE}, 0\n s_cbranch_scc1 L_nomerge")
    a(f"""
    v_and_b32 v{vT}, 31, v{vLANE}
    v_lshlrev_b32 v{vT}, 4, v{vT}
    v_mov_b32 v{vT+1}, 0
    """)
    for i in range(4):
        a(f"ds_read_b128 v[{MM+4*i}:{MM+4*i+3}], v{vT+1} offset:{L_ML + 16*i}")
    for w in range(8):
        a(f"ds_read_b128 v[{MO+4*w}:{MO+4*w+3}], v{vT} offset:{L_MRG + 512*w}")
    a("s_waitcnt lgkmcnt(8)")
    ms = [MM + 2 * w for w in range(8)]
    mstar = vT + 2
    a(f"v_max3_f32 v{mstar}, v{ms[0]}, v{ms[1]}, v{ms[2]}")
    a(f"v_max3_f32 v{mstar}, v{mstar}, v{ms[3]}, v{ms[4]}")
    a(f"v_max3_f32 v{mstar}, v{mstar}, v{ms[5]}, v{ms[6]}")
    a(f"v_max_f32 v{mstar}, v{mstar}, v{ms[7]}")
    for w in range(8):
        a(f"v_sub_f32 v{ms[w]}, v{ms[w]}, v{mstar}")
    for w in range(8):
        a(f"v_mul_f32 v{ms[w]}, s{sL2E}, v{ms[w]}")
    for w in range(8):
        a(f"v_exp_f32 v{ms[w]}, v{ms[w]}")
    Lt = vT + 3
    a(f"s_nop 0\n v_mul_f32 v{Lt}, v{ms[0]}, v{ms[0]+1}")
    for w in range(1, 8):
        a(f"v_fmac_f32 v{Lt}, v{ms[w]}, v{ms[w]+1}")
    a("s_waitcnt lgkmcnt(0)")
    R = vT + 6
    assert R % 2 == 0
    for r in range(4):
        a(f"v_mul_f32 v{R+r}, v{ms[0]}, v{MO+r}")
    for w in range(1, 8):
        for r in range(4):
            a(f"v_fmac_f32 v{R+r}, v{ms[w]}, v{MO+4*w+r}")
    a(f"""
    v_cmp_eq_u32 vcc, 32, v{vLANE}
    v_mov_b32 v{vT+4}, 0
    s_nop 0
    v_cndmask_b32 v{R}, v{R}, v{mstar}, vcc
    v_cndmask_b32 v{R+1}, v{R+1}, v{Lt}, vcc
    v_cndmask_b32 v{R+2}, v{R+2}, v{vT+4}, vcc
    v_cndmask_b32 v{R+3}, v{R+3}, v{vT+4}, vcc
    """)
    addtag(a, range(R, R + 4))
    a(f"""
    v_lshlrev_b32 v{vT}, 4, v{vLANE}
    s_mul_i32 s28, s{sW}, 640
    s_add_u32 s28, s28, {WS_AP}
    v_cmp_gt_u32 vcc, 33, v{vLANE}
    s_and_saveexec_b64 s[30:31], vcc
    buffer_store_dwordx4 v[{R}:{R+3}], v{vT}, s[{sWS}:{sWS+3}], s28 offen sc1
    s_mov_b64 exec, s[30:31]
    L_nomerge:
    """)
    stamp(4)
    if stop == "attn":
        a("s_branch L_fin")

    a(f"s_cmp_eq_u32 s{sROLE}, 0\n s_cbranch_scc1 L_stageB")
    a(f"s_cmp_eq_u32 s{sROLE}, 2\n s_cbranch_scc1 L_reduce")
    if wo_late and not no_w:
        wo_dma(8)
        a("s_waitcnt vmcnt(0)\n s_barrier")
    a(f"""
    s_mov_b32 s29, s{sIDX}
    s_mul_i32 s{sH}, s29, 21846
    s_lshr_b32 s{sH}, s{sH}, 16         ; h'
    s_mul_i32 s31, s{sH}, 3
    s_sub_u32 s{sJ}, s29, s31           ; c
    """)
    WB = 64
    a(f"""
    v_lshrrev_b32 v{vT}, 2, v{vN}                    ; r
    v_lshl_add_u32 v{vT}, v{vG}, 3, v{vT}            ; 8g + r
    v_mul_u32_u24 v{vT}, 384, v{vT}
    v_and_b32 v{vT+1}, 3, v{vLANE}
    v_lshl_add_u32 v{vT}, v{vT+1}, 3, v{vT}          ; + cc*8
    s_lshl_b32 s28, s{sWAVE}, 5
    s_add_u32 s28, s28, {L_WG}
    v_add_u32 v{vT}, s28, v{vT}                      ; + T*32 + base
    """)
    for ks in range(4):
        a(f"ds_read_b64_tr_b16 v[{WB+4*ks}:{WB+4*ks+1}], v{vT} offset:{ks*32*384}")
        a(f"ds_read_b64_tr_b16 v[{WB+4*ks+2}:{WB+4*ks+3}], v{vT} offset:{ks*32*384 + 4*384}")
    a(f"s_cmp_ge_u32 s{sWAVE}, 4\n s_cbranch_scc1 L_wo_gather_skip")
    a("s_waitcnt lgkmcnt(0)")
    for ks in range(4):
        a(f"ds_read_b64_tr_b16 v[{WB+16+4*ks}:{WB+16+4*ks+1}], v{vT} offset:{ks*32*384 + 256}")
        a(f"ds_read_b64_tr_b16 v[{WB+16+4*ks+2}:{WB+16+4*ks+3}], v{vT} offset:{ks*32*384 + 4*384 + 256}")
    GA = P
    a(f"""
    v_lshrrev_b32 v{vT+1}, 5, v{vLANE}               ; s
    v_mul_u32_u24 v{vT+2}, 640, v{vT+1}
    v_and_b32 v{vT+3}, 31, v{vLANE}                  ; c4
    v_lshl_add_u32 v{vT+4}, v{vT+3}, 4, v{vT+2}      ; s*640 + c4*16
    v_add_u32 v{vT+5}, 512, v{vT+2}                  ; s*640 + 512
    s_lshl_b32 s28, s{sWAVE}, 6
    s_lshl_b32 s29, s{sH}, 1
    s_add_u32 s28, s28, s29
    s_mul_i32 s28, s28, 640
    s_add_u32 s28, s28, {WS_AP}
    """)
    GAs = [96 + 8 * k for k in range(3)]
    def ap_issue(k):
        a(f"buffer_load_dwordx4 v[{GAs[k]}:{GAs[k]+3}], v{vT+4}, s[{sWS}:{sWS+3}], s28 offen sc1")
        a(f"buffer_load_dwordx2 v[{GAs[k]+4}:{GAs[k]+5}], v{vT+5}, s[{sWS}:{sWS+3}], s28 offen sc1")
    def ap_consume(k):
        for r in range(6):
            a(f"v_mov_b32 v{GA+r}, v{GAs[k]+r}")
    ppoll(a, "L_apoll", ns[0], 2, ap_issue, lambda k: list(range(GAs[k], GAs[k] + 6)), vT + 6, ap_consume, pollsleep, stg)
    tstamp(9)
    mm, ll = GA + 4, GA + 5
    a(f"""
    v_and_b32 v{mm}, s{sHI}, v{mm}
    v_mov_b32 v{vT+6}, v{mm}
    v_mov_b32 v{vT+7}, v{mm}
    s_nop 1
    v_permlane32_swap_b32 v{vT+6}, v{vT+7}
    s_nop 1
    v_max_f32 v{vT+6}, v{vT+6}, v{vT+7}             ; m*
    v_sub_f32 v{mm}, v{mm}, v{vT+6}
    v_mul_f32 v{mm}, s{sL2E}, v{mm}
    v_exp_f32 v{mm}, v{mm}                           ; a
    s_nop 0
    v_mul_f32 v{ll}, v{ll}, v{mm}
    v_mul_f32 v{GA}, v{GA}, v{mm}
    v_mul_f32 v{GA+1}, v{GA+1}, v{mm}
    v_mul_f32 v{GA+2}, v{GA+2}, v{mm}
    v_mul_f32 v{GA+3}, v{GA+3}, v{mm}
    """)
    xrow(a, [GA, GA+1, GA+2, GA+3, ll], [GA+8, GA+9, GA+10, GA+11, GA+12], only32=True)
    a(f"v_rcp_f32 v{vT+6}, v{ll}\n s_nop 0")
    for r in range(4):
        fdiv(a, GA + 8 + r, GA + r, vT + 6, ll, vT + 7)
    a(f"""
    v_cvt_pk_bf16_f32 v{GA+12}, v{GA+8}, v{GA+9}
    v_cvt_pk_bf16_f32 v{GA+13}, v{GA+10}, v{GA+11}
    v_lshlrev_b32 v{vT+3}, 3, v{vT+3}
    s_lshl_b32 s28, s{sWAVE}, 8
    v_add_u32 v{vT+3}, s28, v{vT+3}
    ds_write_b64 v{vT+3}, v[{GA+12}:{GA+13}] offset:{L_OB}
    L_wo_gather_skip:
    s_waitcnt lgkmcnt(0)
    s_barrier
    """)
    AOP = P + 16
    a(f"""
    v_and_b32 v{vT}, 3, v{vN}
    v_lshlrev_b32 v{vT}, 8, v{vT}
    v_lshl_add_u32 v{vT}, v{vG}, 4, v{vT}           ; (m&3)*256 + g*16
    """)
    for ks in range(4):
        a(f"ds_read_b128 v[{AOP+4*ks}:{AOP+4*ks+3}], v{vT} offset:{L_OB + 64*ks}")
    YD = P + 32
    a("s_waitcnt lgkmcnt(0)")
    for ks in range(4):
        c = "0" if ks == 0 else f"v[{YD}:{YD+3}]"
        a(f"v_mfma_f32_16x16x32_bf16 v[{YD}:{YD+3}], v[{AOP+4*ks}:{AOP+4*ks+3}], v[{WB+4*ks}:{WB+4*ks+3}], {c}")
    a(f"s_cmp_ge_u32 s{sWAVE}, 4\n s_cbranch_scc1 L_wo_one")
    for ks in range(4):
        c = "0" if ks == 0 else f"v[{YD+4}:{YD+7}]"
        a(f"v_mfma_f32_16x16x32_bf16 v[{YD+4}:{YD+7}], v[{AOP+4*ks}:{AOP+4*ks+3}], v[{WB+16+4*ks}:{WB+16+4*ks+3}], {c}")
    a("L_wo_one:")
    a(f"""
    s_mul_i32 s28, s{sH}, 9216
    s_mul_i32 s29, s{sJ}, {192*16}
    s_add_u32 s28, s28, s29
    s_lshl_b32 s29, s{sWAVE}, 8
    s_add_u32 s28, s28, s29
    s_add_u32 s28, s28, {WS_Y}
    v_lshlrev_b32 v{vT}, 4, v{vN}
    s_nop 7
    """)
    addtag(a, range(YD, YD + 4))
    a(f"""
    s_mov_b64 exec, 0xffff
    buffer_store_dwordx4 v[{YD}:{YD+3}], v{vT}, s[{sWS}:{sWS+3}], s28 offen sc1
    s_mov_b64 exec, -1
    s_cmp_ge_u32 s{sWAVE}, 4
    s_cbranch_scc1 L_reduce
    """)
    addtag(a, range(YD + 4, YD + 8))
    a(f"""
    s_mov_b64 exec, 0xffff
    buffer_store_dwordx4 v[{YD+4}:{YD+7}], v{vT}, s[{sWS}:{sWS+3}], s28 offen offset:2048 sc1
    s_mov_b64 exec, -1
    """)
    a("L_reduce:")
    tstamp(10)
    sTASK = 72
    a(f"""
    s_mov_b32 s{sTASK}, s{sIDX}
    s_mul_i32 s28, s{sWAVE}, 112
    s_add_u32 s{sTASK}, s{sTASK}, s28
    s_cmp_ge_u32 s{sTASK}, 144
    s_cbranch_scc1 L_fin
    s_cmp_ge_u32 s{sWAVE}, 2
    s_cbranch_scc1 L_fin
    """)
    XR = P
    srd(a, sT, pX, 4608)
    a(f"""
    v_and_b32 v{vT}, 3, v{vLANE}                     ; col
    v_lshlrev_b32 v{vT+1}, 1, v{vT}
    s_lshl_b32 s28, s{sTASK}, 3
    """)
    for b in range(4):
        a(f"buffer_load_ushort v{XR+b}, v{vT+1}, s[{sT}:{sT+3}], s28 offen offset:{1152*b}")
    a(f"""
    v_lshrrev_b32 v{vT+2}, 2, v{vLANE}               ; hh
    v_mul_u32_u24 v{vT+2}, 9216, v{vT+2}
    v_lshl_add_u32 v{vT+2}, v{vT}, 4, v{vT+2}
    s_lshl_b32 s28, s{sTASK}, 6
    s_add_u32 s28, s28, {WS_Y}
    s_add_u32 s29, s28, {16*9216}
    """)
    YG = P + 4
    YGs = [P + 60 + 8 * k for k in range(3)]
    def y_issue(k):
        a(f"buffer_load_dwordx4 v[{YGs[k]}:{YGs[k]+3}], v{vT+2}, s[{sWS}:{sWS+3}], s28 offen sc1")
        a(f"buffer_load_dwordx4 v[{YGs[k]+4}:{YGs[k]+7}], v{vT+2}, s[{sWS}:{sWS+3}], s29 offen sc1")
    def y_consume(k):
        for r in range(4):
            a(f"v_add_f32 v{YG+r}, v{YGs[k]+r}, v{YGs[k]+4+r}")
    ppoll(a, "L_ypoll", ns[1], 2, y_issue, lambda k: list(range(YGs[k], YGs[k] + 8)), vT + 3, y_consume, pollsleep, stg,
          probe=((lambda: a(f"buffer_load_dword v{YGs[0]}, v{vT+2}, s[{sWS}:{sWS+3}], s28 offen sc1")), YGs[0], "1") if probe[1] else None, presleep=presl[1])
    tstamp(11)
    if canB:
        a(f"""
        s_lshl_b32 s30, s{sTASK}, 7
        s_add_u32 s30, s30, {WS_CANB}
        v_mov_b32 v{vT+4}, 0
        s_mov_b64 exec, 1
        buffer_store_dword v{vTAG}, v{vT+4}, s[{sWS}:{sWS+3}], s30 offen sc1
        s_mov_b64 exec, -1
        """)
    hs = [YG, YG + 1, YG + 2, YG + 3]
    row16(a, hs, ctrls=("row_ror:4", "row_ror:8"))
    xrow(a, hs, [YG + 4, YG + 5, YG + 6, YG + 7])
    rbf(a, [(YG, YG+1), (YG+2, YG+3)], [YG+4, YG+5])
    for b in range(4):
        a(f"v_lshlrev_b32 v{XR+b}, 16, v{XR+b}")
        a(f"v_add_f32 v{YG+b}, v{YG+b}, v{XR+b}")
    rbf(a, [(YG, YG+1), (YG+2, YG+3)], [YG+4, YG+5])
    HK = P + 16
    for b in range(4):
        a(f"v_mov_b32 v{HK+b}, v{YG+b}")
    addtag(a, hs)
    a(f"""
    s_lshl_b32 s28, s{sTASK}, 6
    s_add_u32 s28, s28, {WS_HB}
    v_lshlrev_b32 v{vT+3}, 4, v{vT}
    s_mov_b64 exec, 0xf
    buffer_store_dwordx4 v[{YG}:{YG+3}], v{vT+3}, s[{sWS}:{sWS+3}], s28 offen sc1
    s_mov_b64 exec, -1
    """)
    stamp(7)
    ZG = P + 20
    a(f"""
    s_lshl_b32 s28, s{sTASK}, 6
    s_add_u32 s28, s28, {WS_Z}
    """)
    ZGs = [64, 100, 136]
    sPZ = 73
    if canC:
        a(f"s_lshl_b32 s{sPZ}, s{sTASK}, 7\n s_add_u32 s{sPZ}, s{sPZ}, {WS_CANC}")
    else:
        a(f"s_mul_i32 s{sPZ}, s{sTASK}, 9216\n s_add_u32 s{sPZ}, s{sPZ}, s28")
    ZS = [4, 5, 6, 7, 62, 63, 66, 67, 71]
    for i in range(9):
        a(f"s_add_u32 s{ZS[i]}, s28, {i*16*9216}")
    def z_issue(k):
        for i in range(9):
            a(f"buffer_load_dwordx4 v[{ZGs[k]+4*i}:{ZGs[k]+4*i+3}], v{vT+2}, s[{sWS}:{sWS+3}], s{ZS[i]} offen sc1")
    def z_consume(k):
        z = ZGs[k]
        for (x, y) in ((0, 1), (2, 3), (4, 5), (6, 7), (0, 2), (4, 6), (0, 4)):
            for r in range(0, 4, 2):
                a(f"v_pk_add_f32 v[{z+4*x+r}:{z+4*x+r+1}], v[{z+4*x+r}:{z+4*x+r+1}], v[{z+4*y+r}:{z+4*y+r+1}]")
        for r in range(0, 4, 2):
            a(f"v_pk_add_f32 v[{ZG+r}:{ZG+r+1}], v[{z+r}:{z+r+1}], v[{z+32+r}:{z+32+r+1}]")
    ppoll(a, "L_zpoll", ns[3], 9, z_issue, lambda k: list(range(ZGs[k], ZGs[k] + 36)), vT + 3, z_consume, pollsleep, stg,
          probe=((lambda: a(f"buffer_load_dword v{ZGs[0]}, v{vT+2}, s[{sWS}:{sWS+3}], s{sPZ} offen sc1")), ZGs[0], "1") if probe[3] else None, presleep=presl[3])
    tstamp(12)
    zs = [ZG, ZG + 1, ZG + 2, ZG + 3]
    row16(a, zs, ctrls=("row_ror:4", "row_ror:8"))
    xrow(a, zs, [ZG + 4, ZG + 5, ZG + 6, ZG + 7])
    rbf(a, [(ZG, ZG+1), (ZG+2, ZG+3)], [ZG+4, ZG+5])
    for b in range(4):
        a(f"v_add_f32 v{ZG+b}, v{ZG+b}, v{HK+b}")
    a(f"v_cvt_pk_bf16_f32 v{ZG+4}, v{ZG}, v{ZG+1}")
    a(f"v_cvt_pk_bf16_f32 v{ZG+5}, v{ZG+2}, v{ZG+3}")
    srd(a, sT, pOUT, f"s{sOUTN}")
    a(f"""
    s_lshl_b32 s28, s{sTASK}, 3
    s_mov_b64 exec, 0xf
    buffer_store_short v{ZG+4}, v{vT+1}, s[{sT}:{sT+3}], s28 offen {outfl}
    buffer_store_short_d16_hi v{ZG+4}, v{vT+1}, s[{sT}:{sT+3}], s28 offen offset:1152 {outfl}
    buffer_store_short v{ZG+5}, v{vT+1}, s[{sT}:{sT+3}], s28 offen offset:2304 {outfl}
    buffer_store_short_d16_hi v{ZG+5}, v{vT+1}, s[{sT}:{sT+3}], s28 offen offset:3456 {outfl}
    s_mov_b64 exec, -1
    s_cmp_lg_u32 s{sTASK}, 0
    s_cbranch_scc1 L_fin
    v_mov_b32 v{ZG+6}, s{sE}
    v_mov_b32 v{ZG+7}, 0
    s_mov_b64 exec, 1
    buffer_store_dword v{ZG+6}, v{ZG+7}, s[{sWS}:{sWS+3}], 0 offen sc1
    s_mov_b64 exec, -1
    s_branch L_fin
    """)

    a("L_stageB:")
    if gate:
        a(f"s_cmp_lg_u32 s{sWAVE}, 1\n s_cbranch_scc1 L_gate_done")
        a(f"""
        v_mul_u32_u24 v{vT}, 640, v{vLANE}
        s_mov_b32 s28, {WS_AP + 512}
        s_mov_b32 s29, {WS_AP + 512 + 64*640}
        s_mov_b32 s30, {WS_AP + 512 + 128*640}
        s_mov_b32 s31, {WS_AP + 512 + 192*640}
        """)
        poll_head(a, "L_gpoll")
        for i in range(4):
            a(f"buffer_load_dword v{vT+2+i}, v{vT}, s[{sWS}:{sWS+3}], s{28+i} offen sc1")
        a("s_waitcnt vmcnt(0)")
        tagcheck(a, [vT+2, vT+3, vT+4, vT+5], vT + 6, "L_gpoll")
        a("L_gate_done:\n s_barrier")
    a(f"""
    s_cmp_lg_u32 s{sWAVE}, 7
    s_cbranch_scc1 L_noones
    v_mov_b32 v{P}, 0x3f803f80
    v_mov_b32 v{P+1}, 0x3f803f80
    v_mov_b32 v{P+2}, 0x3f803f80
    v_mov_b32 v{P+3}, 0x3f803f80
    v_lshlrev_b32 v{vT}, 4, v{vLANE}
    ds_write_b128 v{vT}, v[{P}:{P+3}] offset:{L_HB + 4*1152}
    s_mov_b64 exec, 0xff
    ds_write_b128 v{vT}, v[{P}:{P+3}] offset:{L_HB + 4*1152 + 1024}
    s_mov_b64 exec, -1
    L_noones:
    """)
    if not no_w:
        a(f"s_cmp_eq_u32 s{sDRY}, 1\n s_cbranch_scc1 L_skip_late")
        weights_late()
        a("L_skip_late:")
    stamp(15)
    BB = 64
    WDd = 100
    a(f"""
    v_lshrrev_b32 v{vT}, 2, v{vN}
    v_lshl_add_u32 v{vT}, v{vG}, 3, v{vT}            ; 8g + r
    v_and_b32 v{vT+1}, 3, v{vLANE}                   ; cc
    v_lshlrev_b32 v{vT+2}, 6, v{vT}
    v_lshl_add_u32 v{vT+2}, v{vT+1}, 3, v{vT+2}      ; (8g+r)*64 + cc*8
    s_and_b32 s28, s{sWAVE}, 1
    s_lshl_b32 s28, s28, 5                           ; t*32
    s_bfe_u32 s29, s{sWAVE}, 0x10001
    s_mul_i32 s29, s29, {L_WU - L_WG}
    s_add_u32 s28, s28, s29
    s_add_u32 s28, s28, {L_WG}
    s_lshr_b32 s29, s{sWAVE}, 2
    s_mul_i32 s29, s29, {9*2048}
    s_add_u32 s28, s28, s29
    v_add_u32 v{vT+2}, s28, v{vT+2}
    """)
    for ks in range(9):
        a(f"ds_read_b64_tr_b16 v[{BB+4*ks}:{BB+4*ks+1}], v{vT+2} offset:{ks*2048}")
        a(f"ds_read_b64_tr_b16 v[{BB+4*ks+2}:{BB+4*ks+3}], v{vT+2} offset:{ks*2048+256}")
        if ks == 5:
            a("s_waitcnt lgkmcnt(0)")
    a(f"""
    v_mul_u32_u24 v{vT+3}, 1152, v{vT}
    v_lshl_add_u32 v{vT+3}, v{vT+1}, 3, v{vT+3}
    s_lshl_b32 s28, s{sWAVE}, 5
    s_add_u32 s28, s28, {L_WD}
    v_add_u32 v{vT+3}, s28, v{vT+3}
    s_waitcnt lgkmcnt(0)
    """)
    for i in range(5):
        if i == 4:
            a(f"s_cmp_ge_u32 s{sWAVE}, 4\n s_cbranch_scc1 L_no5th")
        a(f"ds_read_b64_tr_b16 v[{WDd+4*i}:{WDd+4*i+1}], v{vT+3} offset:{i*256}")
        a(f"ds_read_b64_tr_b16 v[{WDd+4*i+2}:{WDd+4*i+3}], v{vT+3} offset:{i*256 + 4*1152}")
    a("L_no5th:")
    aH, aA, aG, aR, aF1, aF2, aF3, aW = (vT + 4 + i for i in range(8))
    aP = vT + 12
    a(f"""
    s_lshl_b32 s28, s{sWAVE}, 7
    v_lshlrev_b32 v{aH}, 1, v{vLANE}
    v_add_u32 v{aH}, s28, v{aH}
    v_and_b32 v{aA}, 3, v{vN}
    v_cmp_eq_u32 vcc, 4, v{vN}
    v_mov_b32 v{aG}, 4
    s_lshr_b32 s28, s{sWAVE}, 2
    v_cndmask_b32 v{aA}, v{aA}, v{aG}, vcc           ; row(m)
    v_mul_u32_u24 v{aA}, 1152, v{aA}
    s_mul_i32 s28, s28, {9*64}
    v_lshl_add_u32 v{aA}, v{vG}, 4, v{aA}
    v_add_u32 v{aA}, s28, v{aA}
    s_lshl_b32 s28, s{sWAVE}, 10
    v_lshlrev_b32 v{aG}, 4, v{vLANE}
    v_add_u32 v{aG}, s28, v{aG}
    s_lshl_b32 s28, s{sWAVE}, 8
    v_lshlrev_b32 v{aR}, 4, v{vN}
    v_add_u32 v{aR}, s28, v{aR}                      ; wave*256 + n*16
    v_lshrrev_b32 v{aW}, 2, v{vLANE}                 ; f'
    v_and_b32 v{aF3}, 3, v{vLANE}                    ; b
    s_lshl_b32 s28, s{sWAVE}, 10
    v_lshlrev_b32 v{aF2}, 4, v{aW}
    v_add_u32 v{aF2}, s28, v{aF2}                    ; tile*1024 + f'*16
    v_lshl_add_u32 v{aF1}, v{aF3}, 2, v{aF2}         ; + b*4
    s_lshl_b32 s28, s{sWAVE}, 5
    v_lshlrev_b32 v{aW}, 1, v{aW}
    v_add_u32 v{aW}, s28, v{aW}                      ; (tile*16 + f')*2
    v_lshl_add_u32 v{aW}, v{aF3}, 6, v{aW}           ; + b*64
    v_lshlrev_b32 v{vT}, 4, v{aF3}                   ; b*16
    v_mov_b32 v{vT+1}, 64
    v_and_b32 v{vT+2}, 4, v{vLANE}
    v_cmp_ne_u32 vcc, 0, v{vT+2}
    v_lshrrev_b32 v{vT+2}, 3, v{vLANE}
    v_lshlrev_b32 v{vT+2}, 8, v{vT+2}                ; (l>>3)*256
    v_cndmask_b32 v{vT}, v{vT}, v{vT+1}, vcc
    v_lshl_add_u32 v{aF3}, v{aF3}, 2, v{vT}
    v_add_u32 v{aF3}, v{aF3}, v{vT+2}
    s_mov_b32 s64, 0xf0f0f0f0
    s_mov_b32 s65, 0xf0f0f0f0
    v_lshlrev_b32 v{aP}, 4, v{vLANE}
    s_lshl_b32 s28, s{sWAVE}, 10
    s_add_u32 s28, s28, {WS_HB}
    s_mov_b32 s29, {WS_HB + 8192}
    s_lshl_b32 s30, s{sWAVE}, 11
    s_add_u32 s30, s30, {WS_CANB + 8*128}
    """)
    HGs = [P + 48 + 8 * k for k in range(3)]
    for k in range(3):
        for r in range(4):
            a(f"v_mov_b32 v{HGs[k]+4+r}, v{vTAG}")
    def h_issue2(k):
        a(f"buffer_load_dwordx4 v[{HGs[k]}:{HGs[k]+3}], v{aP}, s[{sWS}:{sWS+3}], s28 offen sc1")
        a(f"buffer_load_dwordx4 v[{HGs[k]+4}:{HGs[k]+7}], v{aP}, s[{sWS}:{sWS+3}], s29 offen sc1")
    def h_issue1(k):
        a(f"buffer_load_dwordx4 v[{HGs[k]}:{HGs[k]+3}], v{aP}, s[{sWS}:{sWS+3}], s28 offen sc1")
    def h_consume2(k):
        for b in range(4):
            a(f"ds_write_b16_d16_hi v{aH}, v{HGs[k]+b} offset:{L_HB + 1152*b}")
        for b in range(4):
            a(f"ds_write_b16_d16_hi v{aH}, v{HGs[k]+4+b} offset:{L_HB + 1152*b + 1024}")
    def h_consume1(k):
        for b in range(4):
            a(f"ds_write_b16_d16_hi v{aH}, v{HGs[k]+b} offset:{L_HB + 1152*b}")
    a(f"s_cmp_lg_u32 s{sWAVE}, 0\n s_cbranch_scc1 L_h1")
    ppoll(a, "L_hpoll2", ns[2], 2, h_issue2, lambda k: list(range(HGs[k], HGs[k] + 8)), vT + 13, h_consume2, pollsleep, stg,
          probe=((lambda: a(f"buffer_load_dword v{HGs[0]}, v{aP}, s[{sWS}:{sWS+3}], s{30 if canB else 28} offen sc1")), HGs[0], "1") if probe[2] else None, presleep=presl[2])
    a("s_branch L_h2\n L_h1:")
    ppoll(a, "L_hpoll1", ns[2], 1, h_issue1, lambda k: list(range(HGs[k], HGs[k] + 4)), vT + 13, h_consume1, pollsleep, stg,
          probe=((lambda: a(f"buffer_load_dword v{HGs[0]}, v{aP}, s[{sWS}:{sWS+3}], s{30 if canB else 28} offen sc1")), HGs[0], "1") if probe[2] else None, presleep=presl[2])
    a("L_h2:")
    stamp(5)
    a("s_waitcnt lgkmcnt(0)\n s_barrier")
    AB = P
    for ks in range(9):
        a(f"ds_read_b128 v[{AB+4*ks}:{AB+4*ks+3}], v{aA} offset:{L_HB + 64*ks}")
    GD = P + 40
    GRm = P + 44
    for ks in range(9):
        a(f"s_waitcnt lgkmcnt({8-ks})")
        c = "0" if ks == 0 else f"v[{GD}:{GD+3}]"
        a(f"v_mfma_f32_16x16x32_bf16 v[{GD}:{GD+3}], v[{AB+4*ks}:{AB+4*ks+3}], v[{BB+4*ks}:{BB+4*ks+3}], {c}")
    a(f"s_and_b32 s28, s{sWAVE}, 3")
    lg = [a.label("L_gr") for _ in range(4)]; lge = a.label("L_gre")
    for t in range(1, 4):
        a(f"s_cmp_eq_u32 s28, {t}\n s_cbranch_scc1 {lg[t]}")
    for t in range(4):
        a(f"{lg[t]}:")
        kss = [t, t + 4] + ([8] if t == 0 else [])
        for i, ks in enumerate(kss):
            c = "0" if i == 0 else f"v[{GRm}:{GRm+3}]"
            a(f"v_mfma_f32_16x16x32_bf16 v[{GRm}:{GRm+3}], v[{AB+4*ks}:{AB+4*ks+3}], v[{AB+4*ks}:{AB+4*ks+3}], {c}")
        if t != 3:
            a(f"s_branch {lge}")
    a(f"""
    {lge}:
    s_nop 2
    ds_write_b128 v{aG}, v[{GD}:{GD+3}] offset:{L_GUF}
    s_nop 6
    s_mov_b64 exec, 0xffff
    ds_write_b128 v{aR}, v[{GRm}:{GRm+3}] offset:{L_GR}
    s_mov_b64 exec, -1
    s_waitcnt lgkmcnt(0)
    s_barrier
    """)
    stamp(6)
    def canc_store():
        lab = a.label("L_nocan")
        a(f"""
        s_cmp_lg_u32 s{sWAVE}, 7
        s_cbranch_scc1 {lab}
        s_lshl_b32 s30, s{sIDX}, 7
        s_add_u32 s30, s30, {WS_CANC}
        v_mov_b32 v{vT+14}, 0
        s_mov_b64 exec, 1
        buffer_store_dword v{vTAG}, v{vT+14}, s[{sWS}:{sWS+3}], s30 offen sc1
        s_mov_b64 exec, -1
        {lab}:
        """)
    if canC == 2:
        canc_store()
    a(f"s_cmp_ge_u32 s{sWAVE}, 2\n s_cbranch_scc1 L_nogelu")
    GE = P
    a(f"""
    ds_read_b32 v{GE+8}, v{aF3} offset:{L_GR}
    ds_read_b32 v{GE}, v{aF1} offset:{L_GUF}
    ds_read_b32 v{GE+1}, v{aF1} offset:{L_GUF+4096}
    ds_read_b32 v{GE+2}, v{aF1} offset:{L_GUF+2048}
    ds_read_b32 v{GE+3}, v{aF1} offset:{L_GUF+2048+4096}
    ds_read_b32 v{GE+4}, v{aF2} offset:{L_GUF+256}
    ds_read_b32 v{GE+5}, v{aF2} offset:{L_GUF+256+4096}
    ds_read_b32 v{GE+6}, v{aF2} offset:{L_GUF+256+2048}
    ds_read_b32 v{GE+7}, v{aF2} offset:{L_GUF+256+2048+4096}
    s_waitcnt lgkmcnt(8)
    """)
    X_, Y_, T_ = GE + 8, GE + 9, GE + 10
    a(f"""
    s_nop 1
    v_add_f32_dpp v{X_}, v{X_}, v{X_} row_ror:8 row_mask:0xf bank_mask:0xf
    """)
    xrow(a, [X_], [T_])
    a(f"""
    s_nop 0
    v_mov_b32_dpp v{Y_}, v{X_} row_ror:4 row_mask:0xf bank_mask:0xf
    s_nop 0
    v_cndmask_b32 v{T_}, v{Y_}, v{X_}, s[64:65]      ; sum
    v_cndmask_b32 v{Y_}, v{X_}, v{Y_}, s[64:65]      ; sumsq
    v_mul_f32 v{T_}, {INV576}, v{T_}                 ; mu
    v_mul_f32 v{Y_}, {INV576}, v{Y_}
    v_fma_f32 v{Y_}, -v{T_}, v{T_}, v{Y_}            ; var
    """)
    rbf(a, [(T_, Y_)], [X_])
    a(f"v_add_f32 v{Y_}, {EPS}, v{Y_}")
    rbf(a, [(Y_, Y_)], [X_])
    a(f"v_sqrt_f32 v{Y_}, v{Y_}\n s_nop 0")
    rbf(a, [(Y_, Y_)], [X_])
    a(f"""
    v_rcp_f32 v{X_}, v{Y_}
    s_waitcnt lgkmcnt(0)
    v_add_f32 v{GE}, v{GE}, v{GE+1}
    v_add_f32 v{GE+2}, v{GE+2}, v{GE+3}
    v_add_f32 v{GE+4}, v{GE+4}, v{GE+5}
    v_add_f32 v{GE+6}, v{GE+6}, v{GE+7}
    v_fma_f32 v{GE}, -v{T_}, v{GE+4}, v{GE}
    v_fma_f32 v{GE+2}, -v{T_}, v{GE+6}, v{GE+2}
    """)
    fdiv(a, GE + 1, GE, X_, Y_, GE + 4)
    fdiv(a, GE + 3, GE + 2, X_, Y_, GE + 5)
    rbf(a, [(GE + 1, GE + 3)], [GE + 4])
    C1, C2 = 0x3d372713, 0x3f4c422a
    TWO_L2E = 0x4038aa3b
    g, t = GE + 1, GE + 4
    a(f"""
    v_mul_f32 v{t}, v{g}, v{g}
    v_mul_f32 v{t}, v{t}, v{g}
    v_mov_b32 v{t+1}, {C1}
    v_fma_f32 v{t}, v{t}, v{t+1}, v{g}
    v_mul_f32 v{t}, {C2}, v{t}
    v_mul_f32 v{t}, {TWO_L2E}, v{t}
    v_exp_f32 v{t}, v{t}
    v_mul_f32 v{t+2}, 0.5, v{g}
    v_add_f32 v{t}, 1.0, v{t}
    v_rcp_f32 v{t}, v{t}
    s_nop 0
    v_fma_f32 v{t}, -2.0, v{t}, 1.0
    v_add_f32 v{t}, 1.0, v{t}
    v_mul_f32 v{g}, v{t+2}, v{t}
    """)
    rbf(a, [(g, g)], [t])
    a(f"""
    v_mul_f32 v{g}, v{g}, v{GE+3}
    v_cvt_pk_bf16_f32 v{t}, v{g}, v{g}
    ds_write_b16 v{aW}, v{t} offset:{L_HF}
    s_waitcnt lgkmcnt(0)
    L_nogelu:
    s_barrier
    """)
    tstamp(14)
    if canC == 1:
        canc_store()
    a(f"""
    v_and_b32 v{vT+5}, 3, v{vN}
    v_lshlrev_b32 v{vT+5}, 6, v{vT+5}
    v_lshl_add_u32 v{vT+5}, v{vG}, 4, v{vT+5}
    ds_read_b128 v[{P}:{P+3}], v{vT+5} offset:{L_HF}
    s_mul_i32 s28, s{sIDX}, 9216
    s_add_u32 s28, s28, {WS_Z}
    s_lshl_b32 s29, s{sWAVE}, 8
    s_add_u32 s28, s28, s29
    v_lshlrev_b32 v{vT+6}, 4, v{vN}
    s_waitcnt lgkmcnt(0)
    """)
    ZD = P + 8
    for i in range(5):
        if i == 4:
            a(f"s_cmp_ge_u32 s{sWAVE}, 4\n s_cbranch_scc1 L_z4")
        a(f"v_mfma_f32_16x16x32_bf16 v[{ZD+4*i}:{ZD+4*i+3}], v[{P}:{P+3}], v[{WDd+4*i}:{WDd+4*i+3}], 0")
    a("L_z4:\n s_nop 7")
    for i in range(5):
        if i == 4:
            a(f"s_cmp_ge_u32 s{sWAVE}, 4\n s_cbranch_scc1 L_fin")
        addtag(a, range(ZD + 4*i, ZD + 4*i + 4))
        a(f"""
        s_mov_b64 exec, 0xffff
        buffer_store_dwordx4 v[{ZD+4*i}:{ZD+4*i+3}], v{vT+6}, s[{sWS}:{sWS+3}], s28 offen offset:{2048*i if i < 2 else 0} sc1
        s_mov_b64 exec, -1
        """ if i < 2 else f"""
        s_add_u32 s29, s28, {2048*i}
        s_mov_b64 exec, 0xffff
        buffer_store_dwordx4 v[{ZD+4*i}:{ZD+4*i+3}], v{vT+6}, s[{sWS}:{sWS+3}], s29 offen sc1
        s_mov_b64 exec, -1
        """)

    tstamp(13)
    a("L_fin:")
    for i in range(mark_tail, len(a.L)):
        if a.L[i].strip() == "s_barrier" and "noguard" not in a.L[i]:
            lab = a.label("L_nb")
            a.L[i] = f"    s_cmp_eq_u32 s{sDRY}, 1\n    s_cbranch_scc1 {lab}\n    s_barrier\n{lab}:"
    a(f"s_cmp_eq_u32 s{sDRY}, 1\n s_cbranch_scc1 L_dry_done" if dry else "")
    if stamps:
        a("s_waitcnt vmcnt(0)")
        stamp(8)
        a(f"""
        s_lshl_b32 s28, s{sW}, 3
        s_add_u32 s28, s28, s{sWAVE}
        s_lshl_b32 s28, s28, 6
        s_add_u32 s28, s28, {WS_STAMP}
        v_mov_b32 v{vT}, 0
        s_mov_b64 exec, 1
        """)
        for i in range(0, NSTAMP, 4):
            for r in range(4):
                a(f"v_mov_b32 v{vT+2+r}, s{sST+i+r}")
            a(f"buffer_store_dwordx4 v[{vT+2}:{vT+5}], v{vT}, s[{sWS}:{sWS+3}], s28 offen offset:{4*i}")
            a("s_nop 1")
        a("s_waitcnt vmcnt(0)")
    a("L_end:\n s_endpgm\n L_code_end:")

    hdr = HEADER + f"; @launch grid=(256,1,1) block=(512,1,1) lds={LDS_BYTES}\n"
    hdr += '.amdgcn_target "amdgcn-amd-amdhsa--gfx950"\n.text\n'
    return hdr + kernel_begin(KNAME) + a.text() + kernel_desc(KNAME, 256, 102, 256)


HEADER = """; Fused pre-LN MHA decode (KV cache) + pre-LN GEGLU MLP, one persistent launch of 256 workgroups (one per CU).
"""

if __name__ == "__main__":
    import sys
    kw = eval(sys.argv[2]) if len(sys.argv) > 2 else {}
    open(sys.argv[1], "w").write(gen(**kw))
```

```python
from asmlib import *

WS_E    = 0x0
WS_QP   = 0x10000
WS_AP   = 0xA0000
WS_Y    = 0xD0000
WS_HB   = 0x120000
WS_Z    = 0x130000
WS_CANB = 0x280000
WS_CANC = 0x288000
WS_STAMP= 0x300000
WS_SIZE = 0x400000

L_XD = 0
L_QB = L_XD + 9216
L_MRG = L_QB + 256
L_ML = L_MRG + 4096
L_OB = L_ML + 64
L_HB = L_OB + 1024
L_GUF = L_HB + 5760
L_GR = L_GUF + 8192
L_HF = L_GR + 2048
L_SMALL_END = L_HF + 256
L_WG = 32768
L_WU = L_WG + 36864
L_WD = L_WU + 36864
L_END = L_WD + 36864
assert L_SMALL_END <= L_WG
LDS_BYTES = 143360
assert L_END <= LDS_BYTES, L_END

LOG2E = 0x3fb8aa3b
SCALE = 0x3db504f3
INV576 = 0x3ae38e39
EPS = 0x3727c5ac

sWAVE = 3
sK, sV, sWS, sT, sU = 8, 12, 16, 20, 24
pX, pK, pV, pWQ, pWO, pBX, pWG, pWU = 32, 34, 36, 38, 40, 42, 44, 46
pWD, pOUT, pDBG, pWSP = 48, 50, 52, 54
sE, sW, sB, sH, sJ, sTO, sKV, sIT = 56, 57, 58, 59, 60, 61, 62, 63
sROW = 64
sOFF = 67
sL2E, sSCALE, sHI = 68, 69, 70
sCNT = 71
sDRY, sOUTN = 94, 95
sROLE, sIDX, sSLICE, sNT, sROT = 96, 97, 98, 99, 100
sST = 74
NSTAMP = 16
vLANE, vN, vG, vOFFK, vOFFV = 0, 1, 2, 3, 4
vMASK = 5
vM, vL = 9, 10
vO = 12
vS = 16
vQ = 20
vTAG, vFF = 36, 37
vT = 38
vSTG = 64
vWQ = 192
vP = 172
vPP = 204


def srd(a, s, ptr, nbytes):
    a(f"""
    s_mov_b32 s{s}, s{ptr}
    s_and_b32 s{s+1}, s{ptr+1}, 0xffff
    s_mov_b32 s{s+2}, {nbytes}
    s_mov_b32 s{s+3}, 0x00020000
    """)


def row16(a, regs, op="add", ctrls=("quad_perm:[1,0,3,2]", "quad_perm:[2,3,0,1]", "row_half_mirror", "row_mirror")):
    ins = "v_add_f32" if op == "add" else "v_max_f32"
    n = len(regs)
    a("s_nop 1")
    for ctrl in ctrls:
        for r in regs:
            a(f"{ins}_dpp v{r}, v{r}, v{r} {ctrl} row_mask:0xf bank_mask:0xf")
        if n < 3:
            a(f"s_nop {2 - n}")


def xrow(a, regs, tmp, op="add", only32=False):
    ins = "v_add_f32" if op == "add" else "v_max_f32"
    sws = ("v_permlane16_swap_b32", "v_permlane32_swap_b32")
    if only32:
        sws = sws[1:]
    for sw in sws:
        for r, t in zip(regs, tmp):
            a(f"v_mov_b32 v{t}, v{r}")
        a("s_nop 1")
        for r, t in zip(regs, tmp):
            a(f"{sw} v{r}, v{t}")
        a("s_nop 1")
        for r, t in zip(regs, tmp):
            a(f"{ins} v{r}, v{r}, v{t}")


def wavesum(a, regs, tmp, op="add"):
    row16(a, regs, op)
    xrow(a, regs, tmp, op)


def rbf(a, pairs, t):
    for (x, y), tt in zip(pairs, t):
        a(f"v_cvt_pk_bf16_f32 v{tt}, v{x}, v{y}")
    for (x, y), tt in zip(pairs, t):
        a(f"v_lshlrev_b32 v{x}, 16, v{tt}")
        if y != x:
            a(f"v_and_b32 v{y}, s{sHI}, v{tt}")


def tagcheck(a, regs, acc, retry):
    a(f"v_xor_b32 v{acc}, v{regs[0]}, v{vTAG}")
    for r in regs[1:]:
        a(f"v_bitop3_b32 v{acc}, v{acc}, v{r}, v{vTAG} bitop3:0xf6")
    a(f"v_and_b32 v{acc}, v{acc}, v{vFF}")
    a(f"v_cmp_ne_u32 vcc, 0, v{acc}")
    a(f"s_cbranch_vccnz {retry}")


def addtag(a, regs):
    for r in regs:
        a(f"v_bfi_b32 v{r}, v{vFF}, v{vTAG}, v{r}")


def poll_head(a, name, bail="L_end"):
    a(f"{name}:")
    a(f"s_sub_u32 s{sTO}, s{sTO}, 1")
    a(f"s_cbranch_scc1 {bail}")


def ppoll(a, name, nsets, nloads, issue, regs, acc, consume, sleep=0, stagger=0, probe=None, presleep=0):
    a(f"s_cmp_eq_u32 s{sDRY}, 1\n s_cbranch_scc1 {name}_ok0")
    if presleep:
        n = presleep
        while n > 0:
            a(f"s_sleep {min(n, 100)}")
            n -= 100
    if probe:
        emit, preg, mask = probe
        a(f"s_mov_b64 exec, {mask}")
        a(f"{name}_probe:")
        a(f"s_sub_u32 s{sTO}, s{sTO}, 1")
        a(f"s_cbranch_scc1 L_end")
        emit()
        a("s_waitcnt vmcnt(0)")
        a(f"v_xor_b32 v{acc}, v{preg}, v{vTAG}")
        a(f"v_and_b32 v{acc}, v{acc}, v{vFF}")
        a(f"v_cmp_ne_u32 vcc, 0, v{acc}")
        a(f"s_cbranch_vccnz {name}_probe")
        a("s_mov_b64 exec, -1")
    for k in range(nsets):
        issue(k)
        if stagger and k != nsets - 1:
            a(f"s_sleep {stagger}")
    a(f"{name}:")
    a(f"s_sub_u32 s{sTO}, s{sTO}, 1")
    a(f"s_cbranch_scc1 L_end")
    for k in range(nsets):
        a(f"s_waitcnt vmcnt({(nsets-1)*nloads})")
        r = regs(k)
        a(f"v_xor_b32 v{acc}, v{r[0]}, v{vTAG}")
        for x in r[1:]:
            a(f"v_bitop3_b32 v{acc}, v{acc}, v{x}, v{vTAG} bitop3:0xf6")
        a(f"v_and_b32 v{acc}, v{acc}, v{vFF}")
        a(f"v_cmp_ne_u32 vcc, 0, v{acc}")
        a(f"s_cbranch_vccz {name}_ok{k}")
        if sleep:
            a(f"s_sleep {sleep}")
        issue(k)
    a(f"s_branch {name}")
    for k in range(nsets):
        a(f"{name}_ok{k}:")
        consume(k)
        if k != nsets - 1:
            a(f"s_branch {name}_done")
    a(f"{name}_done:")


def fdiv(a, out, num, den_rcp, den, t):
    a(f"v_mul_f32 v{out}, v{num}, v{den_rcp}")
    a(f"v_fma_f32 v{t}, -v{out}, v{den}, v{num}")
    a(f"v_fma_f32 v{out}, v{t}, v{den_rcp}, v{out}")


def gen(D=3, stamps=False, stop=None, kvflags="nt", wflags="nt", late_w=False, pollsleep=0, codepf='tail', xflags="nt", cyc=False, pre=(0, 1, 2, 0), no_w=False, no_compute=False, no_q=False, early='', wo_late=False, gate=False, bare=False, tailst=False, ns=(1, 1, 1, 1), stg=0, probe=(0, 1, 1, 1), presl=(0, 0, 0, 0), dry=False, shift=0, rotw=False, only=None, canB=False, canC=0, outfl='sc1', tlbw=0, locq=True, lq_pre=1, lq_mid=1, w0_mid=1, xmap=True, dbgA=False, dbgB=False, lq_late=2, gsleep=0):
    a = Asm()
    NT = 32
    KV_OOB = 0x10000000
    P = vPP

    def tstamp(idx):
        if tailst:
            stamp(idx, True)

    def stamp(idx, force=False):
        if only is not None and idx not in only:
            return
        if tailst and idx in (9, 10, 11, 12, 13, 14) and not force:
            return
        if stamps:
            ins = "s_memtime" if cyc else "s_memrealtime"
            a(f"{ins} s[90:91]\n s_waitcnt lgkmcnt(0)\n s_mov_b32 s{sST+idx}, s90")

    def psleep():
        if pollsleep:
            a(f"s_sleep {pollsleep}")

    def code_prefetch(nwaves, lo, hi, tmp, dst=None):
        a(f"""
        s_getpc_b64 s[92:93]
        {a.label("L_pc")}:
        """)
        lab = a.L[-1].strip()[:-1]
        a(f"""
        s_add_u32 s92, s92, {lo}-{lab}
        s_addc_u32 s93, s93, {-1 if lo == "L_code0" else 0}
        s_lshl_b32 s28, s{sWAVE}, 10
        v_lshlrev_b32 v{tmp+4}, 4, v{vLANE}
        v_add_u32 v{tmp+4}, s28, v{tmp+4}
        s_mov_b32 s29, {hi}-{lo}-16
        """)
        for i in range(NPF[(lo, hi)]):
            a(f"v_min_u32 v{tmp+5}, s29, v{tmp+4}")
            d_ = tmp if dst is None else dst
            a(f"global_load_dwordx4 v[{d_}:{d_+3}], v{tmp+5}, s[92:93]")
            a(f"v_add_u32 v{tmp+4}, {1024*nwaves}, v{tmp+4}")
    NPF = {("L_code0", "L_code_end"): 2, ("L_tail0", "L_code_end"): 2}
    XMAP = "" if not xmap else f"""
    s_and_b32 s29, s2, 7
    s_lshr_b32 s30, s2, 6
    s_lshl_b32 s30, s30, 3
    s_add_u32 s{sH}, s29, s30              ; h = (w&7) + 8*(w>>6)
    s_bfe_u32 s{sJ}, s2, 0x30003           ; j = (w>>3)&7
    s_lshr_b32 s{sB}, s{sJ}, 1
    """
    a(f"""
    L_code0:
    s_cmp_ge_u32 s2, 256
    s_cbranch_scc1 L_end
    s_load_dwordx16 s[32:47], s[0:1], 0
    s_load_dwordx8 s[48:55], s[0:1], 64
    v_lshrrev_b32 v{P}, 6, v0
    v_and_b32 v{vLANE}, 63, v0
    v_readfirstlane_b32 s{sWAVE}, v{P}
    v_and_b32 v{vN}, 15, v{vLANE}
    v_lshrrev_b32 v{vG}, 4, v{vLANE}
    v_lshlrev_b32 v{vOFFK}, 8, v{vN}
    v_lshl_add_u32 v{vOFFK}, v{vG}, 4, v{vOFFK}
    v_lshlrev_b32 v{vOFFV}, 10, v{vG}
    v_lshl_add_u32 v{vOFFV}, v{vN}, 4, v{vOFFV}
    s_mov_b32 s{sW}, s2
    s_lshr_b32 s{sB}, s2, 6
    s_lshr_b32 s{sH}, s2, 1
    s_and_b32 s{sH}, s{sH}, 31
    s_and_b32 s28, s2, 1
    s_lshl_b32 s{sJ}, s{sB}, 1
    s_add_u32 s{sJ}, s{sJ}, s28
    {XMAP}
    s_mov_b32 s{sTO}, 200000
    s_lshr_b32 s29, s2, 1                  ; P
    s_mov_b32 s{sIDX}, s29
    s_cmp_lt_u32 s29, 96
    s_cselect_b32 s{sROLE}, 1, 2
    s_cselect_b32 s30, {shift}, 0
    s_cmp_eq_u32 s28, 1
    s_cselect_b32 s{sROLE}, 0, s{sROLE}
    s_lshr_b32 s31, s29, 3
    s_lshl_b32 s31, s31, 2
    s_and_b32 s4, s29, 3
    s_add_u32 s31, s31, s4
    s_lshl_b32 s31, s31, 1
    s_bfe_u32 s4, s29, 0x10002
    s_add_u32 s{sSLICE}, s31, s4
    s_cmp_lt_u32 s2, 224
    s_cbranch_scc1 L_role_done
    s_mov_b32 s{sROLE}, 0
    s_sub_u32 s4, s2, 224                  ; p'
    s_add_u32 s{sIDX}, s4, 112
    s_lshr_b32 s31, s4, 4
    s_lshl_b32 s31, s31, 3
    s_and_b32 s5, s4, 7
    s_add_u32 s31, s31, s5
    s_lshl_b32 s31, s31, 1
    s_bfe_u32 s5, s4, 0x10003
    s_add_u32 s31, s31, s5
    s_add_u32 s{sSLICE}, s31, 112
    L_role_done:
    s_sub_u32 s30, 256, s30
    s_and_b32 s28, s{sJ}, 1
    s_cmp_eq_u32 s28, 1
    s_cselect_b32 s4, s30, 0               ; t0
    s_cselect_b32 s5, 512, s30             ; t1
    s_mov_b32 s{sL2E}, {LOG2E}
    s_mov_b32 s{sSCALE}, {SCALE}
    s_mov_b32 s{sHI}, 0xffff0000
    s_mov_b32 s{sDRY}, 0
    s_mov_b32 s{sOUTN}, 4608
    """)
    if stamps:
        for i in range(NSTAMP):
            a(f"s_mov_b32 s{sST+i}, 0")
    stamp(0)
    if codepf is True and not locq:
        code_prefetch(8, "L_code0", "L_code_end", vPP + 44)
    a("s_waitcnt lgkmcnt(0)")
    stamp(9)
    a(f"s_load_dword s{sE}, s[{pWSP}:{pWSP+1}], 0")
    srd(a, sK, pK, 0x10000000)
    srd(a, sV, pV, 0x10000000)
    srd(a, sWS, pWSP, WS_SIZE)
    srd(a, sT, pX, 4608)
    srd(a, sU, pWQ, 576 * 8192)
    a(f"""
    s_lshl_b32 s{sKV}, s{sB}, 5
    s_add_u32 s{sKV}, s{sKV}, s{sH}
    s_lshl_b32 s{sKV}, s{sKV}, 21
    s_lshl_b32 s28, s4, 12
    s_add_u32 s{sKV}, s{sKV}, s28
    s_sub_u32 s29, s5, s4                  ; L
    s_lshr_b32 s{sNT}, s29, 3
    s_and_b32 s29, s29, 7                  ; remainder
    {'s_add_u32 s28, s%d, s%d' % (sNT, sWAVE) if rotw else 's_mov_b32 s28, s%d' % sWAVE}
    s_and_b32 s28, s28, 7
    s_cmp_lt_u32 s28, s29
    s_addc_u32 s{sNT}, s{sNT}, 0
    s_mov_b32 s{sIT}, 0
    """)

    def kloads(s):
        r = vSTG + 32 * s
        for j in range(4):
            a(f"buffer_load_dwordx4 v[{r+4*j}:{r+4*j+3}], v{vOFFK}, s[{sK}:{sK+3}], s{sOFF} offen offset:{64*j} {kvflags}")

    def vloads(s):
        r = vSTG + 32 * s + 16
        for j in range(4):
            a(f"buffer_load_dwordx4 v[{r+4*j}:{r+4*j+3}], v{vOFFV}, s[{sV}:{sV+3}], s{sOFF} offen offset:{256*j} {kvflags}")

    def nextoff():
        if rotw:
            a(f"""
            s_add_u32 s{sOFF}, s{sIT}, s{sWAVE}
            s_and_b32 s{sOFF}, s{sOFF}, 7
            s_lshl_b32 s{sOFF}, s{sOFF}, 12
            s_add_u32 s{sOFF}, s{sOFF}, s{sKV}
            """)
        else:
            a(f"""
            s_lshl_b32 s{sOFF}, s{sWAVE}, 12
            s_add_u32 s{sOFF}, s{sOFF}, s{sKV}
            """)
        a(f"""
        s_cmp_ge_u32 s{sIT}, s{sNT}
        s_cselect_b32 s{sOFF}, {KV_OOB}, s{sOFF}
        s_add_u32 s{sKV}, s{sKV}, 32768
        s_add_u32 s{sIT}, s{sIT}, 1
        """)

    def prefetch(lo=0, hi=D):
        for s in range(lo, hi):
            nextoff(); kloads(s); vloads(s)

    a0, a1, b0, b1 = pre

    def by_class(fa, fb, f7=None):
        la, lb, le = a.label("L_cA"), a.label("L_cB"), a.label("L_cE")
        a(f"s_cmp_lt_u32 s{sWAVE}, 4\n s_cbranch_scc1 {la}")
        a(f"s_cmp_lt_u32 s{sWAVE}, 7\n s_cbranch_scc1 {lb}")
        if f7: f7()
        a(f"s_branch {le}\n {la}:")
        fa()
        a(f"s_branch {le}\n {lb}:")
        fb()
        a(f"{le}:")

    def MASKS():
        t0, t1, t2 = vT + 2, vT + 3, vT + 4
        a(f"""
        v_and_b32 v{t0}, 7, v{vN}
        v_and_b32 v{t1}, 1, v{t0}
        v_lshlrev_b32 v{t1}, 4, v{t1}
        v_mov_b32 v{t2}, 0xffff
        v_lshlrev_b32 v{t1}, v{t1}, v{t2}
        v_lshrrev_b32 v{t0}, 1, v{t0}
        v_mov_b32 v{vFF}, 0xff
        """)
        for d in range(4):
            a(f"v_cmp_eq_u32 vcc, {d}, v{t0}\n s_nop 1\n v_cndmask_b32 v{vMASK+d}, 0, v{t1}, vcc")
        a(f"""
        s_waitcnt lgkmcnt(0)
        s_add_u32 s{sE}, s{sE}, 1
        s_and_b32 s28, s{sE}, 0xff
        v_mov_b32 v{vTAG}, s28
        """)

    if bare:
        prefetch(0, D)
        MASKS()
        a("s_branch L_bare")
    if locq:
        X, Dv = 64, 74
        A0, A1, A2, A3, A4 = 84, 85, 86, 87, 88
        vW18, AXS, AO = 160, 232, 250
        a(f"""
        v_lshlrev_b32 v{vT+1}, 13, v{vG}
        v_lshl_add_u32 v{vT+1}, v{vN}, 4, v{vT+1}        ; g*8192 + c*16
        s_lshl_b32 s30, s{sWAVE}, 15
        s_lshl_b32 s31, s{sH}, 8
        s_add_u32 s30, s30, s31
        s_cmp_lg_u32 s{sWAVE}, 0
        s_cbranch_scc1 L_lq_other
        v_lshlrev_b32 v{vT}, 1, v{vLANE}
        s_mul_i32 s28, s{sB}, 1152
        """)
        for i in range(9):
            a(f"buffer_load_ushort v{X+i}, v{vT}, s[{sT}:{sT+3}], s28 offen offset:{128*i} {xflags}")
        def wq18():
            for u in range(18):
                a(f"buffer_load_dwordx4 v[{vW18+4*u}:{vW18+4*u+3}], v{vT+1}, s[{sU}:{sU+3}], s30 offen {wflags}")
                if u != 17:
                    a(f"s_add_u32 s30, s30, {32*8192}")
        wq18()
        a("s_branch L_lq_issued\n L_lq_other:")
        lq_m = min(D, lq_pre + lq_mid)
        w0_m = min(D, w0_mid)
        prefetch(0, lq_pre)
        wq18()
        prefetch(lq_pre, lq_m)
        a("L_lq_issued:")
        if codepf is True:
            code_prefetch(8, "L_code0", "L_code_end", vT + 8, dst=60)
        MASKS()
        ncp = 0
        a(f"s_cmp_lg_u32 s{sWAVE}, 0\n s_cbranch_scc1 L_lq_noln")
        a(f"s_waitcnt vmcnt({18 + ncp})")
        stamp(10)
        for i in range(9):
            a(f"v_lshlrev_b32 v{X+i}, 16, v{X+i}")
        a(f"v_add_f32 v{A0}, v{X}, v{X+1}")
        a(f"v_mul_f32 v{A2}, v{X}, v{X}")
        for i in range(1, 9):
            if i >= 2:
                a(f"v_add_f32 v{A0}, v{A0}, v{X+i}")
            a(f"v_fmac_f32 v{A2}, v{X+i}, v{X+i}")
        wavesum(a, [A0, A2], [A1, A3])
        a(f"""
        v_mul_f32 v{A0}, {INV576}, v{A0}
        v_mul_f32 v{A2}, {INV576}, v{A2}
        v_fma_f32 v{A2}, -v{A0}, v{A0}, v{A2}
        """)
        rbf(a, [(A0, A2)], [A1])
        a(f"v_add_f32 v{A2}, {EPS}, v{A2}")
        rbf(a, [(A2, A2)], [A1])
        a(f"v_sqrt_f32 v{A2}, v{A2}\n s_nop 0")
        rbf(a, [(A2, A2)], [A1])
        a(f"v_rcp_f32 v{A3}, v{A2}")
        for i in range(9):
            a(f"v_sub_f32 v{Dv+i}, v{X+i}, v{A0}")
        rbf(a, [(Dv, Dv+1), (Dv+2, Dv+3), (Dv+4, Dv+5), (Dv+6, Dv+7), (Dv+8, Dv+8)], [X, X+1, X+2, X+3, X+4])
        for i in range(9):
            fdiv(a, X + i, Dv + i, A3, A2, A4)
        for i in range(9):
            a(f"v_cvt_pk_bf16_f32 v{X+i}, v{X+i}, v{X+i}")
        a(f"v_lshlrev_b32 v{A4}, 2, v{vLANE}")
        for i in range(9):
            a(f"ds_write_b32 v{A4}, v{X+i} offset:{L_XD + 256*i}")
        a("s_waitcnt lgkmcnt(0)")
        prefetch(0, w0_m)
        a("L_lq_noln:")
        a("s_barrier")
        stamp(11)
        a(f"""
        s_lshl_b32 s28, s{sWAVE}, 4
        v_lshlrev_b32 v{vT}, 2, v{vG}
        v_add_u32 v{vT}, s28, v{vT}                      ; g*4 + wave*16
        """)
        for u in range(18):
            a(f"ds_read_b32 v{AXS+u}, v{vT} offset:{L_XD + 128*u}")
            if u == 8:
                a("s_waitcnt lgkmcnt(0)")
        lw0, lwe = a.label("L_lqw0"), a.label("L_lqwe")
        a(f"s_cmp_eq_u32 s{sWAVE}, 0\n s_cbranch_scc1 {lw0}")
        a(f"s_waitcnt vmcnt({8*(lq_m-lq_pre) + ncp})\n s_branch {lwe}\n {lw0}:\n s_waitcnt vmcnt({8*w0_m})\n {lwe}:")
        a("s_waitcnt lgkmcnt(0)")
        if dbgA:
            a("s_waitcnt vmcnt(0)")
        stamp(12)
        for u in range(18):
            ao = AO if True else AO
            for d in range(4):
                a(f"v_and_b32 v{ao+d}, v{AXS+u}, v{vMASK+d}")
            a("s_nop 1")
            c = "0" if u == 0 else f"v[{vS}:{vS+3}]"
            a(f"v_mfma_f32_16x16x32_bf16 v[{vS}:{vS+3}], v[{ao}:{ao+3}], v[{vW18+4*u}:{vW18+4*u+3}], {c}")
            if dbgB:
                a("s_nop 7")
        a(f"""
        v_lshlrev_b32 v{vT}, 5, v{vN}                 ; c*32
        v_and_b32 v{vT+1}, 1, v{vG}
        v_lshl_add_u32 v{vT}, v{vT+1}, 4, v{vT}       ; + (g&1)*16
        s_lshl_b32 s28, s{sWAVE}, 9
        v_add_u32 v{vT}, s28, v{vT}
        s_nop 4
        ds_write_b128 v{vT}, v[{vS}:{vS+3}] offset:{L_MRG}
        """)
        if lq_m < D or w0_m < D:
            l0, le = a.label("L_lqr0"), a.label("L_lqre")
            a(f"s_cmp_eq_u32 s{sWAVE}, 0\n s_cbranch_scc1 {l0}")
            r1 = lq_late if lq_late is not None else D
            prefetch(lq_m, max(lq_m, min(D, r1)))
            a(f"s_branch {le}\n {l0}:")
            prefetch(w0_m, max(w0_m, min(D, r1)))
            a(f"{le}:")
        a("""
        s_waitcnt lgkmcnt(0)
        s_barrier
        """)
        stamp(13)
        QS = 232
        a(f"""
        s_cmp_lg_u32 s{sWAVE}, 1
        s_cbranch_scc1 L_lq_qdone
        v_and_b32 v{vT}, 31, v{vLANE}
        v_lshlrev_b32 v{vT+1}, 4, v{vT}
        """)
        for w in range(4):
            a(f"ds_read_b128 v[{QS+4*w}:{QS+4*w+3}], v{vT+1} offset:{L_MRG + 512*w}")
        for w in range(4, 8):
            a(f"ds_read_b128 v[{160+4*w}:{160+4*w+3}], v{vT+1} offset:{L_MRG + 512*w}")
        a("s_waitcnt lgkmcnt(0)")
        for r in range(0, 4, 2):
            a(f"v_pk_add_f32 v[{QS+r}:{QS+r+1}], v[{QS+r}:{QS+r+1}], v[{QS+4+r}:{QS+5+r}]")
            a(f"v_pk_add_f32 v[{QS+8+r}:{QS+9+r}], v[{QS+8+r}:{QS+9+r}], v[{QS+12+r}:{QS+13+r}]")
            a(f"v_pk_add_f32 v[{176+r}:{177+r}], v[{176+r}:{177+r}], v[{180+r}:{181+r}]")
            a(f"v_pk_add_f32 v[{184+r}:{185+r}], v[{184+r}:{185+r}], v[{188+r}:{189+r}]")
        for r in range(0, 4, 2):
            a(f"v_pk_add_f32 v[{QS+r}:{QS+r+1}], v[{QS+r}:{QS+r+1}], v[{QS+8+r}:{QS+9+r}]")
            a(f"v_pk_add_f32 v[{176+r}:{177+r}], v[{176+r}:{177+r}], v[{184+r}:{185+r}]")
        for r in range(0, 4, 2):
            a(f"v_pk_add_f32 v[{QS+r}:{QS+r+1}], v[{QS+r}:{QS+r+1}], v[{176+r}:{177+r}]")
        a(f"""
        v_cvt_pk_bf16_f32 v{QS+4}, v{QS}, v{QS+1}
        v_cvt_pk_bf16_f32 v{QS+5}, v{QS+2}, v{QS+3}
        v_lshlrev_b32 v{vT}, 3, v{vT}
        ds_write_b64 v{vT}, v[{QS+4}:{QS+5}] offset:{L_QB}
        s_waitcnt lgkmcnt(0)
        L_lq_qdone:
        s_barrier
        """)
        stamp(14)
        r1 = lq_late if lq_late is not None else D
        if max(lq_m, min(D, r1)) < D or max(w0_m, min(D, r1)) < D:
            l0, le = a.label("L_lqs0"), a.label("L_lqse")
            a(f"s_cmp_eq_u32 s{sWAVE}, 0\n s_cbranch_scc1 {l0}")
            prefetch(max(lq_m, min(D, r1)), D)
            a(f"s_branch {le}\n {l0}:")
            prefetch(max(w0_m, min(D, r1)), D)
            a(f"{le}:")
    else:
        X = P
        a(f"""
        s_cmp_ge_u32 s{sWAVE}, 4
        s_cbranch_scc1 L_nox
        v_lshlrev_b32 v{vT}, 1, v{vLANE}
        s_mul_i32 s28, s{sWAVE}, 1152
        """)
        for i in range(9):
            a(f"buffer_load_ushort v{X+i}, v{vT}, s[{sT}:{sT+3}], s28 offen offset:{128*i} {xflags}")
        a("L_nox:")
        a(f"""
        v_lshlrev_b32 v{vT+1}, 13, v{vG}
        v_lshl_add_u32 v{vT+1}, v{vN}, 4, v{vT+1}        ; g*8192 + c*16
        """)
        for u in range(3):
            a(f"""
            s_add_u32 s29, s{sWAVE}, {8*u}
            s_lshl_b32 s30, s29, 2
            s_mul_i32 s28, s{sJ}, 72
            s_add_u32 s30, s30, s28
            s_mov_b32 s{sROW+u}, s30
            s_lshl_b32 s30, s30, 13
            s_lshl_b32 s31, s{sH}, 8
            s_add_u32 s30, s30, s31
            s_cmp_ge_u32 s29, 18
            s_cselect_b32 s30, {576*8192}, s30
            s_cselect_b32 s{sROW+u}, s28, s{sROW+u}
            buffer_load_dwordx4 v[{vWQ+4*u}:{vWQ+4*u+3}], v{vT+1}, s[{sU}:{sU+3}], s30 offen {wflags}
            """)
        by_class(lambda: prefetch(0, a0), lambda: prefetch(0, b0))
        MASKS()
        Dv = P + 10
        A0, A1, A2, A3, A4, A5 = (P + 20 + i for i in range(6))
        a(f"""
        s_cmp_ge_u32 s{sWAVE}, 4
        s_cbranch_scc1 L_noln
        s_waitcnt vmcnt({3 + 8*a0})
        """)
        stamp(10)
        for i in range(9):
            a(f"v_lshlrev_b32 v{X+i}, 16, v{X+i}")
        a(f"v_add_f32 v{A0}, v{X}, v{X+1}")
        for i in range(2, 9):
            a(f"v_add_f32 v{A0}, v{A0}, v{X+i}")
        wavesum(a, [A0], [A1])
        a(f"v_mul_f32 v{A0}, {INV576}, v{A0}")
        for i in range(9):
            a(f"v_sub_f32 v{Dv+i}, v{X+i}, v{A0}")
        a(f"v_mul_f32 v{A2}, v{Dv}, v{Dv}")
        for i in range(1, 9):
            a(f"v_fmac_f32 v{A2}, v{Dv+i}, v{Dv+i}")
        wavesum(a, [A2], [A1])
        a(f"v_mul_f32 v{A2}, {INV576}, v{A2}")
        rbf(a, [(A0, A2)], [A1])
        a(f"v_add_f32 v{A2}, {EPS}, v{A2}")
        rbf(a, [(A2, A2)], [A1])
        a(f"v_sqrt_f32 v{A2}, v{A2}\n s_nop 0")
        rbf(a, [(A2, A2)], [A1])
        a(f"v_rcp_f32 v{A3}, v{A2}")
        for i in range(9):
            a(f"v_sub_f32 v{Dv+i}, v{X+i}, v{A0}")
        rbf(a, [(Dv, Dv+1), (Dv+2, Dv+3), (Dv+4, Dv+5), (Dv+6, Dv+7), (Dv+8, Dv+8)], [X, X+1, X+2, X+3, X+4])
        for i in range(9):
            fdiv(a, X + i, Dv + i, A3, A2, A4)
        for i in range(9):
            a(f"v_cvt_pk_bf16_f32 v{X+i}, v{X+i}, v{X+i}")
        a(f"""
        s_mul_i32 s28, s{sWAVE}, {576*4}
        v_lshlrev_b32 v{A4}, 2, v{vLANE}
        v_add_u32 v{A4}, s28, v{A4}
        """)
        for i in range(9):
            a(f"ds_write_b32 v{A4}, v{X+i} offset:{L_XD + 256*i}")
        a("L_noln:")
        a("s_waitcnt lgkmcnt(0)\n s_barrier")
        stamp(11)
        AX = P
        AO = P + 8
        QA = P + 12
        a(f"""
        v_lshrrev_b32 v{vT}, 3, v{vN}                 ; m>>3
        v_mul_u32_u24 v{vT}, 576, v{vT}
        v_add_u32 v{vT}, v{vT}, v{vG}
        v_lshlrev_b32 v{vT}, 2, v{vT}                 ; ((m>>3)*576 + g)*4
        """)
        for u in range(3):
            a(f"""
            s_lshl_b32 s28, s{sROW+u}, 2
            v_add_u32 v{vT+1}, s28, v{vT}
            ds_read_b32 v{AX+2*u}, v{vT+1} offset:{L_XD}
            ds_read_b32 v{AX+2*u+1}, v{vT+1} offset:{L_XD + 2*576*4}
            """)
        by_class(lambda: a(f"s_waitcnt vmcnt({8*a0})"), lambda: a(f"s_waitcnt vmcnt({8*b0})"), lambda: a("s_waitcnt vmcnt(0)"))
        a("s_waitcnt lgkmcnt(0)")
        stamp(12)
        for u in range(3):
            for pp in range(2):
                for d in range(4):
                    a(f"v_and_b32 v{AO+d}, v{AX+2*u+pp}, v{vMASK+d}")
                a("s_nop 1")
                c = "0" if u == 0 else f"v[{QA+4*pp}:{QA+4*pp+3}]"
                a(f"v_mfma_f32_16x16x32_bf16 v[{QA+4*pp}:{QA+4*pp+3}], v[{AO}:{AO+3}], v[{vWQ+4*u}:{vWQ+4*u+3}], {c}")
                a("s_nop 1")
        a(f"""
        v_lshrrev_b32 v{vT}, 1, v{vG}
        v_lshlrev_b32 v{vT}, 9, v{vT}
        v_lshl_add_u32 v{vT}, v{vN}, 5, v{vT}
        v_and_b32 v{vT+1}, 1, v{vG}
        v_lshl_add_u32 v{vT}, v{vT+1}, 4, v{vT}
        s_nop 7
        """)
        a(f"s_lshl_b32 s28, s{sWAVE}, 11\n s_add_u32 s28, s28, {L_WG}\n v_add_u32 v{vT}, s28, v{vT}")
        for pp in range(2):
            a(f"ds_write_b128 v{vT}, v[{QA+4*pp}:{QA+4*pp+3}] offset:{pp*1024}")
        a("s_waitcnt lgkmcnt(0)\n s_barrier")
        stamp(13)
        by_class(lambda: prefetch(a0, a0 + a1), lambda: prefetch(b0, b0 + b1))
        G0 = P
        a(f"""
        s_cmp_lg_u32 s{sWAVE}, 7
        s_cbranch_scc1 L_qwait
        v_lshlrev_b32 v{vT}, 4, v{vLANE}
        v_add_u32 v{vT+1}, {L_WG}, v{vT}
        """)
        for half in range(2):
            base = G0 + 8 if half == 0 else G0 + 8
            for w in range(8):
                dst = (G0 + 4*half) if w == 0 else (G0 + 8 + 4*(w-1))
                a(f"ds_read_b128 v[{dst}:{dst+3}], v{vT+1} offset:{2048*w + 1024*half}")
            a("s_waitcnt lgkmcnt(0)")
            for w in range(1, 8):
                for r in range(4):
                    a(f"v_add_f32 v{G0+4*half+r}, v{G0+4*half+r}, v{G0+8+4*(w-1)+r}")
        a(f"""
        s_lshl_b32 s28, s{sH}, 3
        s_add_u32 s28, s28, s{sJ}
        s_lshl_b32 s28, s28, 11
        s_add_u32 s28, s28, {WS_QP}
        """)
        addtag(a, range(G0, G0 + 8))
        a(f"""
        buffer_store_dwordx4 v[{G0}:{G0+3}], v{vT}, s[{sWS}:{sWS+3}], s28 offen sc1
        buffer_store_dwordx4 v[{G0+4}:{G0+7}], v{vT}, s[{sWS}:{sWS+3}], s28 offen offset:1024 sc1
        v_lshrrev_b32 v{vT+1}, 5, v{vLANE}
        v_lshlrev_b32 v{vT+1}, 11, v{vT+1}
        v_and_b32 v{vT+2}, 31, v{vLANE}
        v_lshl_add_u32 v{vT+1}, v{vT+2}, 4, v{vT+1}      ; jj*2048 + c4*16
        s_lshl_b32 s28, s{sH}, 14
        s_lshl_b32 s29, s{sB}, 9
        s_add_u32 s28, s28, s29
        s_add_u32 s28, s28, {WS_QP}
        s_add_u32 s29, s28, 4096
        s_add_u32 s30, s28, 8192
        s_add_u32 s31, s28, 12288
        s_nop 1
        """)
        G1 = P + 8
        poll_head(a, "L_qpoll")
        psleep()
        for i in range(4):
            a(f"buffer_load_dwordx4 v[{G1+4*i}:{G1+4*i+3}], v{vT+1}, s[{sWS}:{sWS+3}], s{28+i} offen sc1")
        a("s_waitcnt vmcnt(0)")
        if not no_q:
            tagcheck(a, list(range(G1, G1 + 16)), vT + 3, "L_qpoll")
        stamp(14)
        for r in range(4):
            a(f"v_add_f32 v{G1+r}, v{G1+r}, v{G1+4+r}")
            a(f"v_add_f32 v{G1+8+r}, v{G1+8+r}, v{G1+12+r}")
        for r in range(4):
            a(f"v_add_f32 v{G1+r}, v{G1+r}, v{G1+8+r}")
        xrow(a, [G1, G1+1, G1+2, G1+3], [G1+4, G1+5, G1+6, G1+7], only32=True)
        a(f"""
        v_cvt_pk_bf16_f32 v{G1+8}, v{G1}, v{G1+1}
        v_cvt_pk_bf16_f32 v{G1+9}, v{G1+2}, v{G1+3}
        v_lshlrev_b32 v{vT+2}, 3, v{vT+2}
        ds_write_b64 v{vT+2}, v[{G1+8}:{G1+9}] offset:{L_QB}
        """)
        a(f"""
        s_waitcnt lgkmcnt(0)
        L_qwait:
        s_barrier
        """)
        by_class(lambda: prefetch(a0 + a1, D), lambda: prefetch(b0 + b1, D), lambda: prefetch(0, D))
    a(f"v_lshlrev_b32 v{vT}, 4, v{vG}")
    a("L_bare:")
    for j in range(4):
        a(f"ds_read_b128 v[{vQ+4*j}:{vQ+4*j+3}], v{vT} offset:{L_QB + 64*j}")
    a(f"""
    v_mov_b32 v{vM}, 0xff800000
    v_mov_b32 v{vL}, 0
    v_mov_b32 v{vO}, 0
    v_mov_b32 v{vO+1}, 0
    v_mov_b32 v{vO+2}, 0
    v_mov_b32 v{vO+3}, 0
    s_mov_b32 s{sCNT}, s{sNT}
    s_waitcnt lgkmcnt(0)
    """)
    stamp(1)
    if stop == "q":
        a("s_branch L_fin")

    P = vP
    s0, s1, s2, s3 = vT, vT + 1, vT + 2, vT + 3
    u0, u1 = vT + 4, vT + 5
    mx, mt, al, nm = vT + 6, vT + 7, vT + 8, vT + 9
    pk = vT + 10
    Aop = vT + 14
    assert Aop % 2 == 0
    a("L_loop:")
    for s in range(D):
        kb = vSTG + 32 * s
        vb = kb + 16
        a(f"s_waitcnt vmcnt({8*(D-1)+4})")
        for j in range(4):
            c = "0" if j == 0 else f"v[{vS}:{vS+3}]"
            a(f"v_mfma_f32_16x16x32_bf16 v[{vS}:{vS+3}], v[{kb+4*j}:{kb+4*j+3}], v[{vQ+4*j}:{vQ+4*j+3}], {c}")
        nextoff()
        kloads(s)
        a("s_nop 3")
        if no_compute:
            a(f"s_waitcnt vmcnt({8*(D-1)+4})")
            vloads(s)
            a(f"""
            s_sub_u32 s{sCNT}, s{sCNT}, 1
            s_cmp_eq_u32 s{sCNT}, 0
            s_cbranch_scc1 L_loop_end
            """)
            continue
        a(f"""
        v_cvt_pk_bf16_f32 v{u0}, v{vS}, v{vS+1}
        v_cvt_pk_bf16_f32 v{u1}, v{vS+2}, v{vS+3}
        v_lshlrev_b32 v{s0}, 16, v{u0}
        v_and_b32 v{s1}, s{sHI}, v{u0}
        v_lshlrev_b32 v{s2}, 16, v{u1}
        v_and_b32 v{s3}, s{sHI}, v{u1}
        v_mul_f32 v{s0}, s{sSCALE}, v{s0}
        v_mul_f32 v{s1}, s{sSCALE}, v{s1}
        v_mul_f32 v{s2}, s{sSCALE}, v{s2}
        v_mul_f32 v{s3}, s{sSCALE}, v{s3}
        v_cvt_pk_bf16_f32 v{u0}, v{s0}, v{s1}
        v_cvt_pk_bf16_f32 v{u1}, v{s2}, v{s3}
        v_lshlrev_b32 v{s0}, 16, v{u0}
        v_and_b32 v{s1}, s{sHI}, v{u0}
        v_lshlrev_b32 v{s2}, 16, v{u1}
        v_and_b32 v{s3}, s{sHI}, v{u1}
        v_max3_f32 v{mx}, v{s0}, v{s1}, v{s2}
        v_max3_f32 v{mx}, v{mx}, v{s3}, v{vM}
        v_mov_b32 v{mt}, v{mx}
        s_nop 1
        v_permlane16_swap_b32 v{mx}, v{mt}
        s_nop 1
        v_max_f32 v{mx}, v{mx}, v{mt}
        v_mov_b32 v{mt}, v{mx}
        s_nop 1
        v_permlane32_swap_b32 v{mx}, v{mt}
        s_nop 1
        v_max_f32 v{mx}, v{mx}, v{mt}
        v_sub_f32 v{al}, v{vM}, v{mx}
        v_mul_f32 v{nm}, s{sL2E}, v{mx}
        v_mul_f32 v{al}, s{sL2E}, v{al}
        v_fma_f32 v{s0}, v{s0}, s{sL2E}, -v{nm}
        v_fma_f32 v{s1}, v{s1}, s{sL2E}, -v{nm}
        v_fma_f32 v{s2}, v{s2}, s{sL2E}, -v{nm}
        v_fma_f32 v{s3}, v{s3}, s{sL2E}, -v{nm}
        v_exp_f32 v{al}, v{al}
        v_exp_f32 v{s0}, v{s0}
        v_exp_f32 v{s1}, v{s1}
        v_exp_f32 v{s2}, v{s2}
        v_exp_f32 v{s3}, v{s3}
        v_mov_b32 v{vM}, v{mx}
        v_mul_f32 v{vO}, v{vO}, v{al}
        v_mul_f32 v{vO+1}, v{vO+1}, v{al}
        v_mul_f32 v{vO+2}, v{vO+2}, v{al}
        v_mul_f32 v{vO+3}, v{vO+3}, v{al}
        v_cvt_pk_bf16_f32 v{pk}, v{s0}, v{s0}
        v_cvt_pk_bf16_f32 v{pk+1}, v{s1}, v{s1}
        v_cvt_pk_bf16_f32 v{pk+2}, v{s2}, v{s2}
        v_cvt_pk_bf16_f32 v{pk+3}, v{s3}, v{s3}
        v_fma_f32 v{vL}, v{vL}, v{al}, v{s0}
        v_add_f32 v{s1}, v{s1}, v{s2}
        v_add_f32 v{vL}, v{vL}, v{s3}
        v_add_f32 v{vL}, v{vL}, v{s1}
        s_waitcnt vmcnt({8*(D-1)+4})
        """)
        for r in range(4):
            ao = Aop + 4 * (r & 1)
            for d in range(4):
                a(f"v_and_b32 v{ao+d}, v{pk+r}, v{vMASK+d}")
            a("s_nop 1")
            a(f"v_mfma_f32_16x16x32_bf16 v[{vO}:{vO+3}], v[{ao}:{ao+3}], v[{vb+4*r}:{vb+4*r+3}], v[{vO}:{vO+3}]")
        vloads(s)
        a(f"""
        s_sub_u32 s{sCNT}, s{sCNT}, 1
        s_cmp_eq_u32 s{sCNT}, 0
        s_cbranch_scc1 L_loop_end
        """)
    a("s_branch L_loop\n L_loop_end:")
    stamp(2)
    xrow(a, [vL], [vT])
    a(f"""
    s_nop 7
    v_lshlrev_b32 v{vT}, 5, v{vN}                 ; c*32
    v_and_b32 v{vT+1}, 1, v{vG}
    v_lshl_add_u32 v{vT}, v{vT+1}, 4, v{vT}       ; + (g&1)*16
    s_lshl_b32 s28, s{sWAVE}, 9
    v_add_u32 v{vT}, s28, v{vT}
    ds_write_b128 v{vT}, v[{vO}:{vO+3}] offset:{L_MRG}
    s_lshl_b32 s28, s{sWAVE}, 3
    v_mov_b32 v{vT+2}, s28
    v_mov_b32 v{vT+4}, v{vM}
    v_mov_b32 v{vT+5}, v{vL}
    ds_write_b64 v{vT+2}, v[{vT+4}:{vT+5}] offset:{L_ML}
    """)

    def slice_idx():
        a(f"""
        s_mov_b32 s29, s{sSLICE}
        v_lshrrev_b32 v{vT}, 2, v{vLANE}
        v_mul_u32_u24 v{vT}, 9216, v{vT}
        v_and_b32 v{vT+1}, 3, v{vLANE}
        v_lshl_add_u32 v{vT}, v{vT+1}, 4, v{vT}
        v_lshlrev_b32 v{vT+1}, 4, v{vLANE}
        """)

    def dma_mat(which, sq):
        cnt = 9
        if which in "gu":
            ptr, lds0 = (pWG, L_WG) if which == "g" else (pWU, L_WU)
            srd(a, sT, ptr, 576 * 9216)
            a(f"""
            s_mul_i32 s28, s{sq}, {cnt*16*9216}
            s_lshl_b32 s30, s29, 6
            s_add_u32 s28, s28, s30
            s_mul_i32 s31, s{sq}, {cnt*1024}
            """)
            for i in range(cnt):
                a(f"s_add_u32 m0, s31, {lds0 + i*1024}\n s_nop 0")
                a(f"buffer_load_dwordx4 v{vT}, s[{sT}:{sT+3}], s28 offen {wflags} lds")
                a(f"s_add_u32 s28, s28, {16*9216}")
        else:
            srd(a, sT, pWD, 4608 * 1152)
            a(f"""
            s_mul_i32 s28, s29, {32*1152}
            s_mul_i32 s31, s{sq}, {cnt*1024}
            s_add_u32 s28, s28, s31
            """)
            for i in range(cnt):
                a(f"s_add_u32 m0, s31, {L_WD + i*1024}\n s_nop 0")
                a(f"buffer_load_dwordx4 v{vT+1}, s[{sT}:{sT+3}], s28 offen {wflags} lds")
                a(f"s_add_u32 s28, s28, 1024")

    def wo_dma(nw):
        ngrp = 16 // nw
        a(f"""
        s_mov_b32 s29, s{sIDX}
        s_mul_i32 s30, s29, 21846
        s_lshr_b32 s30, s30, 16            ; h'
        s_mul_i32 s31, s30, 3
        s_sub_u32 s31, s29, s31            ; c
        """)
        srd(a, sT, pWO, 4096 * 1152)
        for q in range(3):
            a(f"""
            v_add_u32 v{vT+3}, {64*q}, v{vLANE}
            v_mul_u32_u24 v{vT+4}, 2731, v{vT+3}
            v_lshrrev_b32 v{vT+4}, 16, v{vT+4}          ; row = l0/24
            v_mul_u32_u24 v{vT+5}, 24, v{vT+4}
            v_sub_u32 v{vT+5}, v{vT+3}, v{vT+5}         ; piece
            v_mul_u32_u24 v{vT+4}, 1152, v{vT+4}
            v_lshl_add_u32 v{vT+q}, v{vT+5}, 4, v{vT+4}
            """)
        a(f"""
        s_lshl_b32 s28, s30, 7
        s_mul_i32 s29, s{sWAVE}, {8*ngrp}
        s_add_u32 s28, s28, s29
        s_mul_i32 s28, s28, 1152
        s_mul_i32 s31, s31, 384
        s_add_u32 s28, s28, s31
        s_mul_i32 s31, s{sWAVE}, {3*ngrp*1024}
        """)
        for grp in range(ngrp):
            for q in range(3):
                a(f"s_add_u32 m0, s31, {L_WG + (grp*3+q)*1024}\n s_nop 0")
                a(f"buffer_load_dwordx4 v{vT+q}, s[{sT}:{sT+3}], s28 offen {wflags} lds")
            a(f"s_add_u32 s28, s28, {8*1152}")

    def weights_early():
        lab_wo, lab_done = a.label("L_wwo"), a.label("L_wdone")
        a(f"s_cmp_lg_u32 s{sROLE}, 0\n s_cbranch_scc1 {lab_wo}")
        if early:
            slice_idx()
            for m in early:
                dma_mat(m, sWAVE)
        a(f"s_branch {lab_done}")
        a(f"{lab_wo}:")
        a(f"s_cmp_eq_u32 s{sROLE}, 2\n s_cbranch_scc1 {lab_done}")
        if not wo_late:
            wo_dma(4)
        a(f"{lab_done}:")

    def weights_late():
        late = [m for m in "gud" if m not in early]
        if not late:
            return
        slice_idx()
        sQ = 73
        a(f"s_and_b32 s{sQ}, s{sWAVE}, 3")
        lo, hi = late[:(len(late) + 1) // 2], late[(len(late) + 1) // 2:]
        lh, le = a.label("L_lateh"), a.label("L_latee")
        a(f"s_cmp_ge_u32 s{sWAVE}, 4\n s_cbranch_scc1 {lh}")
        for m in lo:
            dma_mat(m, sQ)
        a(f"s_branch {le}\n {lh}:")
        for m in hi:
            dma_mat(m, sQ)
        a(f"{le}:")
        a("s_waitcnt vmcnt(0)\n s_barrier")

    a(f"s_cmp_ge_u32 s{sWAVE}, 4\n s_cbranch_scc1 L_now")
    if not no_w:
        weights_early()
    if tlbw:
        lab = a.label("L_notlb")
        a(f"s_cmp_lg_u32 s{sWAVE}, 3\n s_cbranch_scc1 {lab}")
        tw = vT + 8
        a(f"v_lshlrev_b32 v{tw}, {tlbw}, v{vLANE}\n v_add_u32 v{tw}, 0x{(1 << tlbw) - 128:x}, v{tw}")
        n_ws = max(1, WS_STAMP // (64 << tlbw) + 1)
        for i in range(n_ws):
            a(f"s_mov_b32 s28, {i * (64 << tlbw)}")
            a(f"buffer_load_dword v{tw+1}, v{tw}, s[{sWS}:{sWS+3}], s28 offen")
        for (ptr, nbytes) in ((pWG, 576*9216), (pWU, 576*9216), (pWD, 4608*1152), (pOUT, 4608), (pX, 4608)):
            srd(a, sT, ptr, nbytes)
            n = max(1, (nbytes + (64 << tlbw) - 1) // (64 << tlbw))
            if nbytes < 65536:
                a(f"v_mov_b32 v{tw+2}, 0")
                a(f"buffer_load_dword v{tw+1}, v{tw+2}, s[{sT}:{sT+3}], 0 offen")
            else:
                for i in range(n):
                    a(f"s_mov_b32 s28, {i * (64 << tlbw)}")
                    a(f"buffer_load_dword v{tw+1}, v{tw}, s[{sT}:{sT+3}], s28 offen nt")
        a(f"{lab}:")
    if codepf:
        code_prefetch(4, "L_tail0", "L_code_end", vT + 8)
    if dry:
        a(f"""
        s_waitcnt vmcnt(0) lgkmcnt(0)
        s_mov_b32 s{sDRY}, 1
        s_mov_b32 s{sWS+2}, 0
        s_mov_b32 s{sOUTN}, 0
        s_branch L_tail_dry
        L_dry_done:
        s_mov_b32 s{sDRY}, 0
        s_mov_b32 s{sWS+2}, {WS_SIZE}
        s_mov_b32 s{sOUTN}, 4608
        s_mov_b64 exec, -1
        """)
    a("L_now:")
    a("L_tail0:")
    a("s_waitcnt vmcnt(0) lgkmcnt(0)\n s_barrier")
    a("L_tail_dry:")
    mark_tail = len(a.L)
    stamp(3)

    MO = P
    MM = P + 32
    a(f"s_cmp_lg_u32 s{sWAVE}, 0\n s_cbranch_scc1 L_nomerge")
    a(f"""
    v_and_b32 v{vT}, 31, v{vLANE}
    v_lshlrev_b32 v{vT}, 4, v{vT}
    v_mov_b32 v{vT+1}, 0
    """)
    for i in range(4):
        a(f"ds_read_b128 v[{MM+4*i}:{MM+4*i+3}], v{vT+1} offset:{L_ML + 16*i}")
    for w in range(8):
        a(f"ds_read_b128 v[{MO+4*w}:{MO+4*w+3}], v{vT} offset:{L_MRG + 512*w}")
    a("s_waitcnt lgkmcnt(8)")
    ms = [MM + 2 * w for w in range(8)]
    mstar = vT + 2
    a(f"v_max3_f32 v{mstar}, v{ms[0]}, v{ms[1]}, v{ms[2]}")
    a(f"v_max3_f32 v{mstar}, v{mstar}, v{ms[3]}, v{ms[4]}")
    a(f"v_max3_f32 v{mstar}, v{mstar}, v{ms[5]}, v{ms[6]}")
    a(f"v_max_f32 v{mstar}, v{mstar}, v{ms[7]}")
    for w in range(8):
        a(f"v_sub_f32 v{ms[w]}, v{ms[w]}, v{mstar}")
    for w in range(8):
        a(f"v_mul_f32 v{ms[w]}, s{sL2E}, v{ms[w]}")
    for w in range(8):
        a(f"v_exp_f32 v{ms[w]}, v{ms[w]}")
    Lt = vT + 3
    a(f"s_nop 0\n v_mul_f32 v{Lt}, v{ms[0]}, v{ms[0]+1}")
    for w in range(1, 8):
        a(f"v_fmac_f32 v{Lt}, v{ms[w]}, v{ms[w]+1}")
    a("s_waitcnt lgkmcnt(0)")
    R = vT + 6
    assert R % 2 == 0
    for r in range(4):
        a(f"v_mul_f32 v{R+r}, v{ms[0]}, v{MO+r}")
    for w in range(1, 8):
        for r in range(4):
            a(f"v_fmac_f32 v{R+r}, v{ms[w]}, v{MO+4*w+r}")
    a(f"""
    v_cmp_eq_u32 vcc, 32, v{vLANE}
    v_mov_b32 v{vT+4}, 0
    s_nop 0
    v_cndmask_b32 v{R}, v{R}, v{mstar}, vcc
    v_cndmask_b32 v{R+1}, v{R+1}, v{Lt}, vcc
    v_cndmask_b32 v{R+2}, v{R+2}, v{vT+4}, vcc
    v_cndmask_b32 v{R+3}, v{R+3}, v{vT+4}, vcc
    """)
    addtag(a, range(R, R + 4))
    a(f"""
    v_lshlrev_b32 v{vT}, 4, v{vLANE}
    s_mul_i32 s28, s{sW}, 640
    s_add_u32 s28, s28, {WS_AP}
    v_cmp_gt_u32 vcc, 33, v{vLANE}
    s_and_saveexec_b64 s[30:31], vcc
    buffer_store_dwordx4 v[{R}:{R+3}], v{vT}, s[{sWS}:{sWS+3}], s28 offen sc1
    s_mov_b64 exec, s[30:31]
    L_nomerge:
    """)
    stamp(4)
    if stop == "attn":
        a("s_branch L_fin")

    a(f"s_cmp_eq_u32 s{sROLE}, 0\n s_cbranch_scc1 L_stageB")
    a(f"s_cmp_eq_u32 s{sROLE}, 2\n s_cbranch_scc1 L_reduce")
    if wo_late and not no_w:
        wo_dma(8)
        a("s_waitcnt vmcnt(0)\n s_barrier")
    a(f"""
    s_mov_b32 s29, s{sIDX}
    s_mul_i32 s{sH}, s29, 21846
    s_lshr_b32 s{sH}, s{sH}, 16         ; h'
    s_mul_i32 s31, s{sH}, 3
    s_sub_u32 s{sJ}, s29, s31           ; c
    """)
    WB = 64
    a(f"""
    v_lshrrev_b32 v{vT}, 2, v{vN}                    ; r
    v_lshl_add_u32 v{vT}, v{vG}, 3, v{vT}            ; 8g + r
    v_mul_u32_u24 v{vT}, 384, v{vT}
    v_and_b32 v{vT+1}, 3, v{vLANE}
    v_lshl_add_u32 v{vT}, v{vT+1}, 3, v{vT}          ; + cc*8
    s_lshl_b32 s28, s{sWAVE}, 5
    s_add_u32 s28, s28, {L_WG}
    v_add_u32 v{vT}, s28, v{vT}                      ; + T*32 + base
    """)
    for ks in range(4):
        a(f"ds_read_b64_tr_b16 v[{WB+4*ks}:{WB+4*ks+1}], v{vT} offset:{ks*32*384}")
        a(f"ds_read_b64_tr_b16 v[{WB+4*ks+2}:{WB+4*ks+3}], v{vT} offset:{ks*32*384 + 4*384}")
    a(f"s_cmp_ge_u32 s{sWAVE}, 4\n s_cbranch_scc1 L_wo_gather_skip")
    a("s_waitcnt lgkmcnt(0)")
    for ks in range(4):
        a(f"ds_read_b64_tr_b16 v[{WB+16+4*ks}:{WB+16+4*ks+1}], v{vT} offset:{ks*32*384 + 256}")
        a(f"ds_read_b64_tr_b16 v[{WB+16+4*ks+2}:{WB+16+4*ks+3}], v{vT} offset:{ks*32*384 + 4*384 + 256}")
    GA = P
    a(f"""
    v_lshrrev_b32 v{vT+1}, 5, v{vLANE}               ; s
    v_mul_u32_u24 v{vT+2}, {640*8 if xmap else 640}, v{vT+1}
    v_and_b32 v{vT+3}, 31, v{vLANE}                  ; c4
    v_lshl_add_u32 v{vT+4}, v{vT+3}, 4, v{vT+2}      ; s*stride + c4*16
    v_add_u32 v{vT+5}, 512, v{vT+2}                  ; s*stride + 512
    """)
    if xmap:
        a(f"""
        s_and_b32 s28, s{sH}, 7
        s_lshl_b32 s29, s{sWAVE}, 4
        s_add_u32 s28, s28, s29
        s_lshr_b32 s29, s{sH}, 3
        s_lshl_b32 s29, s29, 6
        s_add_u32 s28, s28, s29
        """)
    else:
        a(f"""
        s_lshl_b32 s28, s{sWAVE}, 6
        s_lshl_b32 s29, s{sH}, 1
        s_add_u32 s28, s28, s29
        """)
    a(f"""
    s_mul_i32 s28, s28, 640
    s_add_u32 s28, s28, {WS_AP}
    """)
    GAs = [96 + 8 * k for k in range(3)]
    def ap_issue(k):
        a(f"buffer_load_dwordx4 v[{GAs[k]}:{GAs[k]+3}], v{vT+4}, s[{sWS}:{sWS+3}], s28 offen sc1")
        a(f"buffer_load_dwordx2 v[{GAs[k]+4}:{GAs[k]+5}], v{vT+5}, s[{sWS}:{sWS+3}], s28 offen sc1")
    def ap_consume(k):
        for r in range(6):
            a(f"v_mov_b32 v{GA+r}, v{GAs[k]+r}")
    ppoll(a, "L_apoll", ns[0], 2, ap_issue, lambda k: list(range(GAs[k], GAs[k] + 6)), vT + 6, ap_consume, pollsleep, stg)
    tstamp(9)
    mm, ll = GA + 4, GA + 5
    a(f"""
    v_and_b32 v{mm}, s{sHI}, v{mm}
    v_mov_b32 v{vT+6}, v{mm}
    v_mov_b32 v{vT+7}, v{mm}
    s_nop 1
    v_permlane32_swap_b32 v{vT+6}, v{vT+7}
    s_nop 1
    v_max_f32 v{vT+6}, v{vT+6}, v{vT+7}             ; m*
    v_sub_f32 v{mm}, v{mm}, v{vT+6}
    v_mul_f32 v{mm}, s{sL2E}, v{mm}
    v_exp_f32 v{mm}, v{mm}                           ; a
    s_nop 0
    v_mul_f32 v{ll}, v{ll}, v{mm}
    v_mul_f32 v{GA}, v{GA}, v{mm}
    v_mul_f32 v{GA+1}, v{GA+1}, v{mm}
    v_mul_f32 v{GA+2}, v{GA+2}, v{mm}
    v_mul_f32 v{GA+3}, v{GA+3}, v{mm}
    """)
    xrow(a, [GA, GA+1, GA+2, GA+3, ll], [GA+8, GA+9, GA+10, GA+11, GA+12], only32=True)
    a(f"v_rcp_f32 v{vT+6}, v{ll}\n s_nop 0")
    for r in range(4):
        fdiv(a, GA + 8 + r, GA + r, vT + 6, ll, vT + 7)
    a(f"""
    v_cvt_pk_bf16_f32 v{GA+12}, v{GA+8}, v{GA+9}
    v_cvt_pk_bf16_f32 v{GA+13}, v{GA+10}, v{GA+11}
    v_lshlrev_b32 v{vT+3}, 3, v{vT+3}
    s_lshl_b32 s28, s{sWAVE}, 8
    v_add_u32 v{vT+3}, s28, v{vT+3}
    ds_write_b64 v{vT+3}, v[{GA+12}:{GA+13}] offset:{L_OB}
    L_wo_gather_skip:
    s_waitcnt lgkmcnt(0)
    s_barrier
    """)
    AOP = P + 16
    a(f"""
    v_and_b32 v{vT}, 3, v{vN}
    v_lshlrev_b32 v{vT}, 8, v{vT}
    v_lshl_add_u32 v{vT}, v{vG}, 4, v{vT}           ; (m&3)*256 + g*16
    """)
    for ks in range(4):
        a(f"ds_read_b128 v[{AOP+4*ks}:{AOP+4*ks+3}], v{vT} offset:{L_OB + 64*ks}")
    YD = P + 32
    a("s_waitcnt lgkmcnt(0)")
    for ks in range(4):
        c = "0" if ks == 0 else f"v[{YD}:{YD+3}]"
        a(f"v_mfma_f32_16x16x32_bf16 v[{YD}:{YD+3}], v[{AOP+4*ks}:{AOP+4*ks+3}], v[{WB+4*ks}:{WB+4*ks+3}], {c}")
    a(f"s_cmp_ge_u32 s{sWAVE}, 4\n s_cbranch_scc1 L_wo_one")
    for ks in range(4):
        c = "0" if ks == 0 else f"v[{YD+4}:{YD+7}]"
        a(f"v_mfma_f32_16x16x32_bf16 v[{YD+4}:{YD+7}], v[{AOP+4*ks}:{AOP+4*ks+3}], v[{WB+16+4*ks}:{WB+16+4*ks+3}], {c}")
    a("L_wo_one:")
    a(f"""
    s_mul_i32 s28, s{sH}, 9216
    s_mul_i32 s29, s{sJ}, {192*16}
    s_add_u32 s28, s28, s29
    s_lshl_b32 s29, s{sWAVE}, 8
    s_add_u32 s28, s28, s29
    s_add_u32 s28, s28, {WS_Y}
    v_lshlrev_b32 v{vT}, 4, v{vN}
    s_nop 7
    """)
    addtag(a, range(YD, YD + 4))
    a(f"""
    s_mov_b64 exec, 0xffff
    buffer_store_dwordx4 v[{YD}:{YD+3}], v{vT}, s[{sWS}:{sWS+3}], s28 offen sc1
    s_mov_b64 exec, -1
    s_cmp_ge_u32 s{sWAVE}, 4
    s_cbranch_scc1 L_reduce
    """)
    addtag(a, range(YD + 4, YD + 8))
    a(f"""
    s_mov_b64 exec, 0xffff
    buffer_store_dwordx4 v[{YD+4}:{YD+7}], v{vT}, s[{sWS}:{sWS+3}], s28 offen offset:2048 sc1
    s_mov_b64 exec, -1
    """)
    a("L_reduce:")
    tstamp(10)
    sTASK = 72
    a(f"""
    s_mov_b32 s{sTASK}, s{sIDX}
    s_mul_i32 s28, s{sWAVE}, 112
    s_add_u32 s{sTASK}, s{sTASK}, s28
    s_cmp_ge_u32 s{sTASK}, 144
    s_cbranch_scc1 L_fin
    s_cmp_ge_u32 s{sWAVE}, 2
    s_cbranch_scc1 L_fin
    """)
    XR = P
    srd(a, sT, pX, 4608)
    a(f"""
    v_and_b32 v{vT}, 3, v{vLANE}                     ; col
    v_lshlrev_b32 v{vT+1}, 1, v{vT}
    s_lshl_b32 s28, s{sTASK}, 3
    """)
    for b in range(4):
        a(f"buffer_load_ushort v{XR+b}, v{vT+1}, s[{sT}:{sT+3}], s28 offen offset:{1152*b}")
    a(f"""
    v_lshrrev_b32 v{vT+2}, 2, v{vLANE}               ; hh
    v_mul_u32_u24 v{vT+2}, 9216, v{vT+2}
    v_lshl_add_u32 v{vT+2}, v{vT}, 4, v{vT+2}
    s_lshl_b32 s28, s{sTASK}, 6
    s_add_u32 s28, s28, {WS_Y}
    s_add_u32 s29, s28, {16*9216}
    """)
    YG = P + 4
    YGs = [P + 60 + 8 * k for k in range(3)]
    def y_issue(k):
        a(f"buffer_load_dwordx4 v[{YGs[k]}:{YGs[k]+3}], v{vT+2}, s[{sWS}:{sWS+3}], s28 offen sc1")
        a(f"buffer_load_dwordx4 v[{YGs[k]+4}:{YGs[k]+7}], v{vT+2}, s[{sWS}:{sWS+3}], s29 offen sc1")
    def y_consume(k):
        for r in range(4):
            a(f"v_add_f32 v{YG+r}, v{YGs[k]+r}, v{YGs[k]+4+r}")
    ppoll(a, "L_ypoll", ns[1], 2, y_issue, lambda k: list(range(YGs[k], YGs[k] + 8)), vT + 3, y_consume, pollsleep, stg,
          probe=((lambda: a(f"buffer_load_dword v{YGs[0]}, v{vT+2}, s[{sWS}:{sWS+3}], s28 offen sc1")), YGs[0], "1") if probe[1] else None, presleep=presl[1])
    tstamp(11)
    if canB:
        a(f"""
        s_lshl_b32 s30, s{sTASK}, 7
        s_add_u32 s30, s30, {WS_CANB}
        v_mov_b32 v{vT+4}, 0
        s_mov_b64 exec, 1
        buffer_store_dword v{vTAG}, v{vT+4}, s[{sWS}:{sWS+3}], s30 offen sc1
        s_mov_b64 exec, -1
        """)
    hs = [YG, YG + 1, YG + 2, YG + 3]
    row16(a, hs, ctrls=("row_ror:4", "row_ror:8"))
    xrow(a, hs, [YG + 4, YG + 5, YG + 6, YG + 7])
    rbf(a, [(YG, YG+1), (YG+2, YG+3)], [YG+4, YG+5])
    for b in range(4):
        a(f"v_lshlrev_b32 v{XR+b}, 16, v{XR+b}")
        a(f"v_add_f32 v{YG+b}, v{YG+b}, v{XR+b}")
    rbf(a, [(YG, YG+1), (YG+2, YG+3)], [YG+4, YG+5])
    HK = P + 16
    for b in range(4):
        a(f"v_mov_b32 v{HK+b}, v{YG+b}")
    addtag(a, hs)
    a(f"""
    s_lshl_b32 s28, s{sTASK}, 6
    s_add_u32 s28, s28, {WS_HB}
    v_lshlrev_b32 v{vT+3}, 4, v{vT}
    s_mov_b64 exec, 0xf
    buffer_store_dwordx4 v[{YG}:{YG+3}], v{vT+3}, s[{sWS}:{sWS+3}], s28 offen sc1
    s_mov_b64 exec, -1
    """)
    stamp(7)
    ZG = P + 20
    a(f"""
    s_lshl_b32 s28, s{sTASK}, 6
    s_add_u32 s28, s28, {WS_Z}
    """)
    ZGs = [64, 100, 136]
    sPZ = 73
    if canC:
        a(f"s_lshl_b32 s{sPZ}, s{sTASK}, 7\n s_add_u32 s{sPZ}, s{sPZ}, {WS_CANC}")
    else:
        a(f"s_mul_i32 s{sPZ}, s{sTASK}, 9216\n s_add_u32 s{sPZ}, s{sPZ}, s28")
    ZS = [4, 5, 6, 7, 62, 63, 66, 67, 71]
    for i in range(9):
        a(f"s_add_u32 s{ZS[i]}, s28, {i*16*9216}")
    def z_issue(k):
        for i in range(9):
            a(f"buffer_load_dwordx4 v[{ZGs[k]+4*i}:{ZGs[k]+4*i+3}], v{vT+2}, s[{sWS}:{sWS+3}], s{ZS[i]} offen sc1")
    def z_consume(k):
        z = ZGs[k]
        for (x, y) in ((0, 1), (2, 3), (4, 5), (6, 7), (0, 2), (4, 6), (0, 4)):
            for r in range(0, 4, 2):
                a(f"v_pk_add_f32 v[{z+4*x+r}:{z+4*x+r+1}], v[{z+4*x+r}:{z+4*x+r+1}], v[{z+4*y+r}:{z+4*y+r+1}]")
        for r in range(0, 4, 2):
            a(f"v_pk_add_f32 v[{ZG+r}:{ZG+r+1}], v[{z+r}:{z+r+1}], v[{z+32+r}:{z+32+r+1}]")
    ppoll(a, "L_zpoll", ns[3], 9, z_issue, lambda k: list(range(ZGs[k], ZGs[k] + 36)), vT + 3, z_consume, pollsleep, stg,
          probe=((lambda: a(f"buffer_load_dword v{ZGs[0]}, v{vT+2}, s[{sWS}:{sWS+3}], s{sPZ} offen sc1")), ZGs[0], "1") if probe[3] else None, presleep=presl[3])
    tstamp(12)
    zs = [ZG, ZG + 1, ZG + 2, ZG + 3]
    row16(a, zs, ctrls=("row_ror:4", "row_ror:8"))
    xrow(a, zs, [ZG + 4, ZG + 5, ZG + 6, ZG + 7])
    rbf(a, [(ZG, ZG+1), (ZG+2, ZG+3)], [ZG+4, ZG+5])
    for b in range(4):
        a(f"v_add_f32 v{ZG+b}, v{ZG+b}, v{HK+b}")
    a(f"v_cvt_pk_bf16_f32 v{ZG+4}, v{ZG}, v{ZG+1}")
    a(f"v_cvt_pk_bf16_f32 v{ZG+5}, v{ZG+2}, v{ZG+3}")
    srd(a, sT, pOUT, f"s{sOUTN}")
    a(f"""
    s_lshl_b32 s28, s{sTASK}, 3
    s_mov_b64 exec, 0xf
    buffer_store_short v{ZG+4}, v{vT+1}, s[{sT}:{sT+3}], s28 offen {outfl}
    buffer_store_short_d16_hi v{ZG+4}, v{vT+1}, s[{sT}:{sT+3}], s28 offen offset:1152 {outfl}
    buffer_store_short v{ZG+5}, v{vT+1}, s[{sT}:{sT+3}], s28 offen offset:2304 {outfl}
    buffer_store_short_d16_hi v{ZG+5}, v{vT+1}, s[{sT}:{sT+3}], s28 offen offset:3456 {outfl}
    s_mov_b64 exec, -1
    s_cmp_lg_u32 s{sTASK}, 0
    s_cbranch_scc1 L_fin
    v_mov_b32 v{ZG+6}, s{sE}
    v_mov_b32 v{ZG+7}, 0
    s_mov_b64 exec, 1
    buffer_store_dword v{ZG+6}, v{ZG+7}, s[{sWS}:{sWS+3}], 0 offen sc1
    s_mov_b64 exec, -1
    s_branch L_fin
    """)

    a("L_stageB:")
    if gate == 'pair' or isinstance(gate, int) and not isinstance(gate, bool) and gate > 0:
        ns_ = 0 if gate == 'pair' else gate
        a(f"s_cmp_lg_u32 s{sWAVE}, 1\n s_cbranch_scc1 L_gate_done")
        a(f"""
        s_andn2_b32 s29, s{sW}, 8
        v_mul_u32_u24 v{vT}, 37, v{vLANE}
        v_add_u32 v{vT}, s29, v{vT}
        v_and_b32 v{vT}, 255, v{vT}
        s_xor_b32 s28, s{sW}, 8
        v_mov_b32 v{vT+1}, s28
        v_cmp_eq_u32 vcc, {ns_}, v{vLANE}
        s_mov_b32 s28, {WS_AP + 512}
        s_nop 0
        v_cndmask_b32 v{vT}, v{vT}, v{vT+1}, vcc
        v_mul_u32_u24 v{vT}, 640, v{vT}
        s_cmp_eq_u32 s{sDRY}, 1
        s_cbranch_scc1 L_gate_done
        s_mov_b64 exec, {hex((1 << (ns_ + 1)) - 1)}
        """)
        poll_head(a, "L_gpoll")
        if gsleep:
            a(f"s_sleep {gsleep}")
        a(f"buffer_load_dword v{vT+2}, v{vT}, s[{sWS}:{sWS+3}], s28 offen sc1")
        a("s_waitcnt vmcnt(0)")
        tagcheck(a, [vT+2], vT + 6, "L_gpoll")
        a("s_mov_b64 exec, -1")
        a("L_gate_done:\n s_barrier")
    elif gate:
        a(f"s_cmp_lg_u32 s{sWAVE}, 1\n s_cbranch_scc1 L_gate_done")
        a(f"""
        v_mul_u32_u24 v{vT}, 640, v{vLANE}
        s_mov_b32 s28, {WS_AP + 512}
        s_mov_b32 s29, {WS_AP + 512 + 64*640}
        s_mov_b32 s30, {WS_AP + 512 + 128*640}
        s_mov_b32 s31, {WS_AP + 512 + 192*640}
        """)
        poll_head(a, "L_gpoll")
        for i in range(4):
            a(f"buffer_load_dword v{vT+2+i}, v{vT}, s[{sWS}:{sWS+3}], s{28+i} offen sc1")
        a("s_waitcnt vmcnt(0)")
        tagcheck(a, [vT+2, vT+3, vT+4, vT+5], vT + 6, "L_gpoll")
        a("L_gate_done:\n s_barrier")
    a(f"""
    s_cmp_lg_u32 s{sWAVE}, 7
    s_cbranch_scc1 L_noones
    v_mov_b32 v{P}, 0x3f803f80
    v_mov_b32 v{P+1}, 0x3f803f80
    v_mov_b32 v{P+2}, 0x3f803f80
    v_mov_b32 v{P+3}, 0x3f803f80
    v_lshlrev_b32 v{vT}, 4, v{vLANE}
    ds_write_b128 v{vT}, v[{P}:{P+3}] offset:{L_HB + 4*1152}
    s_mov_b64 exec, 0xff
    ds_write_b128 v{vT}, v[{P}:{P+3}] offset:{L_HB + 4*1152 + 1024}
    s_mov_b64 exec, -1
    L_noones:
    """)
    if not no_w:
        a(f"s_cmp_eq_u32 s{sDRY}, 1\n s_cbranch_scc1 L_skip_late")
        weights_late()
        a("L_skip_late:")
    stamp(15)
    BB = 64
    WDd = 100
    a(f"""
    v_lshrrev_b32 v{vT}, 2, v{vN}
    v_lshl_add_u32 v{vT}, v{vG}, 3, v{vT}            ; 8g + r
    v_and_b32 v{vT+1}, 3, v{vLANE}                   ; cc
    v_lshlrev_b32 v{vT+2}, 6, v{vT}
    v_lshl_add_u32 v{vT+2}, v{vT+1}, 3, v{vT+2}      ; (8g+r)*64 + cc*8
    s_and_b32 s28, s{sWAVE}, 1
    s_lshl_b32 s28, s28, 5                           ; t*32
    s_bfe_u32 s29, s{sWAVE}, 0x10001
    s_mul_i32 s29, s29, {L_WU - L_WG}
    s_add_u32 s28, s28, s29
    s_add_u32 s28, s28, {L_WG}
    s_lshr_b32 s29, s{sWAVE}, 2
    s_mul_i32 s29, s29, {9*2048}
    s_add_u32 s28, s28, s29
    v_add_u32 v{vT+2}, s28, v{vT+2}
    """)
    for ks in range(9):
        a(f"ds_read_b64_tr_b16 v[{BB+4*ks}:{BB+4*ks+1}], v{vT+2} offset:{ks*2048}")
        a(f"ds_read_b64_tr_b16 v[{BB+4*ks+2}:{BB+4*ks+3}], v{vT+2} offset:{ks*2048+256}")
        if ks == 5:
            a("s_waitcnt lgkmcnt(0)")
    a(f"""
    v_mul_u32_u24 v{vT+3}, 1152, v{vT}
    v_lshl_add_u32 v{vT+3}, v{vT+1}, 3, v{vT+3}
    s_lshl_b32 s28, s{sWAVE}, 5
    s_add_u32 s28, s28, {L_WD}
    v_add_u32 v{vT+3}, s28, v{vT+3}
    s_waitcnt lgkmcnt(0)
    """)
    for i in range(5):
        if i == 4:
            a(f"s_cmp_ge_u32 s{sWAVE}, 4\n s_cbranch_scc1 L_no5th")
        a(f"ds_read_b64_tr_b16 v[{WDd+4*i}:{WDd+4*i+1}], v{vT+3} offset:{i*256}")
        a(f"ds_read_b64_tr_b16 v[{WDd+4*i+2}:{WDd+4*i+3}], v{vT+3} offset:{i*256 + 4*1152}")
    a("L_no5th:")
    aH, aA, aG, aR, aF1, aF2, aF3, aW = (vT + 4 + i for i in range(8))
    aP = vT + 12
    a(f"""
    s_lshl_b32 s28, s{sWAVE}, 7
    v_lshlrev_b32 v{aH}, 1, v{vLANE}
    v_add_u32 v{aH}, s28, v{aH}
    v_and_b32 v{aA}, 3, v{vN}
    v_cmp_eq_u32 vcc, 4, v{vN}
    v_mov_b32 v{aG}, 4
    s_lshr_b32 s28, s{sWAVE}, 2
    v_cndmask_b32 v{aA}, v{aA}, v{aG}, vcc           ; row(m)
    v_mul_u32_u24 v{aA}, 1152, v{aA}
    s_mul_i32 s28, s28, {9*64}
    v_lshl_add_u32 v{aA}, v{vG}, 4, v{aA}
    v_add_u32 v{aA}, s28, v{aA}
    s_lshl_b32 s28, s{sWAVE}, 10
    v_lshlrev_b32 v{aG}, 4, v{vLANE}
    v_add_u32 v{aG}, s28, v{aG}
    s_lshl_b32 s28, s{sWAVE}, 8
    v_lshlrev_b32 v{aR}, 4, v{vN}
    v_add_u32 v{aR}, s28, v{aR}                      ; wave*256 + n*16
    v_lshrrev_b32 v{aW}, 2, v{vLANE}                 ; f'
    v_and_b32 v{aF3}, 3, v{vLANE}                    ; b
    s_lshl_b32 s28, s{sWAVE}, 10
    v_lshlrev_b32 v{aF2}, 4, v{aW}
    v_add_u32 v{aF2}, s28, v{aF2}                    ; tile*1024 + f'*16
    v_lshl_add_u32 v{aF1}, v{aF3}, 2, v{aF2}         ; + b*4
    s_lshl_b32 s28, s{sWAVE}, 5
    v_lshlrev_b32 v{aW}, 1, v{aW}
    v_add_u32 v{aW}, s28, v{aW}                      ; (tile*16 + f')*2
    v_lshl_add_u32 v{aW}, v{aF3}, 6, v{aW}           ; + b*64
    v_lshlrev_b32 v{vT}, 4, v{aF3}                   ; b*16
    v_mov_b32 v{vT+1}, 64
    v_and_b32 v{vT+2}, 4, v{vLANE}
    v_cmp_ne_u32 vcc, 0, v{vT+2}
    v_lshrrev_b32 v{vT+2}, 3, v{vLANE}
    v_lshlrev_b32 v{vT+2}, 8, v{vT+2}                ; (l>>3)*256
    v_cndmask_b32 v{vT}, v{vT}, v{vT+1}, vcc
    v_lshl_add_u32 v{aF3}, v{aF3}, 2, v{vT}
    v_add_u32 v{aF3}, v{aF3}, v{vT+2}
    s_mov_b32 s64, 0xf0f0f0f0
    s_mov_b32 s65, 0xf0f0f0f0
    v_lshlrev_b32 v{aP}, 4, v{vLANE}
    s_lshl_b32 s28, s{sWAVE}, 10
    s_add_u32 s28, s28, {WS_HB}
    s_mov_b32 s29, {WS_HB + 8192}
    s_lshl_b32 s30, s{sWAVE}, 11
    s_add_u32 s30, s30, {WS_CANB + 8*128}
    """)
    HGs = [P + 48 + 8 * k for k in range(3)]
    for k in range(3):
        for r in range(4):
            a(f"v_mov_b32 v{HGs[k]+4+r}, v{vTAG}")
    def h_issue2(k):
        a(f"buffer_load_dwordx4 v[{HGs[k]}:{HGs[k]+3}], v{aP}, s[{sWS}:{sWS+3}], s28 offen sc1")
        a(f"buffer_load_dwordx4 v[{HGs[k]+4}:{HGs[k]+7}], v{aP}, s[{sWS}:{sWS+3}], s29 offen sc1")
    def h_issue1(k):
        a(f"buffer_load_dwordx4 v[{HGs[k]}:{HGs[k]+3}], v{aP}, s[{sWS}:{sWS+3}], s28 offen sc1")
    def h_consume2(k):
        for b in range(4):
            a(f"ds_write_b16_d16_hi v{aH}, v{HGs[k]+b} offset:{L_HB + 1152*b}")
        for b in range(4):
            a(f"ds_write_b16_d16_hi v{aH}, v{HGs[k]+4+b} offset:{L_HB + 1152*b + 1024}")
    def h_consume1(k):
        for b in range(4):
            a(f"ds_write_b16_d16_hi v{aH}, v{HGs[k]+b} offset:{L_HB + 1152*b}")
    a(f"s_cmp_lg_u32 s{sWAVE}, 0\n s_cbranch_scc1 L_h1")
    ppoll(a, "L_hpoll2", ns[2], 2, h_issue2, lambda k: list(range(HGs[k], HGs[k] + 8)), vT + 13, h_consume2, pollsleep, stg,
          probe=((lambda: a(f"buffer_load_dword v{HGs[0]}, v{aP}, s[{sWS}:{sWS+3}], s{30 if canB else 28} offen sc1")), HGs[0], "1") if probe[2] else None, presleep=presl[2])
    a("s_branch L_h2\n L_h1:")
    ppoll(a, "L_hpoll1", ns[2], 1, h_issue1, lambda k: list(range(HGs[k], HGs[k] + 4)), vT + 13, h_consume1, pollsleep, stg,
          probe=((lambda: a(f"buffer_load_dword v{HGs[0]}, v{aP}, s[{sWS}:{sWS+3}], s{30 if canB else 28} offen sc1")), HGs[0], "1") if probe[2] else None, presleep=presl[2])
    a("L_h2:")
    stamp(5)
    a("s_waitcnt lgkmcnt(0)\n s_barrier")
    AB = P
    for ks in range(9):
        a(f"ds_read_b128 v[{AB+4*ks}:{AB+4*ks+3}], v{aA} offset:{L_HB + 64*ks}")
    GD = P + 40
    GRm = P + 44
    for ks in range(9):
        a(f"s_waitcnt lgkmcnt({8-ks})")
        c = "0" if ks == 0 else f"v[{GD}:{GD+3}]"
        a(f"v_mfma_f32_16x16x32_bf16 v[{GD}:{GD+3}], v[{AB+4*ks}:{AB+4*ks+3}], v[{BB+4*ks}:{BB+4*ks+3}], {c}")
    a(f"s_and_b32 s28, s{sWAVE}, 3")
    lg = [a.label("L_gr") for _ in range(4)]; lge = a.label("L_gre")
    for t in range(1, 4):
        a(f"s_cmp_eq_u32 s28, {t}\n s_cbranch_scc1 {lg[t]}")
    for t in range(4):
        a(f"{lg[t]}:")
        kss = [t, t + 4] + ([8] if t == 0 else [])
        for i, ks in enumerate(kss):
            c = "0" if i == 0 else f"v[{GRm}:{GRm+3}]"
            a(f"v_mfma_f32_16x16x32_bf16 v[{GRm}:{GRm+3}], v[{AB+4*ks}:{AB+4*ks+3}], v[{AB+4*ks}:{AB+4*ks+3}], {c}")
        if t != 3:
            a(f"s_branch {lge}")
    a(f"""
    {lge}:
    s_nop 2
    ds_write_b128 v{aG}, v[{GD}:{GD+3}] offset:{L_GUF}
    s_nop 6
    s_mov_b64 exec, 0xffff
    ds_write_b128 v{aR}, v[{GRm}:{GRm+3}] offset:{L_GR}
    s_mov_b64 exec, -1
    s_waitcnt lgkmcnt(0)
    s_barrier
    """)
    stamp(6)
    def canc_store():
        lab = a.label("L_nocan")
        a(f"""
        s_cmp_lg_u32 s{sWAVE}, 7
        s_cbranch_scc1 {lab}
        s_lshl_b32 s30, s{sIDX}, 7
        s_add_u32 s30, s30, {WS_CANC}
        v_mov_b32 v{vT+14}, 0
        s_mov_b64 exec, 1
        buffer_store_dword v{vTAG}, v{vT+14}, s[{sWS}:{sWS+3}], s30 offen sc1
        s_mov_b64 exec, -1
        {lab}:
        """)
    if canC == 2:
        canc_store()
    a(f"s_cmp_ge_u32 s{sWAVE}, 2\n s_cbranch_scc1 L_nogelu")
    GE = P
    a(f"""
    ds_read_b32 v{GE+8}, v{aF3} offset:{L_GR}
    ds_read_b32 v{GE}, v{aF1} offset:{L_GUF}
    ds_read_b32 v{GE+1}, v{aF1} offset:{L_GUF+4096}
    ds_read_b32 v{GE+2}, v{aF1} offset:{L_GUF+2048}
    ds_read_b32 v{GE+3}, v{aF1} offset:{L_GUF+2048+4096}
    ds_read_b32 v{GE+4}, v{aF2} offset:{L_GUF+256}
    ds_read_b32 v{GE+5}, v{aF2} offset:{L_GUF+256+4096}
    ds_read_b32 v{GE+6}, v{aF2} offset:{L_GUF+256+2048}
    ds_read_b32 v{GE+7}, v{aF2} offset:{L_GUF+256+2048+4096}
    s_waitcnt lgkmcnt(8)
    """)
    X_, Y_, T_ = GE + 8, GE + 9, GE + 10
    a(f"""
    s_nop 1
    v_add_f32_dpp v{X_}, v{X_}, v{X_} row_ror:8 row_mask:0xf bank_mask:0xf
    """)
    xrow(a, [X_], [T_])
    a(f"""
    s_nop 0
    v_mov_b32_dpp v{Y_}, v{X_} row_ror:4 row_mask:0xf bank_mask:0xf
    s_nop 0
    v_cndmask_b32 v{T_}, v{Y_}, v{X_}, s[64:65]      ; sum
    v_cndmask_b32 v{Y_}, v{X_}, v{Y_}, s[64:65]      ; sumsq
    v_mul_f32 v{T_}, {INV576}, v{T_}                 ; mu
    v_mul_f32 v{Y_}, {INV576}, v{Y_}
    v_fma_f32 v{Y_}, -v{T_}, v{T_}, v{Y_}            ; var
    """)
    rbf(a, [(T_, Y_)], [X_])
    a(f"v_add_f32 v{Y_}, {EPS}, v{Y_}")
    rbf(a, [(Y_, Y_)], [X_])
    a(f"v_sqrt_f32 v{Y_}, v{Y_}\n s_nop 0")
    rbf(a, [(Y_, Y_)], [X_])
    a(f"""
    v_rcp_f32 v{X_}, v{Y_}
    s_waitcnt lgkmcnt(0)
    v_add_f32 v{GE}, v{GE}, v{GE+1}
    v_add_f32 v{GE+2}, v{GE+2}, v{GE+3}
    v_add_f32 v{GE+4}, v{GE+4}, v{GE+5}
    v_add_f32 v{GE+6}, v{GE+6}, v{GE+7}
    v_fma_f32 v{GE}, -v{T_}, v{GE+4}, v{GE}
    v_fma_f32 v{GE+2}, -v{T_}, v{GE+6}, v{GE+2}
    """)
    fdiv(a, GE + 1, GE, X_, Y_, GE + 4)
    fdiv(a, GE + 3, GE + 2, X_, Y_, GE + 5)
    rbf(a, [(GE + 1, GE + 3)], [GE + 4])
    C1, C2 = 0x3d372713, 0x3f4c422a
    TWO_L2E = 0x4038aa3b
    g, t = GE + 1, GE + 4
    a(f"""
    v_mul_f32 v{t}, v{g}, v{g}
    v_mul_f32 v{t}, v{t}, v{g}
    v_mov_b32 v{t+1}, {C1}
    v_fma_f32 v{t}, v{t}, v{t+1}, v{g}
    v_mul_f32 v{t}, {C2}, v{t}
    v_mul_f32 v{t}, {TWO_L2E}, v{t}
    v_exp_f32 v{t}, v{t}
    v_mul_f32 v{t+2}, 0.5, v{g}
    v_add_f32 v{t}, 1.0, v{t}
    v_rcp_f32 v{t}, v{t}
    s_nop 0
    v_fma_f32 v{t}, -2.0, v{t}, 1.0
    v_add_f32 v{t}, 1.0, v{t}
    v_mul_f32 v{g}, v{t+2}, v{t}
    """)
    rbf(a, [(g, g)], [t])
    a(f"""
    v_mul_f32 v{g}, v{g}, v{GE+3}
    v_cvt_pk_bf16_f32 v{t}, v{g}, v{g}
    ds_write_b16 v{aW}, v{t} offset:{L_HF}
    s_waitcnt lgkmcnt(0)
    L_nogelu:
    s_barrier
    """)
    tstamp(14)
    if canC == 1:
        canc_store()
    a(f"""
    v_and_b32 v{vT+5}, 3, v{vN}
    v_lshlrev_b32 v{vT+5}, 6, v{vT+5}
    v_lshl_add_u32 v{vT+5}, v{vG}, 4, v{vT+5}
    ds_read_b128 v[{P}:{P+3}], v{vT+5} offset:{L_HF}
    s_mul_i32 s28, s{sIDX}, 9216
    s_add_u32 s28, s28, {WS_Z}
    s_lshl_b32 s29, s{sWAVE}, 8
    s_add_u32 s28, s28, s29
    v_lshlrev_b32 v{vT+6}, 4, v{vN}
    s_waitcnt lgkmcnt(0)
    """)
    ZD = P + 8
    for i in range(5):
        if i == 4:
            a(f"s_cmp_ge_u32 s{sWAVE}, 4\n s_cbranch_scc1 L_z4")
        a(f"v_mfma_f32_16x16x32_bf16 v[{ZD+4*i}:{ZD+4*i+3}], v[{P}:{P+3}], v[{WDd+4*i}:{WDd+4*i+3}], 0")
    a("L_z4:\n s_nop 7")
    for i in range(5):
        if i == 4:
            a(f"s_cmp_ge_u32 s{sWAVE}, 4\n s_cbranch_scc1 L_fin")
        addtag(a, range(ZD + 4*i, ZD + 4*i + 4))
        a(f"""
        s_mov_b64 exec, 0xffff
        buffer_store_dwordx4 v[{ZD+4*i}:{ZD+4*i+3}], v{vT+6}, s[{sWS}:{sWS+3}], s28 offen offset:{2048*i if i < 2 else 0} sc1
        s_mov_b64 exec, -1
        """ if i < 2 else f"""
        s_add_u32 s29, s28, {2048*i}
        s_mov_b64 exec, 0xffff
        buffer_store_dwordx4 v[{ZD+4*i}:{ZD+4*i+3}], v{vT+6}, s[{sWS}:{sWS+3}], s29 offen sc1
        s_mov_b64 exec, -1
        """)

    tstamp(13)
    a("L_fin:")
    for i in range(mark_tail, len(a.L)):
        if a.L[i].strip() == "s_barrier" and "noguard" not in a.L[i]:
            lab = a.label("L_nb")
            a.L[i] = f"    s_cmp_eq_u32 s{sDRY}, 1\n    s_cbranch_scc1 {lab}\n    s_barrier\n{lab}:"
    a(f"s_cmp_eq_u32 s{sDRY}, 1\n s_cbranch_scc1 L_dry_done" if dry else "")
    if stamps:
        a("s_waitcnt vmcnt(0)")
        stamp(8)
        a(f"""
        s_lshl_b32 s28, s{sW}, 3
        s_add_u32 s28, s28, s{sWAVE}
        s_lshl_b32 s28, s28, 6
        s_add_u32 s28, s28, {WS_STAMP}
        v_mov_b32 v{vT}, 0
        s_mov_b64 exec, 1
        """)
        for i in range(0, NSTAMP, 4):
            for r in range(4):
                a(f"v_mov_b32 v{vT+2+r}, s{sST+i+r}")
            a(f"buffer_store_dwordx4 v[{vT+2}:{vT+5}], v{vT}, s[{sWS}:{sWS+3}], s28 offen offset:{4*i}")
            a("s_nop 1")
        a("s_waitcnt vmcnt(0)")
    a("L_end:\n s_endpgm\n L_code_end:")

    hdr = HEADER + f"; @launch grid=(256,1,1) block=(512,1,1) lds={LDS_BYTES}\n"
    hdr += '.amdgcn_target "amdgcn-amd-amdhsa--gfx950"\n.text\n'
    return hdr + kernel_begin(KNAME) + a.text() + kernel_desc(KNAME, 256, 102, 256)


HEADER = """; Fused pre-LN MHA decode (KV cache) + pre-LN GEGLU MLP, one persistent launch of 256 workgroups (one per CU).
"""

if __name__ == "__main__":
    import sys
    kw = eval(sys.argv[2]) if len(sys.argv) > 2 else {}
    open(sys.argv[1], "w").write(gen(**kw))
```

```python
from asmlib import *

WS_E    = 0x0
WS_QP   = 0x10000
WS_AP   = 0xA0000
WS_Y    = 0xD0000
WS_HB   = 0x120000
WS_Z    = 0x130000
WS_CANB = 0x280000
WS_CANC = 0x288000
WS_STAMP= 0x300000
WS_SIZE = 0x400000

L_XD = 0
L_QB = L_XD + 9216
L_MRG = L_QB + 256
L_ML = L_MRG + 4096
L_OB = L_ML + 64
L_HB = L_OB + 1024
L_GUF = L_HB + 5760
L_GR = L_GUF + 8192
L_HF = L_GR + 2048
L_SMALL_END = L_HF + 256
L_WG = 32768
L_WU = L_WG + 36864
L_WD = L_WU + 36864
L_END = L_WD + 36864
assert L_SMALL_END <= L_WG
LDS_BYTES = 143360
assert L_END <= LDS_BYTES, L_END

LOG2E = 0x3fb8aa3b
SCALE = 0x3db504f3
INV576 = 0x3ae38e39
EPS = 0x3727c5ac

sWAVE = 3
sK, sV, sWS, sT, sU = 8, 12, 16, 20, 24
pX, pK, pV, pWQ, pWO, pBX, pWG, pWU = 32, 34, 36, 38, 40, 42, 44, 46
pWD, pOUT, pDBG, pWSP = 48, 50, 52, 54
sE, sW, sB, sH, sJ, sTO, sKV, sIT = 56, 57, 58, 59, 60, 61, 62, 63
sROW = 64
sOFF = 67
sL2E, sSCALE, sHI = 68, 69, 70
sCNT = 71
sDRY, sOUTN = 94, 95
sROLE, sIDX, sSLICE, sNT, sROT = 96, 97, 98, 99, 100
sST = 74
NSTAMP = 16
vLANE, vN, vG, vOFFK, vOFFV = 0, 1, 2, 3, 4
vMASK = 5
vM, vL = 9, 10
vO = 12
vS = 16
vQ = 20
vTAG, vFF = 36, 37
vT = 38
vSTG = 64
vWQ = 192
vP = 172
vPP = 204


def srd(a, s, ptr, nbytes):
    a(f"""
    s_mov_b32 s{s}, s{ptr}
    s_and_b32 s{s+1}, s{ptr+1}, 0xffff
    s_mov_b32 s{s+2}, {nbytes}
    s_mov_b32 s{s+3}, 0x00020000
    """)


def row16(a, regs, op="add", ctrls=("quad_perm:[1,0,3,2]", "quad_perm:[2,3,0,1]", "row_half_mirror", "row_mirror")):
    ins = "v_add_f32" if op == "add" else "v_max_f32"
    n = len(regs)
    a("s_nop 1")
    for ctrl in ctrls:
        for r in regs:
            a(f"{ins}_dpp v{r}, v{r}, v{r} {ctrl} row_mask:0xf bank_mask:0xf")
        if n < 3:
            a(f"s_nop {2 - n}")


def xrow(a, regs, tmp, op="add", only32=False):
    ins = "v_add_f32" if op == "add" else "v_max_f32"
    sws = ("v_permlane16_swap_b32", "v_permlane32_swap_b32")
    if only32:
        sws = sws[1:]
    for sw in sws:
        for r, t in zip(regs, tmp):
            a(f"v_mov_b32 v{t}, v{r}")
        a("s_nop 1")
        for r, t in zip(regs, tmp):
            a(f"{sw} v{r}, v{t}")
        a("s_nop 1")
        for r, t in zip(regs, tmp):
            a(f"{ins} v{r}, v{r}, v{t}")


def wavesum(a, regs, tmp, op="add"):
    row16(a, regs, op)
    xrow(a, regs, tmp, op)


def rbf(a, pairs, t):
    for (x, y), tt in zip(pairs, t):
        a(f"v_cvt_pk_bf16_f32 v{tt}, v{x}, v{y}")
    for (x, y), tt in zip(pairs, t):
        a(f"v_lshlrev_b32 v{x}, 16, v{tt}")
        if y != x:
            a(f"v_and_b32 v{y}, s{sHI}, v{tt}")


def tagcheck(a, regs, acc, retry):
    a(f"v_xor_b32 v{acc}, v{regs[0]}, v{vTAG}")
    for r in regs[1:]:
        a(f"v_bitop3_b32 v{acc}, v{acc}, v{r}, v{vTAG} bitop3:0xf6")
    a(f"v_and_b32 v{acc}, v{acc}, v{vFF}")
    a(f"v_cmp_ne_u32 vcc, 0, v{acc}")
    a(f"s_cbranch_vccnz {retry}")


def addtag(a, regs):
    for r in regs:
        a(f"v_bfi_b32 v{r}, v{vFF}, v{vTAG}, v{r}")


def poll_head(a, name, bail="L_end"):
    a(f"{name}:")
    a(f"s_sub_u32 s{sTO}, s{sTO}, 1")
    a(f"s_cbranch_scc1 {bail}")


def ppoll(a, name, nsets, nloads, issue, regs, acc, consume, sleep=0, stagger=0, probe=None, presleep=0):
    a(f"s_cmp_eq_u32 s{sDRY}, 1\n s_cbranch_scc1 {name}_ok0")
    if presleep:
        n = presleep
        while n > 0:
            a(f"s_sleep {min(n, 100)}")
            n -= 100
    if probe:
        emit, preg, mask = probe
        a(f"s_mov_b64 exec, {mask}")
        a(f"{name}_probe:")
        a(f"s_sub_u32 s{sTO}, s{sTO}, 1")
        a(f"s_cbranch_scc1 L_end")
        emit()
        a("s_waitcnt vmcnt(0)")
        a(f"v_xor_b32 v{acc}, v{preg}, v{vTAG}")
        a(f"v_and_b32 v{acc}, v{acc}, v{vFF}")
        a(f"v_cmp_ne_u32 vcc, 0, v{acc}")
        a(f"s_cbranch_vccnz {name}_probe")
        a("s_mov_b64 exec, -1")
    for k in range(nsets):
        issue(k)
        if stagger and k != nsets - 1:
            a(f"s_sleep {stagger}")
    a(f"{name}:")
    a(f"s_sub_u32 s{sTO}, s{sTO}, 1")
    a(f"s_cbranch_scc1 L_end")
    for k in range(nsets):
        a(f"s_waitcnt vmcnt({(nsets-1)*nloads})")
        r = regs(k)
        a(f"v_xor_b32 v{acc}, v{r[0]}, v{vTAG}")
        for x in r[1:]:
            a(f"v_bitop3_b32 v{acc}, v{acc}, v{x}, v{vTAG} bitop3:0xf6")
        a(f"v_and_b32 v{acc}, v{acc}, v{vFF}")
        a(f"v_cmp_ne_u32 vcc, 0, v{acc}")
        a(f"s_cbranch_vccz {name}_ok{k}")
        if sleep:
            a(f"s_sleep {sleep}")
        issue(k)
    a(f"s_branch {name}")
    for k in range(nsets):
        a(f"{name}_ok{k}:")
        consume(k)
        if k != nsets - 1:
            a(f"s_branch {name}_done")
    a(f"{name}_done:")


def fdiv(a, out, num, den_rcp, den, t):
    a(f"v_mul_f32 v{out}, v{num}, v{den_rcp}")
    a(f"v_fma_f32 v{t}, -v{out}, v{den}, v{num}")
    a(f"v_fma_f32 v{out}, v{t}, v{den_rcp}, v{out}")


def gen(D=3, stamps=False, stop=None, kvflags="nt", wflags="nt", late_w=False, pollsleep=0, codepf='tail', xflags="nt", cyc=False, pre=(0, 1, 2, 0), no_w=False, no_compute=False, no_q=False, early='', wo_late=False, gate='pair', bare=False, tailst=False, ns=(1, 1, 1, 1), stg=0, probe=(0, 1, 1, 1), presl=(0, 0, 0, 0), dry=False, shift=0, rotw=False, only=None, canB=False, canC=0, outfl='sc1', tlbw=0, locq=True, lq_pre=1, lq_mid=1, w0_mid=1, xmap=True, dbgA=False, dbgB=False, lq_late=2, gsleep=0, bdec=True, wo_e=4, wd_after=False, dbgtime=False):
    a = Asm()
    NT = 32
    KV_OOB = 0x10000000
    P = vPP

    def tstamp(idx):
        if tailst:
            stamp(idx, True)

    def stamp(idx, force=False):
        if only is not None and idx not in only:
            return
        if tailst and idx in (9, 10, 11, 12, 13, 14) and not force:
            return
        if stamps:
            ins = "s_memtime" if cyc else "s_memrealtime"
            a(f"{ins} s[90:91]\n s_waitcnt lgkmcnt(0)\n s_mov_b32 s{sST+idx}, s90")

    def psleep():
        if pollsleep:
            a(f"s_sleep {pollsleep}")

    def code_prefetch(nwaves, lo, hi, tmp, dst=None):
        a(f"""
        s_getpc_b64 s[92:93]
        {a.label("L_pc")}:
        """)
        lab = a.L[-1].strip()[:-1]
        a(f"""
        s_add_u32 s92, s92, {lo}-{lab}
        s_addc_u32 s93, s93, {-1 if lo == "L_code0" else 0}
        s_lshl_b32 s28, s{sWAVE}, 10
        v_lshlrev_b32 v{tmp+4}, 4, v{vLANE}
        v_add_u32 v{tmp+4}, s28, v{tmp+4}
        s_mov_b32 s29, {hi}-{lo}-16
        """)
        for i in range(NPF[(lo, hi)]):
            a(f"v_min_u32 v{tmp+5}, s29, v{tmp+4}")
            d_ = tmp if dst is None else dst
            a(f"global_load_dwordx4 v[{d_}:{d_+3}], v{tmp+5}, s[92:93]")
            a(f"v_add_u32 v{tmp+4}, {1024*nwaves}, v{tmp+4}")
    NPF = {("L_code0", "L_code_end"): 2, ("L_tail0", "L_code_end"): 2}
    XMAP = "" if not xmap else f"""
    s_and_b32 s29, s2, 7
    s_lshr_b32 s30, s2, 6
    s_lshl_b32 s30, s30, 3
    s_add_u32 s{sH}, s29, s30              ; h = (w&7) + 8*(w>>6)
    s_bfe_u32 s{sJ}, s2, 0x30003           ; j = (w>>3)&7
    s_lshr_b32 s{sB}, s{sJ}, 1
    """
    def dbg_max(slot, invert=False):
        if not dbgtime:
            return
        lab = a.label("L_dbg")
        a(f"s_cmp_ge_u32 s{sWAVE}, {2 if slot == 2 else 1}\n s_cbranch_scc1 {lab}")
        a(f"""
        s_memrealtime s[90:91]
        s_waitcnt lgkmcnt(0)
        {"s_not_b32 s90, s90" if invert else ""}
        v_mov_b32 v62, s90
        v_mov_b32 v63, {4*slot}
        s_mov_b64 exec, 1
        global_atomic_umax v63, v62, s[{pDBG}:{pDBG+1}]
        s_mov_b64 exec, -1
        {lab}:
        """)

    a(f"""
    L_code0:
    s_cmp_ge_u32 s2, 256
    s_cbranch_scc1 L_end
    s_load_dwordx16 s[32:47], s[0:1], 0
    s_load_dwordx8 s[48:55], s[0:1], 64
    v_lshrrev_b32 v{P}, 6, v0
    v_and_b32 v{vLANE}, 63, v0
    v_readfirstlane_b32 s{sWAVE}, v{P}
    v_and_b32 v{vN}, 15, v{vLANE}
    v_lshrrev_b32 v{vG}, 4, v{vLANE}
    v_lshlrev_b32 v{vOFFK}, 8, v{vN}
    v_lshl_add_u32 v{vOFFK}, v{vG}, 4, v{vOFFK}
    v_lshlrev_b32 v{vOFFV}, 10, v{vG}
    v_lshl_add_u32 v{vOFFV}, v{vN}, 4, v{vOFFV}
    s_mov_b32 s{sW}, s2
    s_lshr_b32 s{sB}, s2, 6
    s_lshr_b32 s{sH}, s2, 1
    s_and_b32 s{sH}, s{sH}, 31
    s_and_b32 s28, s2, 1
    s_lshl_b32 s{sJ}, s{sB}, 1
    s_add_u32 s{sJ}, s{sJ}, s28
    {XMAP}
    s_mov_b32 s{sTO}, 2000000
    s_lshr_b32 s29, s2, 1                  ; P
    s_mov_b32 s{sIDX}, s29
    s_cmp_lt_u32 s29, 96
    s_cselect_b32 s{sROLE}, 1, 2
    s_cselect_b32 s30, {shift}, 0
    s_cmp_eq_u32 s28, 1
    s_cselect_b32 s{sROLE}, 0, s{sROLE}
    s_lshr_b32 s31, s29, 3
    s_lshl_b32 s31, s31, 2
    s_and_b32 s4, s29, 3
    s_add_u32 s31, s31, s4
    s_lshl_b32 s31, s31, 1
    s_bfe_u32 s4, s29, 0x10002
    s_add_u32 s{sSLICE}, s31, s4
    s_cmp_lt_u32 s2, 224
    s_cbranch_scc1 L_role_done
    s_mov_b32 s{sROLE}, 0
    s_sub_u32 s4, s2, 224                  ; p'
    s_add_u32 s{sIDX}, s4, 112
    s_lshr_b32 s31, s4, 4
    s_lshl_b32 s31, s31, 3
    s_and_b32 s5, s4, 7
    s_add_u32 s31, s31, s5
    s_lshl_b32 s31, s31, 1
    s_bfe_u32 s5, s4, 0x10003
    s_add_u32 s31, s31, s5
    s_add_u32 s{sSLICE}, s31, 112
    L_role_done:
    s_sub_u32 s30, 256, s30
    s_and_b32 s28, s{sJ}, 1
    s_cmp_eq_u32 s28, 1
    s_cselect_b32 s4, s30, 0               ; t0
    s_cselect_b32 s5, 512, s30             ; t1
    s_mov_b32 s{sL2E}, {LOG2E}
    s_mov_b32 s{sSCALE}, {SCALE}
    s_mov_b32 s{sHI}, 0xffff0000
    s_mov_b32 s{sDRY}, 0
    s_mov_b32 s{sOUTN}, 4608
    """)
    if stamps:
        for i in range(NSTAMP):
            a(f"s_mov_b32 s{sST+i}, 0")
    stamp(0)
    if codepf is True and not locq:
        code_prefetch(8, "L_code0", "L_code_end", vPP + 44)
    a("s_waitcnt lgkmcnt(0)")
    stamp(9)
    dbg_max(0, True)
    a(f"s_load_dword s{sE}, s[{pWSP}:{pWSP+1}], 0")
    srd(a, sK, pK, 0x10000000)
    srd(a, sV, pV, 0x10000000)
    srd(a, sWS, pWSP, WS_SIZE)
    srd(a, sT, pX, 4608)
    srd(a, sU, pWQ, 576 * 8192)
    a(f"""
    s_lshl_b32 s{sKV}, s{sB}, 5
    s_add_u32 s{sKV}, s{sKV}, s{sH}
    s_lshl_b32 s{sKV}, s{sKV}, 21
    s_lshl_b32 s28, s4, 12
    s_add_u32 s{sKV}, s{sKV}, s28
    s_sub_u32 s29, s5, s4                  ; L
    s_lshr_b32 s{sNT}, s29, 3
    s_and_b32 s29, s29, 7                  ; remainder
    {'s_add_u32 s28, s%d, s%d' % (sNT, sWAVE) if rotw else 's_mov_b32 s28, s%d' % sWAVE}
    s_and_b32 s28, s28, 7
    s_cmp_lt_u32 s28, s29
    s_addc_u32 s{sNT}, s{sNT}, 0
    s_mov_b32 s{sIT}, 0
    """)

    def kloads(s):
        r = vSTG + 32 * s
        for j in range(4):
            a(f"buffer_load_dwordx4 v[{r+4*j}:{r+4*j+3}], v{vOFFK}, s[{sK}:{sK+3}], s{sOFF} offen offset:{64*j} {kvflags}")

    def vloads(s):
        r = vSTG + 32 * s + 16
        for j in range(4):
            a(f"buffer_load_dwordx4 v[{r+4*j}:{r+4*j+3}], v{vOFFV}, s[{sV}:{sV+3}], s{sOFF} offen offset:{256*j} {kvflags}")

    def nextoff():
        if rotw:
            a(f"""
            s_add_u32 s{sOFF}, s{sIT}, s{sWAVE}
            s_and_b32 s{sOFF}, s{sOFF}, 7
            s_lshl_b32 s{sOFF}, s{sOFF}, 12
            s_add_u32 s{sOFF}, s{sOFF}, s{sKV}
            """)
        else:
            a(f"""
            s_lshl_b32 s{sOFF}, s{sWAVE}, 12
            s_add_u32 s{sOFF}, s{sOFF}, s{sKV}
            """)
        a(f"""
        s_cmp_ge_u32 s{sIT}, s{sNT}
        s_cselect_b32 s{sOFF}, {KV_OOB}, s{sOFF}
        s_add_u32 s{sKV}, s{sKV}, 32768
        s_add_u32 s{sIT}, s{sIT}, 1
        """)

    def prefetch(lo=0, hi=D):
        for s in range(lo, hi):
            nextoff(); kloads(s); vloads(s)

    a0, a1, b0, b1 = pre

    def by_class(fa, fb, f7=None):
        la, lb, le = a.label("L_cA"), a.label("L_cB"), a.label("L_cE")
        a(f"s_cmp_lt_u32 s{sWAVE}, 4\n s_cbranch_scc1 {la}")
        a(f"s_cmp_lt_u32 s{sWAVE}, 7\n s_cbranch_scc1 {lb}")
        if f7: f7()
        a(f"s_branch {le}\n {la}:")
        fa()
        a(f"s_branch {le}\n {lb}:")
        fb()
        a(f"{le}:")

    def MASKS():
        t0, t1, t2 = vT + 2, vT + 3, vT + 4
        a(f"""
        v_and_b32 v{t0}, 7, v{vN}
        v_and_b32 v{t1}, 1, v{t0}
        v_lshlrev_b32 v{t1}, 4, v{t1}
        v_mov_b32 v{t2}, 0xffff
        v_lshlrev_b32 v{t1}, v{t1}, v{t2}
        v_lshrrev_b32 v{t0}, 1, v{t0}
        v_mov_b32 v{vFF}, 0xff
        """)
        for d in range(4):
            a(f"v_cmp_eq_u32 vcc, {d}, v{t0}\n s_nop 1\n v_cndmask_b32 v{vMASK+d}, 0, v{t1}, vcc")
        a(f"""
        s_waitcnt lgkmcnt(0)
        s_add_u32 s{sE}, s{sE}, 1
        s_and_b32 s28, s{sE}, 0xff
        v_mov_b32 v{vTAG}, s28
        """)

    if bare:
        prefetch(0, D)
        MASKS()
        a("s_branch L_bare")
    if locq:
        X, Dv = 64, 74
        A0, A1, A2, A3, A4 = 84, 85, 86, 87, 88
        vW18, AXS, AO = 160, 232, 250
        a(f"""
        v_lshlrev_b32 v{vT+1}, 13, v{vG}
        v_lshl_add_u32 v{vT+1}, v{vN}, 4, v{vT+1}        ; g*8192 + c*16
        s_lshl_b32 s30, s{sWAVE}, 15
        s_lshl_b32 s31, s{sH}, 8
        s_add_u32 s30, s30, s31
        s_cmp_lg_u32 s{sWAVE}, 0
        s_cbranch_scc1 L_lq_other
        v_lshlrev_b32 v{vT}, 1, v{vLANE}
        s_mul_i32 s28, s{sB}, 1152
        """)
        for i in range(9):
            a(f"buffer_load_ushort v{X+i}, v{vT}, s[{sT}:{sT+3}], s28 offen offset:{128*i} {xflags}")
        def wq18():
            for u in range(18):
                a(f"buffer_load_dwordx4 v[{vW18+4*u}:{vW18+4*u+3}], v{vT+1}, s[{sU}:{sU+3}], s30 offen {wflags}")
                if u != 17:
                    a(f"s_add_u32 s30, s30, {32*8192}")
        wq18()
        a("s_branch L_lq_issued\n L_lq_other:")
        lq_m = min(D, lq_pre + lq_mid)
        w0_m = min(D, w0_mid)
        prefetch(0, lq_pre)
        wq18()
        prefetch(lq_pre, lq_m)
        a("L_lq_issued:")
        if codepf is True:
            code_prefetch(8, "L_code0", "L_code_end", vT + 8, dst=60)
        MASKS()
        ncp = 0
        a(f"s_cmp_lg_u32 s{sWAVE}, 0\n s_cbranch_scc1 L_lq_noln")
        a(f"s_waitcnt vmcnt({18 + ncp})")
        stamp(10)
        for i in range(9):
            a(f"v_lshlrev_b32 v{X+i}, 16, v{X+i}")
        a(f"v_add_f32 v{A0}, v{X}, v{X+1}")
        a(f"v_mul_f32 v{A2}, v{X}, v{X}")
        for i in range(1, 9):
            if i >= 2:
                a(f"v_add_f32 v{A0}, v{A0}, v{X+i}")
            a(f"v_fmac_f32 v{A2}, v{X+i}, v{X+i}")
        wavesum(a, [A0, A2], [A1, A3])
        a(f"""
        v_mul_f32 v{A0}, {INV576}, v{A0}
        v_mul_f32 v{A2}, {INV576}, v{A2}
        v_fma_f32 v{A2}, -v{A0}, v{A0}, v{A2}
        """)
        rbf(a, [(A0, A2)], [A1])
        a(f"v_add_f32 v{A2}, {EPS}, v{A2}")
        rbf(a, [(A2, A2)], [A1])
        a(f"v_sqrt_f32 v{A2}, v{A2}\n s_nop 0")
        rbf(a, [(A2, A2)], [A1])
        a(f"v_rcp_f32 v{A3}, v{A2}")
        for i in range(9):
            a(f"v_sub_f32 v{Dv+i}, v{X+i}, v{A0}")
        rbf(a, [(Dv, Dv+1), (Dv+2, Dv+3), (Dv+4, Dv+5), (Dv+6, Dv+7), (Dv+8, Dv+8)], [X, X+1, X+2, X+3, X+4])
        for i in range(9):
            fdiv(a, X + i, Dv + i, A3, A2, A4)
        for i in range(9):
            a(f"v_cvt_pk_bf16_f32 v{X+i}, v{X+i}, v{X+i}")
        a(f"v_lshlrev_b32 v{A4}, 2, v{vLANE}")
        for i in range(9):
            a(f"ds_write_b32 v{A4}, v{X+i} offset:{L_XD + 256*i}")
        a("s_waitcnt lgkmcnt(0)")
        prefetch(0, w0_m)
        a("L_lq_noln:")
        a("s_barrier")
        stamp(11)
        a(f"""
        s_lshl_b32 s28, s{sWAVE}, 4
        v_lshlrev_b32 v{vT}, 2, v{vG}
        v_add_u32 v{vT}, s28, v{vT}                      ; g*4 + wave*16
        """)
        for u in range(18):
            a(f"ds_read_b32 v{AXS+u}, v{vT} offset:{L_XD + 128*u}")
            if u == 8:
                a("s_waitcnt lgkmcnt(0)")
        lw0, lwe = a.label("L_lqw0"), a.label("L_lqwe")
        a(f"s_cmp_eq_u32 s{sWAVE}, 0\n s_cbranch_scc1 {lw0}")
        a(f"s_waitcnt vmcnt({8*(lq_m-lq_pre) + ncp})\n s_branch {lwe}\n {lw0}:\n s_waitcnt vmcnt({8*w0_m})\n {lwe}:")
        a("s_waitcnt lgkmcnt(0)")
        if dbgA:
            a("s_waitcnt vmcnt(0)")
        stamp(12)
        for u in range(18):
            ao = AO if True else AO
            for d in range(4):
                a(f"v_and_b32 v{ao+d}, v{AXS+u}, v{vMASK+d}")
            a("s_nop 1")
            c = "0" if u == 0 else f"v[{vS}:{vS+3}]"
            a(f"v_mfma_f32_16x16x32_bf16 v[{vS}:{vS+3}], v[{ao}:{ao+3}], v[{vW18+4*u}:{vW18+4*u+3}], {c}")
            if dbgB:
                a("s_nop 7")
        a(f"""
        v_lshlrev_b32 v{vT}, 5, v{vN}                 ; c*32
        v_and_b32 v{vT+1}, 1, v{vG}
        v_lshl_add_u32 v{vT}, v{vT+1}, 4, v{vT}       ; + (g&1)*16
        s_lshl_b32 s28, s{sWAVE}, 9
        v_add_u32 v{vT}, s28, v{vT}
        s_nop 4
        ds_write_b128 v{vT}, v[{vS}:{vS+3}] offset:{L_MRG}
        """)
        if lq_m < D or w0_m < D:
            l0, le = a.label("L_lqr0"), a.label("L_lqre")
            a(f"s_cmp_eq_u32 s{sWAVE}, 0\n s_cbranch_scc1 {l0}")
            r1 = lq_late if lq_late is not None else D
            prefetch(lq_m, max(lq_m, min(D, r1)))
            a(f"s_branch {le}\n {l0}:")
            prefetch(w0_m, max(w0_m, min(D, r1)))
            a(f"{le}:")
        a("""
        s_waitcnt lgkmcnt(0)
        s_barrier
        """)
        stamp(13)
        QS = 232
        a(f"""
        s_cmp_lg_u32 s{sWAVE}, 1
        s_cbranch_scc1 L_lq_qdone
        v_and_b32 v{vT}, 31, v{vLANE}
        v_lshlrev_b32 v{vT+1}, 4, v{vT}
        """)
        for w in range(4):
            a(f"ds_read_b128 v[{QS+4*w}:{QS+4*w+3}], v{vT+1} offset:{L_MRG + 512*w}")
        for w in range(4, 8):
            a(f"ds_read_b128 v[{160+4*w}:{160+4*w+3}], v{vT+1} offset:{L_MRG + 512*w}")
        a("s_waitcnt lgkmcnt(0)")
        for r in range(0, 4, 2):
            a(f"v_pk_add_f32 v[{QS+r}:{QS+r+1}], v[{QS+r}:{QS+r+1}], v[{QS+4+r}:{QS+5+r}]")
            a(f"v_pk_add_f32 v[{QS+8+r}:{QS+9+r}], v[{QS+8+r}:{QS+9+r}], v[{QS+12+r}:{QS+13+r}]")
            a(f"v_pk_add_f32 v[{176+r}:{177+r}], v[{176+r}:{177+r}], v[{180+r}:{181+r}]")
            a(f"v_pk_add_f32 v[{184+r}:{185+r}], v[{184+r}:{185+r}], v[{188+r}:{189+r}]")
        for r in range(0, 4, 2):
            a(f"v_pk_add_f32 v[{QS+r}:{QS+r+1}], v[{QS+r}:{QS+r+1}], v[{QS+8+r}:{QS+9+r}]")
            a(f"v_pk_add_f32 v[{176+r}:{177+r}], v[{176+r}:{177+r}], v[{184+r}:{185+r}]")
        for r in range(0, 4, 2):
            a(f"v_pk_add_f32 v[{QS+r}:{QS+r+1}], v[{QS+r}:{QS+r+1}], v[{176+r}:{177+r}]")
        a(f"""
        v_cvt_pk_bf16_f32 v{QS+4}, v{QS}, v{QS+1}
        v_cvt_pk_bf16_f32 v{QS+5}, v{QS+2}, v{QS+3}
        v_lshlrev_b32 v{vT}, 3, v{vT}
        ds_write_b64 v{vT}, v[{QS+4}:{QS+5}] offset:{L_QB}
        s_waitcnt lgkmcnt(0)
        L_lq_qdone:
        s_barrier
        """)
        stamp(14)
        r1 = lq_late if lq_late is not None else D
        if max(lq_m, min(D, r1)) < D or max(w0_m, min(D, r1)) < D:
            l0, le = a.label("L_lqs0"), a.label("L_lqse")
            a(f"s_cmp_eq_u32 s{sWAVE}, 0\n s_cbranch_scc1 {l0}")
            prefetch(max(lq_m, min(D, r1)), D)
            a(f"s_branch {le}\n {l0}:")
            prefetch(max(w0_m, min(D, r1)), D)
            a(f"{le}:")
    else:
        X = P
        a(f"""
        s_cmp_ge_u32 s{sWAVE}, 4
        s_cbranch_scc1 L_nox
        v_lshlrev_b32 v{vT}, 1, v{vLANE}
        s_mul_i32 s28, s{sWAVE}, 1152
        """)
        for i in range(9):
            a(f"buffer_load_ushort v{X+i}, v{vT}, s[{sT}:{sT+3}], s28 offen offset:{128*i} {xflags}")
        a("L_nox:")
        a(f"""
        v_lshlrev_b32 v{vT+1}, 13, v{vG}
        v_lshl_add_u32 v{vT+1}, v{vN}, 4, v{vT+1}        ; g*8192 + c*16
        """)
        for u in range(3):
            a(f"""
            s_add_u32 s29, s{sWAVE}, {8*u}
            s_lshl_b32 s30, s29, 2
            s_mul_i32 s28, s{sJ}, 72
            s_add_u32 s30, s30, s28
            s_mov_b32 s{sROW+u}, s30
            s_lshl_b32 s30, s30, 13
            s_lshl_b32 s31, s{sH}, 8
            s_add_u32 s30, s30, s31
            s_cmp_ge_u32 s29, 18
            s_cselect_b32 s30, {576*8192}, s30
            s_cselect_b32 s{sROW+u}, s28, s{sROW+u}
            buffer_load_dwordx4 v[{vWQ+4*u}:{vWQ+4*u+3}], v{vT+1}, s[{sU}:{sU+3}], s30 offen {wflags}
            """)
        by_class(lambda: prefetch(0, a0), lambda: prefetch(0, b0))
        MASKS()
        Dv = P + 10
        A0, A1, A2, A3, A4, A5 = (P + 20 + i for i in range(6))
        a(f"""
        s_cmp_ge_u32 s{sWAVE}, 4
        s_cbranch_scc1 L_noln
        s_waitcnt vmcnt({3 + 8*a0})
        """)
        stamp(10)
        for i in range(9):
            a(f"v_lshlrev_b32 v{X+i}, 16, v{X+i}")
        a(f"v_add_f32 v{A0}, v{X}, v{X+1}")
        for i in range(2, 9):
            a(f"v_add_f32 v{A0}, v{A0}, v{X+i}")
        wavesum(a, [A0], [A1])
        a(f"v_mul_f32 v{A0}, {INV576}, v{A0}")
        for i in range(9):
            a(f"v_sub_f32 v{Dv+i}, v{X+i}, v{A0}")
        a(f"v_mul_f32 v{A2}, v{Dv}, v{Dv}")
        for i in range(1, 9):
            a(f"v_fmac_f32 v{A2}, v{Dv+i}, v{Dv+i}")
        wavesum(a, [A2], [A1])
        a(f"v_mul_f32 v{A2}, {INV576}, v{A2}")
        rbf(a, [(A0, A2)], [A1])
        a(f"v_add_f32 v{A2}, {EPS}, v{A2}")
        rbf(a, [(A2, A2)], [A1])
        a(f"v_sqrt_f32 v{A2}, v{A2}\n s_nop 0")
        rbf(a, [(A2, A2)], [A1])
        a(f"v_rcp_f32 v{A3}, v{A2}")
        for i in range(9):
            a(f"v_sub_f32 v{Dv+i}, v{X+i}, v{A0}")
        rbf(a, [(Dv, Dv+1), (Dv+2, Dv+3), (Dv+4, Dv+5), (Dv+6, Dv+7), (Dv+8, Dv+8)], [X, X+1, X+2, X+3, X+4])
        for i in range(9):
            fdiv(a, X + i, Dv + i, A3, A2, A4)
        for i in range(9):
            a(f"v_cvt_pk_bf16_f32 v{X+i}, v{X+i}, v{X+i}")
        a(f"""
        s_mul_i32 s28, s{sWAVE}, {576*4}
        v_lshlrev_b32 v{A4}, 2, v{vLANE}
        v_add_u32 v{A4}, s28, v{A4}
        """)
        for i in range(9):
            a(f"ds_write_b32 v{A4}, v{X+i} offset:{L_XD + 256*i}")
        a("L_noln:")
        a("s_waitcnt lgkmcnt(0)\n s_barrier")
        stamp(11)
        AX = P
        AO = P + 8
        QA = P + 12
        a(f"""
        v_lshrrev_b32 v{vT}, 3, v{vN}                 ; m>>3
        v_mul_u32_u24 v{vT}, 576, v{vT}
        v_add_u32 v{vT}, v{vT}, v{vG}
        v_lshlrev_b32 v{vT}, 2, v{vT}                 ; ((m>>3)*576 + g)*4
        """)
        for u in range(3):
            a(f"""
            s_lshl_b32 s28, s{sROW+u}, 2
            v_add_u32 v{vT+1}, s28, v{vT}
            ds_read_b32 v{AX+2*u}, v{vT+1} offset:{L_XD}
            ds_read_b32 v{AX+2*u+1}, v{vT+1} offset:{L_XD + 2*576*4}
            """)
        by_class(lambda: a(f"s_waitcnt vmcnt({8*a0})"), lambda: a(f"s_waitcnt vmcnt({8*b0})"), lambda: a("s_waitcnt vmcnt(0)"))
        a("s_waitcnt lgkmcnt(0)")
        stamp(12)
        for u in range(3):
            for pp in range(2):
                for d in range(4):
                    a(f"v_and_b32 v{AO+d}, v{AX+2*u+pp}, v{vMASK+d}")
                a("s_nop 1")
                c = "0" if u == 0 else f"v[{QA+4*pp}:{QA+4*pp+3}]"
                a(f"v_mfma_f32_16x16x32_bf16 v[{QA+4*pp}:{QA+4*pp+3}], v[{AO}:{AO+3}], v[{vWQ+4*u}:{vWQ+4*u+3}], {c}")
                a("s_nop 1")
        a(f"""
        v_lshrrev_b32 v{vT}, 1, v{vG}
        v_lshlrev_b32 v{vT}, 9, v{vT}
        v_lshl_add_u32 v{vT}, v{vN}, 5, v{vT}
        v_and_b32 v{vT+1}, 1, v{vG}
        v_lshl_add_u32 v{vT}, v{vT+1}, 4, v{vT}
        s_nop 7
        """)
        a(f"s_lshl_b32 s28, s{sWAVE}, 11\n s_add_u32 s28, s28, {L_WG}\n v_add_u32 v{vT}, s28, v{vT}")
        for pp in range(2):
            a(f"ds_write_b128 v{vT}, v[{QA+4*pp}:{QA+4*pp+3}] offset:{pp*1024}")
        a("s_waitcnt lgkmcnt(0)\n s_barrier")
        stamp(13)
        by_class(lambda: prefetch(a0, a0 + a1), lambda: prefetch(b0, b0 + b1))
        G0 = P
        a(f"""
        s_cmp_lg_u32 s{sWAVE}, 7
        s_cbranch_scc1 L_qwait
        v_lshlrev_b32 v{vT}, 4, v{vLANE}
        v_add_u32 v{vT+1}, {L_WG}, v{vT}
        """)
        for half in range(2):
            base = G0 + 8 if half == 0 else G0 + 8
            for w in range(8):
                dst = (G0 + 4*half) if w == 0 else (G0 + 8 + 4*(w-1))
                a(f"ds_read_b128 v[{dst}:{dst+3}], v{vT+1} offset:{2048*w + 1024*half}")
            a("s_waitcnt lgkmcnt(0)")
            for w in range(1, 8):
                for r in range(4):
                    a(f"v_add_f32 v{G0+4*half+r}, v{G0+4*half+r}, v{G0+8+4*(w-1)+r}")
        a(f"""
        s_lshl_b32 s28, s{sH}, 3
        s_add_u32 s28, s28, s{sJ}
        s_lshl_b32 s28, s28, 11
        s_add_u32 s28, s28, {WS_QP}
        """)
        addtag(a, range(G0, G0 + 8))
        a(f"""
        buffer_store_dwordx4 v[{G0}:{G0+3}], v{vT}, s[{sWS}:{sWS+3}], s28 offen sc1
        buffer_store_dwordx4 v[{G0+4}:{G0+7}], v{vT}, s[{sWS}:{sWS+3}], s28 offen offset:1024 sc1
        v_lshrrev_b32 v{vT+1}, 5, v{vLANE}
        v_lshlrev_b32 v{vT+1}, 11, v{vT+1}
        v_and_b32 v{vT+2}, 31, v{vLANE}
        v_lshl_add_u32 v{vT+1}, v{vT+2}, 4, v{vT+1}      ; jj*2048 + c4*16
        s_lshl_b32 s28, s{sH}, 14
        s_lshl_b32 s29, s{sB}, 9
        s_add_u32 s28, s28, s29
        s_add_u32 s28, s28, {WS_QP}
        s_add_u32 s29, s28, 4096
        s_add_u32 s30, s28, 8192
        s_add_u32 s31, s28, 12288
        s_nop 1
        """)
        G1 = P + 8
        poll_head(a, "L_qpoll")
        psleep()
        for i in range(4):
            a(f"buffer_load_dwordx4 v[{G1+4*i}:{G1+4*i+3}], v{vT+1}, s[{sWS}:{sWS+3}], s{28+i} offen sc1")
        a("s_waitcnt vmcnt(0)")
        if not no_q:
            tagcheck(a, list(range(G1, G1 + 16)), vT + 3, "L_qpoll")
        stamp(14)
        for r in range(4):
            a(f"v_add_f32 v{G1+r}, v{G1+r}, v{G1+4+r}")
            a(f"v_add_f32 v{G1+8+r}, v{G1+8+r}, v{G1+12+r}")
        for r in range(4):
            a(f"v_add_f32 v{G1+r}, v{G1+r}, v{G1+8+r}")
        xrow(a, [G1, G1+1, G1+2, G1+3], [G1+4, G1+5, G1+6, G1+7], only32=True)
        a(f"""
        v_cvt_pk_bf16_f32 v{G1+8}, v{G1}, v{G1+1}
        v_cvt_pk_bf16_f32 v{G1+9}, v{G1+2}, v{G1+3}
        v_lshlrev_b32 v{vT+2}, 3, v{vT+2}
        ds_write_b64 v{vT+2}, v[{G1+8}:{G1+9}] offset:{L_QB}
        """)
        a(f"""
        s_waitcnt lgkmcnt(0)
        L_qwait:
        s_barrier
        """)
        by_class(lambda: prefetch(a0 + a1, D), lambda: prefetch(b0 + b1, D), lambda: prefetch(0, D))
    a(f"v_lshlrev_b32 v{vT}, 4, v{vG}")
    a("L_bare:")
    for j in range(4):
        a(f"ds_read_b128 v[{vQ+4*j}:{vQ+4*j+3}], v{vT} offset:{L_QB + 64*j}")
    a(f"""
    v_mov_b32 v{vM}, 0xff800000
    v_mov_b32 v{vL}, 0
    v_mov_b32 v{vO}, 0
    v_mov_b32 v{vO+1}, 0
    v_mov_b32 v{vO+2}, 0
    v_mov_b32 v{vO+3}, 0
    s_mov_b32 s{sCNT}, s{sNT}
    s_waitcnt lgkmcnt(0)
    """)
    stamp(1)
    dbg_max(3)
    if stop == "q":
        a("s_branch L_fin")

    P = vP
    s0, s1, s2, s3 = vT, vT + 1, vT + 2, vT + 3
    u0, u1 = vT + 4, vT + 5
    mx, mt, al, nm = vT + 6, vT + 7, vT + 8, vT + 9
    pk = vT + 10
    Aop = vT + 14
    assert Aop % 2 == 0
    a("L_loop:")
    for s in range(D):
        kb = vSTG + 32 * s
        vb = kb + 16
        a(f"s_waitcnt vmcnt({8*(D-1)+4})")
        for j in range(4):
            c = "0" if j == 0 else f"v[{vS}:{vS+3}]"
            a(f"v_mfma_f32_16x16x32_bf16 v[{vS}:{vS+3}], v[{kb+4*j}:{kb+4*j+3}], v[{vQ+4*j}:{vQ+4*j+3}], {c}")
        nextoff()
        kloads(s)
        a("s_nop 3")
        if no_compute:
            a(f"s_waitcnt vmcnt({8*(D-1)+4})")
            vloads(s)
            a(f"""
            s_sub_u32 s{sCNT}, s{sCNT}, 1
            s_cmp_eq_u32 s{sCNT}, 0
            s_cbranch_scc1 L_loop_end
            """)
            continue
        a(f"""
        v_cvt_pk_bf16_f32 v{u0}, v{vS}, v{vS+1}
        v_cvt_pk_bf16_f32 v{u1}, v{vS+2}, v{vS+3}
        v_lshlrev_b32 v{s0}, 16, v{u0}
        v_and_b32 v{s1}, s{sHI}, v{u0}
        v_lshlrev_b32 v{s2}, 16, v{u1}
        v_and_b32 v{s3}, s{sHI}, v{u1}
        v_mul_f32 v{s0}, s{sSCALE}, v{s0}
        v_mul_f32 v{s1}, s{sSCALE}, v{s1}
        v_mul_f32 v{s2}, s{sSCALE}, v{s2}
        v_mul_f32 v{s3}, s{sSCALE}, v{s3}
        v_cvt_pk_bf16_f32 v{u0}, v{s0}, v{s1}
        v_cvt_pk_bf16_f32 v{u1}, v{s2}, v{s3}
        v_lshlrev_b32 v{s0}, 16, v{u0}
        v_and_b32 v{s1}, s{sHI}, v{u0}
        v_lshlrev_b32 v{s2}, 16, v{u1}
        v_and_b32 v{s3}, s{sHI}, v{u1}
        v_max3_f32 v{mx}, v{s0}, v{s1}, v{s2}
        v_max3_f32 v{mx}, v{mx}, v{s3}, v{vM}
        v_mov_b32 v{mt}, v{mx}
        s_nop 1
        v_permlane16_swap_b32 v{mx}, v{mt}
        s_nop 1
        v_max_f32 v{mx}, v{mx}, v{mt}
        v_mov_b32 v{mt}, v{mx}
        s_nop 1
        v_permlane32_swap_b32 v{mx}, v{mt}
        s_nop 1
        v_max_f32 v{mx}, v{mx}, v{mt}
        v_sub_f32 v{al}, v{vM}, v{mx}
        v_mul_f32 v{nm}, s{sL2E}, v{mx}
        v_mul_f32 v{al}, s{sL2E}, v{al}
        v_fma_f32 v{s0}, v{s0}, s{sL2E}, -v{nm}
        v_fma_f32 v{s1}, v{s1}, s{sL2E}, -v{nm}
        v_fma_f32 v{s2}, v{s2}, s{sL2E}, -v{nm}
        v_fma_f32 v{s3}, v{s3}, s{sL2E}, -v{nm}
        v_exp_f32 v{al}, v{al}
        v_exp_f32 v{s0}, v{s0}
        v_exp_f32 v{s1}, v{s1}
        v_exp_f32 v{s2}, v{s2}
        v_exp_f32 v{s3}, v{s3}
        v_mov_b32 v{vM}, v{mx}
        v_mul_f32 v{vO}, v{vO}, v{al}
        v_mul_f32 v{vO+1}, v{vO+1}, v{al}
        v_mul_f32 v{vO+2}, v{vO+2}, v{al}
        v_mul_f32 v{vO+3}, v{vO+3}, v{al}
        v_cvt_pk_bf16_f32 v{pk}, v{s0}, v{s0}
        v_cvt_pk_bf16_f32 v{pk+1}, v{s1}, v{s1}
        v_cvt_pk_bf16_f32 v{pk+2}, v{s2}, v{s2}
        v_cvt_pk_bf16_f32 v{pk+3}, v{s3}, v{s3}
        v_fma_f32 v{vL}, v{vL}, v{al}, v{s0}
        v_add_f32 v{s1}, v{s1}, v{s2}
        v_add_f32 v{vL}, v{vL}, v{s3}
        v_add_f32 v{vL}, v{vL}, v{s1}
        s_waitcnt vmcnt({8*(D-1)+4})
        """)
        for r in range(4):
            ao = Aop + 4 * (r & 1)
            for d in range(4):
                a(f"v_and_b32 v{ao+d}, v{pk+r}, v{vMASK+d}")
            a("s_nop 1")
            a(f"v_mfma_f32_16x16x32_bf16 v[{vO}:{vO+3}], v[{ao}:{ao+3}], v[{vb+4*r}:{vb+4*r+3}], v[{vO}:{vO+3}]")
        vloads(s)
        a(f"""
        s_sub_u32 s{sCNT}, s{sCNT}, 1
        s_cmp_eq_u32 s{sCNT}, 0
        s_cbranch_scc1 L_loop_end
        """)
    a("s_branch L_loop\n L_loop_end:")
    stamp(2)
    xrow(a, [vL], [vT])
    a(f"""
    s_nop 7
    v_lshlrev_b32 v{vT}, 5, v{vN}                 ; c*32
    v_and_b32 v{vT+1}, 1, v{vG}
    v_lshl_add_u32 v{vT}, v{vT+1}, 4, v{vT}       ; + (g&1)*16
    s_lshl_b32 s28, s{sWAVE}, 9
    v_add_u32 v{vT}, s28, v{vT}
    ds_write_b128 v{vT}, v[{vO}:{vO+3}] offset:{L_MRG}
    s_lshl_b32 s28, s{sWAVE}, 3
    v_mov_b32 v{vT+2}, s28
    v_mov_b32 v{vT+4}, v{vM}
    v_mov_b32 v{vT+5}, v{vL}
    ds_write_b64 v{vT+2}, v[{vT+4}:{vT+5}] offset:{L_ML}
    """)

    def slice_idx():
        a(f"""
        s_mov_b32 s29, s{sSLICE}
        v_lshrrev_b32 v{vT}, 2, v{vLANE}
        v_mul_u32_u24 v{vT}, 9216, v{vT}
        v_and_b32 v{vT+1}, 3, v{vLANE}
        v_lshl_add_u32 v{vT}, v{vT+1}, 4, v{vT}
        v_lshlrev_b32 v{vT+1}, 4, v{vLANE}
        """)

    def dma_mat(which, sq):
        cnt = 9
        if which in "gu":
            ptr, lds0 = (pWG, L_WG) if which == "g" else (pWU, L_WU)
            srd(a, sT, ptr, 576 * 9216)
            a(f"""
            s_mul_i32 s28, s{sq}, {cnt*16*9216}
            s_lshl_b32 s30, s29, 6
            s_add_u32 s28, s28, s30
            s_mul_i32 s31, s{sq}, {cnt*1024}
            """)
            for i in range(cnt):
                a(f"s_add_u32 m0, s31, {lds0 + i*1024}\n s_nop 0")
                a(f"buffer_load_dwordx4 v{vT}, s[{sT}:{sT+3}], s28 offen {wflags} lds")
                a(f"s_add_u32 s28, s28, {16*9216}")
        else:
            srd(a, sT, pWD, 4608 * 1152)
            a(f"""
            s_mul_i32 s28, s29, {32*1152}
            s_mul_i32 s31, s{sq}, {cnt*1024}
            s_add_u32 s28, s28, s31
            """)
            for i in range(cnt):
                a(f"s_add_u32 m0, s31, {L_WD + i*1024}\n s_nop 0")
                a(f"buffer_load_dwordx4 v{vT+1}, s[{sT}:{sT+3}], s28 offen {wflags} lds")
                a(f"s_add_u32 s28, s28, 1024")

    def wo_dma(groups, sq, sg=None):
        a(f"""
        s_mov_b32 s29, s{sIDX}
        s_mul_i32 s30, s29, 21846
        s_lshr_b32 s30, s30, 16            ; h'
        s_mul_i32 s31, s30, 3
        s_sub_u32 s31, s29, s31            ; c
        """)
        srd(a, sT, pWO, 4096 * 1152)
        for q in range(3):
            a(f"""
            v_add_u32 v{vT+3}, {64*q}, v{vLANE}
            v_mul_u32_u24 v{vT+4}, 2731, v{vT+3}
            v_lshrrev_b32 v{vT+4}, 16, v{vT+4}          ; row = l0/24
            v_mul_u32_u24 v{vT+5}, 24, v{vT+4}
            v_sub_u32 v{vT+5}, v{vT+3}, v{vT+5}         ; piece
            v_mul_u32_u24 v{vT+4}, 1152, v{vT+4}
            v_lshl_add_u32 v{vT+q}, v{vT+5}, 4, v{vT+4}
            """)
        a(f"s_lshl_b32 s4, s{sq}, 2")
        if sg is not None:
            a(f"s_add_u32 s4, s4, s{sg}")
        a(f"""
        s_lshl_b32 s28, s30, 7
        s_lshl_b32 s29, s4, 3
        s_add_u32 s28, s28, s29
        s_mul_i32 s28, s28, 1152
        s_mul_i32 s31, s31, 384
        s_add_u32 s28, s28, s31
        s_mul_i32 s31, s4, {3*1024}
        """)
        for grp in groups:
            a(f"s_add_u32 s5, s28, {grp*8*1152}")
            for q in range(3):
                a(f"s_add_u32 m0, s31, {L_WG + (grp*3+q)*1024}\n s_nop 0")
                a(f"buffer_load_dwordx4 v{vT+q}, s[{sT}:{sT+3}], s5 offen {wflags} lds")

    def weights_early():
        lab_wo, lab_done = a.label("L_wwo"), a.label("L_wdone")
        a(f"s_cmp_lg_u32 s{sROLE}, 0\n s_cbranch_scc1 {lab_wo}")
        if early:
            slice_idx()
            for m in early:
                dma_mat(m, sWAVE)
        a(f"s_branch {lab_done}")
        a(f"{lab_wo}:")
        a(f"s_cmp_eq_u32 s{sROLE}, 2\n s_cbranch_scc1 {lab_done}")
        if wo_e > 0:
            wo_dma(list(range(wo_e)), sWAVE)
        a(f"{lab_done}:")

    def weights_late():
        late = [m for m in "gud" if m not in early]
        if not late:
            return
        slice_idx()
        sQ = 73
        a(f"s_and_b32 s{sQ}, s{sWAVE}, 3")
        lo, hi = late[:(len(late) + 1) // 2], late[(len(late) + 1) // 2:]
        lh, le = a.label("L_lateh"), a.label("L_latee")
        a(f"s_cmp_ge_u32 s{sWAVE}, 4\n s_cbranch_scc1 {lh}")
        for m in lo:
            dma_mat(m, sQ)
        a(f"s_branch {le}\n {lh}:")
        for m in hi:
            dma_mat(m, sQ)
        a(f"{le}:")
        a("s_waitcnt vmcnt(0)\n s_barrier")

    a(f"s_cmp_ge_u32 s{sWAVE}, 4\n s_cbranch_scc1 L_now")
    if not no_w:
        weights_early()
    if tlbw:
        lab = a.label("L_notlb")
        a(f"s_cmp_lg_u32 s{sWAVE}, 3\n s_cbranch_scc1 {lab}")
        tw = vT + 8
        a(f"v_lshlrev_b32 v{tw}, {tlbw}, v{vLANE}\n v_add_u32 v{tw}, 0x{(1 << tlbw) - 128:x}, v{tw}")
        n_ws = max(1, WS_STAMP // (64 << tlbw) + 1)
        for i in range(n_ws):
            a(f"s_mov_b32 s28, {i * (64 << tlbw)}")
            a(f"buffer_load_dword v{tw+1}, v{tw}, s[{sWS}:{sWS+3}], s28 offen")
        for (ptr, nbytes) in ((pWG, 576*9216), (pWU, 576*9216), (pWD, 4608*1152), (pOUT, 4608), (pX, 4608)):
            srd(a, sT, ptr, nbytes)
            n = max(1, (nbytes + (64 << tlbw) - 1) // (64 << tlbw))
            if nbytes < 65536:
                a(f"v_mov_b32 v{tw+2}, 0")
                a(f"buffer_load_dword v{tw+1}, v{tw+2}, s[{sT}:{sT+3}], 0 offen")
            else:
                for i in range(n):
                    a(f"s_mov_b32 s28, {i * (64 << tlbw)}")
                    a(f"buffer_load_dword v{tw+1}, v{tw}, s[{sT}:{sT+3}], s28 offen nt")
        a(f"{lab}:")
    if codepf:
        code_prefetch(4, "L_tail0", "L_code_end", vT + 8)
    if dry:
        a(f"""
        s_waitcnt vmcnt(0) lgkmcnt(0)
        s_mov_b32 s{sDRY}, 1
        s_mov_b32 s{sWS+2}, 0
        s_mov_b32 s{sOUTN}, 0
        s_branch L_tail_dry
        L_dry_done:
        s_mov_b32 s{sDRY}, 0
        s_mov_b32 s{sWS+2}, {WS_SIZE}
        s_mov_b32 s{sOUTN}, 4608
        s_mov_b64 exec, -1
        """)
    a("L_now:")
    a("L_tail0:")
    a("s_waitcnt vmcnt(0) lgkmcnt(0)\n s_barrier")
    a("L_tail_dry:")
    dbg_max(1)
    mark_tail = len(a.L)
    stamp(3)

    MO = P
    MM = P + 32
    a(f"s_cmp_lg_u32 s{sWAVE}, 0\n s_cbranch_scc1 L_nomerge")
    a(f"""
    v_and_b32 v{vT}, 31, v{vLANE}
    v_lshlrev_b32 v{vT}, 4, v{vT}
    v_mov_b32 v{vT+1}, 0
    """)
    for i in range(4):
        a(f"ds_read_b128 v[{MM+4*i}:{MM+4*i+3}], v{vT+1} offset:{L_ML + 16*i}")
    for w in range(8):
        a(f"ds_read_b128 v[{MO+4*w}:{MO+4*w+3}], v{vT} offset:{L_MRG + 512*w}")
    a("s_waitcnt lgkmcnt(8)")
    ms = [MM + 2 * w for w in range(8)]
    mstar = vT + 2
    a(f"v_max3_f32 v{mstar}, v{ms[0]}, v{ms[1]}, v{ms[2]}")
    a(f"v_max3_f32 v{mstar}, v{mstar}, v{ms[3]}, v{ms[4]}")
    a(f"v_max3_f32 v{mstar}, v{mstar}, v{ms[5]}, v{ms[6]}")
    a(f"v_max_f32 v{mstar}, v{mstar}, v{ms[7]}")
    for w in range(8):
        a(f"v_sub_f32 v{ms[w]}, v{ms[w]}, v{mstar}")
    for w in range(8):
        a(f"v_mul_f32 v{ms[w]}, s{sL2E}, v{ms[w]}")
    for w in range(8):
        a(f"v_exp_f32 v{ms[w]}, v{ms[w]}")
    Lt = vT + 3
    a(f"s_nop 0\n v_mul_f32 v{Lt}, v{ms[0]}, v{ms[0]+1}")
    for w in range(1, 8):
        a(f"v_fmac_f32 v{Lt}, v{ms[w]}, v{ms[w]+1}")
    a("s_waitcnt lgkmcnt(0)")
    R = vT + 6
    assert R % 2 == 0
    for r in range(4):
        a(f"v_mul_f32 v{R+r}, v{ms[0]}, v{MO+r}")
    for w in range(1, 8):
        for r in range(4):
            a(f"v_fmac_f32 v{R+r}, v{ms[w]}, v{MO+4*w+r}")
    a(f"""
    v_cmp_eq_u32 vcc, 32, v{vLANE}
    v_mov_b32 v{vT+4}, 0
    s_nop 0
    v_cndmask_b32 v{R}, v{R}, v{mstar}, vcc
    v_cndmask_b32 v{R+1}, v{R+1}, v{Lt}, vcc
    v_cndmask_b32 v{R+2}, v{R+2}, v{vT+4}, vcc
    v_cndmask_b32 v{R+3}, v{R+3}, v{vT+4}, vcc
    """)
    addtag(a, range(R, R + 4))
    a(f"""
    v_lshlrev_b32 v{vT}, 4, v{vLANE}
    s_mul_i32 s28, s{sW}, 640
    s_add_u32 s28, s28, {WS_AP}
    v_cmp_gt_u32 vcc, 33, v{vLANE}
    s_and_saveexec_b64 s[30:31], vcc
    buffer_store_dwordx4 v[{R}:{R+3}], v{vT}, s[{sWS}:{sWS+3}], s28 offen sc1
    s_mov_b64 exec, s[30:31]
    L_nomerge:
    """)
    stamp(4)
    if stop == "attn":
        a("s_branch L_fin")

    a(f"s_cmp_eq_u32 s{sROLE}, 0\n s_cbranch_scc1 L_stageB")
    a(f"s_cmp_eq_u32 s{sROLE}, 2\n s_cbranch_scc1 L_reduce")
    if wo_e < 4 and not no_w:
        rest = list(range(wo_e, 4))
        a(f"s_cmp_eq_u32 s{sDRY}, 1\n s_cbranch_scc1 L_wo_nolate")
        a(f"s_and_b32 s73, s{sWAVE}, 3")
        lo_, hi_ = rest[:(len(rest) + 1) // 2], rest[(len(rest) + 1) // 2:]
        a(f"s_cmp_ge_u32 s{sWAVE}, 4\n s_cbranch_scc1 L_wo_hi")
        wo_dma(lo_, 73)
        a("s_branch L_wo_lw\n L_wo_hi:")
        if hi_:
            wo_dma(hi_, 73)
        a("L_wo_lw:\n s_waitcnt vmcnt(0)\n s_barrier\n L_wo_nolate:")
    a(f"""
    s_mov_b32 s29, s{sIDX}
    s_mul_i32 s{sH}, s29, 21846
    s_lshr_b32 s{sH}, s{sH}, 16         ; h'
    s_mul_i32 s31, s{sH}, 3
    s_sub_u32 s{sJ}, s29, s31           ; c
    """)
    WB = 64
    a(f"""
    v_lshrrev_b32 v{vT}, 2, v{vN}                    ; r
    v_lshl_add_u32 v{vT}, v{vG}, 3, v{vT}            ; 8g + r
    v_mul_u32_u24 v{vT}, 384, v{vT}
    v_and_b32 v{vT+1}, 3, v{vLANE}
    v_lshl_add_u32 v{vT}, v{vT+1}, 3, v{vT}          ; + cc*8
    s_lshl_b32 s28, s{sWAVE}, 5
    s_add_u32 s28, s28, {L_WG}
    v_add_u32 v{vT}, s28, v{vT}                      ; + T*32 + base
    """)
    for ks in range(4):
        a(f"ds_read_b64_tr_b16 v[{WB+4*ks}:{WB+4*ks+1}], v{vT} offset:{ks*32*384}")
        a(f"ds_read_b64_tr_b16 v[{WB+4*ks+2}:{WB+4*ks+3}], v{vT} offset:{ks*32*384 + 4*384}")
    a(f"s_cmp_ge_u32 s{sWAVE}, 4\n s_cbranch_scc1 L_wo_gather_skip")
    a("s_waitcnt lgkmcnt(0)")
    for ks in range(4):
        a(f"ds_read_b64_tr_b16 v[{WB+16+4*ks}:{WB+16+4*ks+1}], v{vT} offset:{ks*32*384 + 256}")
        a(f"ds_read_b64_tr_b16 v[{WB+16+4*ks+2}:{WB+16+4*ks+3}], v{vT} offset:{ks*32*384 + 4*384 + 256}")
    GA = P
    a(f"""
    v_lshrrev_b32 v{vT+1}, 5, v{vLANE}               ; s
    v_mul_u32_u24 v{vT+2}, {640*8 if xmap else 640}, v{vT+1}
    v_and_b32 v{vT+3}, 31, v{vLANE}                  ; c4
    v_lshl_add_u32 v{vT+4}, v{vT+3}, 4, v{vT+2}      ; s*stride + c4*16
    v_add_u32 v{vT+5}, 512, v{vT+2}                  ; s*stride + 512
    """)
    if xmap:
        a(f"""
        s_and_b32 s28, s{sH}, 7
        s_lshl_b32 s29, s{sWAVE}, 4
        s_add_u32 s28, s28, s29
        s_lshr_b32 s29, s{sH}, 3
        s_lshl_b32 s29, s29, 6
        s_add_u32 s28, s28, s29
        """)
    else:
        a(f"""
        s_lshl_b32 s28, s{sWAVE}, 6
        s_lshl_b32 s29, s{sH}, 1
        s_add_u32 s28, s28, s29
        """)
    a(f"""
    s_mul_i32 s28, s28, 640
    s_add_u32 s28, s28, {WS_AP}
    """)
    GAs = [96 + 8 * k for k in range(3)]
    def ap_issue(k):
        a(f"buffer_load_dwordx4 v[{GAs[k]}:{GAs[k]+3}], v{vT+4}, s[{sWS}:{sWS+3}], s28 offen sc1")
        a(f"buffer_load_dwordx2 v[{GAs[k]+4}:{GAs[k]+5}], v{vT+5}, s[{sWS}:{sWS+3}], s28 offen sc1")
    def ap_consume(k):
        for r in range(6):
            a(f"v_mov_b32 v{GA+r}, v{GAs[k]+r}")
    ppoll(a, "L_apoll", ns[0], 2, ap_issue, lambda k: list(range(GAs[k], GAs[k] + 6)), vT + 6, ap_consume, pollsleep, stg)
    tstamp(9)
    mm, ll = GA + 4, GA + 5
    a(f"""
    v_and_b32 v{mm}, s{sHI}, v{mm}
    v_mov_b32 v{vT+6}, v{mm}
    v_mov_b32 v{vT+7}, v{mm}
    s_nop 1
    v_permlane32_swap_b32 v{vT+6}, v{vT+7}
    s_nop 1
    v_max_f32 v{vT+6}, v{vT+6}, v{vT+7}             ; m*
    v_sub_f32 v{mm}, v{mm}, v{vT+6}
    v_mul_f32 v{mm}, s{sL2E}, v{mm}
    v_exp_f32 v{mm}, v{mm}                           ; a
    s_nop 0
    v_mul_f32 v{ll}, v{ll}, v{mm}
    v_mul_f32 v{GA}, v{GA}, v{mm}
    v_mul_f32 v{GA+1}, v{GA+1}, v{mm}
    v_mul_f32 v{GA+2}, v{GA+2}, v{mm}
    v_mul_f32 v{GA+3}, v{GA+3}, v{mm}
    """)
    xrow(a, [GA, GA+1, GA+2, GA+3, ll], [GA+8, GA+9, GA+10, GA+11, GA+12], only32=True)
    a(f"v_rcp_f32 v{vT+6}, v{ll}\n s_nop 0")
    for r in range(4):
        fdiv(a, GA + 8 + r, GA + r, vT + 6, ll, vT + 7)
    a(f"""
    v_cvt_pk_bf16_f32 v{GA+12}, v{GA+8}, v{GA+9}
    v_cvt_pk_bf16_f32 v{GA+13}, v{GA+10}, v{GA+11}
    v_lshlrev_b32 v{vT+3}, 3, v{vT+3}
    s_lshl_b32 s28, s{sWAVE}, 8
    v_add_u32 v{vT+3}, s28, v{vT+3}
    ds_write_b64 v{vT+3}, v[{GA+12}:{GA+13}] offset:{L_OB}
    L_wo_gather_skip:
    s_waitcnt lgkmcnt(0)
    s_barrier
    """)
    AOP = P + 16
    a(f"""
    v_and_b32 v{vT}, 3, v{vN}
    v_lshlrev_b32 v{vT}, 8, v{vT}
    v_lshl_add_u32 v{vT}, v{vG}, 4, v{vT}           ; (m&3)*256 + g*16
    """)
    for ks in range(4):
        a(f"ds_read_b128 v[{AOP+4*ks}:{AOP+4*ks+3}], v{vT} offset:{L_OB + 64*ks}")
    YD = P + 32
    a("s_waitcnt lgkmcnt(0)")
    for ks in range(4):
        c = "0" if ks == 0 else f"v[{YD}:{YD+3}]"
        a(f"v_mfma_f32_16x16x32_bf16 v[{YD}:{YD+3}], v[{AOP+4*ks}:{AOP+4*ks+3}], v[{WB+4*ks}:{WB+4*ks+3}], {c}")
    a(f"s_cmp_ge_u32 s{sWAVE}, 4\n s_cbranch_scc1 L_wo_one")
    for ks in range(4):
        c = "0" if ks == 0 else f"v[{YD+4}:{YD+7}]"
        a(f"v_mfma_f32_16x16x32_bf16 v[{YD+4}:{YD+7}], v[{AOP+4*ks}:{AOP+4*ks+3}], v[{WB+16+4*ks}:{WB+16+4*ks+3}], {c}")
    a("L_wo_one:")
    a(f"""
    s_mul_i32 s28, s{sH}, 9216
    s_mul_i32 s29, s{sJ}, {192*16}
    s_add_u32 s28, s28, s29
    s_lshl_b32 s29, s{sWAVE}, 8
    s_add_u32 s28, s28, s29
    s_add_u32 s28, s28, {WS_Y}
    v_lshlrev_b32 v{vT}, 4, v{vN}
    s_nop 7
    """)
    addtag(a, range(YD, YD + 4))
    a(f"""
    s_mov_b64 exec, 0xffff
    buffer_store_dwordx4 v[{YD}:{YD+3}], v{vT}, s[{sWS}:{sWS+3}], s28 offen sc1
    s_mov_b64 exec, -1
    s_cmp_ge_u32 s{sWAVE}, 4
    s_cbranch_scc1 L_reduce
    """)
    addtag(a, range(YD + 4, YD + 8))
    a(f"""
    s_mov_b64 exec, 0xffff
    buffer_store_dwordx4 v[{YD+4}:{YD+7}], v{vT}, s[{sWS}:{sWS+3}], s28 offen offset:2048 sc1
    s_mov_b64 exec, -1
    """)
    a("L_reduce:")
    tstamp(10)
    sTASK = 72
    a(f"""
    s_mov_b32 s{sTASK}, s{sIDX}
    s_mul_i32 s28, s{sWAVE}, 112
    s_add_u32 s{sTASK}, s{sTASK}, s28
    s_cmp_ge_u32 s{sTASK}, 144
    s_cbranch_scc1 L_fin
    s_cmp_ge_u32 s{sWAVE}, 2
    s_cbranch_scc1 L_fin
    """)
    XR = P
    srd(a, sT, pX, 4608)
    a(f"""
    v_and_b32 v{vT}, 3, v{vLANE}                     ; col
    v_lshlrev_b32 v{vT+1}, 1, v{vT}
    s_lshl_b32 s28, s{sTASK}, 3
    """)
    for b in range(4):
        a(f"buffer_load_ushort v{XR+b}, v{vT+1}, s[{sT}:{sT+3}], s28 offen offset:{1152*b}")
    a(f"""
    v_lshrrev_b32 v{vT+2}, 2, v{vLANE}               ; hh
    v_mul_u32_u24 v{vT+2}, 9216, v{vT+2}
    v_lshl_add_u32 v{vT+2}, v{vT}, 4, v{vT+2}
    s_lshl_b32 s28, s{sTASK}, 6
    s_add_u32 s28, s28, {WS_Y}
    s_add_u32 s29, s28, {16*9216}
    """)
    YG = P + 4
    YGs = [P + 60 + 8 * k for k in range(3)]
    def y_issue(k):
        a(f"buffer_load_dwordx4 v[{YGs[k]}:{YGs[k]+3}], v{vT+2}, s[{sWS}:{sWS+3}], s28 offen sc1")
        a(f"buffer_load_dwordx4 v[{YGs[k]+4}:{YGs[k]+7}], v{vT+2}, s[{sWS}:{sWS+3}], s29 offen sc1")
    def y_consume(k):
        for r in range(4):
            a(f"v_add_f32 v{YG+r}, v{YGs[k]+r}, v{YGs[k]+4+r}")
    ppoll(a, "L_ypoll", ns[1], 2, y_issue, lambda k: list(range(YGs[k], YGs[k] + 8)), vT + 3, y_consume, pollsleep, stg,
          probe=((lambda: a(f"buffer_load_dword v{YGs[0]}, v{vT+2}, s[{sWS}:{sWS+3}], s28 offen sc1")), YGs[0], "1") if probe[1] else None, presleep=presl[1])
    tstamp(11)
    if canB:
        a(f"""
        s_lshl_b32 s30, s{sTASK}, 7
        s_add_u32 s30, s30, {WS_CANB}
        v_mov_b32 v{vT+4}, 0
        s_mov_b64 exec, 1
        buffer_store_dword v{vTAG}, v{vT+4}, s[{sWS}:{sWS+3}], s30 offen sc1
        s_mov_b64 exec, -1
        """)
    hs = [YG, YG + 1, YG + 2, YG + 3]
    row16(a, hs, ctrls=("row_ror:4", "row_ror:8"))
    xrow(a, hs, [YG + 4, YG + 5, YG + 6, YG + 7])
    rbf(a, [(YG, YG+1), (YG+2, YG+3)], [YG+4, YG+5])
    for b in range(4):
        a(f"v_lshlrev_b32 v{XR+b}, 16, v{XR+b}")
        a(f"v_add_f32 v{YG+b}, v{YG+b}, v{XR+b}")
    rbf(a, [(YG, YG+1), (YG+2, YG+3)], [YG+4, YG+5])
    HK = P + 16
    for b in range(4):
        a(f"v_mov_b32 v{HK+b}, v{YG+b}")
    addtag(a, hs)
    a(f"""
    s_lshl_b32 s28, s{sTASK}, 6
    s_add_u32 s28, s28, {WS_HB}
    v_lshlrev_b32 v{vT+3}, 4, v{vT}
    s_mov_b64 exec, 0xf
    buffer_store_dwordx4 v[{YG}:{YG+3}], v{vT+3}, s[{sWS}:{sWS+3}], s28 offen sc1
    s_mov_b64 exec, -1
    """)
    stamp(7)
    ZG = P + 20
    a(f"""
    s_lshl_b32 s28, s{sTASK}, 6
    s_add_u32 s28, s28, {WS_Z}
    """)
    ZGs = [64, 100, 136]
    sPZ = 73
    if canC:
        a(f"s_lshl_b32 s{sPZ}, s{sTASK}, 7\n s_add_u32 s{sPZ}, s{sPZ}, {WS_CANC}")
    else:
        a(f"s_mul_i32 s{sPZ}, s{sTASK}, 9216\n s_add_u32 s{sPZ}, s{sPZ}, s28")
    ZS = [4, 5, 6, 7, 62, 63, 66, 67, 71]
    for i in range(9):
        a(f"s_add_u32 s{ZS[i]}, s28, {i*16*9216}")
    def z_issue(k):
        for i in range(9):
            a(f"buffer_load_dwordx4 v[{ZGs[k]+4*i}:{ZGs[k]+4*i+3}], v{vT+2}, s[{sWS}:{sWS+3}], s{ZS[i]} offen sc1")
    def z_consume(k):
        z = ZGs[k]
        for (x, y) in ((0, 1), (2, 3), (4, 5), (6, 7), (0, 2), (4, 6), (0, 4)):
            for r in range(0, 4, 2):
                a(f"v_pk_add_f32 v[{z+4*x+r}:{z+4*x+r+1}], v[{z+4*x+r}:{z+4*x+r+1}], v[{z+4*y+r}:{z+4*y+r+1}]")
        for r in range(0, 4, 2):
            a(f"v_pk_add_f32 v[{ZG+r}:{ZG+r+1}], v[{z+r}:{z+r+1}], v[{z+32+r}:{z+32+r+1}]")
    ppoll(a, "L_zpoll", ns[3], 9, z_issue, lambda k: list(range(ZGs[k], ZGs[k] + 36)), vT + 3, z_consume, pollsleep, stg,
          probe=((lambda: a(f"buffer_load_dword v{ZGs[0]}, v{vT+2}, s[{sWS}:{sWS+3}], s{sPZ} offen sc1")), ZGs[0], "1") if probe[3] else None, presleep=presl[3])
    tstamp(12)
    zs = [ZG, ZG + 1, ZG + 2, ZG + 3]
    row16(a, zs, ctrls=("row_ror:4", "row_ror:8"))
    xrow(a, zs, [ZG + 4, ZG + 5, ZG + 6, ZG + 7])
    rbf(a, [(ZG, ZG+1), (ZG+2, ZG+3)], [ZG+4, ZG+5])
    for b in range(4):
        a(f"v_add_f32 v{ZG+b}, v{ZG+b}, v{HK+b}")
    a(f"v_cvt_pk_bf16_f32 v{ZG+4}, v{ZG}, v{ZG+1}")
    a(f"v_cvt_pk_bf16_f32 v{ZG+5}, v{ZG+2}, v{ZG+3}")
    srd(a, sT, pOUT, f"s{sOUTN}")
    a(f"""
    s_lshl_b32 s28, s{sTASK}, 3
    s_mov_b64 exec, 0xf
    buffer_store_short v{ZG+4}, v{vT+1}, s[{sT}:{sT+3}], s28 offen {outfl}
    buffer_store_short_d16_hi v{ZG+4}, v{vT+1}, s[{sT}:{sT+3}], s28 offen offset:1152 {outfl}
    buffer_store_short v{ZG+5}, v{vT+1}, s[{sT}:{sT+3}], s28 offen offset:2304 {outfl}
    buffer_store_short_d16_hi v{ZG+5}, v{vT+1}, s[{sT}:{sT+3}], s28 offen offset:3456 {outfl}
    s_mov_b64 exec, -1
    s_cmp_lg_u32 s{sTASK}, 0
    s_cbranch_scc1 L_fin
    v_mov_b32 v{ZG+6}, s{sE}
    v_mov_b32 v{ZG+7}, 0
    s_mov_b64 exec, 1
    buffer_store_dword v{ZG+6}, v{ZG+7}, s[{sWS}:{sWS+3}], 0 offen sc1
    s_mov_b64 exec, -1
    s_branch L_fin
    """)

    a("L_stageB:")
    if gate == 'pair' or isinstance(gate, int) and not isinstance(gate, bool) and gate > 0:
        ns_ = 0 if gate == 'pair' else gate
        a(f"s_cmp_lg_u32 s{sWAVE}, 1\n s_cbranch_scc1 L_gate_done")
        a(f"""
        s_andn2_b32 s29, s{sW}, 8
        v_mul_u32_u24 v{vT}, 37, v{vLANE}
        v_add_u32 v{vT}, s29, v{vT}
        v_and_b32 v{vT}, 255, v{vT}
        s_xor_b32 s28, s{sW}, 8
        v_mov_b32 v{vT+1}, s28
        v_cmp_eq_u32 vcc, {ns_}, v{vLANE}
        s_mov_b32 s28, {WS_AP + 512}
        s_nop 0
        v_cndmask_b32 v{vT}, v{vT}, v{vT+1}, vcc
        v_mul_u32_u24 v{vT}, 640, v{vT}
        s_cmp_eq_u32 s{sDRY}, 1
        s_cbranch_scc1 L_gate_done
        s_mov_b64 exec, {hex((1 << (ns_ + 1)) - 1)}
        """)
        poll_head(a, "L_gpoll")
        if gsleep:
            a(f"s_sleep {gsleep}")
        a(f"buffer_load_dword v{vT+2}, v{vT}, s[{sWS}:{sWS+3}], s28 offen sc1")
        a("s_waitcnt vmcnt(0)")
        tagcheck(a, [vT+2], vT + 6, "L_gpoll")
        a("s_mov_b64 exec, -1")
        a("L_gate_done:\n s_barrier")
    elif gate:
        a(f"s_cmp_lg_u32 s{sWAVE}, 1\n s_cbranch_scc1 L_gate_done")
        a(f"""
        v_mul_u32_u24 v{vT}, 640, v{vLANE}
        s_mov_b32 s28, {WS_AP + 512}
        s_mov_b32 s29, {WS_AP + 512 + 64*640}
        s_mov_b32 s30, {WS_AP + 512 + 128*640}
        s_mov_b32 s31, {WS_AP + 512 + 192*640}
        """)
        poll_head(a, "L_gpoll")
        for i in range(4):
            a(f"buffer_load_dword v{vT+2+i}, v{vT}, s[{sWS}:{sWS+3}], s{28+i} offen sc1")
        a("s_waitcnt vmcnt(0)")
        tagcheck(a, [vT+2, vT+3, vT+4, vT+5], vT + 6, "L_gpoll")
        a("L_gate_done:\n s_barrier")
    a(f"""
    s_cmp_lg_u32 s{sWAVE}, 7
    s_cbranch_scc1 L_noones
    v_mov_b32 v{P}, 0x3f803f80
    v_mov_b32 v{P+1}, 0x3f803f80
    v_mov_b32 v{P+2}, 0x3f803f80
    v_mov_b32 v{P+3}, 0x3f803f80
    v_lshlrev_b32 v{vT}, 4, v{vLANE}
    ds_write_b128 v{vT}, v[{P}:{P+3}] offset:{L_HB + 4*1152}
    s_mov_b64 exec, 0xff
    ds_write_b128 v{vT}, v[{P}:{P+3}] offset:{L_HB + 4*1152 + 1024}
    s_mov_b64 exec, -1
    L_noones:
    """)
    BB = 64
    WDd = 100
    AB = P
    aH, aA, aG, aR, aF1, aF2, aF3, aW = (vT + 4 + i for i in range(8))
    aP = vT + 12
    aBB, aWD = vT + 14, vT + 15
    if bdec:
        late = [m for m in "gud" if m not in early]
        if not no_w and late:
            a(f"s_cmp_lt_u32 s{sWAVE}, 4\n s_cbranch_scc1 L_b_noload")
            a(f"s_cmp_eq_u32 s{sDRY}, 1\n s_cbranch_scc1 L_b_noload")
            slice_idx()
            a(f"s_and_b32 s73, s{sWAVE}, 3")
            for m in late:
                if wd_after and m == "d":
                    continue
                dma_mat(m, 73)
            a("L_b_noload:")
        a(f"""
        v_lshrrev_b32 v{vT}, 2, v{vN}
        v_lshl_add_u32 v{vT}, v{vG}, 3, v{vT}            ; 8g + r
        v_and_b32 v{vT+1}, 3, v{vLANE}                   ; cc
        v_lshlrev_b32 v{aBB}, 6, v{vT}
        v_lshl_add_u32 v{aBB}, v{vT+1}, 3, v{aBB}        ; (8g+r)*64 + cc*8
        s_and_b32 s28, s{sWAVE}, 1
        s_lshl_b32 s28, s28, 5                           ; t*32
        s_bfe_u32 s29, s{sWAVE}, 0x10001
        s_mul_i32 s29, s29, {L_WU - L_WG}
        s_add_u32 s28, s28, s29
        s_add_u32 s28, s28, {L_WG}
        s_lshr_b32 s29, s{sWAVE}, 2
        s_mul_i32 s29, s29, {9*2048}
        s_add_u32 s28, s28, s29
        v_add_u32 v{aBB}, s28, v{aBB}
        v_mul_u32_u24 v{aWD}, 1152, v{vT}
        v_lshl_add_u32 v{aWD}, v{vT+1}, 3, v{aWD}
        s_lshl_b32 s28, s{sWAVE}, 5
        s_add_u32 s28, s28, {L_WD}
        v_add_u32 v{aWD}, s28, v{aWD}
        s_lshl_b32 s28, s{sWAVE}, 8
        v_lshlrev_b32 v{aH}, 1, v{vLANE}
        v_add_u32 v{aH}, s28, v{aH}
        v_and_b32 v{aA}, 3, v{vN}
        v_cmp_eq_u32 vcc, 4, v{vN}
        v_mov_b32 v{aG}, 4
        s_lshr_b32 s28, s{sWAVE}, 2
        v_cndmask_b32 v{aA}, v{aA}, v{aG}, vcc           ; row(m)
        v_mul_u32_u24 v{aA}, 1152, v{aA}
        s_mul_i32 s28, s28, {9*64}
        v_lshl_add_u32 v{aA}, v{vG}, 4, v{aA}
        v_add_u32 v{aA}, s28, v{aA}
        s_lshl_b32 s28, s{sWAVE}, 10
        v_lshlrev_b32 v{aG}, 4, v{vLANE}
        v_add_u32 v{aG}, s28, v{aG}
        s_lshl_b32 s28, s{sWAVE}, 8
        v_lshlrev_b32 v{aR}, 4, v{vN}
        v_add_u32 v{aR}, s28, v{aR}                      ; wave*256 + n*16
        v_lshrrev_b32 v{aW}, 2, v{vLANE}                 ; f'
        v_and_b32 v{aF3}, 3, v{vLANE}                    ; b
        s_lshl_b32 s28, s{sWAVE}, 10
        v_lshlrev_b32 v{aF2}, 4, v{aW}
        v_add_u32 v{aF2}, s28, v{aF2}                    ; tile*1024 + f'*16
        v_lshl_add_u32 v{aF1}, v{aF3}, 2, v{aF2}         ; + b*4
        s_lshl_b32 s28, s{sWAVE}, 5
        v_lshlrev_b32 v{aW}, 1, v{aW}
        v_add_u32 v{aW}, s28, v{aW}                      ; (tile*16 + f')*2
        v_lshl_add_u32 v{aW}, v{aF3}, 6, v{aW}           ; + b*64
        v_lshlrev_b32 v{vT}, 4, v{aF3}                   ; b*16
        v_mov_b32 v{vT+1}, 64
        v_and_b32 v{vT+2}, 4, v{vLANE}
        v_cmp_ne_u32 vcc, 0, v{vT+2}
        v_lshrrev_b32 v{vT+2}, 3, v{vLANE}
        v_lshlrev_b32 v{vT+2}, 8, v{vT+2}                ; (l>>3)*256
        v_cndmask_b32 v{vT}, v{vT}, v{vT+1}, vcc
        v_lshl_add_u32 v{aF3}, v{aF3}, 2, v{vT}
        v_add_u32 v{aF3}, v{aF3}, v{vT+2}
        s_mov_b32 s64, 0xf0f0f0f0
        s_mov_b32 s65, 0xf0f0f0f0
        v_lshlrev_b32 v{aP}, 4, v{vLANE}
        """)
        def bb_reads():
            for ks in range(9):
                a(f"ds_read_b64_tr_b16 v[{BB+4*ks}:{BB+4*ks+1}], v{aBB} offset:{ks*2048}")
                a(f"ds_read_b64_tr_b16 v[{BB+4*ks+2}:{BB+4*ks+3}], v{aBB} offset:{ks*2048+256}")
                if ks == 5:
                    a("s_waitcnt lgkmcnt(0)")
        pre_gate = "g" in early
        if pre_gate:
            a(f"s_bitcmp1_b32 s{sWAVE}, 1\n s_cbranch_scc1 L_b_nopre")
            bb_reads()
            a("L_b_nopre:")
        a(f"s_cmp_ge_u32 s{sWAVE}, 4\n s_cbranch_scc1 L_b_loadwait")
        HGs = [P + 48, P + 60, P + 72]
        a(f"""
        s_lshl_b32 s28, s{sWAVE}, 11
        s_add_u32 s28, s28, {WS_HB}
        s_add_u32 s29, s28, 1024
        s_mov_b32 s31, {WS_HB + 8192}
        """)
        for k in range(ns[2]):
            for r in range(4):
                a(f"v_mov_b32 v{HGs[k]+8+r}, v{vTAG}")
        def h_issue(k, third):
            a(f"buffer_load_dwordx4 v[{HGs[k]}:{HGs[k]+3}], v{aP}, s[{sWS}:{sWS+3}], s28 offen sc1")
            a(f"buffer_load_dwordx4 v[{HGs[k]+4}:{HGs[k]+7}], v{aP}, s[{sWS}:{sWS+3}], s29 offen sc1")
            if third:
                a(f"buffer_load_dwordx4 v[{HGs[k]+8}:{HGs[k]+11}], v{aP}, s[{sWS}:{sWS+3}], s31 offen sc1")
        def h_consume(k, third):
            for b in range(4):
                a(f"ds_write_b16_d16_hi v{aH}, v{HGs[k]+b} offset:{L_HB + 1152*b}")
                a(f"ds_write_b16_d16_hi v{aH}, v{HGs[k]+4+b} offset:{L_HB + 1152*b + 128}")
            if third:
                for b in range(4):
                    a(f"ds_write_b16_d16_hi v{aH}, v{HGs[k]+8+b} offset:{L_HB + 1152*b + 1024}")
        hp = ((lambda: a(f"buffer_load_dword v{HGs[0]}, v{aP}, s[{sWS}:{sWS+3}], s28 offen sc1")), HGs[0], "1") if probe[2] else None
        a(f"s_cmp_lg_u32 s{sWAVE}, 0\n s_cbranch_scc1 L_h1")
        ppoll(a, "L_hpoll2", ns[2], 3, lambda k: h_issue(k, True), lambda k: list(range(HGs[k], HGs[k] + 12)), vT + 13,
              lambda k: h_consume(k, True), pollsleep, stg, probe=hp, presleep=presl[2])
        a("s_branch L_h2\n L_h1:")
        ppoll(a, "L_hpoll1", ns[2], 2, lambda k: h_issue(k, False), lambda k: list(range(HGs[k], HGs[k] + 8)), vT + 13,
              lambda k: h_consume(k, False), pollsleep, stg, probe=hp, presleep=presl[2])
        a("s_branch L_h2")
        a("L_b_loadwait:\n s_waitcnt vmcnt(0)")
        if wd_after and "d" in late and not no_w:
            a(f"s_cmp_eq_u32 s{sDRY}, 1\n s_cbranch_scc1 L_b_nod")
            slice_idx()
            a(f"s_and_b32 s73, s{sWAVE}, 3")
            dma_mat("d", 73)
            a("L_b_nod:")
        stamp(15)
        a("L_h2:")
        stamp(5)
        a("s_waitcnt lgkmcnt(0)\n s_barrier")
        GD = P + 40
        def mm(ks):
            c = "0" if ks == 0 else f"v[{GD}:{GD+3}]"
            a(f"v_mfma_f32_16x16x32_bf16 v[{GD}:{GD+3}], v[{AB+4*ks}:{AB+4*ks+3}], v[{BB+4*ks}:{BB+4*ks+3}], {c}")
        def a_read(ks):
            a(f"ds_read_b128 v[{AB+4*ks}:{AB+4*ks+3}], v{aA} offset:{L_HB + 64*ks}")
        if pre_gate:
            a(f"s_bitcmp1_b32 s{sWAVE}, 1\n s_cbranch_scc1 L_b_full")
            for ks in range(9):
                a_read(ks)
            for ks in range(9):
                a(f"s_waitcnt lgkmcnt({8-ks})")
                mm(ks)
            a("s_branch L_b_mmdone\n L_b_full:")
        def trip(ks):
            a(f"ds_read_b64_tr_b16 v[{BB+4*ks}:{BB+4*ks+1}], v{aBB} offset:{ks*2048}")
            a(f"ds_read_b64_tr_b16 v[{BB+4*ks+2}:{BB+4*ks+3}], v{aBB} offset:{ks*2048+256}")
            a_read(ks)
        for ks in range(4):
            trip(ks)
        for ks in range(9):
            a(f"s_waitcnt lgkmcnt({3 * (min(ks + 3, 8) - ks)})")
            mm(ks)
            if ks + 4 <= 8:
                trip(ks + 4)
        a("L_b_mmdone:")
        for i in range(5 if not wd_after else 0):
            if i == 4:
                a(f"s_cmp_ge_u32 s{sWAVE}, 4\n s_cbranch_scc1 L_no5th")
            a(f"ds_read_b64_tr_b16 v[{WDd+4*i}:{WDd+4*i+1}], v{aWD} offset:{i*256}")
            a(f"ds_read_b64_tr_b16 v[{WDd+4*i+2}:{WDd+4*i+3}], v{aWD} offset:{i*256 + 4*1152}")
        if not wd_after:
            a("L_no5th:")
    else:
        if not no_w:
            a(f"s_cmp_eq_u32 s{sDRY}, 1\n s_cbranch_scc1 L_skip_late")
            weights_late()
            a("L_skip_late:")
        stamp(15)
        BB = 64
        WDd = 100
        a(f"""
        v_lshrrev_b32 v{vT}, 2, v{vN}
        v_lshl_add_u32 v{vT}, v{vG}, 3, v{vT}            ; 8g + r
        v_and_b32 v{vT+1}, 3, v{vLANE}                   ; cc
        v_lshlrev_b32 v{vT+2}, 6, v{vT}
        v_lshl_add_u32 v{vT+2}, v{vT+1}, 3, v{vT+2}      ; (8g+r)*64 + cc*8
        s_and_b32 s28, s{sWAVE}, 1
        s_lshl_b32 s28, s28, 5                           ; t*32
        s_bfe_u32 s29, s{sWAVE}, 0x10001
        s_mul_i32 s29, s29, {L_WU - L_WG}
        s_add_u32 s28, s28, s29
        s_add_u32 s28, s28, {L_WG}
        s_lshr_b32 s29, s{sWAVE}, 2
        s_mul_i32 s29, s29, {9*2048}
        s_add_u32 s28, s28, s29
        v_add_u32 v{vT+2}, s28, v{vT+2}
        """)
        for ks in range(9):
            a(f"ds_read_b64_tr_b16 v[{BB+4*ks}:{BB+4*ks+1}], v{vT+2} offset:{ks*2048}")
            a(f"ds_read_b64_tr_b16 v[{BB+4*ks+2}:{BB+4*ks+3}], v{vT+2} offset:{ks*2048+256}")
            if ks == 5:
                a("s_waitcnt lgkmcnt(0)")
        a(f"""
        v_mul_u32_u24 v{vT+3}, 1152, v{vT}
        v_lshl_add_u32 v{vT+3}, v{vT+1}, 3, v{vT+3}
        s_lshl_b32 s28, s{sWAVE}, 5
        s_add_u32 s28, s28, {L_WD}
        v_add_u32 v{vT+3}, s28, v{vT+3}
        s_waitcnt lgkmcnt(0)
        """)
        for i in range(5):
            if i == 4:
                a(f"s_cmp_ge_u32 s{sWAVE}, 4\n s_cbranch_scc1 L_no5th")
            a(f"ds_read_b64_tr_b16 v[{WDd+4*i}:{WDd+4*i+1}], v{vT+3} offset:{i*256}")
            a(f"ds_read_b64_tr_b16 v[{WDd+4*i+2}:{WDd+4*i+3}], v{vT+3} offset:{i*256 + 4*1152}")
        a("L_no5th:")
        aH, aA, aG, aR, aF1, aF2, aF3, aW = (vT + 4 + i for i in range(8))
        aP = vT + 12
        a(f"""
        s_lshl_b32 s28, s{sWAVE}, 7
        v_lshlrev_b32 v{aH}, 1, v{vLANE}
        v_add_u32 v{aH}, s28, v{aH}
        v_and_b32 v{aA}, 3, v{vN}
        v_cmp_eq_u32 vcc, 4, v{vN}
        v_mov_b32 v{aG}, 4
        s_lshr_b32 s28, s{sWAVE}, 2
        v_cndmask_b32 v{aA}, v{aA}, v{aG}, vcc           ; row(m)
        v_mul_u32_u24 v{aA}, 1152, v{aA}
        s_mul_i32 s28, s28, {9*64}
        v_lshl_add_u32 v{aA}, v{vG}, 4, v{aA}
        v_add_u32 v{aA}, s28, v{aA}
        s_lshl_b32 s28, s{sWAVE}, 10
        v_lshlrev_b32 v{aG}, 4, v{vLANE}
        v_add_u32 v{aG}, s28, v{aG}
        s_lshl_b32 s28, s{sWAVE}, 8
        v_lshlrev_b32 v{aR}, 4, v{vN}
        v_add_u32 v{aR}, s28, v{aR}                      ; wave*256 + n*16
        v_lshrrev_b32 v{aW}, 2, v{vLANE}                 ; f'
        v_and_b32 v{aF3}, 3, v{vLANE}                    ; b
        s_lshl_b32 s28, s{sWAVE}, 10
        v_lshlrev_b32 v{aF2}, 4, v{aW}
        v_add_u32 v{aF2}, s28, v{aF2}                    ; tile*1024 + f'*16
        v_lshl_add_u32 v{aF1}, v{aF3}, 2, v{aF2}         ; + b*4
        s_lshl_b32 s28, s{sWAVE}, 5
        v_lshlrev_b32 v{aW}, 1, v{aW}
        v_add_u32 v{aW}, s28, v{aW}                      ; (tile*16 + f')*2
        v_lshl_add_u32 v{aW}, v{aF3}, 6, v{aW}           ; + b*64
        v_lshlrev_b32 v{vT}, 4, v{aF3}                   ; b*16
        v_mov_b32 v{vT+1}, 64
        v_and_b32 v{vT+2}, 4, v{vLANE}
        v_cmp_ne_u32 vcc, 0, v{vT+2}
        v_lshrrev_b32 v{vT+2}, 3, v{vLANE}
        v_lshlrev_b32 v{vT+2}, 8, v{vT+2}                ; (l>>3)*256
        v_cndmask_b32 v{vT}, v{vT}, v{vT+1}, vcc
        v_lshl_add_u32 v{aF3}, v{aF3}, 2, v{vT}
        v_add_u32 v{aF3}, v{aF3}, v{vT+2}
        s_mov_b32 s64, 0xf0f0f0f0
        s_mov_b32 s65, 0xf0f0f0f0
        v_lshlrev_b32 v{aP}, 4, v{vLANE}
        s_lshl_b32 s28, s{sWAVE}, 10
        s_add_u32 s28, s28, {WS_HB}
        s_mov_b32 s29, {WS_HB + 8192}
        s_lshl_b32 s30, s{sWAVE}, 11
        s_add_u32 s30, s30, {WS_CANB + 8*128}
        """)
        HGs = [P + 48 + 8 * k for k in range(3)]
        for k in range(3):
            for r in range(4):
                a(f"v_mov_b32 v{HGs[k]+4+r}, v{vTAG}")
        def h_issue2(k):
            a(f"buffer_load_dwordx4 v[{HGs[k]}:{HGs[k]+3}], v{aP}, s[{sWS}:{sWS+3}], s28 offen sc1")
            a(f"buffer_load_dwordx4 v[{HGs[k]+4}:{HGs[k]+7}], v{aP}, s[{sWS}:{sWS+3}], s29 offen sc1")
        def h_issue1(k):
            a(f"buffer_load_dwordx4 v[{HGs[k]}:{HGs[k]+3}], v{aP}, s[{sWS}:{sWS+3}], s28 offen sc1")
        def h_consume2(k):
            for b in range(4):
                a(f"ds_write_b16_d16_hi v{aH}, v{HGs[k]+b} offset:{L_HB + 1152*b}")
            for b in range(4):
                a(f"ds_write_b16_d16_hi v{aH}, v{HGs[k]+4+b} offset:{L_HB + 1152*b + 1024}")
        def h_consume1(k):
            for b in range(4):
                a(f"ds_write_b16_d16_hi v{aH}, v{HGs[k]+b} offset:{L_HB + 1152*b}")
        a(f"s_cmp_lg_u32 s{sWAVE}, 0\n s_cbranch_scc1 L_h1")
        ppoll(a, "L_hpoll2", ns[2], 2, h_issue2, lambda k: list(range(HGs[k], HGs[k] + 8)), vT + 13, h_consume2, pollsleep, stg,
              probe=((lambda: a(f"buffer_load_dword v{HGs[0]}, v{aP}, s[{sWS}:{sWS+3}], s{30 if canB else 28} offen sc1")), HGs[0], "1") if probe[2] else None, presleep=presl[2])
        a("s_branch L_h2\n L_h1:")
        ppoll(a, "L_hpoll1", ns[2], 1, h_issue1, lambda k: list(range(HGs[k], HGs[k] + 4)), vT + 13, h_consume1, pollsleep, stg,
              probe=((lambda: a(f"buffer_load_dword v{HGs[0]}, v{aP}, s[{sWS}:{sWS+3}], s{30 if canB else 28} offen sc1")), HGs[0], "1") if probe[2] else None, presleep=presl[2])
        a("L_h2:")
        stamp(5)
        a("s_waitcnt lgkmcnt(0)\n s_barrier")
        AB = P
        for ks in range(9):
            a(f"ds_read_b128 v[{AB+4*ks}:{AB+4*ks+3}], v{aA} offset:{L_HB + 64*ks}")
    GD = P + 40
    GRm = P + 44
    for ks in range(9 if not bdec else 0):
        a(f"s_waitcnt lgkmcnt({8-ks})")
        c = "0" if ks == 0 else f"v[{GD}:{GD+3}]"
        a(f"v_mfma_f32_16x16x32_bf16 v[{GD}:{GD+3}], v[{AB+4*ks}:{AB+4*ks+3}], v[{BB+4*ks}:{BB+4*ks+3}], {c}")
    a(f"s_and_b32 s28, s{sWAVE}, 3")
    lg = [a.label("L_gr") for _ in range(4)]; lge = a.label("L_gre")
    for t in range(1, 4):
        a(f"s_cmp_eq_u32 s28, {t}\n s_cbranch_scc1 {lg[t]}")
    for t in range(4):
        a(f"{lg[t]}:")
        kss = [t, t + 4] + ([8] if t == 0 else [])
        for i, ks in enumerate(kss):
            c = "0" if i == 0 else f"v[{GRm}:{GRm+3}]"
            a(f"v_mfma_f32_16x16x32_bf16 v[{GRm}:{GRm+3}], v[{AB+4*ks}:{AB+4*ks+3}], v[{AB+4*ks}:{AB+4*ks+3}], {c}")
        if t != 3:
            a(f"s_branch {lge}")
    a(f"""
    {lge}:
    s_nop 2
    ds_write_b128 v{aG}, v[{GD}:{GD+3}] offset:{L_GUF}
    s_nop 6
    s_mov_b64 exec, 0xffff
    ds_write_b128 v{aR}, v[{GRm}:{GRm+3}] offset:{L_GR}
    s_mov_b64 exec, -1
    s_waitcnt {"vmcnt(0) " if (bdec and wd_after) else ""}lgkmcnt(0)
    s_barrier
    """)
    def wd_reads(tag):
        for i in range(5):
            if i == 4:
                a(f"s_cmp_ge_u32 s{sWAVE}, 4\n s_cbranch_scc1 L_no5th{tag}")
            a(f"ds_read_b64_tr_b16 v[{WDd+4*i}:{WDd+4*i+1}], v{aWD} offset:{i*256}")
            a(f"ds_read_b64_tr_b16 v[{WDd+4*i+2}:{WDd+4*i+3}], v{aWD} offset:{i*256 + 4*1152}")
        a(f"L_no5th{tag}:")
    if bdec and wd_after:
        a(f"s_cmp_lt_u32 s{sWAVE}, 2\n s_cbranch_scc1 L_wd_later")
        wd_reads("a")
        a("L_wd_later:")
    stamp(6)
    def canc_store():
        lab = a.label("L_nocan")
        a(f"""
        s_cmp_lg_u32 s{sWAVE}, 7
        s_cbranch_scc1 {lab}
        s_lshl_b32 s30, s{sIDX}, 7
        s_add_u32 s30, s30, {WS_CANC}
        v_mov_b32 v{vT+14}, 0
        s_mov_b64 exec, 1
        buffer_store_dword v{vTAG}, v{vT+14}, s[{sWS}:{sWS+3}], s30 offen sc1
        s_mov_b64 exec, -1
        {lab}:
        """)
    if canC == 2:
        canc_store()
    a(f"s_cmp_ge_u32 s{sWAVE}, 2\n s_cbranch_scc1 L_nogelu")
    GE = P
    a(f"""
    ds_read_b32 v{GE+8}, v{aF3} offset:{L_GR}
    ds_read_b32 v{GE}, v{aF1} offset:{L_GUF}
    ds_read_b32 v{GE+1}, v{aF1} offset:{L_GUF+4096}
    ds_read_b32 v{GE+2}, v{aF1} offset:{L_GUF+2048}
    ds_read_b32 v{GE+3}, v{aF1} offset:{L_GUF+2048+4096}
    ds_read_b32 v{GE+4}, v{aF2} offset:{L_GUF+256}
    ds_read_b32 v{GE+5}, v{aF2} offset:{L_GUF+256+4096}
    ds_read_b32 v{GE+6}, v{aF2} offset:{L_GUF+256+2048}
    ds_read_b32 v{GE+7}, v{aF2} offset:{L_GUF+256+2048+4096}
    s_waitcnt lgkmcnt(8)
    """)
    X_, Y_, T_ = GE + 8, GE + 9, GE + 10
    a(f"""
    s_nop 1
    v_add_f32_dpp v{X_}, v{X_}, v{X_} row_ror:8 row_mask:0xf bank_mask:0xf
    """)
    xrow(a, [X_], [T_])
    a(f"""
    s_nop 1
    v_mov_b32_dpp v{Y_}, v{X_} row_ror:4 row_mask:0xf bank_mask:0xf
    s_nop 0
    v_cndmask_b32 v{T_}, v{Y_}, v{X_}, s[64:65]      ; sum
    v_cndmask_b32 v{Y_}, v{X_}, v{Y_}, s[64:65]      ; sumsq
    v_mul_f32 v{T_}, {INV576}, v{T_}                 ; mu
    v_mul_f32 v{Y_}, {INV576}, v{Y_}
    v_fma_f32 v{Y_}, -v{T_}, v{T_}, v{Y_}            ; var
    """)
    rbf(a, [(T_, Y_)], [X_])
    a(f"v_add_f32 v{Y_}, {EPS}, v{Y_}")
    rbf(a, [(Y_, Y_)], [X_])
    a(f"v_sqrt_f32 v{Y_}, v{Y_}\n s_nop 0")
    rbf(a, [(Y_, Y_)], [X_])
    a(f"""
    v_rcp_f32 v{X_}, v{Y_}
    s_waitcnt lgkmcnt(0)
    """)
    if bdec and wd_after:
        wd_reads("b")
    a(f"""
    v_add_f32 v{GE}, v{GE}, v{GE+1}
    v_add_f32 v{GE+2}, v{GE+2}, v{GE+3}
    v_add_f32 v{GE+4}, v{GE+4}, v{GE+5}
    v_add_f32 v{GE+6}, v{GE+6}, v{GE+7}
    v_fma_f32 v{GE}, -v{T_}, v{GE+4}, v{GE}
    v_fma_f32 v{GE+2}, -v{T_}, v{GE+6}, v{GE+2}
    """)
    fdiv(a, GE + 1, GE, X_, Y_, GE + 4)
    fdiv(a, GE + 3, GE + 2, X_, Y_, GE + 5)
    rbf(a, [(GE + 1, GE + 3)], [GE + 4])
    C1, C2 = 0x3d372713, 0x3f4c422a
    TWO_L2E = 0x4038aa3b
    g, t = GE + 1, GE + 4
    a(f"""
    v_mul_f32 v{t}, v{g}, v{g}
    v_mul_f32 v{t}, v{t}, v{g}
    v_mov_b32 v{t+1}, {C1}
    v_fma_f32 v{t}, v{t}, v{t+1}, v{g}
    v_mul_f32 v{t}, {C2}, v{t}
    v_mul_f32 v{t}, {TWO_L2E}, v{t}
    v_exp_f32 v{t}, v{t}
    v_mul_f32 v{t+2}, 0.5, v{g}
    v_add_f32 v{t}, 1.0, v{t}
    v_rcp_f32 v{t}, v{t}
    s_nop 0
    v_fma_f32 v{t}, -2.0, v{t}, 1.0
    v_add_f32 v{t}, 1.0, v{t}
    v_mul_f32 v{g}, v{t+2}, v{t}
    """)
    rbf(a, [(g, g)], [t])
    a(f"""
    v_mul_f32 v{g}, v{g}, v{GE+3}
    v_cvt_pk_bf16_f32 v{t}, v{g}, v{g}
    ds_write_b16 v{aW}, v{t} offset:{L_HF}
    s_waitcnt lgkmcnt(0)
    L_nogelu:
    s_barrier
    """)
    tstamp(14)
    if canC == 1:
        canc_store()
    a(f"""
    v_and_b32 v{vT+5}, 3, v{vN}
    v_lshlrev_b32 v{vT+5}, 6, v{vT+5}
    v_lshl_add_u32 v{vT+5}, v{vG}, 4, v{vT+5}
    ds_read_b128 v[{P}:{P+3}], v{vT+5} offset:{L_HF}
    s_mul_i32 s28, s{sIDX}, 9216
    s_add_u32 s28, s28, {WS_Z}
    s_lshl_b32 s29, s{sWAVE}, 8
    s_add_u32 s28, s28, s29
    v_lshlrev_b32 v{vT+6}, 4, v{vN}
    s_waitcnt lgkmcnt(0)
    """)
    ZD = P + 8
    for i in range(5):
        if i == 4:
            a(f"s_cmp_ge_u32 s{sWAVE}, 4\n s_cbranch_scc1 L_z4")
        a(f"v_mfma_f32_16x16x32_bf16 v[{ZD+4*i}:{ZD+4*i+3}], v[{P}:{P+3}], v[{WDd+4*i}:{WDd+4*i+3}], 0")
    a("L_z4:\n s_nop 7")
    for i in range(5):
        if i == 4:
            a(f"s_cmp_ge_u32 s{sWAVE}, 4\n s_cbranch_scc1 L_fin")
        addtag(a, range(ZD + 4*i, ZD + 4*i + 4))
        a(f"""
        s_mov_b64 exec, 0xffff
        buffer_store_dwordx4 v[{ZD+4*i}:{ZD+4*i+3}], v{vT+6}, s[{sWS}:{sWS+3}], s28 offen offset:{2048*i if i < 2 else 0} sc1
        s_mov_b64 exec, -1
        """ if i < 2 else f"""
        s_add_u32 s29, s28, {2048*i}
        s_mov_b64 exec, 0xffff
        buffer_store_dwordx4 v[{ZD+4*i}:{ZD+4*i+3}], v{vT+6}, s[{sWS}:{sWS+3}], s29 offen sc1
        s_mov_b64 exec, -1
        """)

    tstamp(13)
    a("L_fin:")
    for i in range(mark_tail, len(a.L)):
        if a.L[i].strip() == "s_barrier" and "noguard" not in a.L[i]:
            lab = a.label("L_nb")
            a.L[i] = f"    s_cmp_eq_u32 s{sDRY}, 1\n    s_cbranch_scc1 {lab}\n    s_barrier\n{lab}:"
    a(f"s_cmp_eq_u32 s{sDRY}, 1\n s_cbranch_scc1 L_dry_done" if dry else "")
    dbg_max(2)
    if stamps:
        a("s_waitcnt vmcnt(0)")
        stamp(8)
        a(f"""
        s_lshl_b32 s28, s{sW}, 3
        s_add_u32 s28, s28, s{sWAVE}
        s_lshl_b32 s28, s28, 6
        s_add_u32 s28, s28, {WS_STAMP}
        v_mov_b32 v{vT}, 0
        s_mov_b64 exec, 1
        """)
        for i in range(0, NSTAMP, 4):
            for r in range(4):
                a(f"v_mov_b32 v{vT+2+r}, s{sST+i+r}")
            a(f"buffer_store_dwordx4 v[{vT+2}:{vT+5}], v{vT}, s[{sWS}:{sWS+3}], s28 offen offset:{4*i}")
            a("s_nop 1")
        a("s_waitcnt vmcnt(0)")
    a("L_end:\n s_endpgm\n L_code_end:")

    hdr = HEADER + f"; @launch grid=(256,1,1) block=(512,1,1) lds={LDS_BYTES}\n"
    hdr += '.amdgcn_target "amdgcn-amd-amdhsa--gfx950"\n.text\n'
    return hdr + kernel_begin(KNAME) + a.text() + kernel_desc(KNAME, 256, 102, 256)


HEADER = """; Fused pre-LN MHA decode (KV cache) + pre-LN GEGLU MLP, one persistent launch of 256 workgroups (one per CU).
"""

if __name__ == "__main__":
    import sys
    kw = eval(sys.argv[2]) if len(sys.argv) > 2 else {}
    open(sys.argv[1], "w").write(gen(**kw))
```

```python
from asmlib import *

WS_E    = 0x0
WS_QP   = 0x10000
WS_AP   = 0xA0000
WS_Y    = 0xD0000
WS_HB   = 0x120000
WS_Z    = 0x130000
WS_CANB = 0x280000
WS_CANC = 0x288000
WS_STAMP= 0x300000
WS_SIZE = 0x400000

L_XD = 0
L_QB = L_XD + 9216
L_MRG = L_QB + 256
L_ML = L_MRG + 4096
L_OB = L_ML + 64
L_HB = L_OB + 1024
L_GUF = L_HB + 5760
L_GR = L_GUF + 8192
L_HF = L_GR + 2048
L_SMALL_END = L_HF + 256
L_WG = 32768
L_WU = L_WG + 36864
L_WD = L_WU + 36864
L_END = L_WD + 36864
assert L_SMALL_END <= L_WG
LDS_BYTES = 143360
assert L_END <= LDS_BYTES, L_END

LOG2E = 0x3fb8aa3b
SCALE = 0x3db504f3
INV576 = 0x3ae38e39
EPS = 0x3727c5ac

sWAVE = 3
sK, sV, sWS, sT, sU = 8, 12, 16, 20, 24
pX, pK, pV, pWQ, pWO, pBX, pWG, pWU = 32, 34, 36, 38, 40, 42, 44, 46
pWD, pOUT, pDBG, pWSP = 48, 50, 52, 54
sE, sW, sB, sH, sJ, sTO, sKV, sIT = 56, 57, 58, 59, 60, 61, 62, 63
sROW = 64
sOFF = 67
sL2E, sSCALE, sHI = 68, 69, 70
sCNT = 71
sDRY, sOUTN = 94, 95
sROLE, sIDX, sSLICE, sNT, sROT, sXTRA = 96, 97, 98, 99, 100, 101
sST = 74
NSTAMP = 16
vLANE, vN, vG, vOFFK, vOFFV = 0, 1, 2, 3, 4
vMASK = 5
vM, vL = 9, 10
vO = 12
vS = 16
vQ = 20
vTAG, vFF = 36, 37
vT = 38
vSTG = 64
vWQ = 192
vP = 172
vPP = 204


def srd(a, s, ptr, nbytes):
    a(f"""
    s_mov_b32 s{s}, s{ptr}
    s_and_b32 s{s+1}, s{ptr+1}, 0xffff
    s_mov_b32 s{s+2}, {nbytes}
    s_mov_b32 s{s+3}, 0x00020000
    """)


def row16(a, regs, op="add", ctrls=("quad_perm:[1,0,3,2]", "quad_perm:[2,3,0,1]", "row_half_mirror", "row_mirror")):
    ins = "v_add_f32" if op == "add" else "v_max_f32"
    n = len(regs)
    a("s_nop 1")
    for ctrl in ctrls:
        for r in regs:
            a(f"{ins}_dpp v{r}, v{r}, v{r} {ctrl} row_mask:0xf bank_mask:0xf")
        if n < 3:
            a(f"s_nop {2 - n}")


def xrow(a, regs, tmp, op="add", only32=False):
    ins = "v_add_f32" if op == "add" else "v_max_f32"
    sws = ("v_permlane16_swap_b32", "v_permlane32_swap_b32")
    if only32:
        sws = sws[1:]
    for sw in sws:
        for r, t in zip(regs, tmp):
            a(f"v_mov_b32 v{t}, v{r}")
        a("s_nop 1")
        for r, t in zip(regs, tmp):
            a(f"{sw} v{r}, v{t}")
        a("s_nop 1")
        for r, t in zip(regs, tmp):
            a(f"{ins} v{r}, v{r}, v{t}")


def wavesum(a, regs, tmp, op="add"):
    row16(a, regs, op)
    xrow(a, regs, tmp, op)


def rbf(a, pairs, t):
    for (x, y), tt in zip(pairs, t):
        a(f"v_cvt_pk_bf16_f32 v{tt}, v{x}, v{y}")
    for (x, y), tt in zip(pairs, t):
        a(f"v_lshlrev_b32 v{x}, 16, v{tt}")
        if y != x:
            a(f"v_and_b32 v{y}, s{sHI}, v{tt}")


def tagcheck(a, regs, acc, retry):
    a(f"v_xor_b32 v{acc}, v{regs[0]}, v{vTAG}")
    for r in regs[1:]:
        a(f"v_bitop3_b32 v{acc}, v{acc}, v{r}, v{vTAG} bitop3:0xf6")
    a(f"v_and_b32 v{acc}, v{acc}, v{vFF}")
    a(f"v_cmp_ne_u32 vcc, 0, v{acc}")
    a(f"s_cbranch_vccnz {retry}")


def addtag(a, regs):
    for r in regs:
        a(f"v_bfi_b32 v{r}, v{vFF}, v{vTAG}, v{r}")


def poll_head(a, name, bail="L_end"):
    a(f"{name}:")
    a(f"s_sub_u32 s{sTO}, s{sTO}, 1")
    a(f"s_cbranch_scc1 {bail}")


def ppoll(a, name, nsets, nloads, issue, regs, acc, consume, sleep=0, stagger=0, probe=None, presleep=0):
    a(f"s_cmp_eq_u32 s{sDRY}, 1\n s_cbranch_scc1 {name}_ok0")
    if presleep:
        n = presleep
        while n > 0:
            a(f"s_sleep {min(n, 100)}")
            n -= 100
    if probe:
        emit, preg, mask = probe
        a(f"s_mov_b64 exec, {mask}")
        a(f"{name}_probe:")
        a(f"s_sub_u32 s{sTO}, s{sTO}, 1")
        a(f"s_cbranch_scc1 L_end")
        emit()
        a("s_waitcnt vmcnt(0)")
        a(f"v_xor_b32 v{acc}, v{preg}, v{vTAG}")
        a(f"v_and_b32 v{acc}, v{acc}, v{vFF}")
        a(f"v_cmp_ne_u32 vcc, 0, v{acc}")
        a(f"s_cbranch_vccnz {name}_probe")
        a("s_mov_b64 exec, -1")
    for k in range(nsets):
        issue(k)
        if stagger and k != nsets - 1:
            a(f"s_sleep {stagger}")
    a(f"{name}:")
    a(f"s_sub_u32 s{sTO}, s{sTO}, 1")
    a(f"s_cbranch_scc1 L_end")
    for k in range(nsets):
        a(f"s_waitcnt vmcnt({(nsets-1)*nloads})")
        r = regs(k)
        a(f"v_xor_b32 v{acc}, v{r[0]}, v{vTAG}")
        for x in r[1:]:
            a(f"v_bitop3_b32 v{acc}, v{acc}, v{x}, v{vTAG} bitop3:0xf6")
        a(f"v_and_b32 v{acc}, v{acc}, v{vFF}")
        a(f"v_cmp_ne_u32 vcc, 0, v{acc}")
        a(f"s_cbranch_vccz {name}_ok{k}")
        if sleep:
            a(f"s_sleep {sleep}")
        issue(k)
    a(f"s_branch {name}")
    for k in range(nsets):
        a(f"{name}_ok{k}:")
        consume(k)
        if k != nsets - 1:
            a(f"s_branch {name}_done")
    a(f"{name}_done:")


def fdiv(a, out, num, den_rcp, den, t):
    a(f"v_mul_f32 v{out}, v{num}, v{den_rcp}")
    a(f"v_fma_f32 v{t}, -v{out}, v{den}, v{num}")
    a(f"v_fma_f32 v{out}, v{t}, v{den_rcp}, v{out}")


def gen(D=3, stamps=False, stop=None, kvflags="nt", wflags="nt", late_w=False, pollsleep=0, codepf='tail', xflags="nt", cyc=False, pre=(0, 1, 2, 0), no_w=False, no_compute=False, no_q=False, early='', wo_late=False, gate='pair', bare=False, tailst=False, ns=(1, 1, 1, 1), stg=0, probe=(0, 1, 1, 1), presl=(0, 0, 0, 0), dry=False, shift=0, rotw=False, only=None, canB=False, canC=0, outfl='sc1', tlbw=0, locq=True, lq_pre=1, lq_mid=1, w0_mid=1, xmap=True, dbgA=False, dbgB=False, lq_late=2, gsleep=0, bdec=True, wo_e=4, wd_after=False, dbgtime=False, cmajY=False, cmajZ=False, rmap=True, sh2=0):
    a = Asm()
    NT = 32
    KV_OOB = 0x10000000
    P = vPP

    def tstamp(idx):
        if tailst:
            stamp(idx, True)

    def stamp(idx, force=False):
        if only is not None and idx not in only:
            return
        if tailst and idx in (9, 10, 11, 12, 13, 14) and not force:
            return
        if stamps:
            ins = "s_memtime" if cyc else "s_memrealtime"
            a(f"{ins} s[90:91]\n s_waitcnt lgkmcnt(0)\n s_mov_b32 s{sST+idx}, s90")

    def psleep():
        if pollsleep:
            a(f"s_sleep {pollsleep}")

    def code_prefetch(nwaves, lo, hi, tmp, dst=None):
        a(f"""
        s_getpc_b64 s[92:93]
        {a.label("L_pc")}:
        """)
        lab = a.L[-1].strip()[:-1]
        a(f"""
        s_add_u32 s92, s92, {lo}-{lab}
        s_addc_u32 s93, s93, {-1 if lo == "L_code0" else 0}
        s_lshl_b32 s28, s{sWAVE}, 10
        v_lshlrev_b32 v{tmp+4}, 4, v{vLANE}
        v_add_u32 v{tmp+4}, s28, v{tmp+4}
        s_mov_b32 s29, {hi}-{lo}-16
        """)
        for i in range(NPF[(lo, hi)]):
            a(f"v_min_u32 v{tmp+5}, s29, v{tmp+4}")
            d_ = tmp if dst is None else dst
            a(f"global_load_dwordx4 v[{d_}:{d_+3}], v{tmp+5}, s[92:93]")
            a(f"v_add_u32 v{tmp+4}, {1024*nwaves}, v{tmp+4}")
    NPF = {("L_code0", "L_code_end"): 2, ("L_tail0", "L_code_end"): 2}
    ROLES_OLD = f"""    ; ---- roles: even w < 224: Wo (w < 192) or spare ; otherwise stage B
    s_lshr_b32 s29, s2, 1                  ; P
    s_mov_b32 s{sIDX}, s29
    s_cmp_lt_u32 s29, 96
    s_cselect_b32 s{sROLE}, 1, 2
    s_cselect_b32 s30, {shift}, 0
    s_cmp_eq_u32 s28, 1
    s_cselect_b32 s{sROLE}, 0, s{sROLE}
    s_lshr_b32 s31, s29, 3
    s_lshl_b32 s31, s31, 2
    s_and_b32 s4, s29, 3
    s_add_u32 s31, s31, s4
    s_lshl_b32 s31, s31, 1
    s_bfe_u32 s4, s29, 0x10002
    s_add_u32 s{sSLICE}, s31, s4
    s_cmp_lt_u32 s2, 224
    s_cbranch_scc1 L_role_done
    s_mov_b32 s{sROLE}, 0
    s_sub_u32 s4, s2, 224                  ; p'
    s_add_u32 s{sIDX}, s4, 112
    s_lshr_b32 s31, s4, 4
    s_lshl_b32 s31, s31, 3
    s_and_b32 s5, s4, 7
    s_add_u32 s31, s31, s5
    s_lshl_b32 s31, s31, 1
    s_bfe_u32 s5, s4, 0x10003
    s_add_u32 s31, s31, s5
    s_add_u32 s{sSLICE}, s31, 112
    L_role_done:
    s_sub_u32 s30, 256, s30
    s_and_b32 s28, s{sJ}, 1
    s_cmp_eq_u32 s28, 1
    s_cselect_b32 s4, s30, 0               ; t0
    s_cselect_b32 s5, 512, s30             ; t1
    """
    ROLES_NEW = f"""
    s_and_b32 s29, s2, 7                   ; x
    s_lshr_b32 s30, s2, 4                  ; r
    s_lshl_b32 s31, s30, 3
    s_add_u32 s{sIDX}, s31, s29            ; r*8 + x
    s_lshr_b32 s31, s30, 1
    s_lshl_b32 s31, s31, 3
    s_add_u32 s31, s31, s29
    s_lshl_b32 s31, s31, 1
    s_and_b32 s4, s30, 1
    s_add_u32 s{sSLICE}, s31, s4           ; ((r>>1)*8 + x)*2 + (r&1)
    s_mov_b32 s{sROLE}, 0
    s_bitcmp1_b32 s2, 3
    s_cbranch_scc1 L_role_done
    s_cmp_lt_u32 s30, 12
    s_cselect_b32 s{sROLE}, 1, 2
    s_cmp_lt_u32 s30, 14
    s_cbranch_scc1 L_role_done
    s_mov_b32 s{sROLE}, 0
    s_add_u32 s{sIDX}, s{sIDX}, {128 - 14*8}
    s_lshl_b32 s31, s29, 1
    s_sub_u32 s4, s30, 14
    s_add_u32 s31, s31, s4
    s_add_u32 s{sSLICE}, s31, 128
    L_role_done:
    s_cmp_lt_u32 s30, 12
    s_cselect_b32 s30, {sh2}, 0
    s_and_b32 s28, s{sJ}, 1
    s_sub_u32 s5, 256, s30                 ; s=0: t1 = 256 - sh
    s_mov_b32 s4, 0
    s_mov_b32 s6, 0
    s_cmp_eq_u32 s28, 1
    s_cselect_b32 s4, 256, 0
    s_cselect_b32 s5, 512, s5
    s_cselect_b32 s6, s30, 0
    """
    ROLES = ROLES_NEW if rmap else ROLES_OLD
    XMAP = "" if not xmap else f"""
    s_and_b32 s29, s2, 7
    s_lshr_b32 s30, s2, 6
    s_lshl_b32 s30, s30, 3
    s_add_u32 s{sH}, s29, s30              ; h = (w&7) + 8*(w>>6)
    s_bfe_u32 s{sJ}, s2, 0x30003           ; j = (w>>3)&7
    s_lshr_b32 s{sB}, s{sJ}, 1
    """
    def dbg_max(slot, invert=False):
        if not dbgtime:
            return
        lab = a.label("L_dbg")
        a(f"s_cmp_ge_u32 s{sWAVE}, {2 if slot == 2 else 1}\n s_cbranch_scc1 {lab}")
        a(f"""
        s_memrealtime s[90:91]
        s_waitcnt lgkmcnt(0)
        {"s_not_b32 s90, s90" if invert else ""}
        v_mov_b32 v62, s90
        v_mov_b32 v63, {4*slot}
        s_mov_b64 exec, 1
        global_atomic_umax v63, v62, s[{pDBG}:{pDBG+1}]
        s_mov_b64 exec, -1
        {lab}:
        """)

    a(f"""
    L_code0:
    s_cmp_ge_u32 s2, 256
    s_cbranch_scc1 L_end
    s_load_dwordx16 s[32:47], s[0:1], 0
    s_load_dwordx8 s[48:55], s[0:1], 64
    v_lshrrev_b32 v{P}, 6, v0
    v_and_b32 v{vLANE}, 63, v0
    v_readfirstlane_b32 s{sWAVE}, v{P}
    v_and_b32 v{vN}, 15, v{vLANE}
    v_lshrrev_b32 v{vG}, 4, v{vLANE}
    v_lshlrev_b32 v{vOFFK}, 8, v{vN}
    v_lshl_add_u32 v{vOFFK}, v{vG}, 4, v{vOFFK}
    v_lshlrev_b32 v{vOFFV}, 10, v{vG}
    v_lshl_add_u32 v{vOFFV}, v{vN}, 4, v{vOFFV}
    s_mov_b32 s{sW}, s2
    s_lshr_b32 s{sB}, s2, 6
    s_lshr_b32 s{sH}, s2, 1
    s_and_b32 s{sH}, s{sH}, 31
    s_and_b32 s28, s2, 1
    s_lshl_b32 s{sJ}, s{sB}, 1
    s_add_u32 s{sJ}, s{sJ}, s28
    {XMAP}
    s_mov_b32 s{sTO}, 2000000
    {ROLES}
    s_mov_b32 s{sL2E}, {LOG2E}
    s_mov_b32 s{sSCALE}, {SCALE}
    s_mov_b32 s{sHI}, 0xffff0000
    s_mov_b32 s{sDRY}, 0
    s_mov_b32 s{sOUTN}, 4608
    """)
    if stamps:
        for i in range(NSTAMP):
            a(f"s_mov_b32 s{sST+i}, 0")
    stamp(0)
    if codepf is True and not locq:
        code_prefetch(8, "L_code0", "L_code_end", vPP + 44)
    a("s_waitcnt lgkmcnt(0)")
    stamp(9)
    dbg_max(0, True)
    a(f"s_load_dword s{sE}, s[{pWSP}:{pWSP+1}], 0")
    srd(a, sK, pK, 0x10000000)
    srd(a, sV, pV, 0x10000000)
    srd(a, sWS, pWSP, WS_SIZE)
    srd(a, sT, pX, 4608)
    srd(a, sU, pWQ, 576 * 8192)
    XTRA = "" if not rmap else f"""
    s_cmp_lt_u32 s{sWAVE}, s6
    s_addc_u32 s{sNT}, s{sNT}, 0
    s_sub_u32 s28, 256, s6
    s_add_u32 s28, s28, s{sWAVE}
    s_lshl_b32 s28, s28, 12
    s_lshl_b32 s{sXTRA}, s{sB}, 5
    s_add_u32 s{sXTRA}, s{sXTRA}, s{sH}
    s_lshl_b32 s{sXTRA}, s{sXTRA}, 21
    s_add_u32 s{sXTRA}, s{sXTRA}, s28
    """
    a(f"""
    s_lshl_b32 s{sKV}, s{sB}, 5
    s_add_u32 s{sKV}, s{sKV}, s{sH}
    s_lshl_b32 s{sKV}, s{sKV}, 21
    s_lshl_b32 s28, s4, 12
    s_add_u32 s{sKV}, s{sKV}, s28
    s_sub_u32 s29, s5, s4                  ; L
    s_lshr_b32 s{sNT}, s29, 3
    s_and_b32 s29, s29, 7                  ; remainder
    {'s_add_u32 s28, s%d, s%d' % (sNT, sWAVE) if rotw else 's_mov_b32 s28, s%d' % sWAVE}
    s_and_b32 s28, s28, 7
    s_cmp_lt_u32 s28, s29
    s_addc_u32 s{sNT}, s{sNT}, 0
    {XTRA}
    s_mov_b32 s{sIT}, 0
    """)

    def kloads(s):
        r = vSTG + 32 * s
        for j in range(4):
            a(f"buffer_load_dwordx4 v[{r+4*j}:{r+4*j+3}], v{vOFFK}, s[{sK}:{sK+3}], s{sOFF} offen offset:{64*j} {kvflags}")

    def vloads(s):
        r = vSTG + 32 * s + 16
        for j in range(4):
            a(f"buffer_load_dwordx4 v[{r+4*j}:{r+4*j+3}], v{vOFFV}, s[{sV}:{sV+3}], s{sOFF} offen offset:{256*j} {kvflags}")

    def nextoff():
        if rotw:
            a(f"""
            s_add_u32 s{sOFF}, s{sIT}, s{sWAVE}
            s_and_b32 s{sOFF}, s{sOFF}, 7
            s_lshl_b32 s{sOFF}, s{sOFF}, 12
            s_add_u32 s{sOFF}, s{sOFF}, s{sKV}
            """)
        else:
            a(f"""
            s_lshl_b32 s{sOFF}, s{sWAVE}, 12
            s_add_u32 s{sOFF}, s{sOFF}, s{sKV}
            """)
        if rmap and sh2:
            a(f"s_cmp_eq_u32 s{sIT}, 32\n s_cselect_b32 s{sOFF}, s{sXTRA}, s{sOFF}")
        a(f"""
        s_cmp_ge_u32 s{sIT}, s{sNT}
        s_cselect_b32 s{sOFF}, {KV_OOB}, s{sOFF}
        s_add_u32 s{sKV}, s{sKV}, 32768
        s_add_u32 s{sIT}, s{sIT}, 1
        """)

    def prefetch(lo=0, hi=D):
        for s in range(lo, hi):
            nextoff(); kloads(s); vloads(s)

    a0, a1, b0, b1 = pre

    def by_class(fa, fb, f7=None):
        la, lb, le = a.label("L_cA"), a.label("L_cB"), a.label("L_cE")
        a(f"s_cmp_lt_u32 s{sWAVE}, 4\n s_cbranch_scc1 {la}")
        a(f"s_cmp_lt_u32 s{sWAVE}, 7\n s_cbranch_scc1 {lb}")
        if f7: f7()
        a(f"s_branch {le}\n {la}:")
        fa()
        a(f"s_branch {le}\n {lb}:")
        fb()
        a(f"{le}:")

    def MASKS():
        t0, t1, t2 = vT + 2, vT + 3, vT + 4
        a(f"""
        v_and_b32 v{t0}, 7, v{vN}
        v_and_b32 v{t1}, 1, v{t0}
        v_lshlrev_b32 v{t1}, 4, v{t1}
        v_mov_b32 v{t2}, 0xffff
        v_lshlrev_b32 v{t1}, v{t1}, v{t2}
        v_lshrrev_b32 v{t0}, 1, v{t0}
        v_mov_b32 v{vFF}, 0xff
        """)
        for d in range(4):
            a(f"v_cmp_eq_u32 vcc, {d}, v{t0}\n s_nop 1\n v_cndmask_b32 v{vMASK+d}, 0, v{t1}, vcc")
        a(f"""
        s_waitcnt lgkmcnt(0)
        s_add_u32 s{sE}, s{sE}, 1
        s_and_b32 s28, s{sE}, 0xff
        v_mov_b32 v{vTAG}, s28
        """)

    if bare:
        prefetch(0, D)
        MASKS()
        a("s_branch L_bare")
    if locq:
        X, Dv = 64, 74
        A0, A1, A2, A3, A4 = 84, 85, 86, 87, 88
        vW18, AXS, AO = 160, 232, 250
        a(f"""
        v_lshlrev_b32 v{vT+1}, 13, v{vG}
        v_lshl_add_u32 v{vT+1}, v{vN}, 4, v{vT+1}        ; g*8192 + c*16
        s_lshl_b32 s30, s{sWAVE}, 15
        s_lshl_b32 s31, s{sH}, 8
        s_add_u32 s30, s30, s31
        s_cmp_lg_u32 s{sWAVE}, 0
        s_cbranch_scc1 L_lq_other
        v_lshlrev_b32 v{vT}, 1, v{vLANE}
        s_mul_i32 s28, s{sB}, 1152
        """)
        for i in range(9):
            a(f"buffer_load_ushort v{X+i}, v{vT}, s[{sT}:{sT+3}], s28 offen offset:{128*i} {xflags}")
        def wq18():
            for u in range(18):
                a(f"buffer_load_dwordx4 v[{vW18+4*u}:{vW18+4*u+3}], v{vT+1}, s[{sU}:{sU+3}], s30 offen {wflags}")
                if u != 17:
                    a(f"s_add_u32 s30, s30, {32*8192}")
        wq18()
        a("s_branch L_lq_issued\n L_lq_other:")
        lq_m = min(D, lq_pre + lq_mid)
        w0_m = min(D, w0_mid)
        prefetch(0, lq_pre)
        wq18()
        prefetch(lq_pre, lq_m)
        a("L_lq_issued:")
        if codepf is True:
            code_prefetch(8, "L_code0", "L_code_end", vT + 8, dst=60)
        MASKS()
        ncp = 0
        a(f"s_cmp_lg_u32 s{sWAVE}, 0\n s_cbranch_scc1 L_lq_noln")
        a(f"s_waitcnt vmcnt({18 + ncp})")
        stamp(10)
        for i in range(9):
            a(f"v_lshlrev_b32 v{X+i}, 16, v{X+i}")
        a(f"v_add_f32 v{A0}, v{X}, v{X+1}")
        a(f"v_mul_f32 v{A2}, v{X}, v{X}")
        for i in range(1, 9):
            if i >= 2:
                a(f"v_add_f32 v{A0}, v{A0}, v{X+i}")
            a(f"v_fmac_f32 v{A2}, v{X+i}, v{X+i}")
        wavesum(a, [A0, A2], [A1, A3])
        a(f"""
        v_mul_f32 v{A0}, {INV576}, v{A0}
        v_mul_f32 v{A2}, {INV576}, v{A2}
        v_fma_f32 v{A2}, -v{A0}, v{A0}, v{A2}
        """)
        rbf(a, [(A0, A2)], [A1])
        a(f"v_add_f32 v{A2}, {EPS}, v{A2}")
        rbf(a, [(A2, A2)], [A1])
        a(f"v_sqrt_f32 v{A2}, v{A2}\n s_nop 0")
        rbf(a, [(A2, A2)], [A1])
        a(f"v_rcp_f32 v{A3}, v{A2}")
        for i in range(9):
            a(f"v_sub_f32 v{Dv+i}, v{X+i}, v{A0}")
        rbf(a, [(Dv, Dv+1), (Dv+2, Dv+3), (Dv+4, Dv+5), (Dv+6, Dv+7), (Dv+8, Dv+8)], [X, X+1, X+2, X+3, X+4])
        for i in range(9):
            fdiv(a, X + i, Dv + i, A3, A2, A4)
        for i in range(9):
            a(f"v_cvt_pk_bf16_f32 v{X+i}, v{X+i}, v{X+i}")
        a(f"v_lshlrev_b32 v{A4}, 2, v{vLANE}")
        for i in range(9):
            a(f"ds_write_b32 v{A4}, v{X+i} offset:{L_XD + 256*i}")
        a("s_waitcnt lgkmcnt(0)")
        prefetch(0, w0_m)
        a("L_lq_noln:")
        a("s_barrier")
        stamp(11)
        a(f"""
        s_lshl_b32 s28, s{sWAVE}, 4
        v_lshlrev_b32 v{vT}, 2, v{vG}
        v_add_u32 v{vT}, s28, v{vT}                      ; g*4 + wave*16
        """)
        for u in range(18):
            a(f"ds_read_b32 v{AXS+u}, v{vT} offset:{L_XD + 128*u}")
            if u == 8:
                a("s_waitcnt lgkmcnt(0)")
        lw0, lwe = a.label("L_lqw0"), a.label("L_lqwe")
        a(f"s_cmp_eq_u32 s{sWAVE}, 0\n s_cbranch_scc1 {lw0}")
        a(f"s_waitcnt vmcnt({8*(lq_m-lq_pre) + ncp})\n s_branch {lwe}\n {lw0}:\n s_waitcnt vmcnt({8*w0_m})\n {lwe}:")
        a("s_waitcnt lgkmcnt(0)")
        if dbgA:
            a("s_waitcnt vmcnt(0)")
        stamp(12)
        for u in range(18):
            ao = AO if True else AO
            for d in range(4):
                a(f"v_and_b32 v{ao+d}, v{AXS+u}, v{vMASK+d}")
            a("s_nop 1")
            c = "0" if u == 0 else f"v[{vS}:{vS+3}]"
            a(f"v_mfma_f32_16x16x32_bf16 v[{vS}:{vS+3}], v[{ao}:{ao+3}], v[{vW18+4*u}:{vW18+4*u+3}], {c}")
            if dbgB:
                a("s_nop 7")
        a(f"""
        v_lshlrev_b32 v{vT}, 5, v{vN}                 ; c*32
        v_and_b32 v{vT+1}, 1, v{vG}
        v_lshl_add_u32 v{vT}, v{vT+1}, 4, v{vT}       ; + (g&1)*16
        s_lshl_b32 s28, s{sWAVE}, 9
        v_add_u32 v{vT}, s28, v{vT}
        s_nop 4
        ds_write_b128 v{vT}, v[{vS}:{vS+3}] offset:{L_MRG}
        """)
        if lq_m < D or w0_m < D:
            l0, le = a.label("L_lqr0"), a.label("L_lqre")
            a(f"s_cmp_eq_u32 s{sWAVE}, 0\n s_cbranch_scc1 {l0}")
            r1 = lq_late if lq_late is not None else D
            prefetch(lq_m, max(lq_m, min(D, r1)))
            a(f"s_branch {le}\n {l0}:")
            prefetch(w0_m, max(w0_m, min(D, r1)))
            a(f"{le}:")
        a("""
        s_waitcnt lgkmcnt(0)
        s_barrier
        """)
        stamp(13)
        QS = 232
        a(f"""
        s_cmp_lg_u32 s{sWAVE}, 1
        s_cbranch_scc1 L_lq_qdone
        v_and_b32 v{vT}, 31, v{vLANE}
        v_lshlrev_b32 v{vT+1}, 4, v{vT}
        """)
        for w in range(4):
            a(f"ds_read_b128 v[{QS+4*w}:{QS+4*w+3}], v{vT+1} offset:{L_MRG + 512*w}")
        for w in range(4, 8):
            a(f"ds_read_b128 v[{160+4*w}:{160+4*w+3}], v{vT+1} offset:{L_MRG + 512*w}")
        a("s_waitcnt lgkmcnt(0)")
        for r in range(0, 4, 2):
            a(f"v_pk_add_f32 v[{QS+r}:{QS+r+1}], v[{QS+r}:{QS+r+1}], v[{QS+4+r}:{QS+5+r}]")
            a(f"v_pk_add_f32 v[{QS+8+r}:{QS+9+r}], v[{QS+8+r}:{QS+9+r}], v[{QS+12+r}:{QS+13+r}]")
            a(f"v_pk_add_f32 v[{176+r}:{177+r}], v[{176+r}:{177+r}], v[{180+r}:{181+r}]")
            a(f"v_pk_add_f32 v[{184+r}:{185+r}], v[{184+r}:{185+r}], v[{188+r}:{189+r}]")
        for r in range(0, 4, 2):
            a(f"v_pk_add_f32 v[{QS+r}:{QS+r+1}], v[{QS+r}:{QS+r+1}], v[{QS+8+r}:{QS+9+r}]")
            a(f"v_pk_add_f32 v[{176+r}:{177+r}], v[{176+r}:{177+r}], v[{184+r}:{185+r}]")
        for r in range(0, 4, 2):
            a(f"v_pk_add_f32 v[{QS+r}:{QS+r+1}], v[{QS+r}:{QS+r+1}], v[{176+r}:{177+r}]")
        a(f"""
        v_cvt_pk_bf16_f32 v{QS+4}, v{QS}, v{QS+1}
        v_cvt_pk_bf16_f32 v{QS+5}, v{QS+2}, v{QS+3}
        v_lshlrev_b32 v{vT}, 3, v{vT}
        ds_write_b64 v{vT}, v[{QS+4}:{QS+5}] offset:{L_QB}
        s_waitcnt lgkmcnt(0)
        L_lq_qdone:
        s_barrier
        """)
        stamp(14)
        r1 = lq_late if lq_late is not None else D
        if max(lq_m, min(D, r1)) < D or max(w0_m, min(D, r1)) < D:
            l0, le = a.label("L_lqs0"), a.label("L_lqse")
            a(f"s_cmp_eq_u32 s{sWAVE}, 0\n s_cbranch_scc1 {l0}")
            prefetch(max(lq_m, min(D, r1)), D)
            a(f"s_branch {le}\n {l0}:")
            prefetch(max(w0_m, min(D, r1)), D)
            a(f"{le}:")
    else:
        X = P
        a(f"""
        s_cmp_ge_u32 s{sWAVE}, 4
        s_cbranch_scc1 L_nox
        v_lshlrev_b32 v{vT}, 1, v{vLANE}
        s_mul_i32 s28, s{sWAVE}, 1152
        """)
        for i in range(9):
            a(f"buffer_load_ushort v{X+i}, v{vT}, s[{sT}:{sT+3}], s28 offen offset:{128*i} {xflags}")
        a("L_nox:")
        a(f"""
        v_lshlrev_b32 v{vT+1}, 13, v{vG}
        v_lshl_add_u32 v{vT+1}, v{vN}, 4, v{vT+1}        ; g*8192 + c*16
        """)
        for u in range(3):
            a(f"""
            s_add_u32 s29, s{sWAVE}, {8*u}
            s_lshl_b32 s30, s29, 2
            s_mul_i32 s28, s{sJ}, 72
            s_add_u32 s30, s30, s28
            s_mov_b32 s{sROW+u}, s30
            s_lshl_b32 s30, s30, 13
            s_lshl_b32 s31, s{sH}, 8
            s_add_u32 s30, s30, s31
            s_cmp_ge_u32 s29, 18
            s_cselect_b32 s30, {576*8192}, s30
            s_cselect_b32 s{sROW+u}, s28, s{sROW+u}
            buffer_load_dwordx4 v[{vWQ+4*u}:{vWQ+4*u+3}], v{vT+1}, s[{sU}:{sU+3}], s30 offen {wflags}
            """)
        by_class(lambda: prefetch(0, a0), lambda: prefetch(0, b0))
        MASKS()
        Dv = P + 10
        A0, A1, A2, A3, A4, A5 = (P + 20 + i for i in range(6))
        a(f"""
        s_cmp_ge_u32 s{sWAVE}, 4
        s_cbranch_scc1 L_noln
        s_waitcnt vmcnt({3 + 8*a0})
        """)
        stamp(10)
        for i in range(9):
            a(f"v_lshlrev_b32 v{X+i}, 16, v{X+i}")
        a(f"v_add_f32 v{A0}, v{X}, v{X+1}")
        for i in range(2, 9):
            a(f"v_add_f32 v{A0}, v{A0}, v{X+i}")
        wavesum(a, [A0], [A1])
        a(f"v_mul_f32 v{A0}, {INV576}, v{A0}")
        for i in range(9):
            a(f"v_sub_f32 v{Dv+i}, v{X+i}, v{A0}")
        a(f"v_mul_f32 v{A2}, v{Dv}, v{Dv}")
        for i in range(1, 9):
            a(f"v_fmac_f32 v{A2}, v{Dv+i}, v{Dv+i}")
        wavesum(a, [A2], [A1])
        a(f"v_mul_f32 v{A2}, {INV576}, v{A2}")
        rbf(a, [(A0, A2)], [A1])
        a(f"v_add_f32 v{A2}, {EPS}, v{A2}")
        rbf(a, [(A2, A2)], [A1])
        a(f"v_sqrt_f32 v{A2}, v{A2}\n s_nop 0")
        rbf(a, [(A2, A2)], [A1])
        a(f"v_rcp_f32 v{A3}, v{A2}")
        for i in range(9):
            a(f"v_sub_f32 v{Dv+i}, v{X+i}, v{A0}")
        rbf(a, [(Dv, Dv+1), (Dv+2, Dv+3), (Dv+4, Dv+5), (Dv+6, Dv+7), (Dv+8, Dv+8)], [X, X+1, X+2, X+3, X+4])
        for i in range(9):
            fdiv(a, X + i, Dv + i, A3, A2, A4)
        for i in range(9):
            a(f"v_cvt_pk_bf16_f32 v{X+i}, v{X+i}, v{X+i}")
        a(f"""
        s_mul_i32 s28, s{sWAVE}, {576*4}
        v_lshlrev_b32 v{A4}, 2, v{vLANE}
        v_add_u32 v{A4}, s28, v{A4}
        """)
        for i in range(9):
            a(f"ds_write_b32 v{A4}, v{X+i} offset:{L_XD + 256*i}")
        a("L_noln:")
        a("s_waitcnt lgkmcnt(0)\n s_barrier")
        stamp(11)
        AX = P
        AO = P + 8
        QA = P + 12
        a(f"""
        v_lshrrev_b32 v{vT}, 3, v{vN}                 ; m>>3
        v_mul_u32_u24 v{vT}, 576, v{vT}
        v_add_u32 v{vT}, v{vT}, v{vG}
        v_lshlrev_b32 v{vT}, 2, v{vT}                 ; ((m>>3)*576 + g)*4
        """)
        for u in range(3):
            a(f"""
            s_lshl_b32 s28, s{sROW+u}, 2
            v_add_u32 v{vT+1}, s28, v{vT}
            ds_read_b32 v{AX+2*u}, v{vT+1} offset:{L_XD}
            ds_read_b32 v{AX+2*u+1}, v{vT+1} offset:{L_XD + 2*576*4}
            """)
        by_class(lambda: a(f"s_waitcnt vmcnt({8*a0})"), lambda: a(f"s_waitcnt vmcnt({8*b0})"), lambda: a("s_waitcnt vmcnt(0)"))
        a("s_waitcnt lgkmcnt(0)")
        stamp(12)
        for u in range(3):
            for pp in range(2):
                for d in range(4):
                    a(f"v_and_b32 v{AO+d}, v{AX+2*u+pp}, v{vMASK+d}")
                a("s_nop 1")
                c = "0" if u == 0 else f"v[{QA+4*pp}:{QA+4*pp+3}]"
                a(f"v_mfma_f32_16x16x32_bf16 v[{QA+4*pp}:{QA+4*pp+3}], v[{AO}:{AO+3}], v[{vWQ+4*u}:{vWQ+4*u+3}], {c}")
                a("s_nop 1")
        a(f"""
        v_lshrrev_b32 v{vT}, 1, v{vG}
        v_lshlrev_b32 v{vT}, 9, v{vT}
        v_lshl_add_u32 v{vT}, v{vN}, 5, v{vT}
        v_and_b32 v{vT+1}, 1, v{vG}
        v_lshl_add_u32 v{vT}, v{vT+1}, 4, v{vT}
        s_nop 7
        """)
        a(f"s_lshl_b32 s28, s{sWAVE}, 11\n s_add_u32 s28, s28, {L_WG}\n v_add_u32 v{vT}, s28, v{vT}")
        for pp in range(2):
            a(f"ds_write_b128 v{vT}, v[{QA+4*pp}:{QA+4*pp+3}] offset:{pp*1024}")
        a("s_waitcnt lgkmcnt(0)\n s_barrier")
        stamp(13)
        by_class(lambda: prefetch(a0, a0 + a1), lambda: prefetch(b0, b0 + b1))
        G0 = P
        a(f"""
        s_cmp_lg_u32 s{sWAVE}, 7
        s_cbranch_scc1 L_qwait
        v_lshlrev_b32 v{vT}, 4, v{vLANE}
        v_add_u32 v{vT+1}, {L_WG}, v{vT}
        """)
        for half in range(2):
            base = G0 + 8 if half == 0 else G0 + 8
            for w in range(8):
                dst = (G0 + 4*half) if w == 0 else (G0 + 8 + 4*(w-1))
                a(f"ds_read_b128 v[{dst}:{dst+3}], v{vT+1} offset:{2048*w + 1024*half}")
            a("s_waitcnt lgkmcnt(0)")
            for w in range(1, 8):
                for r in range(4):
                    a(f"v_add_f32 v{G0+4*half+r}, v{G0+4*half+r}, v{G0+8+4*(w-1)+r}")
        a(f"""
        s_lshl_b32 s28, s{sH}, 3
        s_add_u32 s28, s28, s{sJ}
        s_lshl_b32 s28, s28, 11
        s_add_u32 s28, s28, {WS_QP}
        """)
        addtag(a, range(G0, G0 + 8))
        a(f"""
        buffer_store_dwordx4 v[{G0}:{G0+3}], v{vT}, s[{sWS}:{sWS+3}], s28 offen sc1
        buffer_store_dwordx4 v[{G0+4}:{G0+7}], v{vT}, s[{sWS}:{sWS+3}], s28 offen offset:1024 sc1
        v_lshrrev_b32 v{vT+1}, 5, v{vLANE}
        v_lshlrev_b32 v{vT+1}, 11, v{vT+1}
        v_and_b32 v{vT+2}, 31, v{vLANE}
        v_lshl_add_u32 v{vT+1}, v{vT+2}, 4, v{vT+1}      ; jj*2048 + c4*16
        s_lshl_b32 s28, s{sH}, 14
        s_lshl_b32 s29, s{sB}, 9
        s_add_u32 s28, s28, s29
        s_add_u32 s28, s28, {WS_QP}
        s_add_u32 s29, s28, 4096
        s_add_u32 s30, s28, 8192
        s_add_u32 s31, s28, 12288
        s_nop 1
        """)
        G1 = P + 8
        poll_head(a, "L_qpoll")
        psleep()
        for i in range(4):
            a(f"buffer_load_dwordx4 v[{G1+4*i}:{G1+4*i+3}], v{vT+1}, s[{sWS}:{sWS+3}], s{28+i} offen sc1")
        a("s_waitcnt vmcnt(0)")
        if not no_q:
            tagcheck(a, list(range(G1, G1 + 16)), vT + 3, "L_qpoll")
        stamp(14)
        for r in range(4):
            a(f"v_add_f32 v{G1+r}, v{G1+r}, v{G1+4+r}")
            a(f"v_add_f32 v{G1+8+r}, v{G1+8+r}, v{G1+12+r}")
        for r in range(4):
            a(f"v_add_f32 v{G1+r}, v{G1+r}, v{G1+8+r}")
        xrow(a, [G1, G1+1, G1+2, G1+3], [G1+4, G1+5, G1+6, G1+7], only32=True)
        a(f"""
        v_cvt_pk_bf16_f32 v{G1+8}, v{G1}, v{G1+1}
        v_cvt_pk_bf16_f32 v{G1+9}, v{G1+2}, v{G1+3}
        v_lshlrev_b32 v{vT+2}, 3, v{vT+2}
        ds_write_b64 v{vT+2}, v[{G1+8}:{G1+9}] offset:{L_QB}
        """)
        a(f"""
        s_waitcnt lgkmcnt(0)
        L_qwait:
        s_barrier
        """)
        by_class(lambda: prefetch(a0 + a1, D), lambda: prefetch(b0 + b1, D), lambda: prefetch(0, D))
    a(f"v_lshlrev_b32 v{vT}, 4, v{vG}")
    a("L_bare:")
    for j in range(4):
        a(f"ds_read_b128 v[{vQ+4*j}:{vQ+4*j+3}], v{vT} offset:{L_QB + 64*j}")
    a(f"""
    v_mov_b32 v{vM}, 0xff800000
    v_mov_b32 v{vL}, 0
    v_mov_b32 v{vO}, 0
    v_mov_b32 v{vO+1}, 0
    v_mov_b32 v{vO+2}, 0
    v_mov_b32 v{vO+3}, 0
    s_mov_b32 s{sCNT}, s{sNT}
    s_waitcnt lgkmcnt(0)
    """)
    stamp(1)
    dbg_max(3)
    if stop == "q":
        a("s_branch L_fin")

    P = vP
    s0, s1, s2, s3 = vT, vT + 1, vT + 2, vT + 3
    u0, u1 = vT + 4, vT + 5
    mx, mt, al, nm = vT + 6, vT + 7, vT + 8, vT + 9
    pk = vT + 10
    Aop = vT + 14
    assert Aop % 2 == 0
    a("L_loop:")
    for s in range(D):
        kb = vSTG + 32 * s
        vb = kb + 16
        a(f"s_waitcnt vmcnt({8*(D-1)+4})")
        for j in range(4):
            c = "0" if j == 0 else f"v[{vS}:{vS+3}]"
            a(f"v_mfma_f32_16x16x32_bf16 v[{vS}:{vS+3}], v[{kb+4*j}:{kb+4*j+3}], v[{vQ+4*j}:{vQ+4*j+3}], {c}")
        nextoff()
        kloads(s)
        a("s_nop 3")
        if no_compute:
            a(f"s_waitcnt vmcnt({8*(D-1)+4})")
            vloads(s)
            a(f"""
            s_sub_u32 s{sCNT}, s{sCNT}, 1
            s_cmp_eq_u32 s{sCNT}, 0
            s_cbranch_scc1 L_loop_end
            """)
            continue
        a(f"""
        v_cvt_pk_bf16_f32 v{u0}, v{vS}, v{vS+1}
        v_cvt_pk_bf16_f32 v{u1}, v{vS+2}, v{vS+3}
        v_lshlrev_b32 v{s0}, 16, v{u0}
        v_and_b32 v{s1}, s{sHI}, v{u0}
        v_lshlrev_b32 v{s2}, 16, v{u1}
        v_and_b32 v{s3}, s{sHI}, v{u1}
        v_mul_f32 v{s0}, s{sSCALE}, v{s0}
        v_mul_f32 v{s1}, s{sSCALE}, v{s1}
        v_mul_f32 v{s2}, s{sSCALE}, v{s2}
        v_mul_f32 v{s3}, s{sSCALE}, v{s3}
        v_cvt_pk_bf16_f32 v{u0}, v{s0}, v{s1}
        v_cvt_pk_bf16_f32 v{u1}, v{s2}, v{s3}
        v_lshlrev_b32 v{s0}, 16, v{u0}
        v_and_b32 v{s1}, s{sHI}, v{u0}
        v_lshlrev_b32 v{s2}, 16, v{u1}
        v_and_b32 v{s3}, s{sHI}, v{u1}
        v_max3_f32 v{mx}, v{s0}, v{s1}, v{s2}
        v_max3_f32 v{mx}, v{mx}, v{s3}, v{vM}
        v_mov_b32 v{mt}, v{mx}
        s_nop 1
        v_permlane16_swap_b32 v{mx}, v{mt}
        s_nop 1
        v_max_f32 v{mx}, v{mx}, v{mt}
        v_mov_b32 v{mt}, v{mx}
        s_nop 1
        v_permlane32_swap_b32 v{mx}, v{mt}
        s_nop 1
        v_max_f32 v{mx}, v{mx}, v{mt}
        v_sub_f32 v{al}, v{vM}, v{mx}
        v_mul_f32 v{nm}, s{sL2E}, v{mx}
        v_mul_f32 v{al}, s{sL2E}, v{al}
        v_fma_f32 v{s0}, v{s0}, s{sL2E}, -v{nm}
        v_fma_f32 v{s1}, v{s1}, s{sL2E}, -v{nm}
        v_fma_f32 v{s2}, v{s2}, s{sL2E}, -v{nm}
        v_fma_f32 v{s3}, v{s3}, s{sL2E}, -v{nm}
        v_exp_f32 v{al}, v{al}
        v_exp_f32 v{s0}, v{s0}
        v_exp_f32 v{s1}, v{s1}
        v_exp_f32 v{s2}, v{s2}
        v_exp_f32 v{s3}, v{s3}
        v_mov_b32 v{vM}, v{mx}
        v_mul_f32 v{vO}, v{vO}, v{al}
        v_mul_f32 v{vO+1}, v{vO+1}, v{al}
        v_mul_f32 v{vO+2}, v{vO+2}, v{al}
        v_mul_f32 v{vO+3}, v{vO+3}, v{al}
        v_cvt_pk_bf16_f32 v{pk}, v{s0}, v{s0}
        v_cvt_pk_bf16_f32 v{pk+1}, v{s1}, v{s1}
        v_cvt_pk_bf16_f32 v{pk+2}, v{s2}, v{s2}
        v_cvt_pk_bf16_f32 v{pk+3}, v{s3}, v{s3}
        v_fma_f32 v{vL}, v{vL}, v{al}, v{s0}
        v_add_f32 v{s1}, v{s1}, v{s2}
        v_add_f32 v{vL}, v{vL}, v{s3}
        v_add_f32 v{vL}, v{vL}, v{s1}
        s_waitcnt vmcnt({8*(D-1)+4})
        """)
        for r in range(4):
            ao = Aop + 4 * (r & 1)
            for d in range(4):
                a(f"v_and_b32 v{ao+d}, v{pk+r}, v{vMASK+d}")
            a("s_nop 1")
            a(f"v_mfma_f32_16x16x32_bf16 v[{vO}:{vO+3}], v[{ao}:{ao+3}], v[{vb+4*r}:{vb+4*r+3}], v[{vO}:{vO+3}]")
        vloads(s)
        a(f"""
        s_sub_u32 s{sCNT}, s{sCNT}, 1
        s_cmp_eq_u32 s{sCNT}, 0
        s_cbranch_scc1 L_loop_end
        """)
    a("s_branch L_loop\n L_loop_end:")
    stamp(2)
    xrow(a, [vL], [vT])
    a(f"""
    s_nop 7
    v_lshlrev_b32 v{vT}, 5, v{vN}                 ; c*32
    v_and_b32 v{vT+1}, 1, v{vG}
    v_lshl_add_u32 v{vT}, v{vT+1}, 4, v{vT}       ; + (g&1)*16
    s_lshl_b32 s28, s{sWAVE}, 9
    v_add_u32 v{vT}, s28, v{vT}
    ds_write_b128 v{vT}, v[{vO}:{vO+3}] offset:{L_MRG}
    s_lshl_b32 s28, s{sWAVE}, 3
    v_mov_b32 v{vT+2}, s28
    v_mov_b32 v{vT+4}, v{vM}
    v_mov_b32 v{vT+5}, v{vL}
    ds_write_b64 v{vT+2}, v[{vT+4}:{vT+5}] offset:{L_ML}
    """)

    def slice_idx():
        a(f"""
        s_mov_b32 s29, s{sSLICE}
        v_lshrrev_b32 v{vT}, 2, v{vLANE}
        v_mul_u32_u24 v{vT}, 9216, v{vT}
        v_and_b32 v{vT+1}, 3, v{vLANE}
        v_lshl_add_u32 v{vT}, v{vT+1}, 4, v{vT}
        v_lshlrev_b32 v{vT+1}, 4, v{vLANE}
        """)

    def dma_mat(which, sq):
        cnt = 9
        if which in "gu":
            ptr, lds0 = (pWG, L_WG) if which == "g" else (pWU, L_WU)
            srd(a, sT, ptr, 576 * 9216)
            a(f"""
            s_mul_i32 s28, s{sq}, {cnt*16*9216}
            s_lshl_b32 s30, s29, 6
            s_add_u32 s28, s28, s30
            s_mul_i32 s31, s{sq}, {cnt*1024}
            """)
            for i in range(cnt):
                a(f"s_add_u32 m0, s31, {lds0 + i*1024}\n s_nop 0")
                a(f"buffer_load_dwordx4 v{vT}, s[{sT}:{sT+3}], s28 offen {wflags} lds")
                a(f"s_add_u32 s28, s28, {16*9216}")
        else:
            srd(a, sT, pWD, 4608 * 1152)
            a(f"""
            s_mul_i32 s28, s29, {32*1152}
            s_mul_i32 s31, s{sq}, {cnt*1024}
            s_add_u32 s28, s28, s31
            """)
            for i in range(cnt):
                a(f"s_add_u32 m0, s31, {L_WD + i*1024}\n s_nop 0")
                a(f"buffer_load_dwordx4 v{vT+1}, s[{sT}:{sT+3}], s28 offen {wflags} lds")
                a(f"s_add_u32 s28, s28, 1024")

    def wo_dma(groups, sq, sg=None):
        a(f"""
        s_mov_b32 s29, s{sIDX}
        s_mul_i32 s30, s29, 21846
        s_lshr_b32 s30, s30, 16            ; h'
        s_mul_i32 s31, s30, 3
        s_sub_u32 s31, s29, s31            ; c
        """)
        srd(a, sT, pWO, 4096 * 1152)
        for q in range(3):
            a(f"""
            v_add_u32 v{vT+3}, {64*q}, v{vLANE}
            v_mul_u32_u24 v{vT+4}, 2731, v{vT+3}
            v_lshrrev_b32 v{vT+4}, 16, v{vT+4}          ; row = l0/24
            v_mul_u32_u24 v{vT+5}, 24, v{vT+4}
            v_sub_u32 v{vT+5}, v{vT+3}, v{vT+5}         ; piece
            v_mul_u32_u24 v{vT+4}, 1152, v{vT+4}
            v_lshl_add_u32 v{vT+q}, v{vT+5}, 4, v{vT+4}
            """)
        a(f"s_lshl_b32 s4, s{sq}, 2")
        if sg is not None:
            a(f"s_add_u32 s4, s4, s{sg}")
        a(f"""
        s_lshl_b32 s28, s30, 7
        s_lshl_b32 s29, s4, 3
        s_add_u32 s28, s28, s29
        s_mul_i32 s28, s28, 1152
        s_mul_i32 s31, s31, 384
        s_add_u32 s28, s28, s31
        s_mul_i32 s31, s4, {3*1024}
        """)
        for grp in groups:
            a(f"s_add_u32 s5, s28, {grp*8*1152}")
            for q in range(3):
                a(f"s_add_u32 m0, s31, {L_WG + (grp*3+q)*1024}\n s_nop 0")
                a(f"buffer_load_dwordx4 v{vT+q}, s[{sT}:{sT+3}], s5 offen {wflags} lds")

    def weights_early():
        lab_wo, lab_done = a.label("L_wwo"), a.label("L_wdone")
        a(f"s_cmp_lg_u32 s{sROLE}, 0\n s_cbranch_scc1 {lab_wo}")
        if early:
            slice_idx()
            for m in early:
                dma_mat(m, sWAVE)
        a(f"s_branch {lab_done}")
        a(f"{lab_wo}:")
        a(f"s_cmp_eq_u32 s{sROLE}, 2\n s_cbranch_scc1 {lab_done}")
        if wo_e > 0:
            wo_dma(list(range(wo_e)), sWAVE)
        a(f"{lab_done}:")

    def weights_late():
        late = [m for m in "gud" if m not in early]
        if not late:
            return
        slice_idx()
        sQ = 73
        a(f"s_and_b32 s{sQ}, s{sWAVE}, 3")
        lo, hi = late[:(len(late) + 1) // 2], late[(len(late) + 1) // 2:]
        lh, le = a.label("L_lateh"), a.label("L_latee")
        a(f"s_cmp_ge_u32 s{sWAVE}, 4\n s_cbranch_scc1 {lh}")
        for m in lo:
            dma_mat(m, sQ)
        a(f"s_branch {le}\n {lh}:")
        for m in hi:
            dma_mat(m, sQ)
        a(f"{le}:")
        a("s_waitcnt vmcnt(0)\n s_barrier")

    a(f"s_cmp_ge_u32 s{sWAVE}, 4\n s_cbranch_scc1 L_now")
    a(f"""
    s_cmp_ge_u32 s{sWAVE}, 2
    s_cbranch_scc1 L_noxr
    s_cmp_eq_u32 s{sROLE}, 0
    s_cbranch_scc1 L_noxr
    s_mul_i32 s28, s{sWAVE}, 112
    s_add_u32 s28, s28, s{sIDX}
    s_cmp_ge_u32 s28, 144
    s_cbranch_scc1 L_noxr
    """)
    srd(a, sT, pX, 4608)
    a(f"""
    v_and_b32 v{vT}, 3, v{vLANE}
    v_lshlrev_b32 v{vT+1}, 1, v{vT}
    s_lshl_b32 s28, s28, 3
    """)
    for b in range(4):
        a(f"buffer_load_ushort v{160+b}, v{vT+1}, s[{sT}:{sT+3}], s28 offen offset:{1152*b} nt")
    a("L_noxr:")
    if not no_w:
        weights_early()
    if tlbw:
        lab = a.label("L_notlb")
        a(f"s_cmp_lg_u32 s{sWAVE}, 3\n s_cbranch_scc1 {lab}")
        tw = vT + 8
        a(f"v_lshlrev_b32 v{tw}, {tlbw}, v{vLANE}\n v_add_u32 v{tw}, 0x{(1 << tlbw) - 128:x}, v{tw}")
        n_ws = max(1, WS_STAMP // (64 << tlbw) + 1)
        for i in range(n_ws):
            a(f"s_mov_b32 s28, {i * (64 << tlbw)}")
            a(f"buffer_load_dword v{tw+1}, v{tw}, s[{sWS}:{sWS+3}], s28 offen")
        for (ptr, nbytes) in ((pWG, 576*9216), (pWU, 576*9216), (pWD, 4608*1152), (pOUT, 4608), (pX, 4608)):
            srd(a, sT, ptr, nbytes)
            n = max(1, (nbytes + (64 << tlbw) - 1) // (64 << tlbw))
            if nbytes < 65536:
                a(f"v_mov_b32 v{tw+2}, 0")
                a(f"buffer_load_dword v{tw+1}, v{tw+2}, s[{sT}:{sT+3}], 0 offen")
            else:
                for i in range(n):
                    a(f"s_mov_b32 s28, {i * (64 << tlbw)}")
                    a(f"buffer_load_dword v{tw+1}, v{tw}, s[{sT}:{sT+3}], s28 offen nt")
        a(f"{lab}:")
    if codepf:
        code_prefetch(4, "L_tail0", "L_code_end", vT + 8)
    if dry:
        a(f"""
        s_waitcnt vmcnt(0) lgkmcnt(0)
        s_mov_b32 s{sDRY}, 1
        s_mov_b32 s{sWS+2}, 0
        s_mov_b32 s{sOUTN}, 0
        s_branch L_tail_dry
        L_dry_done:
        s_mov_b32 s{sDRY}, 0
        s_mov_b32 s{sWS+2}, {WS_SIZE}
        s_mov_b32 s{sOUTN}, 4608
        s_mov_b64 exec, -1
        """)
    a("L_now:")
    a("L_tail0:")
    a("s_waitcnt vmcnt(0) lgkmcnt(0)\n s_barrier")
    a("L_tail_dry:")
    dbg_max(1)
    mark_tail = len(a.L)
    stamp(3)

    MO = P
    MM = P + 32
    a(f"s_cmp_lg_u32 s{sWAVE}, 0\n s_cbranch_scc1 L_nomerge")
    a(f"""
    v_and_b32 v{vT}, 31, v{vLANE}
    v_lshlrev_b32 v{vT}, 4, v{vT}
    v_mov_b32 v{vT+1}, 0
    """)
    for i in range(4):
        a(f"ds_read_b128 v[{MM+4*i}:{MM+4*i+3}], v{vT+1} offset:{L_ML + 16*i}")
    for w in range(8):
        a(f"ds_read_b128 v[{MO+4*w}:{MO+4*w+3}], v{vT} offset:{L_MRG + 512*w}")
    a("s_waitcnt lgkmcnt(8)")
    ms = [MM + 2 * w for w in range(8)]
    mstar = vT + 2
    a(f"v_max3_f32 v{mstar}, v{ms[0]}, v{ms[1]}, v{ms[2]}")
    a(f"v_max3_f32 v{mstar}, v{mstar}, v{ms[3]}, v{ms[4]}")
    a(f"v_max3_f32 v{mstar}, v{mstar}, v{ms[5]}, v{ms[6]}")
    a(f"v_max_f32 v{mstar}, v{mstar}, v{ms[7]}")
    for w in range(8):
        a(f"v_sub_f32 v{ms[w]}, v{ms[w]}, v{mstar}")
    for w in range(8):
        a(f"v_mul_f32 v{ms[w]}, s{sL2E}, v{ms[w]}")
    for w in range(8):
        a(f"v_exp_f32 v{ms[w]}, v{ms[w]}")
    Lt = vT + 3
    a(f"s_nop 0\n v_mul_f32 v{Lt}, v{ms[0]}, v{ms[0]+1}")
    for w in range(1, 8):
        a(f"v_fmac_f32 v{Lt}, v{ms[w]}, v{ms[w]+1}")
    a("s_waitcnt lgkmcnt(0)")
    R = vT + 6
    assert R % 2 == 0
    for r in range(4):
        a(f"v_mul_f32 v{R+r}, v{ms[0]}, v{MO+r}")
    for w in range(1, 8):
        for r in range(4):
            a(f"v_fmac_f32 v{R+r}, v{ms[w]}, v{MO+4*w+r}")
    a(f"""
    v_cmp_eq_u32 vcc, 32, v{vLANE}
    v_mov_b32 v{vT+4}, 0
    s_nop 0
    v_cndmask_b32 v{R}, v{R}, v{mstar}, vcc
    v_cndmask_b32 v{R+1}, v{R+1}, v{Lt}, vcc
    v_cndmask_b32 v{R+2}, v{R+2}, v{vT+4}, vcc
    v_cndmask_b32 v{R+3}, v{R+3}, v{vT+4}, vcc
    """)
    addtag(a, range(R, R + 4))
    a(f"""
    v_lshlrev_b32 v{vT}, 4, v{vLANE}
    s_mul_i32 s28, s{sW}, 640
    s_add_u32 s28, s28, {WS_AP}
    v_cmp_gt_u32 vcc, 33, v{vLANE}
    s_and_saveexec_b64 s[30:31], vcc
    buffer_store_dwordx4 v[{R}:{R+3}], v{vT}, s[{sWS}:{sWS+3}], s28 offen sc1
    s_mov_b64 exec, s[30:31]
    L_nomerge:
    """)
    stamp(4)
    if stop == "attn":
        a("s_branch L_fin")

    a(f"s_cmp_eq_u32 s{sROLE}, 0\n s_cbranch_scc1 L_stageB")
    a(f"s_cmp_eq_u32 s{sROLE}, 2\n s_cbranch_scc1 L_reduce")
    if wo_e < 4 and not no_w:
        rest = list(range(wo_e, 4))
        a(f"s_cmp_eq_u32 s{sDRY}, 1\n s_cbranch_scc1 L_wo_nolate")
        a(f"s_and_b32 s73, s{sWAVE}, 3")
        lo_, hi_ = rest[:(len(rest) + 1) // 2], rest[(len(rest) + 1) // 2:]
        a(f"s_cmp_ge_u32 s{sWAVE}, 4\n s_cbranch_scc1 L_wo_hi")
        wo_dma(lo_, 73)
        a("s_branch L_wo_lw\n L_wo_hi:")
        if hi_:
            wo_dma(hi_, 73)
        a("L_wo_lw:\n s_waitcnt vmcnt(0)\n s_barrier\n L_wo_nolate:")
    a(f"""
    s_mov_b32 s29, s{sIDX}
    s_mul_i32 s{sH}, s29, 21846
    s_lshr_b32 s{sH}, s{sH}, 16         ; h'
    s_mul_i32 s31, s{sH}, 3
    s_sub_u32 s{sJ}, s29, s31           ; c
    """)
    WB = 64
    a(f"""
    v_lshrrev_b32 v{vT}, 2, v{vN}                    ; r
    v_lshl_add_u32 v{vT}, v{vG}, 3, v{vT}            ; 8g + r
    v_mul_u32_u24 v{vT}, 384, v{vT}
    v_and_b32 v{vT+1}, 3, v{vLANE}
    v_lshl_add_u32 v{vT}, v{vT+1}, 3, v{vT}          ; + cc*8
    s_lshl_b32 s28, s{sWAVE}, 5
    s_add_u32 s28, s28, {L_WG}
    v_add_u32 v{vT}, s28, v{vT}                      ; + T*32 + base
    """)
    for ks in range(4):
        a(f"ds_read_b64_tr_b16 v[{WB+4*ks}:{WB+4*ks+1}], v{vT} offset:{ks*32*384}")
        a(f"ds_read_b64_tr_b16 v[{WB+4*ks+2}:{WB+4*ks+3}], v{vT} offset:{ks*32*384 + 4*384}")
    a(f"s_cmp_ge_u32 s{sWAVE}, 4\n s_cbranch_scc1 L_wo_gather_skip")
    a("s_waitcnt lgkmcnt(0)")
    for ks in range(4):
        a(f"ds_read_b64_tr_b16 v[{WB+16+4*ks}:{WB+16+4*ks+1}], v{vT} offset:{ks*32*384 + 256}")
        a(f"ds_read_b64_tr_b16 v[{WB+16+4*ks+2}:{WB+16+4*ks+3}], v{vT} offset:{ks*32*384 + 4*384 + 256}")
    GA = P
    a(f"""
    v_lshrrev_b32 v{vT+1}, 5, v{vLANE}               ; s
    v_mul_u32_u24 v{vT+2}, {640*8 if xmap else 640}, v{vT+1}
    v_and_b32 v{vT+3}, 31, v{vLANE}                  ; c4
    v_lshl_add_u32 v{vT+4}, v{vT+3}, 4, v{vT+2}      ; s*stride + c4*16
    v_add_u32 v{vT+5}, 512, v{vT+2}                  ; s*stride + 512
    """)
    if xmap:
        a(f"""
        s_and_b32 s28, s{sH}, 7
        s_lshl_b32 s29, s{sWAVE}, 4
        s_add_u32 s28, s28, s29
        s_lshr_b32 s29, s{sH}, 3
        s_lshl_b32 s29, s29, 6
        s_add_u32 s28, s28, s29
        """)
    else:
        a(f"""
        s_lshl_b32 s28, s{sWAVE}, 6
        s_lshl_b32 s29, s{sH}, 1
        s_add_u32 s28, s28, s29
        """)
    a(f"""
    s_mul_i32 s28, s28, 640
    s_add_u32 s28, s28, {WS_AP}
    """)
    GAs = [96 + 8 * k for k in range(3)]
    def ap_issue(k):
        a(f"buffer_load_dwordx4 v[{GAs[k]}:{GAs[k]+3}], v{vT+4}, s[{sWS}:{sWS+3}], s28 offen sc1")
        a(f"buffer_load_dwordx2 v[{GAs[k]+4}:{GAs[k]+5}], v{vT+5}, s[{sWS}:{sWS+3}], s28 offen sc1")
    def ap_consume(k):
        for r in range(6):
            a(f"v_mov_b32 v{GA+r}, v{GAs[k]+r}")
    ppoll(a, "L_apoll", ns[0], 2, ap_issue, lambda k: list(range(GAs[k], GAs[k] + 6)), vT + 6, ap_consume, pollsleep, stg)
    tstamp(9)
    mm, ll = GA + 4, GA + 5
    a(f"""
    v_and_b32 v{mm}, s{sHI}, v{mm}
    v_mov_b32 v{vT+6}, v{mm}
    v_mov_b32 v{vT+7}, v{mm}
    s_nop 1
    v_permlane32_swap_b32 v{vT+6}, v{vT+7}
    s_nop 1
    v_max_f32 v{vT+6}, v{vT+6}, v{vT+7}             ; m*
    v_sub_f32 v{mm}, v{mm}, v{vT+6}
    v_mul_f32 v{mm}, s{sL2E}, v{mm}
    v_exp_f32 v{mm}, v{mm}                           ; a
    s_nop 0
    v_mul_f32 v{ll}, v{ll}, v{mm}
    v_mul_f32 v{GA}, v{GA}, v{mm}
    v_mul_f32 v{GA+1}, v{GA+1}, v{mm}
    v_mul_f32 v{GA+2}, v{GA+2}, v{mm}
    v_mul_f32 v{GA+3}, v{GA+3}, v{mm}
    """)
    xrow(a, [GA, GA+1, GA+2, GA+3, ll], [GA+8, GA+9, GA+10, GA+11, GA+12], only32=True)
    a(f"v_rcp_f32 v{vT+6}, v{ll}\n s_nop 0")
    for r in range(4):
        fdiv(a, GA + 8 + r, GA + r, vT + 6, ll, vT + 7)
    a(f"""
    v_cvt_pk_bf16_f32 v{GA+12}, v{GA+8}, v{GA+9}
    v_cvt_pk_bf16_f32 v{GA+13}, v{GA+10}, v{GA+11}
    v_lshlrev_b32 v{vT+3}, 3, v{vT+3}
    s_lshl_b32 s28, s{sWAVE}, 8
    v_add_u32 v{vT+3}, s28, v{vT+3}
    ds_write_b64 v{vT+3}, v[{GA+12}:{GA+13}] offset:{L_OB}
    L_wo_gather_skip:
    s_waitcnt lgkmcnt(0)
    s_barrier
    """)
    AOP = P + 16
    a(f"""
    v_and_b32 v{vT}, 3, v{vN}
    v_lshlrev_b32 v{vT}, 8, v{vT}
    v_lshl_add_u32 v{vT}, v{vG}, 4, v{vT}           ; (m&3)*256 + g*16
    """)
    for ks in range(4):
        a(f"ds_read_b128 v[{AOP+4*ks}:{AOP+4*ks+3}], v{vT} offset:{L_OB + 64*ks}")
    YD = P + 32
    a("s_waitcnt lgkmcnt(0)")
    for ks in range(4):
        c = "0" if ks == 0 else f"v[{YD}:{YD+3}]"
        a(f"v_mfma_f32_16x16x32_bf16 v[{YD}:{YD+3}], v[{AOP+4*ks}:{AOP+4*ks+3}], v[{WB+4*ks}:{WB+4*ks+3}], {c}")
    a(f"s_cmp_ge_u32 s{sWAVE}, 4\n s_cbranch_scc1 L_wo_one")
    for ks in range(4):
        c = "0" if ks == 0 else f"v[{YD+4}:{YD+7}]"
        a(f"v_mfma_f32_16x16x32_bf16 v[{YD+4}:{YD+7}], v[{AOP+4*ks}:{AOP+4*ks+3}], v[{WB+16+4*ks}:{WB+16+4*ks+3}], {c}")
    a("L_wo_one:")
    if cmajY:
        a(f"""
        s_mul_i32 s28, s{sJ}, 48
        s_lshl_b32 s29, s{sWAVE}, 2
        s_add_u32 s28, s28, s29
        s_lshl_b32 s28, s28, 11
        s_lshl_b32 s29, s{sH}, 6
        s_add_u32 s28, s28, s29
        s_add_u32 s28, s28, {WS_Y}
        s_add_u32 s30, s28, {32*2048}
        v_lshrrev_b32 v{vT}, 2, v{vN}
        v_lshlrev_b32 v{vT}, 11, v{vT}
        v_and_b32 v{vT+1}, 3, v{vN}
        v_lshl_add_u32 v{vT}, v{vT+1}, 4, v{vT}
        s_nop 6
        """)
    else:
        a(f"""
        s_mul_i32 s28, s{sH}, 9216
        s_mul_i32 s29, s{sJ}, {192*16}
        s_add_u32 s28, s28, s29
        s_lshl_b32 s29, s{sWAVE}, 8
        s_add_u32 s28, s28, s29
        s_add_u32 s28, s28, {WS_Y}
        s_add_u32 s30, s28, 2048
        v_lshlrev_b32 v{vT}, 4, v{vN}
        s_nop 7
        """)
    addtag(a, range(YD, YD + 4))
    a(f"""
    s_mov_b64 exec, 0xffff
    buffer_store_dwordx4 v[{YD}:{YD+3}], v{vT}, s[{sWS}:{sWS+3}], s28 offen sc1
    s_mov_b64 exec, -1
    s_cmp_ge_u32 s{sWAVE}, 4
    s_cbranch_scc1 L_reduce
    """)
    addtag(a, range(YD + 4, YD + 8))
    a(f"""
    s_mov_b64 exec, 0xffff
    buffer_store_dwordx4 v[{YD+4}:{YD+7}], v{vT}, s[{sWS}:{sWS+3}], s30 offen sc1
    s_mov_b64 exec, -1
    """)
    a("L_reduce:")
    tstamp(10)
    sTASK = 72
    a(f"""
    s_mov_b32 s{sTASK}, s{sIDX}
    s_mul_i32 s28, s{sWAVE}, 112
    s_add_u32 s{sTASK}, s{sTASK}, s28
    s_cmp_ge_u32 s{sTASK}, 144
    s_cbranch_scc1 L_fin
    s_cmp_ge_u32 s{sWAVE}, 2
    s_cbranch_scc1 L_fin
    """)
    XR = 160
    a(f"""
    v_and_b32 v{vT}, 3, v{vLANE}                     ; col
    v_lshlrev_b32 v{vT+1}, 1, v{vT}
    v_lshrrev_b32 v{vT+2}, 2, v{vLANE}               ; hh
    v_mul_u32_u24 v{vT+2}, 9216, v{vT+2}
    v_lshl_add_u32 v{vT+2}, v{vT}, 4, v{vT+2}
    v_lshlrev_b32 v{vT+5}, 4, v{vLANE}               ; lane*16
    """)
    vY = vT + 5 if cmajY else vT + 2
    vZ = vT + 5 if cmajZ else vT + 2
    if cmajY:
        a(f"s_lshl_b32 s28, s{sTASK}, 11\n s_add_u32 s28, s28, {WS_Y}\n s_add_u32 s29, s28, 1024")
    else:
        a(f"s_lshl_b32 s28, s{sTASK}, 6\n s_add_u32 s28, s28, {WS_Y}\n s_add_u32 s29, s28, {16*9216}")
    YG = P + 4
    YGs = [P + 60 + 8 * k for k in range(3)]
    def y_issue(k):
        a(f"buffer_load_dwordx4 v[{YGs[k]}:{YGs[k]+3}], v{vY}, s[{sWS}:{sWS+3}], s28 offen sc1")
        a(f"buffer_load_dwordx4 v[{YGs[k]+4}:{YGs[k]+7}], v{vY}, s[{sWS}:{sWS+3}], s29 offen sc1")
    def y_consume(k):
        for r in range(4):
            a(f"v_add_f32 v{YG+r}, v{YGs[k]+r}, v{YGs[k]+4+r}")
    ppoll(a, "L_ypoll", ns[1], 2, y_issue, lambda k: list(range(YGs[k], YGs[k] + 8)), vT + 3, y_consume, pollsleep, stg,
          probe=((lambda: a(f"buffer_load_dword v{YGs[0]}, v{vY}, s[{sWS}:{sWS+3}], s28 offen sc1")), YGs[0], "1") if probe[1] else None, presleep=presl[1])
    tstamp(11)
    if canB:
        a(f"""
        s_lshl_b32 s30, s{sTASK}, 7
        s_add_u32 s30, s30, {WS_CANB}
        v_mov_b32 v{vT+4}, 0
        s_mov_b64 exec, 1
        buffer_store_dword v{vTAG}, v{vT+4}, s[{sWS}:{sWS+3}], s30 offen sc1
        s_mov_b64 exec, -1
        """)
    hs = [YG, YG + 1, YG + 2, YG + 3]
    row16(a, hs, ctrls=("row_ror:4", "row_ror:8"))
    xrow(a, hs, [YG + 4, YG + 5, YG + 6, YG + 7])
    rbf(a, [(YG, YG+1), (YG+2, YG+3)], [YG+4, YG+5])
    for b in range(4):
        a(f"v_lshlrev_b32 v{XR+b}, 16, v{XR+b}")
        a(f"v_add_f32 v{YG+b}, v{YG+b}, v{XR+b}")
    rbf(a, [(YG, YG+1), (YG+2, YG+3)], [YG+4, YG+5])
    HK = P + 16
    for b in range(4):
        a(f"v_mov_b32 v{HK+b}, v{YG+b}")
    addtag(a, hs)
    a(f"""
    s_lshl_b32 s28, s{sTASK}, 6
    s_add_u32 s28, s28, {WS_HB}
    v_lshlrev_b32 v{vT+3}, 4, v{vT}
    s_mov_b64 exec, 0xf
    buffer_store_dwordx4 v[{YG}:{YG+3}], v{vT+3}, s[{sWS}:{sWS+3}], s28 offen sc1
    s_mov_b64 exec, -1
    """)
    stamp(7)
    ZG = P + 20
    ZGs = [64, 100, 136]
    sPZ = 73
    ZS = [4, 5, 6, 7, 62, 63, 66, 67, 71]
    if cmajZ:
        a(f"s_mul_i32 s28, s{sTASK}, 9216\n s_add_u32 s28, s28, {WS_Z}")
        a(f"s_lshl_b32 s{sPZ}, s{sTASK}, 6\n s_add_u32 s{sPZ}, s{sPZ}, s28")
        for i in range(9):
            a(f"s_add_u32 s{ZS[i]}, s28, {i*1024}")
    else:
        a(f"s_lshl_b32 s28, s{sTASK}, 6\n s_add_u32 s28, s28, {WS_Z}")
        if canC:
            a(f"s_lshl_b32 s{sPZ}, s{sTASK}, 7\n s_add_u32 s{sPZ}, s{sPZ}, {WS_CANC}")
        else:
            a(f"s_mul_i32 s{sPZ}, s{sTASK}, 9216\n s_add_u32 s{sPZ}, s{sPZ}, s28")
        for i in range(9):
            a(f"s_add_u32 s{ZS[i]}, s28, {i*16*9216}")
    def z_issue(k):
        for i in range(9):
            a(f"buffer_load_dwordx4 v[{ZGs[k]+4*i}:{ZGs[k]+4*i+3}], v{vZ}, s[{sWS}:{sWS+3}], s{ZS[i]} offen sc1")
    def z_consume(k):
        z = ZGs[k]
        for (x, y) in ((0, 1), (2, 3), (4, 5), (6, 7), (0, 2), (4, 6), (0, 4)):
            for r in range(0, 4, 2):
                a(f"v_pk_add_f32 v[{z+4*x+r}:{z+4*x+r+1}], v[{z+4*x+r}:{z+4*x+r+1}], v[{z+4*y+r}:{z+4*y+r+1}]")
        for r in range(0, 4, 2):
            a(f"v_pk_add_f32 v[{ZG+r}:{ZG+r+1}], v[{z+r}:{z+r+1}], v[{z+32+r}:{z+32+r+1}]")
    ppoll(a, "L_zpoll", ns[3], 9, z_issue, lambda k: list(range(ZGs[k], ZGs[k] + 36)), vT + 3, z_consume, pollsleep, stg,
          probe=((lambda: a(f"buffer_load_dword v{ZGs[0]}, v{vZ}, s[{sWS}:{sWS+3}], s{sPZ} offen sc1")), ZGs[0], "1") if probe[3] else None, presleep=presl[3])
    tstamp(12)
    zs = [ZG, ZG + 1, ZG + 2, ZG + 3]
    row16(a, zs, ctrls=("row_ror:4", "row_ror:8"))
    xrow(a, zs, [ZG + 4, ZG + 5, ZG + 6, ZG + 7])
    rbf(a, [(ZG, ZG+1), (ZG+2, ZG+3)], [ZG+4, ZG+5])
    for b in range(4):
        a(f"v_add_f32 v{ZG+b}, v{ZG+b}, v{HK+b}")
    a(f"v_cvt_pk_bf16_f32 v{ZG+4}, v{ZG}, v{ZG+1}")
    a(f"v_cvt_pk_bf16_f32 v{ZG+5}, v{ZG+2}, v{ZG+3}")
    srd(a, sT, pOUT, f"s{sOUTN}")
    a(f"""
    s_lshl_b32 s28, s{sTASK}, 3
    s_mov_b64 exec, 0xf
    buffer_store_short v{ZG+4}, v{vT+1}, s[{sT}:{sT+3}], s28 offen {outfl}
    buffer_store_short_d16_hi v{ZG+4}, v{vT+1}, s[{sT}:{sT+3}], s28 offen offset:1152 {outfl}
    buffer_store_short v{ZG+5}, v{vT+1}, s[{sT}:{sT+3}], s28 offen offset:2304 {outfl}
    buffer_store_short_d16_hi v{ZG+5}, v{vT+1}, s[{sT}:{sT+3}], s28 offen offset:3456 {outfl}
    s_mov_b64 exec, -1
    s_cmp_lg_u32 s{sTASK}, 0
    s_cbranch_scc1 L_fin
    v_mov_b32 v{ZG+6}, s{sE}
    v_mov_b32 v{ZG+7}, 0
    s_mov_b64 exec, 1
    buffer_store_dword v{ZG+6}, v{ZG+7}, s[{sWS}:{sWS+3}], 0 offen sc1
    s_mov_b64 exec, -1
    s_branch L_fin
    """)

    a("L_stageB:")
    if gate == 'pair' or isinstance(gate, int) and not isinstance(gate, bool) and gate > 0:
        ns_ = 0 if gate == 'pair' else gate
        a(f"s_cmp_lg_u32 s{sWAVE}, 1\n s_cbranch_scc1 L_gate_done")
        a(f"""
        s_andn2_b32 s29, s{sW}, {16 if rmap else 8}
        v_mul_u32_u24 v{vT}, 37, v{vLANE}
        v_add_u32 v{vT}, s29, v{vT}
        v_and_b32 v{vT}, 255, v{vT}
        s_xor_b32 s28, s{sW}, {16 if rmap else 8}
        v_mov_b32 v{vT+1}, s28
        v_cmp_eq_u32 vcc, {ns_}, v{vLANE}
        s_mov_b32 s28, {WS_AP + 512}
        s_nop 0
        v_cndmask_b32 v{vT}, v{vT}, v{vT+1}, vcc
        v_mul_u32_u24 v{vT}, 640, v{vT}
        s_cmp_eq_u32 s{sDRY}, 1
        s_cbranch_scc1 L_gate_done
        s_mov_b64 exec, {hex((1 << (ns_ + 1)) - 1)}
        """)
        poll_head(a, "L_gpoll")
        if gsleep:
            a(f"s_sleep {gsleep}")
        a(f"buffer_load_dword v{vT+2}, v{vT}, s[{sWS}:{sWS+3}], s28 offen sc1")
        a("s_waitcnt vmcnt(0)")
        tagcheck(a, [vT+2], vT + 6, "L_gpoll")
        a("s_mov_b64 exec, -1")
        a("L_gate_done:\n s_barrier")
    elif gate:
        a(f"s_cmp_lg_u32 s{sWAVE}, 1\n s_cbranch_scc1 L_gate_done")
        a(f"""
        v_mul_u32_u24 v{vT}, 640, v{vLANE}
        s_mov_b32 s28, {WS_AP + 512}
        s_mov_b32 s29, {WS_AP + 512 + 64*640}
        s_mov_b32 s30, {WS_AP + 512 + 128*640}
        s_mov_b32 s31, {WS_AP + 512 + 192*640}
        """)
        poll_head(a, "L_gpoll")
        for i in range(4):
            a(f"buffer_load_dword v{vT+2+i}, v{vT}, s[{sWS}:{sWS+3}], s{28+i} offen sc1")
        a("s_waitcnt vmcnt(0)")
        tagcheck(a, [vT+2, vT+3, vT+4, vT+5], vT + 6, "L_gpoll")
        a("L_gate_done:\n s_barrier")
    a(f"""
    s_cmp_lg_u32 s{sWAVE}, 7
    s_cbranch_scc1 L_noones
    v_mov_b32 v{P}, 0x3f803f80
    v_mov_b32 v{P+1}, 0x3f803f80
    v_mov_b32 v{P+2}, 0x3f803f80
    v_mov_b32 v{P+3}, 0x3f803f80
    v_lshlrev_b32 v{vT}, 4, v{vLANE}
    ds_write_b128 v{vT}, v[{P}:{P+3}] offset:{L_HB + 4*1152}
    s_mov_b64 exec, 0xff
    ds_write_b128 v{vT}, v[{P}:{P+3}] offset:{L_HB + 4*1152 + 1024}
    s_mov_b64 exec, -1
    L_noones:
    """)
    BB = 64
    WDd = 100
    AB = P
    aH, aA, aG, aR, aF1, aF2, aF3, aW = (vT + 4 + i for i in range(8))
    aP = vT + 12
    aBB, aWD = vT + 14, vT + 15
    if bdec:
        late = [m for m in "gud" if m not in early]
        if not no_w and late:
            a(f"s_cmp_lt_u32 s{sWAVE}, 4\n s_cbranch_scc1 L_b_noload")
            a(f"s_cmp_eq_u32 s{sDRY}, 1\n s_cbranch_scc1 L_b_noload")
            slice_idx()
            a(f"s_and_b32 s73, s{sWAVE}, 3")
            for m in late:
                if wd_after and m == "d":
                    continue
                dma_mat(m, 73)
            a("L_b_noload:")
        a(f"""
        v_lshrrev_b32 v{vT}, 2, v{vN}
        v_lshl_add_u32 v{vT}, v{vG}, 3, v{vT}            ; 8g + r
        v_and_b32 v{vT+1}, 3, v{vLANE}                   ; cc
        v_lshlrev_b32 v{aBB}, 6, v{vT}
        v_lshl_add_u32 v{aBB}, v{vT+1}, 3, v{aBB}        ; (8g+r)*64 + cc*8
        s_and_b32 s28, s{sWAVE}, 1
        s_lshl_b32 s28, s28, 5                           ; t*32
        s_bfe_u32 s29, s{sWAVE}, 0x10001
        s_mul_i32 s29, s29, {L_WU - L_WG}
        s_add_u32 s28, s28, s29
        s_add_u32 s28, s28, {L_WG}
        s_lshr_b32 s29, s{sWAVE}, 2
        s_mul_i32 s29, s29, {9*2048}
        s_add_u32 s28, s28, s29
        v_add_u32 v{aBB}, s28, v{aBB}
        v_mul_u32_u24 v{aWD}, 1152, v{vT}
        v_lshl_add_u32 v{aWD}, v{vT+1}, 3, v{aWD}
        s_lshl_b32 s28, s{sWAVE}, 5
        s_add_u32 s28, s28, {L_WD}
        v_add_u32 v{aWD}, s28, v{aWD}
        s_lshl_b32 s28, s{sWAVE}, 8
        v_lshlrev_b32 v{aH}, 1, v{vLANE}
        v_add_u32 v{aH}, s28, v{aH}
        v_and_b32 v{aA}, 3, v{vN}
        v_cmp_eq_u32 vcc, 4, v{vN}
        v_mov_b32 v{aG}, 4
        s_lshr_b32 s28, s{sWAVE}, 2
        v_cndmask_b32 v{aA}, v{aA}, v{aG}, vcc           ; row(m)
        v_mul_u32_u24 v{aA}, 1152, v{aA}
        s_mul_i32 s28, s28, {9*64}
        v_lshl_add_u32 v{aA}, v{vG}, 4, v{aA}
        v_add_u32 v{aA}, s28, v{aA}
        s_lshl_b32 s28, s{sWAVE}, 10
        v_lshlrev_b32 v{aG}, 4, v{vLANE}
        v_add_u32 v{aG}, s28, v{aG}
        s_lshl_b32 s28, s{sWAVE}, 8
        v_lshlrev_b32 v{aR}, 4, v{vN}
        v_add_u32 v{aR}, s28, v{aR}                      ; wave*256 + n*16
        v_lshrrev_b32 v{aW}, 2, v{vLANE}                 ; f'
        v_and_b32 v{aF3}, 3, v{vLANE}                    ; b
        s_lshl_b32 s28, s{sWAVE}, 10
        v_lshlrev_b32 v{aF2}, 4, v{aW}
        v_add_u32 v{aF2}, s28, v{aF2}                    ; tile*1024 + f'*16
        v_lshl_add_u32 v{aF1}, v{aF3}, 2, v{aF2}         ; + b*4
        s_lshl_b32 s28, s{sWAVE}, 5
        v_lshlrev_b32 v{aW}, 1, v{aW}
        v_add_u32 v{aW}, s28, v{aW}                      ; (tile*16 + f')*2
        v_lshl_add_u32 v{aW}, v{aF3}, 6, v{aW}           ; + b*64
        v_lshlrev_b32 v{vT}, 4, v{aF3}                   ; b*16
        v_mov_b32 v{vT+1}, 64
        v_and_b32 v{vT+2}, 4, v{vLANE}
        v_cmp_ne_u32 vcc, 0, v{vT+2}
        v_lshrrev_b32 v{vT+2}, 3, v{vLANE}
        v_lshlrev_b32 v{vT+2}, 8, v{vT+2}                ; (l>>3)*256
        v_cndmask_b32 v{vT}, v{vT}, v{vT+1}, vcc
        v_lshl_add_u32 v{aF3}, v{aF3}, 2, v{vT}
        v_add_u32 v{aF3}, v{aF3}, v{vT+2}
        s_mov_b32 s64, 0xf0f0f0f0
        s_mov_b32 s65, 0xf0f0f0f0
        v_lshlrev_b32 v{aP}, 4, v{vLANE}
        """)
        def bb_reads():
            for ks in range(9):
                a(f"ds_read_b64_tr_b16 v[{BB+4*ks}:{BB+4*ks+1}], v{aBB} offset:{ks*2048}")
                a(f"ds_read_b64_tr_b16 v[{BB+4*ks+2}:{BB+4*ks+3}], v{aBB} offset:{ks*2048+256}")
                if ks == 5:
                    a("s_waitcnt lgkmcnt(0)")
        pre_gate = "g" in early
        if pre_gate:
            a(f"s_bitcmp1_b32 s{sWAVE}, 1\n s_cbranch_scc1 L_b_nopre")
            bb_reads()
            a("L_b_nopre:")
        a(f"s_cmp_ge_u32 s{sWAVE}, 4\n s_cbranch_scc1 L_b_loadwait")
        HGs = [P + 48, P + 60, P + 72]
        a(f"""
        s_lshl_b32 s28, s{sWAVE}, 11
        s_add_u32 s28, s28, {WS_HB}
        s_add_u32 s29, s28, 1024
        s_mov_b32 s31, {WS_HB + 8192}
        """)
        for k in range(ns[2]):
            for r in range(4):
                a(f"v_mov_b32 v{HGs[k]+8+r}, v{vTAG}")
        def h_issue(k, third):
            a(f"buffer_load_dwordx4 v[{HGs[k]}:{HGs[k]+3}], v{aP}, s[{sWS}:{sWS+3}], s28 offen sc1")
            a(f"buffer_load_dwordx4 v[{HGs[k]+4}:{HGs[k]+7}], v{aP}, s[{sWS}:{sWS+3}], s29 offen sc1")
            if third:
                a(f"buffer_load_dwordx4 v[{HGs[k]+8}:{HGs[k]+11}], v{aP}, s[{sWS}:{sWS+3}], s31 offen sc1")
        def h_consume(k, third):
            for b in range(4):
                a(f"ds_write_b16_d16_hi v{aH}, v{HGs[k]+b} offset:{L_HB + 1152*b}")
                a(f"ds_write_b16_d16_hi v{aH}, v{HGs[k]+4+b} offset:{L_HB + 1152*b + 128}")
            if third:
                for b in range(4):
                    a(f"ds_write_b16_d16_hi v{aH}, v{HGs[k]+8+b} offset:{L_HB + 1152*b + 1024}")
        hp = ((lambda: a(f"buffer_load_dword v{HGs[0]}, v{aP}, s[{sWS}:{sWS+3}], s28 offen sc1")), HGs[0], "1") if probe[2] else None
        a(f"s_cmp_lg_u32 s{sWAVE}, 0\n s_cbranch_scc1 L_h1")
        ppoll(a, "L_hpoll2", ns[2], 3, lambda k: h_issue(k, True), lambda k: list(range(HGs[k], HGs[k] + 12)), vT + 13,
              lambda k: h_consume(k, True), pollsleep, stg, probe=hp, presleep=presl[2])
        a("s_branch L_h2\n L_h1:")
        ppoll(a, "L_hpoll1", ns[2], 2, lambda k: h_issue(k, False), lambda k: list(range(HGs[k], HGs[k] + 8)), vT + 13,
              lambda k: h_consume(k, False), pollsleep, stg, probe=hp, presleep=presl[2])
        a("s_branch L_h2")
        a("L_b_loadwait:\n s_waitcnt vmcnt(0)")
        if wd_after and "d" in late and not no_w:
            a(f"s_cmp_eq_u32 s{sDRY}, 1\n s_cbranch_scc1 L_b_nod")
            slice_idx()
            a(f"s_and_b32 s73, s{sWAVE}, 3")
            dma_mat("d", 73)
            a("L_b_nod:")
        stamp(15)
        a("L_h2:")
        stamp(5)
        a("s_waitcnt lgkmcnt(0)\n s_barrier")
        GD = P + 40
        def mm(ks):
            c = "0" if ks == 0 else f"v[{GD}:{GD+3}]"
            a(f"v_mfma_f32_16x16x32_bf16 v[{GD}:{GD+3}], v[{AB+4*ks}:{AB+4*ks+3}], v[{BB+4*ks}:{BB+4*ks+3}], {c}")
        def a_read(ks):
            a(f"ds_read_b128 v[{AB+4*ks}:{AB+4*ks+3}], v{aA} offset:{L_HB + 64*ks}")
        if pre_gate:
            a(f"s_bitcmp1_b32 s{sWAVE}, 1\n s_cbranch_scc1 L_b_full")
            for ks in range(9):
                a_read(ks)
            for ks in range(9):
                a(f"s_waitcnt lgkmcnt({8-ks})")
                mm(ks)
            a("s_branch L_b_mmdone\n L_b_full:")
        def trip(ks):
            a(f"ds_read_b64_tr_b16 v[{BB+4*ks}:{BB+4*ks+1}], v{aBB} offset:{ks*2048}")
            a(f"ds_read_b64_tr_b16 v[{BB+4*ks+2}:{BB+4*ks+3}], v{aBB} offset:{ks*2048+256}")
            a_read(ks)
        for ks in range(4):
            trip(ks)
        for ks in range(9):
            a(f"s_waitcnt lgkmcnt({3 * (min(ks + 3, 8) - ks)})")
            mm(ks)
            if ks + 4 <= 8:
                trip(ks + 4)
        a("L_b_mmdone:")
        for i in range(5 if not wd_after else 0):
            if i == 4:
                a(f"s_cmp_ge_u32 s{sWAVE}, 4\n s_cbranch_scc1 L_no5th")
            a(f"ds_read_b64_tr_b16 v[{WDd+4*i}:{WDd+4*i+1}], v{aWD} offset:{i*256}")
            a(f"ds_read_b64_tr_b16 v[{WDd+4*i+2}:{WDd+4*i+3}], v{aWD} offset:{i*256 + 4*1152}")
        if not wd_after:
            a("L_no5th:")
    else:
        if not no_w:
            a(f"s_cmp_eq_u32 s{sDRY}, 1\n s_cbranch_scc1 L_skip_late")
            weights_late()
            a("L_skip_late:")
        stamp(15)
        BB = 64
        WDd = 100
        a(f"""
        v_lshrrev_b32 v{vT}, 2, v{vN}
        v_lshl_add_u32 v{vT}, v{vG}, 3, v{vT}            ; 8g + r
        v_and_b32 v{vT+1}, 3, v{vLANE}                   ; cc
        v_lshlrev_b32 v{vT+2}, 6, v{vT}
        v_lshl_add_u32 v{vT+2}, v{vT+1}, 3, v{vT+2}      ; (8g+r)*64 + cc*8
        s_and_b32 s28, s{sWAVE}, 1
        s_lshl_b32 s28, s28, 5                           ; t*32
        s_bfe_u32 s29, s{sWAVE}, 0x10001
        s_mul_i32 s29, s29, {L_WU - L_WG}
        s_add_u32 s28, s28, s29
        s_add_u32 s28, s28, {L_WG}
        s_lshr_b32 s29, s{sWAVE}, 2
        s_mul_i32 s29, s29, {9*2048}
        s_add_u32 s28, s28, s29
        v_add_u32 v{vT+2}, s28, v{vT+2}
        """)
        for ks in range(9):
            a(f"ds_read_b64_tr_b16 v[{BB+4*ks}:{BB+4*ks+1}], v{vT+2} offset:{ks*2048}")
            a(f"ds_read_b64_tr_b16 v[{BB+4*ks+2}:{BB+4*ks+3}], v{vT+2} offset:{ks*2048+256}")
            if ks == 5:
                a("s_waitcnt lgkmcnt(0)")
        a(f"""
        v_mul_u32_u24 v{vT+3}, 1152, v{vT}
        v_lshl_add_u32 v{vT+3}, v{vT+1}, 3, v{vT+3}
        s_lshl_b32 s28, s{sWAVE}, 5
        s_add_u32 s28, s28, {L_WD}
        v_add_u32 v{vT+3}, s28, v{vT+3}
        s_waitcnt lgkmcnt(0)
        """)
        for i in range(5):
            if i == 4:
                a(f"s_cmp_ge_u32 s{sWAVE}, 4\n s_cbranch_scc1 L_no5th")
            a(f"ds_read_b64_tr_b16 v[{WDd+4*i}:{WDd+4*i+1}], v{vT+3} offset:{i*256}")
            a(f"ds_read_b64_tr_b16 v[{WDd+4*i+2}:{WDd+4*i+3}], v{vT+3} offset:{i*256 + 4*1152}")
        a("L_no5th:")
        aH, aA, aG, aR, aF1, aF2, aF3, aW = (vT + 4 + i for i in range(8))
        aP = vT + 12
        a(f"""
        s_lshl_b32 s28, s{sWAVE}, 7
        v_lshlrev_b32 v{aH}, 1, v{vLANE}
        v_add_u32 v{aH}, s28, v{aH}
        v_and_b32 v{aA}, 3, v{vN}
        v_cmp_eq_u32 vcc, 4, v{vN}
        v_mov_b32 v{aG}, 4
        s_lshr_b32 s28, s{sWAVE}, 2
        v_cndmask_b32 v{aA}, v{aA}, v{aG}, vcc           ; row(m)
        v_mul_u32_u24 v{aA}, 1152, v{aA}
        s_mul_i32 s28, s28, {9*64}
        v_lshl_add_u32 v{aA}, v{vG}, 4, v{aA}
        v_add_u32 v{aA}, s28, v{aA}
        s_lshl_b32 s28, s{sWAVE}, 10
        v_lshlrev_b32 v{aG}, 4, v{vLANE}
        v_add_u32 v{aG}, s28, v{aG}
        s_lshl_b32 s28, s{sWAVE}, 8
        v_lshlrev_b32 v{aR}, 4, v{vN}
        v_add_u32 v{aR}, s28, v{aR}                      ; wave*256 + n*16
        v_lshrrev_b32 v{aW}, 2, v{vLANE}                 ; f'
        v_and_b32 v{aF3}, 3, v{vLANE}                    ; b
        s_lshl_b32 s28, s{sWAVE}, 10
        v_lshlrev_b32 v{aF2}, 4, v{aW}
        v_add_u32 v{aF2}, s28, v{aF2}                    ; tile*1024 + f'*16
        v_lshl_add_u32 v{aF1}, v{aF3}, 2, v{aF2}         ; + b*4
        s_lshl_b32 s28, s{sWAVE}, 5
        v_lshlrev_b32 v{aW}, 1, v{aW}
        v_add_u32 v{aW}, s28, v{aW}                      ; (tile*16 + f')*2
        v_lshl_add_u32 v{aW}, v{aF3}, 6, v{aW}           ; + b*64
        v_lshlrev_b32 v{vT}, 4, v{aF3}                   ; b*16
        v_mov_b32 v{vT+1}, 64
        v_and_b32 v{vT+2}, 4, v{vLANE}
        v_cmp_ne_u32 vcc, 0, v{vT+2}
        v_lshrrev_b32 v{vT+2}, 3, v{vLANE}
        v_lshlrev_b32 v{vT+2}, 8, v{vT+2}                ; (l>>3)*256
        v_cndmask_b32 v{vT}, v{vT}, v{vT+1}, vcc
        v_lshl_add_u32 v{aF3}, v{aF3}, 2, v{vT}
        v_add_u32 v{aF3}, v{aF3}, v{vT+2}
        s_mov_b32 s64, 0xf0f0f0f0
        s_mov_b32 s65, 0xf0f0f0f0
        v_lshlrev_b32 v{aP}, 4, v{vLANE}
        s_lshl_b32 s28, s{sWAVE}, 10
        s_add_u32 s28, s28, {WS_HB}
        s_mov_b32 s29, {WS_HB + 8192}
        s_lshl_b32 s30, s{sWAVE}, 11
        s_add_u32 s30, s30, {WS_CANB + 8*128}
        """)
        HGs = [P + 48 + 8 * k for k in range(3)]
        for k in range(3):
            for r in range(4):
                a(f"v_mov_b32 v{HGs[k]+4+r}, v{vTAG}")
        def h_issue2(k):
            a(f"buffer_load_dwordx4 v[{HGs[k]}:{HGs[k]+3}], v{aP}, s[{sWS}:{sWS+3}], s28 offen sc1")
            a(f"buffer_load_dwordx4 v[{HGs[k]+4}:{HGs[k]+7}], v{aP}, s[{sWS}:{sWS+3}], s29 offen sc1")
        def h_issue1(k):
            a(f"buffer_load_dwordx4 v[{HGs[k]}:{HGs[k]+3}], v{aP}, s[{sWS}:{sWS+3}], s28 offen sc1")
        def h_consume2(k):
            for b in range(4):
                a(f"ds_write_b16_d16_hi v{aH}, v{HGs[k]+b} offset:{L_HB + 1152*b}")
            for b in range(4):
                a(f"ds_write_b16_d16_hi v{aH}, v{HGs[k]+4+b} offset:{L_HB + 1152*b + 1024}")
        def h_consume1(k):
            for b in range(4):
                a(f"ds_write_b16_d16_hi v{aH}, v{HGs[k]+b} offset:{L_HB + 1152*b}")
        a(f"s_cmp_lg_u32 s{sWAVE}, 0\n s_cbranch_scc1 L_h1")
        ppoll(a, "L_hpoll2", ns[2], 2, h_issue2, lambda k: list(range(HGs[k], HGs[k] + 8)), vT + 13, h_consume2, pollsleep, stg,
              probe=((lambda: a(f"buffer_load_dword v{HGs[0]}, v{aP}, s[{sWS}:{sWS+3}], s{30 if canB else 28} offen sc1")), HGs[0], "1") if probe[2] else None, presleep=presl[2])
        a("s_branch L_h2\n L_h1:")
        ppoll(a, "L_hpoll1", ns[2], 1, h_issue1, lambda k: list(range(HGs[k], HGs[k] + 4)), vT + 13, h_consume1, pollsleep, stg,
              probe=((lambda: a(f"buffer_load_dword v{HGs[0]}, v{aP}, s[{sWS}:{sWS+3}], s{30 if canB else 28} offen sc1")), HGs[0], "1") if probe[2] else None, presleep=presl[2])
        a("L_h2:")
        stamp(5)
        a("s_waitcnt lgkmcnt(0)\n s_barrier")
        AB = P
        for ks in range(9):
            a(f"ds_read_b128 v[{AB+4*ks}:{AB+4*ks+3}], v{aA} offset:{L_HB + 64*ks}")
    GD = P + 40
    GRm = P + 44
    for ks in range(9 if not bdec else 0):
        a(f"s_waitcnt lgkmcnt({8-ks})")
        c = "0" if ks == 0 else f"v[{GD}:{GD+3}]"
        a(f"v_mfma_f32_16x16x32_bf16 v[{GD}:{GD+3}], v[{AB+4*ks}:{AB+4*ks+3}], v[{BB+4*ks}:{BB+4*ks+3}], {c}")
    a(f"s_and_b32 s28, s{sWAVE}, 3")
    lg = [a.label("L_gr") for _ in range(4)]; lge = a.label("L_gre")
    for t in range(1, 4):
        a(f"s_cmp_eq_u32 s28, {t}\n s_cbranch_scc1 {lg[t]}")
    for t in range(4):
        a(f"{lg[t]}:")
        kss = [t, t + 4] + ([8] if t == 0 else [])
        for i, ks in enumerate(kss):
            c = "0" if i == 0 else f"v[{GRm}:{GRm+3}]"
            a(f"v_mfma_f32_16x16x32_bf16 v[{GRm}:{GRm+3}], v[{AB+4*ks}:{AB+4*ks+3}], v[{AB+4*ks}:{AB+4*ks+3}], {c}")
        if t != 3:
            a(f"s_branch {lge}")
    a(f"""
    {lge}:
    s_nop 2
    ds_write_b128 v{aG}, v[{GD}:{GD+3}] offset:{L_GUF}
    s_nop 6
    s_mov_b64 exec, 0xffff
    ds_write_b128 v{aR}, v[{GRm}:{GRm+3}] offset:{L_GR}
    s_mov_b64 exec, -1
    s_waitcnt {"vmcnt(0) " if (bdec and wd_after) else ""}lgkmcnt(0)
    s_barrier
    """)
    def wd_reads(tag):
        for i in range(5):
            if i == 4:
                a(f"s_cmp_ge_u32 s{sWAVE}, 4\n s_cbranch_scc1 L_no5th{tag}")
            a(f"ds_read_b64_tr_b16 v[{WDd+4*i}:{WDd+4*i+1}], v{aWD} offset:{i*256}")
            a(f"ds_read_b64_tr_b16 v[{WDd+4*i+2}:{WDd+4*i+3}], v{aWD} offset:{i*256 + 4*1152}")
        a(f"L_no5th{tag}:")
    if bdec and wd_after:
        a(f"s_cmp_lt_u32 s{sWAVE}, 2\n s_cbranch_scc1 L_wd_later")
        wd_reads("a")
        a("L_wd_later:")
    stamp(6)
    def canc_store():
        lab = a.label("L_nocan")
        a(f"""
        s_cmp_lg_u32 s{sWAVE}, 7
        s_cbranch_scc1 {lab}
        s_lshl_b32 s30, s{sIDX}, 7
        s_add_u32 s30, s30, {WS_CANC}
        v_mov_b32 v{vT+14}, 0
        s_mov_b64 exec, 1
        buffer_store_dword v{vTAG}, v{vT+14}, s[{sWS}:{sWS+3}], s30 offen sc1
        s_mov_b64 exec, -1
        {lab}:
        """)
    if canC == 2:
        canc_store()
    a(f"s_cmp_ge_u32 s{sWAVE}, 2\n s_cbranch_scc1 L_nogelu")
    GE = P
    a(f"""
    ds_read_b32 v{GE+8}, v{aF3} offset:{L_GR}
    ds_read_b32 v{GE}, v{aF1} offset:{L_GUF}
    ds_read_b32 v{GE+1}, v{aF1} offset:{L_GUF+4096}
    ds_read_b32 v{GE+2}, v{aF1} offset:{L_GUF+2048}
    ds_read_b32 v{GE+3}, v{aF1} offset:{L_GUF+2048+4096}
    ds_read_b32 v{GE+4}, v{aF2} offset:{L_GUF+256}
    ds_read_b32 v{GE+5}, v{aF2} offset:{L_GUF+256+4096}
    ds_read_b32 v{GE+6}, v{aF2} offset:{L_GUF+256+2048}
    ds_read_b32 v{GE+7}, v{aF2} offset:{L_GUF+256+2048+4096}
    s_waitcnt lgkmcnt(8)
    """)
    X_, Y_, T_ = GE + 8, GE + 9, GE + 10
    a(f"""
    s_nop 1
    v_add_f32_dpp v{X_}, v{X_}, v{X_} row_ror:8 row_mask:0xf bank_mask:0xf
    """)
    xrow(a, [X_], [T_])
    a(f"""
    s_nop 1
    v_mov_b32_dpp v{Y_}, v{X_} row_ror:4 row_mask:0xf bank_mask:0xf
    s_nop 0
    v_cndmask_b32 v{T_}, v{Y_}, v{X_}, s[64:65]      ; sum
    v_cndmask_b32 v{Y_}, v{X_}, v{Y_}, s[64:65]      ; sumsq
    v_mul_f32 v{T_}, {INV576}, v{T_}                 ; mu
    v_mul_f32 v{Y_}, {INV576}, v{Y_}
    v_fma_f32 v{Y_}, -v{T_}, v{T_}, v{Y_}            ; var
    """)
    rbf(a, [(T_, Y_)], [X_])
    a(f"v_add_f32 v{Y_}, {EPS}, v{Y_}")
    rbf(a, [(Y_, Y_)], [X_])
    a(f"v_sqrt_f32 v{Y_}, v{Y_}\n s_nop 0")
    rbf(a, [(Y_, Y_)], [X_])
    a(f"""
    v_rcp_f32 v{X_}, v{Y_}
    s_waitcnt lgkmcnt(0)
    """)
    if bdec and wd_after:
        wd_reads("b")
    a(f"""
    v_add_f32 v{GE}, v{GE}, v{GE+1}
    v_add_f32 v{GE+2}, v{GE+2}, v{GE+3}
    v_add_f32 v{GE+4}, v{GE+4}, v{GE+5}
    v_add_f32 v{GE+6}, v{GE+6}, v{GE+7}
    v_fma_f32 v{GE}, -v{T_}, v{GE+4}, v{GE}
    v_fma_f32 v{GE+2}, -v{T_}, v{GE+6}, v{GE+2}
    """)
    fdiv(a, GE + 1, GE, X_, Y_, GE + 4)
    fdiv(a, GE + 3, GE + 2, X_, Y_, GE + 5)
    rbf(a, [(GE + 1, GE + 3)], [GE + 4])
    C1, C2 = 0x3d372713, 0x3f4c422a
    TWO_L2E = 0x4038aa3b
    g, t = GE + 1, GE + 4
    a(f"""
    v_mul_f32 v{t}, v{g}, v{g}
    v_mul_f32 v{t}, v{t}, v{g}
    v_mov_b32 v{t+1}, {C1}
    v_fma_f32 v{t}, v{t}, v{t+1}, v{g}
    v_mul_f32 v{t}, {C2}, v{t}
    v_mul_f32 v{t}, {TWO_L2E}, v{t}
    v_exp_f32 v{t}, v{t}
    v_mul_f32 v{t+2}, 0.5, v{g}
    v_add_f32 v{t}, 1.0, v{t}
    v_rcp_f32 v{t}, v{t}
    s_nop 0
    v_fma_f32 v{t}, -2.0, v{t}, 1.0
    v_add_f32 v{t}, 1.0, v{t}
    v_mul_f32 v{g}, v{t+2}, v{t}
    """)
    rbf(a, [(g, g)], [t])
    a(f"""
    v_mul_f32 v{g}, v{g}, v{GE+3}
    v_cvt_pk_bf16_f32 v{t}, v{g}, v{g}
    ds_write_b16 v{aW}, v{t} offset:{L_HF}
    s_waitcnt lgkmcnt(0)
    L_nogelu:
    s_barrier
    """)
    tstamp(14)
    if canC == 1:
        canc_store()
    a(f"""
    v_and_b32 v{vT+5}, 3, v{vN}
    v_lshlrev_b32 v{vT+5}, 6, v{vT+5}
    v_lshl_add_u32 v{vT+5}, v{vG}, 4, v{vT+5}
    ds_read_b128 v[{P}:{P+3}], v{vT+5} offset:{L_HF}
    """)
    if cmajZ:
        a(f"""
        s_lshl_b32 s28, s{sIDX}, 6
        s_add_u32 s28, s28, {WS_Z}
        s_mul_i32 s29, s{sWAVE}, {4*9216}
        s_add_u32 s28, s28, s29
        v_lshrrev_b32 v{vT+6}, 2, v{vN}
        v_mul_u32_u24 v{vT+6}, 9216, v{vT+6}
        v_and_b32 v{vT+7}, 3, v{vN}
        v_lshl_add_u32 v{vT+6}, v{vT+7}, 4, v{vT+6}
        """)
        zstep = 8 * 4 * 9216
    else:
        a(f"""
        s_mul_i32 s28, s{sIDX}, 9216
        s_add_u32 s28, s28, {WS_Z}
        s_lshl_b32 s29, s{sWAVE}, 8
        s_add_u32 s28, s28, s29
        v_lshlrev_b32 v{vT+6}, 4, v{vN}
        """)
        zstep = 2048
    a("s_waitcnt lgkmcnt(0)")
    ZD = P + 8
    for i in range(5):
        if i == 4:
            a(f"s_cmp_ge_u32 s{sWAVE}, 4\n s_cbranch_scc1 L_z4")
        a(f"v_mfma_f32_16x16x32_bf16 v[{ZD+4*i}:{ZD+4*i+3}], v[{P}:{P+3}], v[{WDd+4*i}:{WDd+4*i+3}], 0")
    a("L_z4:\n s_nop 7")
    for i in range(5):
        if i == 4:
            a(f"s_cmp_ge_u32 s{sWAVE}, 4\n s_cbranch_scc1 L_fin")
        addtag(a, range(ZD + 4*i, ZD + 4*i + 4))
        a(f"""
        s_add_u32 s29, s28, {zstep*i}
        s_mov_b64 exec, 0xffff
        buffer_store_dwordx4 v[{ZD+4*i}:{ZD+4*i+3}], v{vT+6}, s[{sWS}:{sWS+3}], s29 offen sc1
        s_mov_b64 exec, -1
        """)

    tstamp(13)
    a("L_fin:")
    for i in range(mark_tail, len(a.L)):
        if a.L[i].strip() == "s_barrier" and "noguard" not in a.L[i]:
            lab = a.label("L_nb")
            a.L[i] = f"    s_cmp_eq_u32 s{sDRY}, 1\n    s_cbranch_scc1 {lab}\n    s_barrier\n{lab}:"
    a(f"s_cmp_eq_u32 s{sDRY}, 1\n s_cbranch_scc1 L_dry_done" if dry else "")
    dbg_max(2)
    if stamps:
        a("s_waitcnt vmcnt(0)")
        stamp(8)
        a(f"""
        s_lshl_b32 s28, s{sW}, 3
        s_add_u32 s28, s28, s{sWAVE}
        s_lshl_b32 s28, s28, 6
        s_add_u32 s28, s28, {WS_STAMP}
        v_mov_b32 v{vT}, 0
        s_mov_b64 exec, 1
        """)
        for i in range(0, NSTAMP, 4):
            for r in range(4):
                a(f"v_mov_b32 v{vT+2+r}, s{sST+i+r}")
            a(f"buffer_store_dwordx4 v[{vT+2}:{vT+5}], v{vT}, s[{sWS}:{sWS+3}], s28 offen offset:{4*i}")
            a("s_nop 1")
        a("s_waitcnt vmcnt(0)")
    a("L_end:\n s_endpgm\n L_code_end:")

    hdr = HEADER + f"; @launch grid=(256,1,1) block=(512,1,1) lds={LDS_BYTES}\n"
    hdr += '.amdgcn_target "amdgcn-amd-amdhsa--gfx950"\n.text\n'
    return hdr + kernel_begin(KNAME) + a.text() + kernel_desc(KNAME, 256, 102, 256)


HEADER = """; Fused pre-LN MHA decode (KV cache) + pre-LN GEGLU MLP, one persistent launch of 256 workgroups (one per CU).
"""

if __name__ == "__main__":
    import sys
    kw = eval(sys.argv[2]) if len(sys.argv) > 2 else {}
    open(sys.argv[1], "w").write(gen(**kw))
```

```python
from asmlib import *

WS_E    = 0x0
WS_QP   = 0x10000
WS_AP   = 0xA0000
WS_Y    = 0xD0000
WS_HB   = 0x120000
WS_Z    = 0x130000
WS_CANB = 0x280000
WS_CANC = 0x288000
WS_STAMP= 0x300000
WS_SIZE = 0x400000

L_XD = 0
L_QB = L_XD + 9216
L_MRG = L_QB + 256
L_ML = L_MRG + 4096
L_OB = L_ML + 64
L_HB = L_OB + 1024
L_GUF = L_HB + 5760
L_GR = L_GUF + 8192
L_HF = L_GR + 2048
L_SMALL_END = L_HF + 256
L_WG = 32768
L_WU = L_WG + 36864
L_WD = L_WU + 36864
L_END = L_WD + 36864
assert L_SMALL_END <= L_WG
LDS_BYTES = 143360
assert L_END <= LDS_BYTES, L_END

LOG2E = 0x3fb8aa3b
SCALE = 0x3db504f3
INV576 = 0x3ae38e39
EPS = 0x3727c5ac

sWAVE = 3
sK, sV, sWS, sT, sU = 8, 12, 16, 20, 24
pX, pK, pV, pWQ, pWO, pBX, pWG, pWU = 32, 34, 36, 38, 40, 42, 44, 46
pWD, pOUT, pDBG, pWSP = 48, 50, 52, 54
sE, sW, sB, sH, sJ, sTO, sKV, sIT = 56, 57, 58, 59, 60, 61, 62, 63
sROW = 64
sOFF = 67
sL2E, sSCALE, sHI = 68, 69, 70
sCNT = 71
sDRY, sOUTN = 94, 95
sROLE, sIDX, sSLICE, sNT, sROT, sXTRA = 96, 97, 98, 99, 100, 101
sST = 74
NSTAMP = 16
vLANE, vN, vG, vOFFK, vOFFV = 0, 1, 2, 3, 4
vMASK = 5
vM, vL = 9, 10
vO = 12
vS = 16
vQ = 20
vTAG, vFF = 36, 37
vT = 38
vSTG = 64
vWQ = 192
vP = 172
vPP = 204


def srd(a, s, ptr, nbytes):
    a(f"""
    s_mov_b32 s{s}, s{ptr}
    s_and_b32 s{s+1}, s{ptr+1}, 0xffff
    s_mov_b32 s{s+2}, {nbytes}
    s_mov_b32 s{s+3}, 0x00020000
    """)


def row16(a, regs, op="add", ctrls=("quad_perm:[1,0,3,2]", "quad_perm:[2,3,0,1]", "row_half_mirror", "row_mirror")):
    ins = "v_add_f32" if op == "add" else "v_max_f32"
    n = len(regs)
    a("s_nop 1")
    for ctrl in ctrls:
        for r in regs:
            a(f"{ins}_dpp v{r}, v{r}, v{r} {ctrl} row_mask:0xf bank_mask:0xf")
        if n < 3:
            a(f"s_nop {2 - n}")


def xrow(a, regs, tmp, op="add", only32=False):
    ins = "v_add_f32" if op == "add" else "v_max_f32"
    sws = ("v_permlane16_swap_b32", "v_permlane32_swap_b32")
    if only32:
        sws = sws[1:]
    for sw in sws:
        for r, t in zip(regs, tmp):
            a(f"v_mov_b32 v{t}, v{r}")
        a("s_nop 1")
        for r, t in zip(regs, tmp):
            a(f"{sw} v{r}, v{t}")
        a("s_nop 1")
        for r, t in zip(regs, tmp):
            a(f"{ins} v{r}, v{r}, v{t}")


def wavesum(a, regs, tmp, op="add"):
    row16(a, regs, op)
    xrow(a, regs, tmp, op)


def rbf(a, pairs, t):
    for (x, y), tt in zip(pairs, t):
        a(f"v_cvt_pk_bf16_f32 v{tt}, v{x}, v{y}")
    for (x, y), tt in zip(pairs, t):
        a(f"v_lshlrev_b32 v{x}, 16, v{tt}")
        if y != x:
            a(f"v_and_b32 v{y}, s{sHI}, v{tt}")


def tagcheck(a, regs, acc, retry):
    a(f"v_xor_b32 v{acc}, v{regs[0]}, v{vTAG}")
    for r in regs[1:]:
        a(f"v_bitop3_b32 v{acc}, v{acc}, v{r}, v{vTAG} bitop3:0xf6")
    a(f"v_and_b32 v{acc}, v{acc}, v{vFF}")
    a(f"v_cmp_ne_u32 vcc, 0, v{acc}")
    a(f"s_cbranch_vccnz {retry}")


def addtag(a, regs):
    for r in regs:
        a(f"v_bfi_b32 v{r}, v{vFF}, v{vTAG}, v{r}")


def poll_head(a, name, bail="L_end"):
    a(f"{name}:")
    a(f"s_sub_u32 s{sTO}, s{sTO}, 1")
    a(f"s_cbranch_scc1 {bail}")


DRYG = False

def ppoll(a, name, nsets, nloads, issue, regs, acc, consume, sleep=0, stagger=0, probe=None, presleep=0):
    if DRYG:
        a(f"s_cmp_eq_u32 s{sDRY}, 1\n s_cbranch_scc1 {name}_ok0")
    if presleep:
        n = presleep
        while n > 0:
            a(f"s_sleep {min(n, 100)}")
            n -= 100
    if probe:
        emit, preg, mask = probe
        a(f"s_mov_b64 exec, {mask}")
        a(f"{name}_probe:")
        a(f"s_sub_u32 s{sTO}, s{sTO}, 1")
        a(f"s_cbranch_scc1 L_end")
        emit()
        a("s_waitcnt vmcnt(0)")
        a(f"v_xor_b32 v{acc}, v{preg}, v{vTAG}")
        a(f"v_and_b32 v{acc}, v{acc}, v{vFF}")
        a(f"v_cmp_ne_u32 vcc, 0, v{acc}")
        a(f"s_cbranch_vccnz {name}_probe")
        a("s_mov_b64 exec, -1")
    for k in range(nsets):
        issue(k)
        if stagger and k != nsets - 1:
            a(f"s_sleep {stagger}")
    a(f"{name}:")
    a(f"s_sub_u32 s{sTO}, s{sTO}, 1")
    a(f"s_cbranch_scc1 L_end")
    for k in range(nsets):
        a(f"s_waitcnt vmcnt({(nsets-1)*nloads})")
        r = regs(k)
        a(f"v_xor_b32 v{acc}, v{r[0]}, v{vTAG}")
        for x in r[1:]:
            a(f"v_bitop3_b32 v{acc}, v{acc}, v{x}, v{vTAG} bitop3:0xf6")
        a(f"v_and_b32 v{acc}, v{acc}, v{vFF}")
        a(f"v_cmp_ne_u32 vcc, 0, v{acc}")
        a(f"s_cbranch_vccz {name}_ok{k}")
        if sleep:
            a(f"s_sleep {sleep}")
        issue(k)
    a(f"s_branch {name}")
    for k in range(nsets):
        a(f"{name}_ok{k}:")
        consume(k)
        if k != nsets - 1:
            a(f"s_branch {name}_done")
    a(f"{name}_done:")


def fdiv(a, out, num, den_rcp, den, t):
    a(f"v_mul_f32 v{out}, v{num}, v{den_rcp}")
    a(f"v_fma_f32 v{t}, -v{out}, v{den}, v{num}")
    a(f"v_fma_f32 v{out}, v{t}, v{den_rcp}, v{out}")


def gen(D=3, stamps=False, stop=None, kvflags="nt", wflags="nt", late_w=False, pollsleep=0, codepf='tail', xflags="nt", cyc=False, pre=(0, 1, 2, 0), no_w=False, no_compute=False, no_q=False, early='', wo_late=False, gate='pair', bare=False, tailst=False, ns=(1, 1, 1, 1), stg=0, probe=(0, 1, 1, 1), presl=(0, 0, 0, 0), dry=False, shift=0, rotw=False, only=None, canB=False, canC=0, outfl='sc1', tlbw=0, locq=True, lq_pre=1, lq_mid=1, w0_mid=1, xmap=True, dbgA=False, dbgB=False, lq_late=2, gsleep=0, bdec=True, wo_e=4, wd_after=False, dbgtime=False, cmajY=False, cmajZ=False, rmap=True, sh2=0):
    global DRYG
    DRYG = bool(dry)
    a = Asm()
    NT = 32
    KV_OOB = 0x10000000
    P = vPP

    def tstamp(idx):
        if tailst:
            stamp(idx, True)

    def stamp(idx, force=False):
        if only is not None and idx not in only:
            return
        if tailst and idx in (9, 10, 11, 12, 13, 14) and not force:
            return
        if stamps:
            ins = "s_memtime" if cyc else "s_memrealtime"
            a(f"{ins} s[90:91]\n s_waitcnt lgkmcnt(0)\n s_mov_b32 s{sST+idx}, s90")

    def psleep():
        if pollsleep:
            a(f"s_sleep {pollsleep}")

    def code_prefetch(nwaves, lo, hi, tmp, dst=None):
        a(f"""
        s_getpc_b64 s[92:93]
        {a.label("L_pc")}:
        """)
        lab = a.L[-1].strip()[:-1]
        a(f"""
        s_add_u32 s92, s92, {lo}-{lab}
        s_addc_u32 s93, s93, {-1 if lo == "L_code0" else 0}
        s_lshl_b32 s28, s{sWAVE}, 10
        v_lshlrev_b32 v{tmp+4}, 4, v{vLANE}
        v_add_u32 v{tmp+4}, s28, v{tmp+4}
        s_mov_b32 s29, {hi}-{lo}-16
        """)
        for i in range(NPF[(lo, hi)]):
            a(f"v_min_u32 v{tmp+5}, s29, v{tmp+4}")
            d_ = tmp if dst is None else dst
            a(f"global_load_dwordx4 v[{d_}:{d_+3}], v{tmp+5}, s[92:93]")
            a(f"v_add_u32 v{tmp+4}, {1024*nwaves}, v{tmp+4}")
    NPF = {("L_code0", "L_code_end"): 2, ("L_tail0", "L_code_end"): 2}
    ROLES_OLD = f"""    ; ---- roles: even w < 224: Wo (w < 192) or spare ; otherwise stage B
    s_lshr_b32 s29, s2, 1                  ; P
    s_mov_b32 s{sIDX}, s29
    s_cmp_lt_u32 s29, 96
    s_cselect_b32 s{sROLE}, 1, 2
    s_cselect_b32 s30, {shift}, 0
    s_cmp_eq_u32 s28, 1
    s_cselect_b32 s{sROLE}, 0, s{sROLE}
    s_lshr_b32 s31, s29, 3
    s_lshl_b32 s31, s31, 2
    s_and_b32 s4, s29, 3
    s_add_u32 s31, s31, s4
    s_lshl_b32 s31, s31, 1
    s_bfe_u32 s4, s29, 0x10002
    s_add_u32 s{sSLICE}, s31, s4
    s_cmp_lt_u32 s2, 224
    s_cbranch_scc1 L_role_done
    s_mov_b32 s{sROLE}, 0
    s_sub_u32 s4, s2, 224                  ; p'
    s_add_u32 s{sIDX}, s4, 112
    s_lshr_b32 s31, s4, 4
    s_lshl_b32 s31, s31, 3
    s_and_b32 s5, s4, 7
    s_add_u32 s31, s31, s5
    s_lshl_b32 s31, s31, 1
    s_bfe_u32 s5, s4, 0x10003
    s_add_u32 s31, s31, s5
    s_add_u32 s{sSLICE}, s31, 112
    L_role_done:
    s_sub_u32 s30, 256, s30
    s_and_b32 s28, s{sJ}, 1
    s_cmp_eq_u32 s28, 1
    s_cselect_b32 s4, s30, 0               ; t0
    s_cselect_b32 s5, 512, s30             ; t1
    """
    ROLES_NEW = f"""
    s_and_b32 s29, s2, 7                   ; x
    s_lshr_b32 s30, s2, 4                  ; r
    s_lshl_b32 s31, s30, 3
    s_add_u32 s{sIDX}, s31, s29            ; r*8 + x
    s_lshr_b32 s31, s30, 1
    s_lshl_b32 s31, s31, 3
    s_add_u32 s31, s31, s29
    s_lshl_b32 s31, s31, 1
    s_and_b32 s4, s30, 1
    s_add_u32 s{sSLICE}, s31, s4           ; ((r>>1)*8 + x)*2 + (r&1)
    s_mov_b32 s{sROLE}, 0
    s_bitcmp1_b32 s2, 3
    s_cbranch_scc1 L_role_done
    s_cmp_lt_u32 s30, 12
    s_cselect_b32 s{sROLE}, 1, 2
    s_cmp_lt_u32 s30, 14
    s_cbranch_scc1 L_role_done
    s_mov_b32 s{sROLE}, 0
    s_add_u32 s{sIDX}, s{sIDX}, {128 - 14*8}
    s_lshl_b32 s31, s29, 1
    s_sub_u32 s4, s30, 14
    s_add_u32 s31, s31, s4
    s_add_u32 s{sSLICE}, s31, 128
    L_role_done:
    s_cmp_lt_u32 s30, 12
    s_cselect_b32 s30, {sh2}, 0
    s_and_b32 s28, s{sJ}, 1
    s_sub_u32 s5, 256, s30                 ; s=0: t1 = 256 - sh
    s_mov_b32 s4, 0
    s_mov_b32 s6, 0
    s_cmp_eq_u32 s28, 1
    s_cselect_b32 s4, 256, 0
    s_cselect_b32 s5, 512, s5
    s_cselect_b32 s6, s30, 0
    """
    ROLES = ROLES_NEW if rmap else ROLES_OLD
    XMAP = "" if not xmap else f"""
    s_and_b32 s29, s2, 7
    s_lshr_b32 s30, s2, 6
    s_lshl_b32 s30, s30, 3
    s_add_u32 s{sH}, s29, s30              ; h = (w&7) + 8*(w>>6)
    s_bfe_u32 s{sJ}, s2, 0x30003           ; j = (w>>3)&7
    s_lshr_b32 s{sB}, s{sJ}, 1
    """
    def dbg_max(slot, invert=False):
        if not dbgtime:
            return
        lab = a.label("L_dbg")
        a(f"s_cmp_ge_u32 s{sWAVE}, {2 if slot == 2 else 1}\n s_cbranch_scc1 {lab}")
        a(f"""
        s_memrealtime s[90:91]
        s_waitcnt lgkmcnt(0)
        {"s_not_b32 s90, s90" if invert else ""}
        v_mov_b32 v62, s90
        v_mov_b32 v63, {4*slot}
        s_mov_b64 exec, 1
        global_atomic_umax v63, v62, s[{pDBG}:{pDBG+1}]
        s_mov_b64 exec, -1
        {lab}:
        """)

    a(f"""
    L_code0:
    s_cmp_ge_u32 s2, 256
    s_cbranch_scc1 L_end
    s_load_dwordx16 s[32:47], s[0:1], 0
    s_load_dwordx8 s[48:55], s[0:1], 64
    v_lshrrev_b32 v{P}, 6, v0
    v_and_b32 v{vLANE}, 63, v0
    v_readfirstlane_b32 s{sWAVE}, v{P}
    v_and_b32 v{vN}, 15, v{vLANE}
    v_lshrrev_b32 v{vG}, 4, v{vLANE}
    v_lshlrev_b32 v{vOFFK}, 8, v{vN}
    v_lshl_add_u32 v{vOFFK}, v{vG}, 4, v{vOFFK}
    v_lshlrev_b32 v{vOFFV}, 10, v{vG}
    v_lshl_add_u32 v{vOFFV}, v{vN}, 4, v{vOFFV}
    s_mov_b32 s{sW}, s2
    s_lshr_b32 s{sB}, s2, 6
    s_lshr_b32 s{sH}, s2, 1
    s_and_b32 s{sH}, s{sH}, 31
    s_and_b32 s28, s2, 1
    s_lshl_b32 s{sJ}, s{sB}, 1
    s_add_u32 s{sJ}, s{sJ}, s28
    {XMAP}
    s_mov_b32 s{sTO}, 2000000
    {ROLES}
    s_mov_b32 s{sL2E}, {LOG2E}
    s_mov_b32 s{sSCALE}, {SCALE}
    s_mov_b32 s{sHI}, 0xffff0000
    s_mov_b32 s{sDRY}, 0
    s_mov_b32 s{sOUTN}, 4608
    """)
    if stamps:
        for i in range(NSTAMP):
            a(f"s_mov_b32 s{sST+i}, 0")
    stamp(0)
    if codepf is True and not locq:
        code_prefetch(8, "L_code0", "L_code_end", vPP + 44)
    a("s_waitcnt lgkmcnt(0)")
    stamp(9)
    dbg_max(0, True)
    a(f"s_load_dword s{sE}, s[{pWSP}:{pWSP+1}], 0")
    srd(a, sK, pK, 0x10000000)
    srd(a, sV, pV, 0x10000000)
    srd(a, sWS, pWSP, WS_SIZE)
    srd(a, sT, pX, 4608)
    srd(a, sU, pWQ, 576 * 8192)
    XTRA = "" if not rmap else f"""
    s_cmp_lt_u32 s{sWAVE}, s6
    s_addc_u32 s{sNT}, s{sNT}, 0
    s_sub_u32 s28, 256, s6
    s_add_u32 s28, s28, s{sWAVE}
    s_lshl_b32 s28, s28, 12
    s_lshl_b32 s{sXTRA}, s{sB}, 5
    s_add_u32 s{sXTRA}, s{sXTRA}, s{sH}
    s_lshl_b32 s{sXTRA}, s{sXTRA}, 21
    s_add_u32 s{sXTRA}, s{sXTRA}, s28
    """
    a(f"""
    s_lshl_b32 s{sKV}, s{sB}, 5
    s_add_u32 s{sKV}, s{sKV}, s{sH}
    s_lshl_b32 s{sKV}, s{sKV}, 21
    s_lshl_b32 s28, s4, 12
    s_add_u32 s{sKV}, s{sKV}, s28
    s_sub_u32 s29, s5, s4                  ; L
    s_lshr_b32 s{sNT}, s29, 3
    s_and_b32 s29, s29, 7                  ; remainder
    {'s_add_u32 s28, s%d, s%d' % (sNT, sWAVE) if rotw else 's_mov_b32 s28, s%d' % sWAVE}
    s_and_b32 s28, s28, 7
    s_cmp_lt_u32 s28, s29
    s_addc_u32 s{sNT}, s{sNT}, 0
    {XTRA}
    s_mov_b32 s{sIT}, 0
    """)

    def kloads(s):
        r = vSTG + 32 * s
        for j in range(4):
            a(f"buffer_load_dwordx4 v[{r+4*j}:{r+4*j+3}], v{vOFFK}, s[{sK}:{sK+3}], s{sOFF} offen offset:{64*j} {kvflags}")

    def vloads(s):
        r = vSTG + 32 * s + 16
        for j in range(4):
            a(f"buffer_load_dwordx4 v[{r+4*j}:{r+4*j+3}], v{vOFFV}, s[{sV}:{sV+3}], s{sOFF} offen offset:{256*j} {kvflags}")

    def nextoff():
        if rotw:
            a(f"""
            s_add_u32 s{sOFF}, s{sIT}, s{sWAVE}
            s_and_b32 s{sOFF}, s{sOFF}, 7
            s_lshl_b32 s{sOFF}, s{sOFF}, 12
            s_add_u32 s{sOFF}, s{sOFF}, s{sKV}
            """)
        else:
            a(f"""
            s_lshl_b32 s{sOFF}, s{sWAVE}, 12
            s_add_u32 s{sOFF}, s{sOFF}, s{sKV}
            """)
        if rmap and sh2:
            a(f"s_cmp_eq_u32 s{sIT}, 32\n s_cselect_b32 s{sOFF}, s{sXTRA}, s{sOFF}")
        a(f"""
        s_cmp_ge_u32 s{sIT}, s{sNT}
        s_cselect_b32 s{sOFF}, {KV_OOB}, s{sOFF}
        s_add_u32 s{sKV}, s{sKV}, 32768
        s_add_u32 s{sIT}, s{sIT}, 1
        """)

    def prefetch(lo=0, hi=D):
        for s in range(lo, hi):
            nextoff(); kloads(s); vloads(s)

    a0, a1, b0, b1 = pre

    def by_class(fa, fb, f7=None):
        la, lb, le = a.label("L_cA"), a.label("L_cB"), a.label("L_cE")
        a(f"s_cmp_lt_u32 s{sWAVE}, 4\n s_cbranch_scc1 {la}")
        a(f"s_cmp_lt_u32 s{sWAVE}, 7\n s_cbranch_scc1 {lb}")
        if f7: f7()
        a(f"s_branch {le}\n {la}:")
        fa()
        a(f"s_branch {le}\n {lb}:")
        fb()
        a(f"{le}:")

    def MASKS():
        t0, t1, t2 = vT + 2, vT + 3, vT + 4
        a(f"""
        v_and_b32 v{t0}, 7, v{vN}
        v_and_b32 v{t1}, 1, v{t0}
        v_lshlrev_b32 v{t1}, 4, v{t1}
        v_mov_b32 v{t2}, 0xffff
        v_lshlrev_b32 v{t1}, v{t1}, v{t2}
        v_lshrrev_b32 v{t0}, 1, v{t0}
        v_mov_b32 v{vFF}, 0xff
        """)
        for d in range(4):
            a(f"v_cmp_eq_u32 vcc, {d}, v{t0}\n s_nop 1\n v_cndmask_b32 v{vMASK+d}, 0, v{t1}, vcc")
        a(f"""
        s_waitcnt lgkmcnt(0)
        s_add_u32 s{sE}, s{sE}, 1
        s_and_b32 s28, s{sE}, 0xff
        v_mov_b32 v{vTAG}, s28
        """)

    if bare:
        prefetch(0, D)
        MASKS()
        a("s_branch L_bare")
    if locq:
        X, Dv = 64, 74
        A0, A1, A2, A3, A4 = 84, 85, 86, 87, 88
        vW18, AXS, AO = 160, 232, 250
        a(f"""
        v_lshlrev_b32 v{vT+1}, 13, v{vG}
        v_lshl_add_u32 v{vT+1}, v{vN}, 4, v{vT+1}        ; g*8192 + c*16
        s_lshl_b32 s30, s{sWAVE}, 15
        s_lshl_b32 s31, s{sH}, 8
        s_add_u32 s30, s30, s31
        s_cmp_lg_u32 s{sWAVE}, 0
        s_cbranch_scc1 L_lq_other
        v_lshlrev_b32 v{vT}, 1, v{vLANE}
        s_mul_i32 s28, s{sB}, 1152
        """)
        for i in range(9):
            a(f"buffer_load_ushort v{X+i}, v{vT}, s[{sT}:{sT+3}], s28 offen offset:{128*i} {xflags}")
        def wq18():
            for u in range(18):
                a(f"buffer_load_dwordx4 v[{vW18+4*u}:{vW18+4*u+3}], v{vT+1}, s[{sU}:{sU+3}], s30 offen {wflags}")
                if u != 17:
                    a(f"s_add_u32 s30, s30, {32*8192}")
        wq18()
        a("s_branch L_lq_issued\n L_lq_other:")
        lq_m = min(D, lq_pre + lq_mid)
        w0_m = min(D, w0_mid)
        prefetch(0, lq_pre)
        wq18()
        prefetch(lq_pre, lq_m)
        a("L_lq_issued:")
        if codepf is True:
            code_prefetch(8, "L_code0", "L_code_end", vT + 8, dst=60)
        MASKS()
        ncp = 0
        a(f"s_cmp_lg_u32 s{sWAVE}, 0\n s_cbranch_scc1 L_lq_noln")
        a(f"s_waitcnt vmcnt({18 + ncp})")
        stamp(10)
        for i in range(9):
            a(f"v_lshlrev_b32 v{X+i}, 16, v{X+i}")
        a(f"v_add_f32 v{A0}, v{X}, v{X+1}")
        a(f"v_mul_f32 v{A2}, v{X}, v{X}")
        for i in range(1, 9):
            if i >= 2:
                a(f"v_add_f32 v{A0}, v{A0}, v{X+i}")
            a(f"v_fmac_f32 v{A2}, v{X+i}, v{X+i}")
        wavesum(a, [A0, A2], [A1, A3])
        a(f"""
        v_mul_f32 v{A0}, {INV576}, v{A0}
        v_mul_f32 v{A2}, {INV576}, v{A2}
        v_fma_f32 v{A2}, -v{A0}, v{A0}, v{A2}
        """)
        rbf(a, [(A0, A2)], [A1])
        a(f"v_add_f32 v{A2}, {EPS}, v{A2}")
        rbf(a, [(A2, A2)], [A1])
        a(f"v_sqrt_f32 v{A2}, v{A2}\n s_nop 0")
        rbf(a, [(A2, A2)], [A1])
        a(f"v_rcp_f32 v{A3}, v{A2}")
        for i in range(9):
            a(f"v_sub_f32 v{Dv+i}, v{X+i}, v{A0}")
        rbf(a, [(Dv, Dv+1), (Dv+2, Dv+3), (Dv+4, Dv+5), (Dv+6, Dv+7), (Dv+8, Dv+8)], [X, X+1, X+2, X+3, X+4])
        for i in range(9):
            fdiv(a, X + i, Dv + i, A3, A2, A4)
        for i in range(9):
            a(f"v_cvt_pk_bf16_f32 v{X+i}, v{X+i}, v{X+i}")
        a(f"v_lshlrev_b32 v{A4}, 2, v{vLANE}")
        for i in range(9):
            a(f"ds_write_b32 v{A4}, v{X+i} offset:{L_XD + 256*i}")
        a("s_waitcnt lgkmcnt(0)")
        prefetch(0, w0_m)
        a("L_lq_noln:")
        a("s_barrier")
        stamp(11)
        a(f"""
        s_lshl_b32 s28, s{sWAVE}, 4
        v_lshlrev_b32 v{vT}, 2, v{vG}
        v_add_u32 v{vT}, s28, v{vT}                      ; g*4 + wave*16
        """)
        for u in range(18):
            a(f"ds_read_b32 v{AXS+u}, v{vT} offset:{L_XD + 128*u}")
            if u == 8:
                a("s_waitcnt lgkmcnt(0)")
        lw0, lwe = a.label("L_lqw0"), a.label("L_lqwe")
        a(f"s_cmp_eq_u32 s{sWAVE}, 0\n s_cbranch_scc1 {lw0}")
        a(f"s_waitcnt vmcnt({8*(lq_m-lq_pre) + ncp})\n s_branch {lwe}\n {lw0}:\n s_waitcnt vmcnt({8*w0_m})\n {lwe}:")
        a("s_waitcnt lgkmcnt(0)")
        if dbgA:
            a("s_waitcnt vmcnt(0)")
        stamp(12)
        for u in range(18):
            ao = AO if True else AO
            for d in range(4):
                a(f"v_and_b32 v{ao+d}, v{AXS+u}, v{vMASK+d}")
            a("s_nop 1")
            c = "0" if u == 0 else f"v[{vS}:{vS+3}]"
            a(f"v_mfma_f32_16x16x32_bf16 v[{vS}:{vS+3}], v[{ao}:{ao+3}], v[{vW18+4*u}:{vW18+4*u+3}], {c}")
            if dbgB:
                a("s_nop 7")
        a(f"""
        v_lshlrev_b32 v{vT}, 5, v{vN}                 ; c*32
        v_and_b32 v{vT+1}, 1, v{vG}
        v_lshl_add_u32 v{vT}, v{vT+1}, 4, v{vT}       ; + (g&1)*16
        s_lshl_b32 s28, s{sWAVE}, 9
        v_add_u32 v{vT}, s28, v{vT}
        s_nop 4
        ds_write_b128 v{vT}, v[{vS}:{vS+3}] offset:{L_MRG}
        """)
        if lq_m < D or w0_m < D:
            l0, le = a.label("L_lqr0"), a.label("L_lqre")
            a(f"s_cmp_eq_u32 s{sWAVE}, 0\n s_cbranch_scc1 {l0}")
            r1 = lq_late if lq_late is not None else D
            prefetch(lq_m, max(lq_m, min(D, r1)))
            a(f"s_branch {le}\n {l0}:")
            prefetch(w0_m, max(w0_m, min(D, r1)))
            a(f"{le}:")
        a("""
        s_waitcnt lgkmcnt(0)
        s_barrier
        """)
        stamp(13)
        QS = 232
        a(f"""
        s_cmp_lg_u32 s{sWAVE}, 1
        s_cbranch_scc1 L_lq_qdone
        v_and_b32 v{vT}, 31, v{vLANE}
        v_lshlrev_b32 v{vT+1}, 4, v{vT}
        """)
        for w in range(4):
            a(f"ds_read_b128 v[{QS+4*w}:{QS+4*w+3}], v{vT+1} offset:{L_MRG + 512*w}")
        for w in range(4, 8):
            a(f"ds_read_b128 v[{160+4*w}:{160+4*w+3}], v{vT+1} offset:{L_MRG + 512*w}")
        a("s_waitcnt lgkmcnt(0)")
        for r in range(0, 4, 2):
            a(f"v_pk_add_f32 v[{QS+r}:{QS+r+1}], v[{QS+r}:{QS+r+1}], v[{QS+4+r}:{QS+5+r}]")
            a(f"v_pk_add_f32 v[{QS+8+r}:{QS+9+r}], v[{QS+8+r}:{QS+9+r}], v[{QS+12+r}:{QS+13+r}]")
            a(f"v_pk_add_f32 v[{176+r}:{177+r}], v[{176+r}:{177+r}], v[{180+r}:{181+r}]")
            a(f"v_pk_add_f32 v[{184+r}:{185+r}], v[{184+r}:{185+r}], v[{188+r}:{189+r}]")
        for r in range(0, 4, 2):
            a(f"v_pk_add_f32 v[{QS+r}:{QS+r+1}], v[{QS+r}:{QS+r+1}], v[{QS+8+r}:{QS+9+r}]")
            a(f"v_pk_add_f32 v[{176+r}:{177+r}], v[{176+r}:{177+r}], v[{184+r}:{185+r}]")
        for r in range(0, 4, 2):
            a(f"v_pk_add_f32 v[{QS+r}:{QS+r+1}], v[{QS+r}:{QS+r+1}], v[{176+r}:{177+r}]")
        a(f"""
        v_cvt_pk_bf16_f32 v{QS+4}, v{QS}, v{QS+1}
        v_cvt_pk_bf16_f32 v{QS+5}, v{QS+2}, v{QS+3}
        v_lshlrev_b32 v{vT}, 3, v{vT}
        ds_write_b64 v{vT}, v[{QS+4}:{QS+5}] offset:{L_QB}
        s_waitcnt lgkmcnt(0)
        L_lq_qdone:
        s_barrier
        """)
        stamp(14)
        r1 = lq_late if lq_late is not None else D
        if max(lq_m, min(D, r1)) < D or max(w0_m, min(D, r1)) < D:
            l0, le = a.label("L_lqs0"), a.label("L_lqse")
            a(f"s_cmp_eq_u32 s{sWAVE}, 0\n s_cbranch_scc1 {l0}")
            prefetch(max(lq_m, min(D, r1)), D)
            a(f"s_branch {le}\n {l0}:")
            prefetch(max(w0_m, min(D, r1)), D)
            a(f"{le}:")
    else:
        X = P
        a(f"""
        s_cmp_ge_u32 s{sWAVE}, 4
        s_cbranch_scc1 L_nox
        v_lshlrev_b32 v{vT}, 1, v{vLANE}
        s_mul_i32 s28, s{sWAVE}, 1152
        """)
        for i in range(9):
            a(f"buffer_load_ushort v{X+i}, v{vT}, s[{sT}:{sT+3}], s28 offen offset:{128*i} {xflags}")
        a("L_nox:")
        a(f"""
        v_lshlrev_b32 v{vT+1}, 13, v{vG}
        v_lshl_add_u32 v{vT+1}, v{vN}, 4, v{vT+1}        ; g*8192 + c*16
        """)
        for u in range(3):
            a(f"""
            s_add_u32 s29, s{sWAVE}, {8*u}
            s_lshl_b32 s30, s29, 2
            s_mul_i32 s28, s{sJ}, 72
            s_add_u32 s30, s30, s28
            s_mov_b32 s{sROW+u}, s30
            s_lshl_b32 s30, s30, 13
            s_lshl_b32 s31, s{sH}, 8
            s_add_u32 s30, s30, s31
            s_cmp_ge_u32 s29, 18
            s_cselect_b32 s30, {576*8192}, s30
            s_cselect_b32 s{sROW+u}, s28, s{sROW+u}
            buffer_load_dwordx4 v[{vWQ+4*u}:{vWQ+4*u+3}], v{vT+1}, s[{sU}:{sU+3}], s30 offen {wflags}
            """)
        by_class(lambda: prefetch(0, a0), lambda: prefetch(0, b0))
        MASKS()
        Dv = P + 10
        A0, A1, A2, A3, A4, A5 = (P + 20 + i for i in range(6))
        a(f"""
        s_cmp_ge_u32 s{sWAVE}, 4
        s_cbranch_scc1 L_noln
        s_waitcnt vmcnt({3 + 8*a0})
        """)
        stamp(10)
        for i in range(9):
            a(f"v_lshlrev_b32 v{X+i}, 16, v{X+i}")
        a(f"v_add_f32 v{A0}, v{X}, v{X+1}")
        for i in range(2, 9):
            a(f"v_add_f32 v{A0}, v{A0}, v{X+i}")
        wavesum(a, [A0], [A1])
        a(f"v_mul_f32 v{A0}, {INV576}, v{A0}")
        for i in range(9):
            a(f"v_sub_f32 v{Dv+i}, v{X+i}, v{A0}")
        a(f"v_mul_f32 v{A2}, v{Dv}, v{Dv}")
        for i in range(1, 9):
            a(f"v_fmac_f32 v{A2}, v{Dv+i}, v{Dv+i}")
        wavesum(a, [A2], [A1])
        a(f"v_mul_f32 v{A2}, {INV576}, v{A2}")
        rbf(a, [(A0, A2)], [A1])
        a(f"v_add_f32 v{A2}, {EPS}, v{A2}")
        rbf(a, [(A2, A2)], [A1])
        a(f"v_sqrt_f32 v{A2}, v{A2}\n s_nop 0")
        rbf(a, [(A2, A2)], [A1])
        a(f"v_rcp_f32 v{A3}, v{A2}")
        for i in range(9):
            a(f"v_sub_f32 v{Dv+i}, v{X+i}, v{A0}")
        rbf(a, [(Dv, Dv+1), (Dv+2, Dv+3), (Dv+4, Dv+5), (Dv+6, Dv+7), (Dv+8, Dv+8)], [X, X+1, X+2, X+3, X+4])
        for i in range(9):
            fdiv(a, X + i, Dv + i, A3, A2, A4)
        for i in range(9):
            a(f"v_cvt_pk_bf16_f32 v{X+i}, v{X+i}, v{X+i}")
        a(f"""
        s_mul_i32 s28, s{sWAVE}, {576*4}
        v_lshlrev_b32 v{A4}, 2, v{vLANE}
        v_add_u32 v{A4}, s28, v{A4}
        """)
        for i in range(9):
            a(f"ds_write_b32 v{A4}, v{X+i} offset:{L_XD + 256*i}")
        a("L_noln:")
        a("s_waitcnt lgkmcnt(0)\n s_barrier")
        stamp(11)
        AX = P
        AO = P + 8
        QA = P + 12
        a(f"""
        v_lshrrev_b32 v{vT}, 3, v{vN}                 ; m>>3
        v_mul_u32_u24 v{vT}, 576, v{vT}
        v_add_u32 v{vT}, v{vT}, v{vG}
        v_lshlrev_b32 v{vT}, 2, v{vT}                 ; ((m>>3)*576 + g)*4
        """)
        for u in range(3):
            a(f"""
            s_lshl_b32 s28, s{sROW+u}, 2
            v_add_u32 v{vT+1}, s28, v{vT}
            ds_read_b32 v{AX+2*u}, v{vT+1} offset:{L_XD}
            ds_read_b32 v{AX+2*u+1}, v{vT+1} offset:{L_XD + 2*576*4}
            """)
        by_class(lambda: a(f"s_waitcnt vmcnt({8*a0})"), lambda: a(f"s_waitcnt vmcnt({8*b0})"), lambda: a("s_waitcnt vmcnt(0)"))
        a("s_waitcnt lgkmcnt(0)")
        stamp(12)
        for u in range(3):
            for pp in range(2):
                for d in range(4):
                    a(f"v_and_b32 v{AO+d}, v{AX+2*u+pp}, v{vMASK+d}")
                a("s_nop 1")
                c = "0" if u == 0 else f"v[{QA+4*pp}:{QA+4*pp+3}]"
                a(f"v_mfma_f32_16x16x32_bf16 v[{QA+4*pp}:{QA+4*pp+3}], v[{AO}:{AO+3}], v[{vWQ+4*u}:{vWQ+4*u+3}], {c}")
                a("s_nop 1")
        a(f"""
        v_lshrrev_b32 v{vT}, 1, v{vG}
        v_lshlrev_b32 v{vT}, 9, v{vT}
        v_lshl_add_u32 v{vT}, v{vN}, 5, v{vT}
        v_and_b32 v{vT+1}, 1, v{vG}
        v_lshl_add_u32 v{vT}, v{vT+1}, 4, v{vT}
        s_nop 7
        """)
        a(f"s_lshl_b32 s28, s{sWAVE}, 11\n s_add_u32 s28, s28, {L_WG}\n v_add_u32 v{vT}, s28, v{vT}")
        for pp in range(2):
            a(f"ds_write_b128 v{vT}, v[{QA+4*pp}:{QA+4*pp+3}] offset:{pp*1024}")
        a("s_waitcnt lgkmcnt(0)\n s_barrier")
        stamp(13)
        by_class(lambda: prefetch(a0, a0 + a1), lambda: prefetch(b0, b0 + b1))
        G0 = P
        a(f"""
        s_cmp_lg_u32 s{sWAVE}, 7
        s_cbranch_scc1 L_qwait
        v_lshlrev_b32 v{vT}, 4, v{vLANE}
        v_add_u32 v{vT+1}, {L_WG}, v{vT}
        """)
        for half in range(2):
            base = G0 + 8 if half == 0 else G0 + 8
            for w in range(8):
                dst = (G0 + 4*half) if w == 0 else (G0 + 8 + 4*(w-1))
                a(f"ds_read_b128 v[{dst}:{dst+3}], v{vT+1} offset:{2048*w + 1024*half}")
            a("s_waitcnt lgkmcnt(0)")
            for w in range(1, 8):
                for r in range(4):
                    a(f"v_add_f32 v{G0+4*half+r}, v{G0+4*half+r}, v{G0+8+4*(w-1)+r}")
        a(f"""
        s_lshl_b32 s28, s{sH}, 3
        s_add_u32 s28, s28, s{sJ}
        s_lshl_b32 s28, s28, 11
        s_add_u32 s28, s28, {WS_QP}
        """)
        addtag(a, range(G0, G0 + 8))
        a(f"""
        buffer_store_dwordx4 v[{G0}:{G0+3}], v{vT}, s[{sWS}:{sWS+3}], s28 offen sc1
        buffer_store_dwordx4 v[{G0+4}:{G0+7}], v{vT}, s[{sWS}:{sWS+3}], s28 offen offset:1024 sc1
        v_lshrrev_b32 v{vT+1}, 5, v{vLANE}
        v_lshlrev_b32 v{vT+1}, 11, v{vT+1}
        v_and_b32 v{vT+2}, 31, v{vLANE}
        v_lshl_add_u32 v{vT+1}, v{vT+2}, 4, v{vT+1}      ; jj*2048 + c4*16
        s_lshl_b32 s28, s{sH}, 14
        s_lshl_b32 s29, s{sB}, 9
        s_add_u32 s28, s28, s29
        s_add_u32 s28, s28, {WS_QP}
        s_add_u32 s29, s28, 4096
        s_add_u32 s30, s28, 8192
        s_add_u32 s31, s28, 12288
        s_nop 1
        """)
        G1 = P + 8
        poll_head(a, "L_qpoll")
        psleep()
        for i in range(4):
            a(f"buffer_load_dwordx4 v[{G1+4*i}:{G1+4*i+3}], v{vT+1}, s[{sWS}:{sWS+3}], s{28+i} offen sc1")
        a("s_waitcnt vmcnt(0)")
        if not no_q:
            tagcheck(a, list(range(G1, G1 + 16)), vT + 3, "L_qpoll")
        stamp(14)
        for r in range(4):
            a(f"v_add_f32 v{G1+r}, v{G1+r}, v{G1+4+r}")
            a(f"v_add_f32 v{G1+8+r}, v{G1+8+r}, v{G1+12+r}")
        for r in range(4):
            a(f"v_add_f32 v{G1+r}, v{G1+r}, v{G1+8+r}")
        xrow(a, [G1, G1+1, G1+2, G1+3], [G1+4, G1+5, G1+6, G1+7], only32=True)
        a(f"""
        v_cvt_pk_bf16_f32 v{G1+8}, v{G1}, v{G1+1}
        v_cvt_pk_bf16_f32 v{G1+9}, v{G1+2}, v{G1+3}
        v_lshlrev_b32 v{vT+2}, 3, v{vT+2}
        ds_write_b64 v{vT+2}, v[{G1+8}:{G1+9}] offset:{L_QB}
        """)
        a(f"""
        s_waitcnt lgkmcnt(0)
        L_qwait:
        s_barrier
        """)
        by_class(lambda: prefetch(a0 + a1, D), lambda: prefetch(b0 + b1, D), lambda: prefetch(0, D))
    a(f"v_lshlrev_b32 v{vT}, 4, v{vG}")
    a("L_bare:")
    for j in range(4):
        a(f"ds_read_b128 v[{vQ+4*j}:{vQ+4*j+3}], v{vT} offset:{L_QB + 64*j}")
    a(f"""
    v_mov_b32 v{vM}, 0xff800000
    v_mov_b32 v{vL}, 0
    v_mov_b32 v{vO}, 0
    v_mov_b32 v{vO+1}, 0
    v_mov_b32 v{vO+2}, 0
    v_mov_b32 v{vO+3}, 0
    s_mov_b32 s{sCNT}, s{sNT}
    s_waitcnt lgkmcnt(0)
    """)
    stamp(1)
    dbg_max(3)
    if stop == "q":
        a("s_branch L_fin")

    P = vP
    s0, s1, s2, s3 = vT, vT + 1, vT + 2, vT + 3
    u0, u1 = vT + 4, vT + 5
    mx, mt, al, nm = vT + 6, vT + 7, vT + 8, vT + 9
    pk = vT + 10
    Aop = vT + 14
    assert Aop % 2 == 0
    a("L_loop:")
    for s in range(D):
        kb = vSTG + 32 * s
        vb = kb + 16
        a(f"s_waitcnt vmcnt({8*(D-1)+4})")
        for j in range(4):
            c = "0" if j == 0 else f"v[{vS}:{vS+3}]"
            a(f"v_mfma_f32_16x16x32_bf16 v[{vS}:{vS+3}], v[{kb+4*j}:{kb+4*j+3}], v[{vQ+4*j}:{vQ+4*j+3}], {c}")
        nextoff()
        kloads(s)
        a("s_nop 3")
        if no_compute:
            a(f"s_waitcnt vmcnt({8*(D-1)+4})")
            vloads(s)
            a(f"""
            s_sub_u32 s{sCNT}, s{sCNT}, 1
            s_cmp_eq_u32 s{sCNT}, 0
            s_cbranch_scc1 L_loop_end
            """)
            continue
        a(f"""
        v_cvt_pk_bf16_f32 v{u0}, v{vS}, v{vS+1}
        v_cvt_pk_bf16_f32 v{u1}, v{vS+2}, v{vS+3}
        v_lshlrev_b32 v{s0}, 16, v{u0}
        v_and_b32 v{s1}, s{sHI}, v{u0}
        v_lshlrev_b32 v{s2}, 16, v{u1}
        v_and_b32 v{s3}, s{sHI}, v{u1}
        v_mul_f32 v{s0}, s{sSCALE}, v{s0}
        v_mul_f32 v{s1}, s{sSCALE}, v{s1}
        v_mul_f32 v{s2}, s{sSCALE}, v{s2}
        v_mul_f32 v{s3}, s{sSCALE}, v{s3}
        v_cvt_pk_bf16_f32 v{u0}, v{s0}, v{s1}
        v_cvt_pk_bf16_f32 v{u1}, v{s2}, v{s3}
        v_lshlrev_b32 v{s0}, 16, v{u0}
        v_and_b32 v{s1}, s{sHI}, v{u0}
        v_lshlrev_b32 v{s2}, 16, v{u1}
        v_and_b32 v{s3}, s{sHI}, v{u1}
        v_max3_f32 v{mx}, v{s0}, v{s1}, v{s2}
        v_max3_f32 v{mx}, v{mx}, v{s3}, v{vM}
        v_mov_b32 v{mt}, v{mx}
        s_nop 1
        v_permlane16_swap_b32 v{mx}, v{mt}
        s_nop 1
        v_max_f32 v{mx}, v{mx}, v{mt}
        v_mov_b32 v{mt}, v{mx}
        s_nop 1
        v_permlane32_swap_b32 v{mx}, v{mt}
        s_nop 1
        v_max_f32 v{mx}, v{mx}, v{mt}
        v_sub_f32 v{al}, v{vM}, v{mx}
        v_mul_f32 v{nm}, s{sL2E}, v{mx}
        v_mul_f32 v{al}, s{sL2E}, v{al}
        v_fma_f32 v{s0}, v{s0}, s{sL2E}, -v{nm}
        v_fma_f32 v{s1}, v{s1}, s{sL2E}, -v{nm}
        v_fma_f32 v{s2}, v{s2}, s{sL2E}, -v{nm}
        v_fma_f32 v{s3}, v{s3}, s{sL2E}, -v{nm}
        v_exp_f32 v{al}, v{al}
        v_exp_f32 v{s0}, v{s0}
        v_exp_f32 v{s1}, v{s1}
        v_exp_f32 v{s2}, v{s2}
        v_exp_f32 v{s3}, v{s3}
        v_mov_b32 v{vM}, v{mx}
        v_mul_f32 v{vO}, v{vO}, v{al}
        v_mul_f32 v{vO+1}, v{vO+1}, v{al}
        v_mul_f32 v{vO+2}, v{vO+2}, v{al}
        v_mul_f32 v{vO+3}, v{vO+3}, v{al}
        v_cvt_pk_bf16_f32 v{pk}, v{s0}, v{s0}
        v_cvt_pk_bf16_f32 v{pk+1}, v{s1}, v{s1}
        v_cvt_pk_bf16_f32 v{pk+2}, v{s2}, v{s2}
        v_cvt_pk_bf16_f32 v{pk+3}, v{s3}, v{s3}
        v_fma_f32 v{vL}, v{vL}, v{al}, v{s0}
        v_add_f32 v{s1}, v{s1}, v{s2}
        v_add_f32 v{vL}, v{vL}, v{s3}
        v_add_f32 v{vL}, v{vL}, v{s1}
        s_waitcnt vmcnt({8*(D-1)+4})
        """)
        for r in range(4):
            ao = Aop + 4 * (r & 1)
            for d in range(4):
                a(f"v_and_b32 v{ao+d}, v{pk+r}, v{vMASK+d}")
            a("s_nop 1")
            a(f"v_mfma_f32_16x16x32_bf16 v[{vO}:{vO+3}], v[{ao}:{ao+3}], v[{vb+4*r}:{vb+4*r+3}], v[{vO}:{vO+3}]")
        vloads(s)
        a(f"""
        s_sub_u32 s{sCNT}, s{sCNT}, 1
        s_cmp_eq_u32 s{sCNT}, 0
        s_cbranch_scc1 L_loop_end
        """)
    a("s_branch L_loop\n L_loop_end:")
    stamp(2)
    xrow(a, [vL], [vT])
    a(f"""
    s_nop 7
    v_lshlrev_b32 v{vT}, 5, v{vN}                 ; c*32
    v_and_b32 v{vT+1}, 1, v{vG}
    v_lshl_add_u32 v{vT}, v{vT+1}, 4, v{vT}       ; + (g&1)*16
    s_lshl_b32 s28, s{sWAVE}, 9
    v_add_u32 v{vT}, s28, v{vT}
    ds_write_b128 v{vT}, v[{vO}:{vO+3}] offset:{L_MRG}
    s_lshl_b32 s28, s{sWAVE}, 3
    v_mov_b32 v{vT+2}, s28
    v_mov_b32 v{vT+4}, v{vM}
    v_mov_b32 v{vT+5}, v{vL}
    ds_write_b64 v{vT+2}, v[{vT+4}:{vT+5}] offset:{L_ML}
    """)

    def slice_idx():
        a(f"""
        s_mov_b32 s29, s{sSLICE}
        v_lshrrev_b32 v{vT}, 2, v{vLANE}
        v_mul_u32_u24 v{vT}, 9216, v{vT}
        v_and_b32 v{vT+1}, 3, v{vLANE}
        v_lshl_add_u32 v{vT}, v{vT+1}, 4, v{vT}
        v_lshlrev_b32 v{vT+1}, 4, v{vLANE}
        """)

    def dma_mat(which, sq):
        cnt = 9
        if which in "gu":
            ptr, lds0 = (pWG, L_WG) if which == "g" else (pWU, L_WU)
            srd(a, sT, ptr, 576 * 9216)
            a(f"""
            s_mul_i32 s28, s{sq}, {cnt*16*9216}
            s_lshl_b32 s30, s29, 6
            s_add_u32 s28, s28, s30
            s_mul_i32 s31, s{sq}, {cnt*1024}
            """)
            for i in range(cnt):
                a(f"s_add_u32 m0, s31, {lds0 + i*1024}\n s_nop 0")
                a(f"buffer_load_dwordx4 v{vT}, s[{sT}:{sT+3}], s28 offen {wflags} lds")
                a(f"s_add_u32 s28, s28, {16*9216}")
        else:
            srd(a, sT, pWD, 4608 * 1152)
            a(f"""
            s_mul_i32 s28, s29, {32*1152}
            s_mul_i32 s31, s{sq}, {cnt*1024}
            s_add_u32 s28, s28, s31
            """)
            for i in range(cnt):
                a(f"s_add_u32 m0, s31, {L_WD + i*1024}\n s_nop 0")
                a(f"buffer_load_dwordx4 v{vT+1}, s[{sT}:{sT+3}], s28 offen {wflags} lds")
                a(f"s_add_u32 s28, s28, 1024")

    def wo_dma(groups, sq, sg=None):
        a(f"""
        s_mov_b32 s29, s{sIDX}
        s_mul_i32 s30, s29, 21846
        s_lshr_b32 s30, s30, 16            ; h'
        s_mul_i32 s31, s30, 3
        s_sub_u32 s31, s29, s31            ; c
        """)
        srd(a, sT, pWO, 4096 * 1152)
        for q in range(3):
            a(f"""
            v_add_u32 v{vT+3}, {64*q}, v{vLANE}
            v_mul_u32_u24 v{vT+4}, 2731, v{vT+3}
            v_lshrrev_b32 v{vT+4}, 16, v{vT+4}          ; row = l0/24
            v_mul_u32_u24 v{vT+5}, 24, v{vT+4}
            v_sub_u32 v{vT+5}, v{vT+3}, v{vT+5}         ; piece
            v_mul_u32_u24 v{vT+4}, 1152, v{vT+4}
            v_lshl_add_u32 v{vT+q}, v{vT+5}, 4, v{vT+4}
            """)
        a(f"s_lshl_b32 s4, s{sq}, 2")
        if sg is not None:
            a(f"s_add_u32 s4, s4, s{sg}")
        a(f"""
        s_lshl_b32 s28, s30, 7
        s_lshl_b32 s29, s4, 3
        s_add_u32 s28, s28, s29
        s_mul_i32 s28, s28, 1152
        s_mul_i32 s31, s31, 384
        s_add_u32 s28, s28, s31
        s_mul_i32 s31, s4, {3*1024}
        """)
        for grp in groups:
            a(f"s_add_u32 s5, s28, {grp*8*1152}")
            for q in range(3):
                a(f"s_add_u32 m0, s31, {L_WG + (grp*3+q)*1024}\n s_nop 0")
                a(f"buffer_load_dwordx4 v{vT+q}, s[{sT}:{sT+3}], s5 offen {wflags} lds")

    def weights_early():
        lab_wo, lab_done = a.label("L_wwo"), a.label("L_wdone")
        a(f"s_cmp_lg_u32 s{sROLE}, 0\n s_cbranch_scc1 {lab_wo}")
        if early:
            slice_idx()
            for m in early:
                dma_mat(m, sWAVE)
        a(f"s_branch {lab_done}")
        a(f"{lab_wo}:")
        a(f"s_cmp_eq_u32 s{sROLE}, 2\n s_cbranch_scc1 {lab_done}")
        if wo_e > 0:
            wo_dma(list(range(wo_e)), sWAVE)
        a(f"{lab_done}:")

    def weights_late():
        late = [m for m in "gud" if m not in early]
        if not late:
            return
        slice_idx()
        sQ = 73
        a(f"s_and_b32 s{sQ}, s{sWAVE}, 3")
        lo, hi = late[:(len(late) + 1) // 2], late[(len(late) + 1) // 2:]
        lh, le = a.label("L_lateh"), a.label("L_latee")
        a(f"s_cmp_ge_u32 s{sWAVE}, 4\n s_cbranch_scc1 {lh}")
        for m in lo:
            dma_mat(m, sQ)
        a(f"s_branch {le}\n {lh}:")
        for m in hi:
            dma_mat(m, sQ)
        a(f"{le}:")
        a("s_waitcnt vmcnt(0)\n s_barrier")

    a(f"s_cmp_ge_u32 s{sWAVE}, 4\n s_cbranch_scc1 L_now")
    a(f"""
    s_cmp_ge_u32 s{sWAVE}, 2
    s_cbranch_scc1 L_noxr
    s_cmp_eq_u32 s{sROLE}, 0
    s_cbranch_scc1 L_noxr
    s_mul_i32 s28, s{sWAVE}, 112
    s_add_u32 s28, s28, s{sIDX}
    s_cmp_ge_u32 s28, 144
    s_cbranch_scc1 L_noxr
    """)
    srd(a, sT, pX, 4608)
    a(f"""
    v_and_b32 v{vT}, 3, v{vLANE}
    v_lshlrev_b32 v{vT+1}, 1, v{vT}
    s_lshl_b32 s28, s28, 3
    """)
    for b in range(4):
        a(f"buffer_load_ushort v{160+b}, v{vT+1}, s[{sT}:{sT+3}], s28 offen offset:{1152*b} nt")
    a("L_noxr:")
    if not no_w:
        weights_early()
    if tlbw:
        lab = a.label("L_notlb")
        a(f"s_cmp_lg_u32 s{sWAVE}, 3\n s_cbranch_scc1 {lab}")
        tw = vT + 8
        a(f"v_lshlrev_b32 v{tw}, {tlbw}, v{vLANE}\n v_add_u32 v{tw}, 0x{(1 << tlbw) - 128:x}, v{tw}")
        n_ws = max(1, WS_STAMP // (64 << tlbw) + 1)
        for i in range(n_ws):
            a(f"s_mov_b32 s28, {i * (64 << tlbw)}")
            a(f"buffer_load_dword v{tw+1}, v{tw}, s[{sWS}:{sWS+3}], s28 offen")
        for (ptr, nbytes) in ((pWG, 576*9216), (pWU, 576*9216), (pWD, 4608*1152), (pOUT, 4608), (pX, 4608)):
            srd(a, sT, ptr, nbytes)
            n = max(1, (nbytes + (64 << tlbw) - 1) // (64 << tlbw))
            if nbytes < 65536:
                a(f"v_mov_b32 v{tw+2}, 0")
                a(f"buffer_load_dword v{tw+1}, v{tw+2}, s[{sT}:{sT+3}], 0 offen")
            else:
                for i in range(n):
                    a(f"s_mov_b32 s28, {i * (64 << tlbw)}")
                    a(f"buffer_load_dword v{tw+1}, v{tw}, s[{sT}:{sT+3}], s28 offen nt")
        a(f"{lab}:")
    if codepf:
        code_prefetch(4, "L_tail0", "L_code_end", vT + 8)
    if dry:
        a(f"""
        s_waitcnt vmcnt(0) lgkmcnt(0)
        s_mov_b32 s{sDRY}, 1
        s_mov_b32 s{sWS+2}, 0
        s_mov_b32 s{sOUTN}, 0
        s_branch L_tail_dry
        L_dry_done:
        s_mov_b32 s{sDRY}, 0
        s_mov_b32 s{sWS+2}, {WS_SIZE}
        s_mov_b32 s{sOUTN}, 4608
        s_mov_b64 exec, -1
        """)
    a("L_now:")
    a("L_tail0:")
    a("s_waitcnt vmcnt(0) lgkmcnt(0)\n s_barrier")
    a("L_tail_dry:")
    dbg_max(1)
    mark_tail = len(a.L)
    stamp(3)

    MO = P
    MM = P + 32
    a(f"s_cmp_lg_u32 s{sWAVE}, 0\n s_cbranch_scc1 L_nomerge")
    a(f"""
    v_and_b32 v{vT}, 31, v{vLANE}
    v_lshlrev_b32 v{vT}, 4, v{vT}
    v_mov_b32 v{vT+1}, 0
    """)
    for i in range(4):
        a(f"ds_read_b128 v[{MM+4*i}:{MM+4*i+3}], v{vT+1} offset:{L_ML + 16*i}")
    for w in range(8):
        a(f"ds_read_b128 v[{MO+4*w}:{MO+4*w+3}], v{vT} offset:{L_MRG + 512*w}")
    a("s_waitcnt lgkmcnt(8)")
    ms = [MM + 2 * w for w in range(8)]
    mstar = vT + 2
    a(f"v_max3_f32 v{mstar}, v{ms[0]}, v{ms[1]}, v{ms[2]}")
    a(f"v_max3_f32 v{mstar}, v{mstar}, v{ms[3]}, v{ms[4]}")
    a(f"v_max3_f32 v{mstar}, v{mstar}, v{ms[5]}, v{ms[6]}")
    a(f"v_max_f32 v{mstar}, v{mstar}, v{ms[7]}")
    for w in range(8):
        a(f"v_sub_f32 v{ms[w]}, v{ms[w]}, v{mstar}")
    for w in range(8):
        a(f"v_mul_f32 v{ms[w]}, s{sL2E}, v{ms[w]}")
    for w in range(8):
        a(f"v_exp_f32 v{ms[w]}, v{ms[w]}")
    Lt = vT + 3
    a(f"s_nop 0\n v_mul_f32 v{Lt}, v{ms[0]}, v{ms[0]+1}")
    for w in range(1, 8):
        a(f"v_fmac_f32 v{Lt}, v{ms[w]}, v{ms[w]+1}")
    a("s_waitcnt lgkmcnt(0)")
    R = vT + 6
    assert R % 2 == 0
    for r in range(4):
        a(f"v_mul_f32 v{R+r}, v{ms[0]}, v{MO+r}")
    for w in range(1, 8):
        for r in range(4):
            a(f"v_fmac_f32 v{R+r}, v{ms[w]}, v{MO+4*w+r}")
    a(f"""
    v_cmp_eq_u32 vcc, 32, v{vLANE}
    v_mov_b32 v{vT+4}, 0
    s_nop 0
    v_cndmask_b32 v{R}, v{R}, v{mstar}, vcc
    v_cndmask_b32 v{R+1}, v{R+1}, v{Lt}, vcc
    v_cndmask_b32 v{R+2}, v{R+2}, v{vT+4}, vcc
    v_cndmask_b32 v{R+3}, v{R+3}, v{vT+4}, vcc
    """)
    addtag(a, range(R, R + 4))
    a(f"""
    v_lshlrev_b32 v{vT}, 4, v{vLANE}
    s_mul_i32 s28, s{sW}, 640
    s_add_u32 s28, s28, {WS_AP}
    v_cmp_gt_u32 vcc, 33, v{vLANE}
    s_and_saveexec_b64 s[30:31], vcc
    buffer_store_dwordx4 v[{R}:{R+3}], v{vT}, s[{sWS}:{sWS+3}], s28 offen sc1
    s_mov_b64 exec, s[30:31]
    L_nomerge:
    """)
    stamp(4)
    if stop == "attn":
        a("s_branch L_fin")

    a(f"s_cmp_eq_u32 s{sROLE}, 0\n s_cbranch_scc1 L_stageB")
    a(f"s_cmp_eq_u32 s{sROLE}, 2\n s_cbranch_scc1 L_reduce")
    if wo_e < 4 and not no_w:
        rest = list(range(wo_e, 4))
        a(f"s_cmp_eq_u32 s{sDRY}, 1\n s_cbranch_scc1 L_wo_nolate")
        a(f"s_and_b32 s73, s{sWAVE}, 3")
        lo_, hi_ = rest[:(len(rest) + 1) // 2], rest[(len(rest) + 1) // 2:]
        a(f"s_cmp_ge_u32 s{sWAVE}, 4\n s_cbranch_scc1 L_wo_hi")
        wo_dma(lo_, 73)
        a("s_branch L_wo_lw\n L_wo_hi:")
        if hi_:
            wo_dma(hi_, 73)
        a("L_wo_lw:\n s_waitcnt vmcnt(0)\n s_barrier\n L_wo_nolate:")
    a(f"""
    s_mov_b32 s29, s{sIDX}
    s_mul_i32 s{sH}, s29, 21846
    s_lshr_b32 s{sH}, s{sH}, 16         ; h'
    s_mul_i32 s31, s{sH}, 3
    s_sub_u32 s{sJ}, s29, s31           ; c
    """)
    WB = 64
    a(f"""
    v_lshrrev_b32 v{vT}, 2, v{vN}                    ; r
    v_lshl_add_u32 v{vT}, v{vG}, 3, v{vT}            ; 8g + r
    v_mul_u32_u24 v{vT}, 384, v{vT}
    v_and_b32 v{vT+1}, 3, v{vLANE}
    v_lshl_add_u32 v{vT}, v{vT+1}, 3, v{vT}          ; + cc*8
    s_lshl_b32 s28, s{sWAVE}, 5
    s_add_u32 s28, s28, {L_WG}
    v_add_u32 v{vT}, s28, v{vT}                      ; + T*32 + base
    """)
    for ks in range(4):
        a(f"ds_read_b64_tr_b16 v[{WB+4*ks}:{WB+4*ks+1}], v{vT} offset:{ks*32*384}")
        a(f"ds_read_b64_tr_b16 v[{WB+4*ks+2}:{WB+4*ks+3}], v{vT} offset:{ks*32*384 + 4*384}")
    a(f"s_cmp_ge_u32 s{sWAVE}, 4\n s_cbranch_scc1 L_wo_gather_skip")
    a("s_waitcnt lgkmcnt(0)")
    for ks in range(4):
        a(f"ds_read_b64_tr_b16 v[{WB+16+4*ks}:{WB+16+4*ks+1}], v{vT} offset:{ks*32*384 + 256}")
        a(f"ds_read_b64_tr_b16 v[{WB+16+4*ks+2}:{WB+16+4*ks+3}], v{vT} offset:{ks*32*384 + 4*384 + 256}")
    GA = P
    a(f"""
    v_lshrrev_b32 v{vT+1}, 5, v{vLANE}               ; s
    v_mul_u32_u24 v{vT+2}, {640*8 if xmap else 640}, v{vT+1}
    v_and_b32 v{vT+3}, 31, v{vLANE}                  ; c4
    v_lshl_add_u32 v{vT+4}, v{vT+3}, 4, v{vT+2}      ; s*stride + c4*16
    v_add_u32 v{vT+5}, 512, v{vT+2}                  ; s*stride + 512
    """)
    if xmap:
        a(f"""
        s_and_b32 s28, s{sH}, 7
        s_lshl_b32 s29, s{sWAVE}, 4
        s_add_u32 s28, s28, s29
        s_lshr_b32 s29, s{sH}, 3
        s_lshl_b32 s29, s29, 6
        s_add_u32 s28, s28, s29
        """)
    else:
        a(f"""
        s_lshl_b32 s28, s{sWAVE}, 6
        s_lshl_b32 s29, s{sH}, 1
        s_add_u32 s28, s28, s29
        """)
    a(f"""
    s_mul_i32 s28, s28, 640
    s_add_u32 s28, s28, {WS_AP}
    """)
    GAs = [96 + 8 * k for k in range(3)]
    def ap_issue(k):
        a(f"buffer_load_dwordx4 v[{GAs[k]}:{GAs[k]+3}], v{vT+4}, s[{sWS}:{sWS+3}], s28 offen sc1")
        a(f"buffer_load_dwordx4 v[{GAs[k]+4}:{GAs[k]+7}], v{vT+5}, s[{sWS}:{sWS+3}], s28 offen sc1")
    def ap_consume(k):
        for r in range(6):
            a(f"v_mov_b32 v{GA+r}, v{GAs[k]+r}")
    ppoll(a, "L_apoll", ns[0], 2, ap_issue, lambda k: list(range(GAs[k], GAs[k] + 8)), vT + 6, ap_consume, pollsleep, stg)
    tstamp(9)
    mm, ll = GA + 4, GA + 5
    a(f"""
    v_and_b32 v{mm}, s{sHI}, v{mm}
    v_mov_b32 v{vT+6}, v{mm}
    v_mov_b32 v{vT+7}, v{mm}
    s_nop 1
    v_permlane32_swap_b32 v{vT+6}, v{vT+7}
    s_nop 1
    v_max_f32 v{vT+6}, v{vT+6}, v{vT+7}             ; m*
    v_sub_f32 v{mm}, v{mm}, v{vT+6}
    v_mul_f32 v{mm}, s{sL2E}, v{mm}
    v_exp_f32 v{mm}, v{mm}                           ; a
    s_nop 0
    v_mul_f32 v{ll}, v{ll}, v{mm}
    v_mul_f32 v{GA}, v{GA}, v{mm}
    v_mul_f32 v{GA+1}, v{GA+1}, v{mm}
    v_mul_f32 v{GA+2}, v{GA+2}, v{mm}
    v_mul_f32 v{GA+3}, v{GA+3}, v{mm}
    """)
    xrow(a, [GA, GA+1, GA+2, GA+3, ll], [GA+8, GA+9, GA+10, GA+11, GA+12], only32=True)
    a(f"v_rcp_f32 v{vT+6}, v{ll}\n s_nop 0")
    for r in range(4):
        fdiv(a, GA + 8 + r, GA + r, vT + 6, ll, vT + 7)
    a(f"""
    v_cvt_pk_bf16_f32 v{GA+12}, v{GA+8}, v{GA+9}
    v_cvt_pk_bf16_f32 v{GA+13}, v{GA+10}, v{GA+11}
    v_lshlrev_b32 v{vT+3}, 3, v{vT+3}
    s_lshl_b32 s28, s{sWAVE}, 8
    v_add_u32 v{vT+3}, s28, v{vT+3}
    ds_write_b64 v{vT+3}, v[{GA+12}:{GA+13}] offset:{L_OB}
    L_wo_gather_skip:
    s_waitcnt lgkmcnt(0)
    s_barrier
    """)
    AOP = P + 16
    a(f"""
    v_and_b32 v{vT}, 3, v{vN}
    v_lshlrev_b32 v{vT}, 8, v{vT}
    v_lshl_add_u32 v{vT}, v{vG}, 4, v{vT}           ; (m&3)*256 + g*16
    """)
    for ks in range(4):
        a(f"ds_read_b128 v[{AOP+4*ks}:{AOP+4*ks+3}], v{vT} offset:{L_OB + 64*ks}")
    YD = P + 32
    a("s_waitcnt lgkmcnt(0)")
    for ks in range(4):
        c = "0" if ks == 0 else f"v[{YD}:{YD+3}]"
        a(f"v_mfma_f32_16x16x32_bf16 v[{YD}:{YD+3}], v[{AOP+4*ks}:{AOP+4*ks+3}], v[{WB+4*ks}:{WB+4*ks+3}], {c}")
    a(f"s_cmp_ge_u32 s{sWAVE}, 4\n s_cbranch_scc1 L_wo_one")
    for ks in range(4):
        c = "0" if ks == 0 else f"v[{YD+4}:{YD+7}]"
        a(f"v_mfma_f32_16x16x32_bf16 v[{YD+4}:{YD+7}], v[{AOP+4*ks}:{AOP+4*ks+3}], v[{WB+16+4*ks}:{WB+16+4*ks+3}], {c}")
    a("L_wo_one:")
    if cmajY:
        a(f"""
        s_mul_i32 s28, s{sJ}, 48
        s_lshl_b32 s29, s{sWAVE}, 2
        s_add_u32 s28, s28, s29
        s_lshl_b32 s28, s28, 11
        s_lshl_b32 s29, s{sH}, 6
        s_add_u32 s28, s28, s29
        s_add_u32 s28, s28, {WS_Y}
        s_add_u32 s30, s28, {32*2048}
        v_lshrrev_b32 v{vT}, 2, v{vN}
        v_lshlrev_b32 v{vT}, 11, v{vT}
        v_and_b32 v{vT+1}, 3, v{vN}
        v_lshl_add_u32 v{vT}, v{vT+1}, 4, v{vT}
        s_nop 6
        """)
    else:
        a(f"""
        s_mul_i32 s28, s{sH}, 9216
        s_mul_i32 s29, s{sJ}, {192*16}
        s_add_u32 s28, s28, s29
        s_lshl_b32 s29, s{sWAVE}, 8
        s_add_u32 s28, s28, s29
        s_add_u32 s28, s28, {WS_Y}
        s_add_u32 s30, s28, 2048
        v_lshlrev_b32 v{vT}, 4, v{vN}
        s_nop 7
        """)
    addtag(a, range(YD, YD + 4))
    a(f"""
    s_mov_b64 exec, 0xffff
    buffer_store_dwordx4 v[{YD}:{YD+3}], v{vT}, s[{sWS}:{sWS+3}], s28 offen sc1
    s_mov_b64 exec, -1
    s_cmp_ge_u32 s{sWAVE}, 4
    s_cbranch_scc1 L_reduce
    """)
    addtag(a, range(YD + 4, YD + 8))
    a(f"""
    s_mov_b64 exec, 0xffff
    buffer_store_dwordx4 v[{YD+4}:{YD+7}], v{vT}, s[{sWS}:{sWS+3}], s30 offen sc1
    s_mov_b64 exec, -1
    """)
    a("L_reduce:")
    tstamp(10)
    sTASK = 72
    a(f"""
    s_mov_b32 s{sTASK}, s{sIDX}
    s_mul_i32 s28, s{sWAVE}, 112
    s_add_u32 s{sTASK}, s{sTASK}, s28
    s_cmp_ge_u32 s{sTASK}, 144
    s_cbranch_scc1 L_fin
    s_cmp_ge_u32 s{sWAVE}, 2
    s_cbranch_scc1 L_fin
    """)
    XR = 160
    a(f"""
    v_and_b32 v{vT}, 3, v{vLANE}                     ; col
    v_lshlrev_b32 v{vT+1}, 1, v{vT}
    v_lshrrev_b32 v{vT+2}, 2, v{vLANE}               ; hh
    v_mul_u32_u24 v{vT+2}, 9216, v{vT+2}
    v_lshl_add_u32 v{vT+2}, v{vT}, 4, v{vT+2}
    v_lshlrev_b32 v{vT+5}, 4, v{vLANE}               ; lane*16
    """)
    vY = vT + 5 if cmajY else vT + 2
    vZ = vT + 5 if cmajZ else vT + 2
    if cmajY:
        a(f"s_lshl_b32 s28, s{sTASK}, 11\n s_add_u32 s28, s28, {WS_Y}\n s_add_u32 s29, s28, 1024")
    else:
        a(f"s_lshl_b32 s28, s{sTASK}, 6\n s_add_u32 s28, s28, {WS_Y}\n s_add_u32 s29, s28, {16*9216}")
    YG = P + 4
    YGs = [P + 60 + 8 * k for k in range(3)]
    def y_issue(k):
        a(f"buffer_load_dwordx4 v[{YGs[k]}:{YGs[k]+3}], v{vY}, s[{sWS}:{sWS+3}], s28 offen sc1")
        a(f"buffer_load_dwordx4 v[{YGs[k]+4}:{YGs[k]+7}], v{vY}, s[{sWS}:{sWS+3}], s29 offen sc1")
    def y_consume(k):
        for r in range(4):
            a(f"v_add_f32 v{YG+r}, v{YGs[k]+r}, v{YGs[k]+4+r}")
    ppoll(a, "L_ypoll", ns[1], 2, y_issue, lambda k: list(range(YGs[k], YGs[k] + 8)), vT + 3, y_consume, pollsleep, stg,
          probe=((lambda: a(f"buffer_load_dword v{YGs[0]}, v{vY}, s[{sWS}:{sWS+3}], s28 offen sc1")), YGs[0], "1") if probe[1] else None, presleep=presl[1])
    tstamp(11)
    if canB:
        a(f"""
        s_lshl_b32 s30, s{sTASK}, 7
        s_add_u32 s30, s30, {WS_CANB}
        v_mov_b32 v{vT+4}, 0
        s_mov_b64 exec, 1
        buffer_store_dword v{vTAG}, v{vT+4}, s[{sWS}:{sWS+3}], s30 offen sc1
        s_mov_b64 exec, -1
        """)
    hs = [YG, YG + 1, YG + 2, YG + 3]
    row16(a, hs, ctrls=("row_ror:4", "row_ror:8"))
    xrow(a, hs, [YG + 4, YG + 5, YG + 6, YG + 7])
    rbf(a, [(YG, YG+1), (YG+2, YG+3)], [YG+4, YG+5])
    for b in range(4):
        a(f"v_lshlrev_b32 v{XR+b}, 16, v{XR+b}")
        a(f"v_add_f32 v{YG+b}, v{YG+b}, v{XR+b}")
    rbf(a, [(YG, YG+1), (YG+2, YG+3)], [YG+4, YG+5])
    HK = P + 16
    for b in range(4):
        a(f"v_mov_b32 v{HK+b}, v{YG+b}")
    addtag(a, hs)
    a(f"""
    s_lshl_b32 s28, s{sTASK}, 6
    s_add_u32 s28, s28, {WS_HB}
    v_lshlrev_b32 v{vT+3}, 4, v{vT}
    s_mov_b64 exec, 0xf
    buffer_store_dwordx4 v[{YG}:{YG+3}], v{vT+3}, s[{sWS}:{sWS+3}], s28 offen sc1
    s_mov_b64 exec, -1
    """)
    stamp(7)
    ZG = P + 20
    ZGs = [64, 100, 136]
    sPZ = 73
    ZS = [4, 5, 6, 7, 62, 63, 66, 67, 71]
    if cmajZ:
        a(f"s_mul_i32 s28, s{sTASK}, 9216\n s_add_u32 s28, s28, {WS_Z}")
        a(f"s_lshl_b32 s{sPZ}, s{sTASK}, 6\n s_add_u32 s{sPZ}, s{sPZ}, s28")
        for i in range(9):
            a(f"s_add_u32 s{ZS[i]}, s28, {i*1024}")
    else:
        a(f"s_lshl_b32 s28, s{sTASK}, 6\n s_add_u32 s28, s28, {WS_Z}")
        if canC:
            a(f"s_lshl_b32 s{sPZ}, s{sTASK}, 7\n s_add_u32 s{sPZ}, s{sPZ}, {WS_CANC}")
        else:
            a(f"s_mul_i32 s{sPZ}, s{sTASK}, 9216\n s_add_u32 s{sPZ}, s{sPZ}, s28")
        for i in range(9):
            a(f"s_add_u32 s{ZS[i]}, s28, {i*16*9216}")
    def z_issue(k):
        for i in range(9):
            a(f"buffer_load_dwordx4 v[{ZGs[k]+4*i}:{ZGs[k]+4*i+3}], v{vZ}, s[{sWS}:{sWS+3}], s{ZS[i]} offen sc1")
    def z_consume(k):
        z = ZGs[k]
        for (x, y) in ((0, 1), (2, 3), (4, 5), (6, 7), (0, 2), (4, 6), (0, 4)):
            for r in range(0, 4, 2):
                a(f"v_pk_add_f32 v[{z+4*x+r}:{z+4*x+r+1}], v[{z+4*x+r}:{z+4*x+r+1}], v[{z+4*y+r}:{z+4*y+r+1}]")
        for r in range(0, 4, 2):
            a(f"v_pk_add_f32 v[{ZG+r}:{ZG+r+1}], v[{z+r}:{z+r+1}], v[{z+32+r}:{z+32+r+1}]")
    ppoll(a, "L_zpoll", ns[3], 9, z_issue, lambda k: list(range(ZGs[k], ZGs[k] + 36)), vT + 3, z_consume, pollsleep, stg,
          probe=((lambda: a(f"buffer_load_dword v{ZGs[0]}, v{vZ}, s[{sWS}:{sWS+3}], s{sPZ} offen sc1")), ZGs[0], "1") if probe[3] else None, presleep=presl[3])
    tstamp(12)
    zs = [ZG, ZG + 1, ZG + 2, ZG + 3]
    row16(a, zs, ctrls=("row_ror:4", "row_ror:8"))
    xrow(a, zs, [ZG + 4, ZG + 5, ZG + 6, ZG + 7])
    rbf(a, [(ZG, ZG+1), (ZG+2, ZG+3)], [ZG+4, ZG+5])
    for b in range(4):
        a(f"v_add_f32 v{ZG+b}, v{ZG+b}, v{HK+b}")
    a(f"v_cvt_pk_bf16_f32 v{ZG+4}, v{ZG}, v{ZG+1}")
    a(f"v_cvt_pk_bf16_f32 v{ZG+5}, v{ZG+2}, v{ZG+3}")
    srd(a, sT, pOUT, f"s{sOUTN}")
    a(f"""
    s_lshl_b32 s28, s{sTASK}, 3
    s_mov_b64 exec, 0xf
    buffer_store_short v{ZG+4}, v{vT+1}, s[{sT}:{sT+3}], s28 offen {outfl}
    buffer_store_short_d16_hi v{ZG+4}, v{vT+1}, s[{sT}:{sT+3}], s28 offen offset:1152 {outfl}
    buffer_store_short v{ZG+5}, v{vT+1}, s[{sT}:{sT+3}], s28 offen offset:2304 {outfl}
    buffer_store_short_d16_hi v{ZG+5}, v{vT+1}, s[{sT}:{sT+3}], s28 offen offset:3456 {outfl}
    s_mov_b64 exec, -1
    s_cmp_lg_u32 s{sTASK}, 0
    s_cbranch_scc1 L_fin
    v_mov_b32 v{ZG+6}, s{sE}
    v_mov_b32 v{ZG+7}, 0
    s_mov_b64 exec, 1
    buffer_store_dword v{ZG+6}, v{ZG+7}, s[{sWS}:{sWS+3}], 0 offen sc1
    s_mov_b64 exec, -1
    s_branch L_fin
    """)

    a("L_stageB:")
    if gate == 'pair' or isinstance(gate, int) and not isinstance(gate, bool) and gate > 0:
        ns_ = 0 if gate == 'pair' else gate
        a(f"s_cmp_lg_u32 s{sWAVE}, 1\n s_cbranch_scc1 L_gate_done")
        a(f"""
        s_andn2_b32 s29, s{sW}, {16 if rmap else 8}
        v_mul_u32_u24 v{vT}, 37, v{vLANE}
        v_add_u32 v{vT}, s29, v{vT}
        v_and_b32 v{vT}, 255, v{vT}
        s_xor_b32 s28, s{sW}, {16 if rmap else 8}
        v_mov_b32 v{vT+1}, s28
        v_cmp_eq_u32 vcc, {ns_}, v{vLANE}
        s_mov_b32 s28, {WS_AP + 512}
        s_nop 0
        v_cndmask_b32 v{vT}, v{vT}, v{vT+1}, vcc
        v_mul_u32_u24 v{vT}, 640, v{vT}
        s_cmp_eq_u32 s{sDRY}, 1
        s_cbranch_scc1 L_gate_done
        s_mov_b64 exec, {hex((1 << (ns_ + 1)) - 1)}
        """)
        poll_head(a, "L_gpoll")
        if gsleep:
            a(f"s_sleep {gsleep}")
        a(f"buffer_load_dword v{vT+2}, v{vT}, s[{sWS}:{sWS+3}], s28 offen sc1")
        a("s_waitcnt vmcnt(0)")
        tagcheck(a, [vT+2], vT + 6, "L_gpoll")
        a("s_mov_b64 exec, -1")
        a("L_gate_done:\n s_barrier")
    elif gate:
        a(f"s_cmp_lg_u32 s{sWAVE}, 1\n s_cbranch_scc1 L_gate_done")
        a(f"""
        v_mul_u32_u24 v{vT}, 640, v{vLANE}
        s_mov_b32 s28, {WS_AP + 512}
        s_mov_b32 s29, {WS_AP + 512 + 64*640}
        s_mov_b32 s30, {WS_AP + 512 + 128*640}
        s_mov_b32 s31, {WS_AP + 512 + 192*640}
        """)
        poll_head(a, "L_gpoll")
        for i in range(4):
            a(f"buffer_load_dword v{vT+2+i}, v{vT}, s[{sWS}:{sWS+3}], s{28+i} offen sc1")
        a("s_waitcnt vmcnt(0)")
        tagcheck(a, [vT+2, vT+3, vT+4, vT+5], vT + 6, "L_gpoll")
        a("L_gate_done:\n s_barrier")
    a(f"""
    s_cmp_lg_u32 s{sWAVE}, 7
    s_cbranch_scc1 L_noones
    v_mov_b32 v{P}, 0x3f803f80
    v_mov_b32 v{P+1}, 0x3f803f80
    v_mov_b32 v{P+2}, 0x3f803f80
    v_mov_b32 v{P+3}, 0x3f803f80
    v_lshlrev_b32 v{vT}, 4, v{vLANE}
    ds_write_b128 v{vT}, v[{P}:{P+3}] offset:{L_HB + 4*1152}
    s_mov_b64 exec, 0xff
    ds_write_b128 v{vT}, v[{P}:{P+3}] offset:{L_HB + 4*1152 + 1024}
    s_mov_b64 exec, -1
    L_noones:
    """)
    BB = 64
    WDd = 100
    AB = P
    aH, aA, aG, aR, aF1, aF2, aF3, aW = (vT + 4 + i for i in range(8))
    aP = vT + 12
    aBB, aWD = vT + 14, vT + 15
    if bdec:
        late = [m for m in "gud" if m not in early]
        if not no_w and late:
            a(f"s_cmp_lt_u32 s{sWAVE}, 4\n s_cbranch_scc1 L_b_noload")
            a(f"s_cmp_eq_u32 s{sDRY}, 1\n s_cbranch_scc1 L_b_noload")
            slice_idx()
            a(f"s_and_b32 s73, s{sWAVE}, 3")
            for m in late:
                if wd_after and m == "d":
                    continue
                dma_mat(m, 73)
            a("L_b_noload:")
        a(f"""
        v_lshrrev_b32 v{vT}, 2, v{vN}
        v_lshl_add_u32 v{vT}, v{vG}, 3, v{vT}            ; 8g + r
        v_and_b32 v{vT+1}, 3, v{vLANE}                   ; cc
        v_lshlrev_b32 v{aBB}, 6, v{vT}
        v_lshl_add_u32 v{aBB}, v{vT+1}, 3, v{aBB}        ; (8g+r)*64 + cc*8
        s_and_b32 s28, s{sWAVE}, 1
        s_lshl_b32 s28, s28, 5                           ; t*32
        s_bfe_u32 s29, s{sWAVE}, 0x10001
        s_mul_i32 s29, s29, {L_WU - L_WG}
        s_add_u32 s28, s28, s29
        s_add_u32 s28, s28, {L_WG}
        s_lshr_b32 s29, s{sWAVE}, 2
        s_mul_i32 s29, s29, {9*2048}
        s_add_u32 s28, s28, s29
        v_add_u32 v{aBB}, s28, v{aBB}
        v_mul_u32_u24 v{aWD}, 1152, v{vT}
        v_lshl_add_u32 v{aWD}, v{vT+1}, 3, v{aWD}
        s_lshl_b32 s28, s{sWAVE}, 5
        s_add_u32 s28, s28, {L_WD}
        v_add_u32 v{aWD}, s28, v{aWD}
        s_lshl_b32 s28, s{sWAVE}, 8
        v_lshlrev_b32 v{aH}, 1, v{vLANE}
        v_add_u32 v{aH}, s28, v{aH}
        v_and_b32 v{aA}, 3, v{vN}
        v_cmp_eq_u32 vcc, 4, v{vN}
        v_mov_b32 v{aG}, 4
        s_lshr_b32 s28, s{sWAVE}, 2
        v_cndmask_b32 v{aA}, v{aA}, v{aG}, vcc           ; row(m)
        v_mul_u32_u24 v{aA}, 1152, v{aA}
        s_mul_i32 s28, s28, {9*64}
        v_lshl_add_u32 v{aA}, v{vG}, 4, v{aA}
        v_add_u32 v{aA}, s28, v{aA}
        s_lshl_b32 s28, s{sWAVE}, 10
        v_lshlrev_b32 v{aG}, 4, v{vLANE}
        v_add_u32 v{aG}, s28, v{aG}
        s_lshl_b32 s28, s{sWAVE}, 8
        v_lshlrev_b32 v{aR}, 4, v{vN}
        v_add_u32 v{aR}, s28, v{aR}                      ; wave*256 + n*16
        v_lshrrev_b32 v{aW}, 2, v{vLANE}                 ; f'
        v_and_b32 v{aF3}, 3, v{vLANE}                    ; b
        s_lshl_b32 s28, s{sWAVE}, 10
        v_lshlrev_b32 v{aF2}, 4, v{aW}
        v_add_u32 v{aF2}, s28, v{aF2}                    ; tile*1024 + f'*16
        v_lshl_add_u32 v{aF1}, v{aF3}, 2, v{aF2}         ; + b*4
        s_lshl_b32 s28, s{sWAVE}, 5
        v_lshlrev_b32 v{aW}, 1, v{aW}
        v_add_u32 v{aW}, s28, v{aW}                      ; (tile*16 + f')*2
        v_lshl_add_u32 v{aW}, v{aF3}, 6, v{aW}           ; + b*64
        v_lshlrev_b32 v{vT}, 4, v{aF3}                   ; b*16
        v_mov_b32 v{vT+1}, 64
        v_and_b32 v{vT+2}, 4, v{vLANE}
        v_cmp_ne_u32 vcc, 0, v{vT+2}
        v_lshrrev_b32 v{vT+2}, 3, v{vLANE}
        v_lshlrev_b32 v{vT+2}, 8, v{vT+2}                ; (l>>3)*256
        v_cndmask_b32 v{vT}, v{vT}, v{vT+1}, vcc
        v_lshl_add_u32 v{aF3}, v{aF3}, 2, v{vT}
        v_add_u32 v{aF3}, v{aF3}, v{vT+2}
        s_mov_b32 s64, 0xf0f0f0f0
        s_mov_b32 s65, 0xf0f0f0f0
        v_lshlrev_b32 v{aP}, 4, v{vLANE}
        """)
        def bb_reads():
            for ks in range(9):
                a(f"ds_read_b64_tr_b16 v[{BB+4*ks}:{BB+4*ks+1}], v{aBB} offset:{ks*2048}")
                a(f"ds_read_b64_tr_b16 v[{BB+4*ks+2}:{BB+4*ks+3}], v{aBB} offset:{ks*2048+256}")
                if ks == 5:
                    a("s_waitcnt lgkmcnt(0)")
        pre_gate = "g" in early
        if pre_gate:
            a(f"s_bitcmp1_b32 s{sWAVE}, 1\n s_cbranch_scc1 L_b_nopre")
            bb_reads()
            a("L_b_nopre:")
        a(f"s_cmp_ge_u32 s{sWAVE}, 4\n s_cbranch_scc1 L_b_loadwait")
        HGs = [P + 48, P + 60, P + 72]
        a(f"""
        s_lshl_b32 s28, s{sWAVE}, 11
        s_add_u32 s28, s28, {WS_HB}
        s_add_u32 s29, s28, 1024
        s_mov_b32 s31, {WS_HB + 8192}
        """)
        for k in range(ns[2]):
            for r in range(4):
                a(f"v_mov_b32 v{HGs[k]+8+r}, v{vTAG}")
        def h_issue(k, third):
            a(f"buffer_load_dwordx4 v[{HGs[k]}:{HGs[k]+3}], v{aP}, s[{sWS}:{sWS+3}], s28 offen sc1")
            a(f"buffer_load_dwordx4 v[{HGs[k]+4}:{HGs[k]+7}], v{aP}, s[{sWS}:{sWS+3}], s29 offen sc1")
            if third:
                a(f"buffer_load_dwordx4 v[{HGs[k]+8}:{HGs[k]+11}], v{aP}, s[{sWS}:{sWS+3}], s31 offen sc1")
        def h_consume(k, third):
            for b in range(4):
                a(f"ds_write_b16_d16_hi v{aH}, v{HGs[k]+b} offset:{L_HB + 1152*b}")
                a(f"ds_write_b16_d16_hi v{aH}, v{HGs[k]+4+b} offset:{L_HB + 1152*b + 128}")
            if third:
                for b in range(4):
                    a(f"ds_write_b16_d16_hi v{aH}, v{HGs[k]+8+b} offset:{L_HB + 1152*b + 1024}")
        hp = ((lambda: a(f"buffer_load_dword v{HGs[0]}, v{aP}, s[{sWS}:{sWS+3}], s28 offen sc1")), HGs[0], "1") if probe[2] else None
        a(f"s_cmp_lg_u32 s{sWAVE}, 0\n s_cbranch_scc1 L_h1")
        ppoll(a, "L_hpoll2", ns[2], 3, lambda k: h_issue(k, True), lambda k: list(range(HGs[k], HGs[k] + 12)), vT + 13,
              lambda k: h_consume(k, True), pollsleep, stg, probe=hp, presleep=presl[2])
        a("s_branch L_h2\n L_h1:")
        ppoll(a, "L_hpoll1", ns[2], 2, lambda k: h_issue(k, False), lambda k: list(range(HGs[k], HGs[k] + 8)), vT + 13,
              lambda k: h_consume(k, False), pollsleep, stg, probe=hp, presleep=presl[2])
        a("s_branch L_h2")
        a("L_b_loadwait:\n s_waitcnt vmcnt(0)")
        if wd_after and "d" in late and not no_w:
            a(f"s_cmp_eq_u32 s{sDRY}, 1\n s_cbranch_scc1 L_b_nod")
            slice_idx()
            a(f"s_and_b32 s73, s{sWAVE}, 3")
            dma_mat("d", 73)
            a("L_b_nod:")
        stamp(15)
        a("L_h2:")
        stamp(5)
        a("s_waitcnt lgkmcnt(0)\n s_barrier")
        GD = P + 40
        def mm(ks):
            c = "0" if ks == 0 else f"v[{GD}:{GD+3}]"
            a(f"v_mfma_f32_16x16x32_bf16 v[{GD}:{GD+3}], v[{AB+4*ks}:{AB+4*ks+3}], v[{BB+4*ks}:{BB+4*ks+3}], {c}")
        def a_read(ks):
            a(f"ds_read_b128 v[{AB+4*ks}:{AB+4*ks+3}], v{aA} offset:{L_HB + 64*ks}")
        if pre_gate:
            a(f"s_bitcmp1_b32 s{sWAVE}, 1\n s_cbranch_scc1 L_b_full")
            for ks in range(9):
                a_read(ks)
            for ks in range(9):
                a(f"s_waitcnt lgkmcnt({8-ks})")
                mm(ks)
            a("s_branch L_b_mmdone\n L_b_full:")
        def trip(ks):
            a(f"ds_read_b64_tr_b16 v[{BB+4*ks}:{BB+4*ks+1}], v{aBB} offset:{ks*2048}")
            a(f"ds_read_b64_tr_b16 v[{BB+4*ks+2}:{BB+4*ks+3}], v{aBB} offset:{ks*2048+256}")
            a_read(ks)
        for ks in range(4):
            trip(ks)
        for ks in range(9):
            a(f"s_waitcnt lgkmcnt({3 * (min(ks + 3, 8) - ks)})")
            mm(ks)
            if ks + 4 <= 8:
                trip(ks + 4)
        a("L_b_mmdone:")
        for i in range(5 if not wd_after else 0):
            if i == 4:
                a(f"s_cmp_ge_u32 s{sWAVE}, 4\n s_cbranch_scc1 L_no5th")
            a(f"ds_read_b64_tr_b16 v[{WDd+4*i}:{WDd+4*i+1}], v{aWD} offset:{i*256}")
            a(f"ds_read_b64_tr_b16 v[{WDd+4*i+2}:{WDd+4*i+3}], v{aWD} offset:{i*256 + 4*1152}")
        if not wd_after:
            a("L_no5th:")
    else:
        if not no_w:
            a(f"s_cmp_eq_u32 s{sDRY}, 1\n s_cbranch_scc1 L_skip_late")
            weights_late()
            a("L_skip_late:")
        stamp(15)
        BB = 64
        WDd = 100
        a(f"""
        v_lshrrev_b32 v{vT}, 2, v{vN}
        v_lshl_add_u32 v{vT}, v{vG}, 3, v{vT}            ; 8g + r
        v_and_b32 v{vT+1}, 3, v{vLANE}                   ; cc
        v_lshlrev_b32 v{vT+2}, 6, v{vT}
        v_lshl_add_u32 v{vT+2}, v{vT+1}, 3, v{vT+2}      ; (8g+r)*64 + cc*8
        s_and_b32 s28, s{sWAVE}, 1
        s_lshl_b32 s28, s28, 5                           ; t*32
        s_bfe_u32 s29, s{sWAVE}, 0x10001
        s_mul_i32 s29, s29, {L_WU - L_WG}
        s_add_u32 s28, s28, s29
        s_add_u32 s28, s28, {L_WG}
        s_lshr_b32 s29, s{sWAVE}, 2
        s_mul_i32 s29, s29, {9*2048}
        s_add_u32 s28, s28, s29
        v_add_u32 v{vT+2}, s28, v{vT+2}
        """)
        for ks in range(9):
            a(f"ds_read_b64_tr_b16 v[{BB+4*ks}:{BB+4*ks+1}], v{vT+2} offset:{ks*2048}")
            a(f"ds_read_b64_tr_b16 v[{BB+4*ks+2}:{BB+4*ks+3}], v{vT+2} offset:{ks*2048+256}")
            if ks == 5:
                a("s_waitcnt lgkmcnt(0)")
        a(f"""
        v_mul_u32_u24 v{vT+3}, 1152, v{vT}
        v_lshl_add_u32 v{vT+3}, v{vT+1}, 3, v{vT+3}
        s_lshl_b32 s28, s{sWAVE}, 5
        s_add_u32 s28, s28, {L_WD}
        v_add_u32 v{vT+3}, s28, v{vT+3}
        s_waitcnt lgkmcnt(0)
        """)
        for i in range(5):
            if i == 4:
                a(f"s_cmp_ge_u32 s{sWAVE}, 4\n s_cbranch_scc1 L_no5th")
            a(f"ds_read_b64_tr_b16 v[{WDd+4*i}:{WDd+4*i+1}], v{vT+3} offset:{i*256}")
            a(f"ds_read_b64_tr_b16 v[{WDd+4*i+2}:{WDd+4*i+3}], v{vT+3} offset:{i*256 + 4*1152}")
        a("L_no5th:")
        aH, aA, aG, aR, aF1, aF2, aF3, aW = (vT + 4 + i for i in range(8))
        aP = vT + 12
        a(f"""
        s_lshl_b32 s28, s{sWAVE}, 7
        v_lshlrev_b32 v{aH}, 1, v{vLANE}
        v_add_u32 v{aH}, s28, v{aH}
        v_and_b32 v{aA}, 3, v{vN}
        v_cmp_eq_u32 vcc, 4, v{vN}
        v_mov_b32 v{aG}, 4
        s_lshr_b32 s28, s{sWAVE}, 2
        v_cndmask_b32 v{aA}, v{aA}, v{aG}, vcc           ; row(m)
        v_mul_u32_u24 v{aA}, 1152, v{aA}
        s_mul_i32 s28, s28, {9*64}
        v_lshl_add_u32 v{aA}, v{vG}, 4, v{aA}
        v_add_u32 v{aA}, s28, v{aA}
        s_lshl_b32 s28, s{sWAVE}, 10
        v_lshlrev_b32 v{aG}, 4, v{vLANE}
        v_add_u32 v{aG}, s28, v{aG}
        s_lshl_b32 s28, s{sWAVE}, 8
        v_lshlrev_b32 v{aR}, 4, v{vN}
        v_add_u32 v{aR}, s28, v{aR}                      ; wave*256 + n*16
        v_lshrrev_b32 v{aW}, 2, v{vLANE}                 ; f'
        v_and_b32 v{aF3}, 3, v{vLANE}                    ; b
        s_lshl_b32 s28, s{sWAVE}, 10
        v_lshlrev_b32 v{aF2}, 4, v{aW}
        v_add_u32 v{aF2}, s28, v{aF2}                    ; tile*1024 + f'*16
        v_lshl_add_u32 v{aF1}, v{aF3}, 2, v{aF2}         ; + b*4
        s_lshl_b32 s28, s{sWAVE}, 5
        v_lshlrev_b32 v{aW}, 1, v{aW}
        v_add_u32 v{aW}, s28, v{aW}                      ; (tile*16 + f')*2
        v_lshl_add_u32 v{aW}, v{aF3}, 6, v{aW}           ; + b*64
        v_lshlrev_b32 v{vT}, 4, v{aF3}                   ; b*16
        v_mov_b32 v{vT+1}, 64
        v_and_b32 v{vT+2}, 4, v{vLANE}
        v_cmp_ne_u32 vcc, 0, v{vT+2}
        v_lshrrev_b32 v{vT+2}, 3, v{vLANE}
        v_lshlrev_b32 v{vT+2}, 8, v{vT+2}                ; (l>>3)*256
        v_cndmask_b32 v{vT}, v{vT}, v{vT+1}, vcc
        v_lshl_add_u32 v{aF3}, v{aF3}, 2, v{vT}
        v_add_u32 v{aF3}, v{aF3}, v{vT+2}
        s_mov_b32 s64, 0xf0f0f0f0
        s_mov_b32 s65, 0xf0f0f0f0
        v_lshlrev_b32 v{aP}, 4, v{vLANE}
        s_lshl_b32 s28, s{sWAVE}, 10
        s_add_u32 s28, s28, {WS_HB}
        s_mov_b32 s29, {WS_HB + 8192}
        s_lshl_b32 s30, s{sWAVE}, 11
        s_add_u32 s30, s30, {WS_CANB + 8*128}
        """)
        HGs = [P + 48 + 8 * k for k in range(3)]
        for k in range(3):
            for r in range(4):
                a(f"v_mov_b32 v{HGs[k]+4+r}, v{vTAG}")
        def h_issue2(k):
            a(f"buffer_load_dwordx4 v[{HGs[k]}:{HGs[k]+3}], v{aP}, s[{sWS}:{sWS+3}], s28 offen sc1")
            a(f"buffer_load_dwordx4 v[{HGs[k]+4}:{HGs[k]+7}], v{aP}, s[{sWS}:{sWS+3}], s29 offen sc1")
        def h_issue1(k):
            a(f"buffer_load_dwordx4 v[{HGs[k]}:{HGs[k]+3}], v{aP}, s[{sWS}:{sWS+3}], s28 offen sc1")
        def h_consume2(k):
            for b in range(4):
                a(f"ds_write_b16_d16_hi v{aH}, v{HGs[k]+b} offset:{L_HB + 1152*b}")
            for b in range(4):
                a(f"ds_write_b16_d16_hi v{aH}, v{HGs[k]+4+b} offset:{L_HB + 1152*b + 1024}")
        def h_consume1(k):
            for b in range(4):
                a(f"ds_write_b16_d16_hi v{aH}, v{HGs[k]+b} offset:{L_HB + 1152*b}")
        a(f"s_cmp_lg_u32 s{sWAVE}, 0\n s_cbranch_scc1 L_h1")
        ppoll(a, "L_hpoll2", ns[2], 2, h_issue2, lambda k: list(range(HGs[k], HGs[k] + 8)), vT + 13, h_consume2, pollsleep, stg,
              probe=((lambda: a(f"buffer_load_dword v{HGs[0]}, v{aP}, s[{sWS}:{sWS+3}], s{30 if canB else 28} offen sc1")), HGs[0], "1") if probe[2] else None, presleep=presl[2])
        a("s_branch L_h2\n L_h1:")
        ppoll(a, "L_hpoll1", ns[2], 1, h_issue1, lambda k: list(range(HGs[k], HGs[k] + 4)), vT + 13, h_consume1, pollsleep, stg,
              probe=((lambda: a(f"buffer_load_dword v{HGs[0]}, v{aP}, s[{sWS}:{sWS+3}], s{30 if canB else 28} offen sc1")), HGs[0], "1") if probe[2] else None, presleep=presl[2])
        a("L_h2:")
        stamp(5)
        a("s_waitcnt lgkmcnt(0)\n s_barrier")
        AB = P
        for ks in range(9):
            a(f"ds_read_b128 v[{AB+4*ks}:{AB+4*ks+3}], v{aA} offset:{L_HB + 64*ks}")
    GD = P + 40
    GRm = P + 44
    for ks in range(9 if not bdec else 0):
        a(f"s_waitcnt lgkmcnt({8-ks})")
        c = "0" if ks == 0 else f"v[{GD}:{GD+3}]"
        a(f"v_mfma_f32_16x16x32_bf16 v[{GD}:{GD+3}], v[{AB+4*ks}:{AB+4*ks+3}], v[{BB+4*ks}:{BB+4*ks+3}], {c}")
    a(f"s_and_b32 s28, s{sWAVE}, 3")
    lg = [a.label("L_gr") for _ in range(4)]; lge = a.label("L_gre")
    for t in range(1, 4):
        a(f"s_cmp_eq_u32 s28, {t}\n s_cbranch_scc1 {lg[t]}")
    for t in range(4):
        a(f"{lg[t]}:")
        kss = [t, t + 4] + ([8] if t == 0 else [])
        for i, ks in enumerate(kss):
            c = "0" if i == 0 else f"v[{GRm}:{GRm+3}]"
            a(f"v_mfma_f32_16x16x32_bf16 v[{GRm}:{GRm+3}], v[{AB+4*ks}:{AB+4*ks+3}], v[{AB+4*ks}:{AB+4*ks+3}], {c}")
        if t != 3:
            a(f"s_branch {lge}")
    a(f"""
    {lge}:
    s_nop 2
    ds_write_b128 v{aG}, v[{GD}:{GD+3}] offset:{L_GUF}
    s_nop 6
    s_mov_b64 exec, 0xffff
    ds_write_b128 v{aR}, v[{GRm}:{GRm+3}] offset:{L_GR}
    s_mov_b64 exec, -1
    s_waitcnt {"vmcnt(0) " if (bdec and wd_after) else ""}lgkmcnt(0)
    s_barrier
    """)
    def wd_reads(tag):
        for i in range(5):
            if i == 4:
                a(f"s_cmp_ge_u32 s{sWAVE}, 4\n s_cbranch_scc1 L_no5th{tag}")
            a(f"ds_read_b64_tr_b16 v[{WDd+4*i}:{WDd+4*i+1}], v{aWD} offset:{i*256}")
            a(f"ds_read_b64_tr_b16 v[{WDd+4*i+2}:{WDd+4*i+3}], v{aWD} offset:{i*256 + 4*1152}")
        a(f"L_no5th{tag}:")
    if bdec and wd_after:
        a(f"s_cmp_lt_u32 s{sWAVE}, 2\n s_cbranch_scc1 L_wd_later")
        wd_reads("a")
        a("L_wd_later:")
    stamp(6)
    def canc_store():
        lab = a.label("L_nocan")
        a(f"""
        s_cmp_lg_u32 s{sWAVE}, 7
        s_cbranch_scc1 {lab}
        s_lshl_b32 s30, s{sIDX}, 7
        s_add_u32 s30, s30, {WS_CANC}
        v_mov_b32 v{vT+14}, 0
        s_mov_b64 exec, 1
        buffer_store_dword v{vTAG}, v{vT+14}, s[{sWS}:{sWS+3}], s30 offen sc1
        s_mov_b64 exec, -1
        {lab}:
        """)
    if canC == 2:
        canc_store()
    a(f"s_cmp_ge_u32 s{sWAVE}, 2\n s_cbranch_scc1 L_nogelu")
    GE = P
    a(f"""
    ds_read_b32 v{GE+8}, v{aF3} offset:{L_GR}
    ds_read_b32 v{GE}, v{aF1} offset:{L_GUF}
    ds_read_b32 v{GE+1}, v{aF1} offset:{L_GUF+4096}
    ds_read_b32 v{GE+2}, v{aF1} offset:{L_GUF+2048}
    ds_read_b32 v{GE+3}, v{aF1} offset:{L_GUF+2048+4096}
    ds_read_b32 v{GE+4}, v{aF2} offset:{L_GUF+256}
    ds_read_b32 v{GE+5}, v{aF2} offset:{L_GUF+256+4096}
    ds_read_b32 v{GE+6}, v{aF2} offset:{L_GUF+256+2048}
    ds_read_b32 v{GE+7}, v{aF2} offset:{L_GUF+256+2048+4096}
    s_waitcnt lgkmcnt(8)
    """)
    X_, Y_, T_ = GE + 8, GE + 9, GE + 10
    a(f"""
    s_nop 1
    v_add_f32_dpp v{X_}, v{X_}, v{X_} row_ror:8 row_mask:0xf bank_mask:0xf
    """)
    xrow(a, [X_], [T_])
    a(f"""
    s_nop 1
    v_mov_b32_dpp v{Y_}, v{X_} row_ror:4 row_mask:0xf bank_mask:0xf
    s_nop 0
    v_cndmask_b32 v{T_}, v{Y_}, v{X_}, s[64:65]      ; sum
    v_cndmask_b32 v{Y_}, v{X_}, v{Y_}, s[64:65]      ; sumsq
    v_mul_f32 v{T_}, {INV576}, v{T_}                 ; mu
    v_mul_f32 v{Y_}, {INV576}, v{Y_}
    v_fma_f32 v{Y_}, -v{T_}, v{T_}, v{Y_}            ; var
    """)
    rbf(a, [(T_, Y_)], [X_])
    a(f"v_add_f32 v{Y_}, {EPS}, v{Y_}")
    rbf(a, [(Y_, Y_)], [X_])
    a(f"v_sqrt_f32 v{Y_}, v{Y_}\n s_nop 0")
    rbf(a, [(Y_, Y_)], [X_])
    a(f"""
    v_rcp_f32 v{X_}, v{Y_}
    s_waitcnt lgkmcnt(0)
    """)
    if bdec and wd_after:
        wd_reads("b")
    a(f"""
    v_add_f32 v{GE}, v{GE}, v{GE+1}
    v_add_f32 v{GE+2}, v{GE+2}, v{GE+3}
    v_add_f32 v{GE+4}, v{GE+4}, v{GE+5}
    v_add_f32 v{GE+6}, v{GE+6}, v{GE+7}
    v_fma_f32 v{GE}, -v{T_}, v{GE+4}, v{GE}
    v_fma_f32 v{GE+2}, -v{T_}, v{GE+6}, v{GE+2}
    """)
    fdiv(a, GE + 1, GE, X_, Y_, GE + 4)
    fdiv(a, GE + 3, GE + 2, X_, Y_, GE + 5)
    rbf(a, [(GE + 1, GE + 3)], [GE + 4])
    C1, C2 = 0x3d372713, 0x3f4c422a
    TWO_L2E = 0x4038aa3b
    g, t = GE + 1, GE + 4
    a(f"""
    v_mul_f32 v{t}, v{g}, v{g}
    v_mul_f32 v{t}, v{t}, v{g}
    v_mov_b32 v{t+1}, {C1}
    v_fma_f32 v{t}, v{t}, v{t+1}, v{g}
    v_mul_f32 v{t}, {C2}, v{t}
    v_mul_f32 v{t}, {TWO_L2E}, v{t}
    v_exp_f32 v{t}, v{t}
    v_mul_f32 v{t+2}, 0.5, v{g}
    v_add_f32 v{t}, 1.0, v{t}
    v_rcp_f32 v{t}, v{t}
    s_nop 0
    v_fma_f32 v{t}, -2.0, v{t}, 1.0
    v_add_f32 v{t}, 1.0, v{t}
    v_mul_f32 v{g}, v{t+2}, v{t}
    """)
    rbf(a, [(g, g)], [t])
    a(f"""
    v_mul_f32 v{g}, v{g}, v{GE+3}
    v_cvt_pk_bf16_f32 v{t}, v{g}, v{g}
    ds_write_b16 v{aW}, v{t} offset:{L_HF}
    s_waitcnt lgkmcnt(0)
    L_nogelu:
    s_barrier
    """)
    tstamp(14)
    if canC == 1:
        canc_store()
    a(f"""
    v_and_b32 v{vT+5}, 3, v{vN}
    v_lshlrev_b32 v{vT+5}, 6, v{vT+5}
    v_lshl_add_u32 v{vT+5}, v{vG}, 4, v{vT+5}
    ds_read_b128 v[{P}:{P+3}], v{vT+5} offset:{L_HF}
    """)
    if cmajZ:
        a(f"""
        s_lshl_b32 s28, s{sIDX}, 6
        s_add_u32 s28, s28, {WS_Z}
        s_mul_i32 s29, s{sWAVE}, {4*9216}
        s_add_u32 s28, s28, s29
        v_lshrrev_b32 v{vT+6}, 2, v{vN}
        v_mul_u32_u24 v{vT+6}, 9216, v{vT+6}
        v_and_b32 v{vT+7}, 3, v{vN}
        v_lshl_add_u32 v{vT+6}, v{vT+7}, 4, v{vT+6}
        """)
        zstep = 8 * 4 * 9216
    else:
        a(f"""
        s_mul_i32 s28, s{sIDX}, 9216
        s_add_u32 s28, s28, {WS_Z}
        s_lshl_b32 s29, s{sWAVE}, 8
        s_add_u32 s28, s28, s29
        v_lshlrev_b32 v{vT+6}, 4, v{vN}
        """)
        zstep = 2048
    a("s_waitcnt lgkmcnt(0)")
    ZD = P + 8
    for i in range(5):
        if i == 4:
            a(f"s_cmp_ge_u32 s{sWAVE}, 4\n s_cbranch_scc1 L_z4")
        a(f"v_mfma_f32_16x16x32_bf16 v[{ZD+4*i}:{ZD+4*i+3}], v[{P}:{P+3}], v[{WDd+4*i}:{WDd+4*i+3}], 0")
    a("L_z4:\n s_nop 7")
    for i in range(5):
        if i == 4:
            a(f"s_cmp_ge_u32 s{sWAVE}, 4\n s_cbranch_scc1 L_fin")
        addtag(a, range(ZD + 4*i, ZD + 4*i + 4))
        a(f"""
        s_add_u32 s29, s28, {zstep*i}
        s_mov_b64 exec, 0xffff
        buffer_store_dwordx4 v[{ZD+4*i}:{ZD+4*i+3}], v{vT+6}, s[{sWS}:{sWS+3}], s29 offen sc1
        s_mov_b64 exec, -1
        """)

    tstamp(13)
    a("L_fin:")
    for i in range(mark_tail, len(a.L) if dry else 0):
        if a.L[i].strip() == "s_barrier" and "noguard" not in a.L[i]:
            lab = a.label("L_nb")
            a.L[i] = f"    s_cmp_eq_u32 s{sDRY}, 1\n    s_cbranch_scc1 {lab}\n    s_barrier\n{lab}:"
    a(f"s_cmp_eq_u32 s{sDRY}, 1\n s_cbranch_scc1 L_dry_done" if dry else "")
    dbg_max(2)
    if stamps:
        a("s_waitcnt vmcnt(0)")
        stamp(8)
        a(f"""
        s_lshl_b32 s28, s{sW}, 3
        s_add_u32 s28, s28, s{sWAVE}
        s_lshl_b32 s28, s28, 6
        s_add_u32 s28, s28, {WS_STAMP}
        v_mov_b32 v{vT}, 0
        s_mov_b64 exec, 1
        """)
        for i in range(0, NSTAMP, 4):
            for r in range(4):
                a(f"v_mov_b32 v{vT+2+r}, s{sST+i+r}")
            a(f"buffer_store_dwordx4 v[{vT+2}:{vT+5}], v{vT}, s[{sWS}:{sWS+3}], s28 offen offset:{4*i}")
            a("s_nop 1")
        a("s_waitcnt vmcnt(0)")
    a("L_end:\n s_endpgm\n L_code_end:")

    if not dry:
        L2 = []; i = 0
        flat = "\n".join(a.L).split("\n")
        while i < len(flat):
            if flat[i].strip() == f"s_cmp_eq_u32 s{sDRY}, 1" and flat[i+1].strip().startswith("s_cbranch_scc1"):
                i += 2; continue
            if flat[i].strip() in (f"s_mov_b32 s{sDRY}, 0",):
                i += 1; continue
            L2.append(flat[i]); i += 1
        a.L = L2
    hdr = HEADER + f"; @launch grid=(256,1,1) block=(512,1,1) lds={LDS_BYTES}\n"
    hdr += '.amdgcn_target "amdgcn-amd-amdhsa--gfx950"\n.text\n'
    return hdr + kernel_begin(KNAME) + a.text() + kernel_desc(KNAME, 256, 102, 256)


HEADER = """;
;  prologue : LN(x[b]) and q[b,h] = LN(x) Wq[:, h] per workgroup (MFMA, natural-layout weights with a delta-masked A
;             attention partials -> 96 Wo workgroups (merge, o Wo) -> 144 column reducers (h = x + attn) ->
"""

if __name__ == "__main__":
    import sys
    kw = eval(sys.argv[2]) if len(sys.argv) > 2 else {}
    open(sys.argv[1], "w").write(gen(**kw))
```

```python
from asmlib import *

WS_E    = 0x0
WS_QP   = 0x10000
WS_AP   = 0xA0000
WS_Y    = 0xD0000
WS_HB   = 0x120000
WS_Z    = 0x130000
WS_CANB = 0x280000
WS_CANC = 0x288000
WS_STAMP= 0x300000
WS_SIZE = 0x400000

L_XD = 0
L_QB = L_XD + 9216
L_MRG = L_QB + 256
L_ML = L_MRG + 4096
L_OB = L_ML + 64
L_HB = L_OB + 1024
L_GUF = L_HB + 5760
L_GR = L_GUF + 8192
L_HF = L_GR + 2048
L_SMALL_END = L_HF + 256
L_WG = 32768
L_WU = L_WG + 36864
L_WD = L_WU + 36864
L_END = L_WD + 36864
assert L_SMALL_END <= L_WG
LDS_BYTES = 143360
assert L_END <= LDS_BYTES, L_END

LOG2E = 0x3fb8aa3b
SCALE = 0x3db504f3
INV576 = 0x3ae38e39
EPS = 0x3727c5ac

sWAVE = 3
sK, sV, sWS, sT, sU = 8, 12, 16, 20, 24
pX, pK, pV, pWQ, pWO, pBX, pWG, pWU = 32, 34, 36, 38, 40, 42, 44, 46
pWD, pOUT, pDBG, pWSP = 48, 50, 52, 54
sE, sW, sB, sH, sJ, sTO, sKV, sIT = 56, 57, 58, 59, 60, 61, 62, 63
sROW = 64
sOFF = 67
sL2E, sSCALE, sHI = 68, 69, 70
sCNT = 71
sDRY, sOUTN = 94, 95
sROLE, sIDX, sSLICE, sNT, sROT, sXTRA = 96, 97, 98, 99, 100, 101
sST = 74
NSTAMP = 16
vLANE, vN, vG, vOFFK, vOFFV = 0, 1, 2, 3, 4
vMASK = 5
vM, vL = 9, 10
vO = 12
vS = 16
vQ = 20
vTAG, vFF = 36, 37
vT = 38
vSTG = 64
vWQ = 192
vP = 172
vPP = 204


def srd(a, s, ptr, nbytes):
    a(f"""
    s_mov_b32 s{s}, s{ptr}
    s_and_b32 s{s+1}, s{ptr+1}, 0xffff
    s_mov_b32 s{s+2}, {nbytes}
    s_mov_b32 s{s+3}, 0x00020000
    """)


def row16(a, regs, op="add", ctrls=("quad_perm:[1,0,3,2]", "quad_perm:[2,3,0,1]", "row_half_mirror", "row_mirror")):
    ins = "v_add_f32" if op == "add" else "v_max_f32"
    n = len(regs)
    a("s_nop 1")
    for ctrl in ctrls:
        for r in regs:
            a(f"{ins}_dpp v{r}, v{r}, v{r} {ctrl} row_mask:0xf bank_mask:0xf")
        if n < 3:
            a(f"s_nop {2 - n}")


def xrow(a, regs, tmp, op="add", only32=False):
    ins = "v_add_f32" if op == "add" else "v_max_f32"
    sws = ("v_permlane16_swap_b32", "v_permlane32_swap_b32")
    if only32:
        sws = sws[1:]
    for sw in sws:
        for r, t in zip(regs, tmp):
            a(f"v_mov_b32 v{t}, v{r}")
        a("s_nop 1")
        for r, t in zip(regs, tmp):
            a(f"{sw} v{r}, v{t}")
        a("s_nop 1")
        for r, t in zip(regs, tmp):
            a(f"{ins} v{r}, v{r}, v{t}")


def wavesum(a, regs, tmp, op="add"):
    row16(a, regs, op)
    xrow(a, regs, tmp, op)


def rbf(a, pairs, t):
    for (x, y), tt in zip(pairs, t):
        a(f"v_cvt_pk_bf16_f32 v{tt}, v{x}, v{y}")
    for (x, y), tt in zip(pairs, t):
        a(f"v_lshlrev_b32 v{x}, 16, v{tt}")
        if y != x:
            a(f"v_and_b32 v{y}, s{sHI}, v{tt}")


def tagcheck(a, regs, acc, retry):
    a(f"v_xor_b32 v{acc}, v{regs[0]}, v{vTAG}")
    for r in regs[1:]:
        a(f"v_bitop3_b32 v{acc}, v{acc}, v{r}, v{vTAG} bitop3:0xf6")
    a(f"v_and_b32 v{acc}, v{acc}, v{vFF}")
    a(f"v_cmp_ne_u32 vcc, 0, v{acc}")
    a(f"s_cbranch_vccnz {retry}")


def addtag(a, regs):
    for r in regs:
        a(f"v_bfi_b32 v{r}, v{vFF}, v{vTAG}, v{r}")


def poll_head(a, name, bail="L_end"):
    a(f"{name}:")
    a(f"s_sub_u32 s{sTO}, s{sTO}, 1")
    a(f"s_cbranch_scc1 {bail}")


DRYG = False

def ppoll(a, name, nsets, nloads, issue, regs, acc, consume, sleep=0, stagger=0, probe=None, presleep=0):
    if DRYG:
        a(f"s_cmp_eq_u32 s{sDRY}, 1\n s_cbranch_scc1 {name}_ok0")
    if presleep:
        n = presleep
        while n > 0:
            a(f"s_sleep {min(n, 100)}")
            n -= 100
    if probe:
        emit, preg, mask = probe
        a(f"s_mov_b64 exec, {mask}")
        a(f"{name}_probe:")
        a(f"s_sub_u32 s{sTO}, s{sTO}, 1")
        a(f"s_cbranch_scc1 L_end")
        emit()
        a("s_waitcnt vmcnt(0)")
        a(f"v_xor_b32 v{acc}, v{preg}, v{vTAG}")
        a(f"v_and_b32 v{acc}, v{acc}, v{vFF}")
        a(f"v_cmp_ne_u32 vcc, 0, v{acc}")
        a(f"s_cbranch_vccnz {name}_probe")
        a("s_mov_b64 exec, -1")
    for k in range(nsets):
        issue(k)
        if stagger and k != nsets - 1:
            a(f"s_sleep {stagger}")
    a(f"{name}:")
    a(f"s_sub_u32 s{sTO}, s{sTO}, 1")
    a(f"s_cbranch_scc1 L_end")
    for k in range(nsets):
        a(f"s_waitcnt vmcnt({(nsets-1)*nloads})")
        r = regs(k)
        a(f"v_xor_b32 v{acc}, v{r[0]}, v{vTAG}")
        for x in r[1:]:
            a(f"v_bitop3_b32 v{acc}, v{acc}, v{x}, v{vTAG} bitop3:0xf6")
        a(f"v_and_b32 v{acc}, v{acc}, v{vFF}")
        a(f"v_cmp_ne_u32 vcc, 0, v{acc}")
        a(f"s_cbranch_vccz {name}_ok{k}")
        if sleep:
            a(f"s_sleep {sleep}")
        issue(k)
    a(f"s_branch {name}")
    for k in range(nsets):
        a(f"{name}_ok{k}:")
        consume(k)
        if k != nsets - 1:
            a(f"s_branch {name}_done")
    a(f"{name}_done:")


def fdiv(a, out, num, den_rcp, den, t):
    a(f"v_mul_f32 v{out}, v{num}, v{den_rcp}")
    a(f"v_fma_f32 v{t}, -v{out}, v{den}, v{num}")
    a(f"v_fma_f32 v{out}, v{t}, v{den_rcp}, v{out}")


def gen(D=3, stamps=False, stop=None, kvflags="nt", wflags="nt", late_w=False, pollsleep=0, codepf='tail', xflags="nt", cyc=False, pre=(0, 1, 2, 0), no_w=False, no_compute=False, no_q=False, early='', wo_late=False, gate='pair', bare=False, tailst=False, ns=(1, 1, 1, 1), stg=0, probe=(0, 1, 1, 1), presl=(0, 0, 0, 0), dry=False, shift=0, rotw=False, only=None, canB=False, canC=0, outfl='sc1', tlbw=0, locq=True, lq_pre=1, lq_mid=1, w0_mid=1, xmap=True, dbgA=False, dbgB=False, lq_late=2, gsleep=0, bdec=True, wo_e=4, wd_after=False, dbgtime=False, cmajY=False, cmajZ=False, rmap=True, sh2=0, wrot=0):
    global DRYG
    DRYG = bool(dry)
    a = Asm()
    NT = 32
    KV_OOB = 0x10000000
    P = vPP

    def tstamp(idx):
        if tailst:
            stamp(idx, True)

    def stamp(idx, force=False):
        if only is not None and idx not in only:
            return
        if tailst and idx in (9, 10, 11, 12, 13, 14) and not force:
            return
        if stamps:
            ins = "s_memtime" if cyc else "s_memrealtime"
            a(f"{ins} s[90:91]\n s_waitcnt lgkmcnt(0)\n s_mov_b32 s{sST+idx}, s90")

    def psleep():
        if pollsleep:
            a(f"s_sleep {pollsleep}")

    def code_prefetch(nwaves, lo, hi, tmp, dst=None):
        a(f"""
        s_getpc_b64 s[92:93]
        {a.label("L_pc")}:
        """)
        lab = a.L[-1].strip()[:-1]
        a(f"""
        s_add_u32 s92, s92, {lo}-{lab}
        s_addc_u32 s93, s93, {-1 if lo == "L_code0" else 0}
        s_lshl_b32 s28, s{sWAVE}, 10
        v_lshlrev_b32 v{tmp+4}, 4, v{vLANE}
        v_add_u32 v{tmp+4}, s28, v{tmp+4}
        s_mov_b32 s29, {hi}-{lo}-16
        """)
        for i in range(NPF[(lo, hi)]):
            a(f"v_min_u32 v{tmp+5}, s29, v{tmp+4}")
            d_ = tmp if dst is None else dst
            a(f"global_load_dwordx4 v[{d_}:{d_+3}], v{tmp+5}, s[92:93]")
            a(f"v_add_u32 v{tmp+4}, {1024*nwaves}, v{tmp+4}")
    NPF = {("L_code0", "L_code_end"): 2, ("L_tail0", "L_code_end"): 2}
    ROLES_OLD = f"""    ; ---- roles: even w < 224: Wo (w < 192) or spare ; otherwise stage B
    s_lshr_b32 s29, s2, 1                  ; P
    s_mov_b32 s{sIDX}, s29
    s_cmp_lt_u32 s29, 96
    s_cselect_b32 s{sROLE}, 1, 2
    s_cselect_b32 s30, {shift}, 0
    s_cmp_eq_u32 s28, 1
    s_cselect_b32 s{sROLE}, 0, s{sROLE}
    s_lshr_b32 s31, s29, 3
    s_lshl_b32 s31, s31, 2
    s_and_b32 s4, s29, 3
    s_add_u32 s31, s31, s4
    s_lshl_b32 s31, s31, 1
    s_bfe_u32 s4, s29, 0x10002
    s_add_u32 s{sSLICE}, s31, s4
    s_cmp_lt_u32 s2, 224
    s_cbranch_scc1 L_role_done
    s_mov_b32 s{sROLE}, 0
    s_sub_u32 s4, s2, 224                  ; p'
    s_add_u32 s{sIDX}, s4, 112
    s_lshr_b32 s31, s4, 4
    s_lshl_b32 s31, s31, 3
    s_and_b32 s5, s4, 7
    s_add_u32 s31, s31, s5
    s_lshl_b32 s31, s31, 1
    s_bfe_u32 s5, s4, 0x10003
    s_add_u32 s31, s31, s5
    s_add_u32 s{sSLICE}, s31, 112
    L_role_done:
    s_sub_u32 s30, 256, s30
    s_and_b32 s28, s{sJ}, 1
    s_cmp_eq_u32 s28, 1
    s_cselect_b32 s4, s30, 0               ; t0
    s_cselect_b32 s5, 512, s30             ; t1
    """
    ROLES_NEW = f"""
    s_and_b32 s29, s2, 7                   ; x
    s_lshr_b32 s30, s2, 4                  ; r
    s_lshl_b32 s31, s30, 3
    s_add_u32 s{sIDX}, s31, s29            ; r*8 + x
    s_lshr_b32 s31, s30, 1
    s_lshl_b32 s31, s31, 3
    s_add_u32 s31, s31, s29
    s_lshl_b32 s31, s31, 1
    s_and_b32 s4, s30, 1
    s_add_u32 s{sSLICE}, s31, s4           ; ((r>>1)*8 + x)*2 + (r&1)
    s_mov_b32 s{sROLE}, 0
    s_bitcmp1_b32 s2, 3
    s_cbranch_scc1 L_role_done
    s_cmp_lt_u32 s30, 12
    s_cselect_b32 s{sROLE}, 1, 2
    s_cmp_lt_u32 s30, 14
    s_cbranch_scc1 L_role_done
    s_mov_b32 s{sROLE}, 0
    s_add_u32 s{sIDX}, s{sIDX}, {128 - 14*8}
    s_lshl_b32 s31, s29, 1
    s_sub_u32 s4, s30, 14
    s_add_u32 s31, s31, s4
    s_add_u32 s{sSLICE}, s31, 128
    L_role_done:
    s_cmp_lt_u32 s30, 12
    s_cselect_b32 s30, {sh2}, 0
    s_and_b32 s28, s{sJ}, 1
    s_sub_u32 s5, 256, s30                 ; s=0: t1 = 256 - sh
    s_mov_b32 s4, 0
    s_mov_b32 s6, 0
    s_cmp_eq_u32 s28, 1
    s_cselect_b32 s4, 256, 0
    s_cselect_b32 s5, 512, s5
    s_cselect_b32 s6, s30, 0
    """
    ROLES = ROLES_NEW if rmap else ROLES_OLD
    XMAP = "" if not xmap else f"""
    s_and_b32 s29, s2, 7
    s_lshr_b32 s30, s2, 6
    s_lshl_b32 s30, s30, 3
    s_add_u32 s{sH}, s29, s30              ; h = (w&7) + 8*(w>>6)
    s_bfe_u32 s{sJ}, s2, 0x30003           ; j = (w>>3)&7
    s_lshr_b32 s{sB}, s{sJ}, 1
    """
    def dbg_max(slot, invert=False):
        if not dbgtime:
            return
        lab = a.label("L_dbg")
        a(f"s_cmp_ge_u32 s{sWAVE}, {2 if slot == 2 else 1}\n s_cbranch_scc1 {lab}")
        a(f"""
        s_memrealtime s[90:91]
        s_waitcnt lgkmcnt(0)
        {"s_not_b32 s90, s90" if invert else ""}
        v_mov_b32 v62, s90
        v_mov_b32 v63, {4*slot}
        s_mov_b64 exec, 1
        global_atomic_umax v63, v62, s[{pDBG}:{pDBG+1}]
        s_mov_b64 exec, -1
        {lab}:
        """)

    a(f"""
    L_code0:
    s_cmp_ge_u32 s2, 256
    s_cbranch_scc1 L_end
    s_load_dwordx16 s[32:47], s[0:1], 0
    s_load_dwordx8 s[48:55], s[0:1], 64
    v_lshrrev_b32 v{P}, 6, v0
    v_and_b32 v{vLANE}, 63, v0
    v_readfirstlane_b32 s{sWAVE}, v{P}
    v_and_b32 v{vN}, 15, v{vLANE}
    v_lshrrev_b32 v{vG}, 4, v{vLANE}
    v_lshlrev_b32 v{vOFFK}, 8, v{vN}
    v_lshl_add_u32 v{vOFFK}, v{vG}, 4, v{vOFFK}
    v_lshlrev_b32 v{vOFFV}, 10, v{vG}
    v_lshl_add_u32 v{vOFFV}, v{vN}, 4, v{vOFFV}
    s_mov_b32 s{sW}, s2
    s_lshr_b32 s{sB}, s2, 6
    s_lshr_b32 s{sH}, s2, 1
    s_and_b32 s{sH}, s{sH}, 31
    s_and_b32 s28, s2, 1
    s_lshl_b32 s{sJ}, s{sB}, 1
    s_add_u32 s{sJ}, s{sJ}, s28
    {XMAP}
    s_mov_b32 s{sTO}, 2000000
    {ROLES}
    s_mov_b32 s{sL2E}, {LOG2E}
    s_mov_b32 s{sSCALE}, {SCALE}
    s_mov_b32 s{sHI}, 0xffff0000
    s_mov_b32 s{sDRY}, 0
    s_mov_b32 s{sOUTN}, 4608
    """)
    if stamps:
        for i in range(NSTAMP):
            a(f"s_mov_b32 s{sST+i}, 0")
    stamp(0)
    if codepf is True and not locq:
        code_prefetch(8, "L_code0", "L_code_end", vPP + 44)
    a("s_waitcnt lgkmcnt(0)")
    stamp(9)
    dbg_max(0, True)
    a(f"s_load_dword s{sE}, s[{pWSP}:{pWSP+1}], 0")
    srd(a, sK, pK, 0x10000000)
    srd(a, sV, pV, 0x10000000)
    srd(a, sWS, pWSP, WS_SIZE)
    srd(a, sT, pX, 4608)
    srd(a, sU, pWQ, 576 * 8192)
    WROT = "" if not wrot else f"""
    s_mul_i32 s{sROT}, s{sW}, {wrot}
    s_add_u32 s{sROT}, s{sROT}, s{sWAVE}
    s_lshl_b32 s{sROT}, s{sROT}, 12
    """
    XTRA = "" if not rmap else f"""
    s_cmp_lt_u32 s{sWAVE}, s6
    s_addc_u32 s{sNT}, s{sNT}, 0
    s_sub_u32 s28, 256, s6
    s_add_u32 s28, s28, s{sWAVE}
    s_lshl_b32 s28, s28, 12
    s_lshl_b32 s{sXTRA}, s{sB}, 5
    s_add_u32 s{sXTRA}, s{sXTRA}, s{sH}
    s_lshl_b32 s{sXTRA}, s{sXTRA}, 21
    s_add_u32 s{sXTRA}, s{sXTRA}, s28
    """
    a(f"""
    s_lshl_b32 s{sKV}, s{sB}, 5
    s_add_u32 s{sKV}, s{sKV}, s{sH}
    s_lshl_b32 s{sKV}, s{sKV}, 21
    s_lshl_b32 s28, s4, 12
    s_add_u32 s{sKV}, s{sKV}, s28
    s_sub_u32 s29, s5, s4                  ; L
    s_lshr_b32 s{sNT}, s29, 3
    s_and_b32 s29, s29, 7                  ; remainder
    {'s_add_u32 s28, s%d, s%d' % (sNT, sWAVE) if rotw else 's_mov_b32 s28, s%d' % sWAVE}
    s_and_b32 s28, s28, 7
    s_cmp_lt_u32 s28, s29
    s_addc_u32 s{sNT}, s{sNT}, 0
    {XTRA}
    {WROT}
    s_mov_b32 s{sIT}, 0
    """)

    def kloads(s):
        r = vSTG + 32 * s
        for j in range(4):
            a(f"buffer_load_dwordx4 v[{r+4*j}:{r+4*j+3}], v{vOFFK}, s[{sK}:{sK+3}], s{sOFF} offen offset:{64*j} {kvflags}")

    def vloads(s):
        r = vSTG + 32 * s + 16
        for j in range(4):
            a(f"buffer_load_dwordx4 v[{r+4*j}:{r+4*j+3}], v{vOFFV}, s[{sV}:{sV+3}], s{sOFF} offen offset:{256*j} {kvflags}")

    def nextoff():
        if wrot:
            a(f"""
            s_and_b32 s{sOFF}, s{sROT}, 0xfffff
            s_add_u32 s{sOFF}, s{sOFF}, s{sKV}
            s_add_u32 s{sROT}, s{sROT}, 32768
            s_cmp_ge_u32 s{sIT}, s{sNT}
            s_cselect_b32 s{sOFF}, {KV_OOB}, s{sOFF}
            s_add_u32 s{sIT}, s{sIT}, 1
            """)
            return
        if rotw:
            a(f"""
            s_add_u32 s{sOFF}, s{sIT}, s{sWAVE}
            s_and_b32 s{sOFF}, s{sOFF}, 7
            s_lshl_b32 s{sOFF}, s{sOFF}, 12
            s_add_u32 s{sOFF}, s{sOFF}, s{sKV}
            """)
        else:
            a(f"""
            s_lshl_b32 s{sOFF}, s{sWAVE}, 12
            s_add_u32 s{sOFF}, s{sOFF}, s{sKV}
            """)
        if rmap and sh2:
            a(f"s_cmp_eq_u32 s{sIT}, 32\n s_cselect_b32 s{sOFF}, s{sXTRA}, s{sOFF}")
        a(f"""
        s_cmp_ge_u32 s{sIT}, s{sNT}
        s_cselect_b32 s{sOFF}, {KV_OOB}, s{sOFF}
        s_add_u32 s{sKV}, s{sKV}, 32768
        s_add_u32 s{sIT}, s{sIT}, 1
        """)

    def prefetch(lo=0, hi=D):
        for s in range(lo, hi):
            nextoff(); kloads(s); vloads(s)

    a0, a1, b0, b1 = pre

    def by_class(fa, fb, f7=None):
        la, lb, le = a.label("L_cA"), a.label("L_cB"), a.label("L_cE")
        a(f"s_cmp_lt_u32 s{sWAVE}, 4\n s_cbranch_scc1 {la}")
        a(f"s_cmp_lt_u32 s{sWAVE}, 7\n s_cbranch_scc1 {lb}")
        if f7: f7()
        a(f"s_branch {le}\n {la}:")
        fa()
        a(f"s_branch {le}\n {lb}:")
        fb()
        a(f"{le}:")

    def MASKS():
        t0, t1, t2 = vT + 2, vT + 3, vT + 4
        a(f"""
        v_and_b32 v{t0}, 7, v{vN}
        v_and_b32 v{t1}, 1, v{t0}
        v_lshlrev_b32 v{t1}, 4, v{t1}
        v_mov_b32 v{t2}, 0xffff
        v_lshlrev_b32 v{t1}, v{t1}, v{t2}
        v_lshrrev_b32 v{t0}, 1, v{t0}
        v_mov_b32 v{vFF}, 0xff
        """)
        for d in range(4):
            a(f"v_cmp_eq_u32 vcc, {d}, v{t0}\n s_nop 1\n v_cndmask_b32 v{vMASK+d}, 0, v{t1}, vcc")
        a(f"""
        s_waitcnt lgkmcnt(0)
        s_add_u32 s{sE}, s{sE}, 1
        s_and_b32 s28, s{sE}, 0xff
        v_mov_b32 v{vTAG}, s28
        """)

    if bare:
        prefetch(0, D)
        MASKS()
        a("s_branch L_bare")
    if locq:
        X, Dv = 64, 74
        A0, A1, A2, A3, A4 = 84, 85, 86, 87, 88
        vW18, AXS, AO = 160, 232, 250
        a(f"""
        v_lshlrev_b32 v{vT+1}, 13, v{vG}
        v_lshl_add_u32 v{vT+1}, v{vN}, 4, v{vT+1}        ; g*8192 + c*16
        s_lshl_b32 s30, s{sWAVE}, 15
        s_lshl_b32 s31, s{sH}, 8
        s_add_u32 s30, s30, s31
        s_cmp_lg_u32 s{sWAVE}, 0
        s_cbranch_scc1 L_lq_other
        v_lshlrev_b32 v{vT}, 1, v{vLANE}
        s_mul_i32 s28, s{sB}, 1152
        """)
        for i in range(9):
            a(f"buffer_load_ushort v{X+i}, v{vT}, s[{sT}:{sT+3}], s28 offen offset:{128*i} {xflags}")
        def wq18():
            for u in range(18):
                a(f"buffer_load_dwordx4 v[{vW18+4*u}:{vW18+4*u+3}], v{vT+1}, s[{sU}:{sU+3}], s30 offen {wflags}")
                if u != 17:
                    a(f"s_add_u32 s30, s30, {32*8192}")
        wq18()
        a("s_branch L_lq_issued\n L_lq_other:")
        lq_m = min(D, lq_pre + lq_mid)
        w0_m = min(D, w0_mid)
        prefetch(0, lq_pre)
        wq18()
        prefetch(lq_pre, lq_m)
        a("L_lq_issued:")
        if codepf is True:
            code_prefetch(8, "L_code0", "L_code_end", vT + 8, dst=60)
        MASKS()
        ncp = 0
        a(f"s_cmp_lg_u32 s{sWAVE}, 0\n s_cbranch_scc1 L_lq_noln")
        a(f"s_waitcnt vmcnt({18 + ncp})")
        stamp(10)
        for i in range(9):
            a(f"v_lshlrev_b32 v{X+i}, 16, v{X+i}")
        a(f"v_add_f32 v{A0}, v{X}, v{X+1}")
        a(f"v_mul_f32 v{A2}, v{X}, v{X}")
        for i in range(1, 9):
            if i >= 2:
                a(f"v_add_f32 v{A0}, v{A0}, v{X+i}")
            a(f"v_fmac_f32 v{A2}, v{X+i}, v{X+i}")
        wavesum(a, [A0, A2], [A1, A3])
        a(f"""
        v_mul_f32 v{A0}, {INV576}, v{A0}
        v_mul_f32 v{A2}, {INV576}, v{A2}
        v_fma_f32 v{A2}, -v{A0}, v{A0}, v{A2}
        """)
        rbf(a, [(A0, A2)], [A1])
        a(f"v_add_f32 v{A2}, {EPS}, v{A2}")
        rbf(a, [(A2, A2)], [A1])
        a(f"v_sqrt_f32 v{A2}, v{A2}\n s_nop 0")
        rbf(a, [(A2, A2)], [A1])
        a(f"v_rcp_f32 v{A3}, v{A2}")
        for i in range(9):
            a(f"v_sub_f32 v{Dv+i}, v{X+i}, v{A0}")
        rbf(a, [(Dv, Dv+1), (Dv+2, Dv+3), (Dv+4, Dv+5), (Dv+6, Dv+7), (Dv+8, Dv+8)], [X, X+1, X+2, X+3, X+4])
        for i in range(9):
            fdiv(a, X + i, Dv + i, A3, A2, A4)
        for i in range(9):
            a(f"v_cvt_pk_bf16_f32 v{X+i}, v{X+i}, v{X+i}")
        a(f"v_lshlrev_b32 v{A4}, 2, v{vLANE}")
        for i in range(9):
            a(f"ds_write_b32 v{A4}, v{X+i} offset:{L_XD + 256*i}")
        a("s_waitcnt lgkmcnt(0)")
        prefetch(0, w0_m)
        a("L_lq_noln:")
        a("s_barrier")
        stamp(11)
        a(f"""
        s_lshl_b32 s28, s{sWAVE}, 4
        v_lshlrev_b32 v{vT}, 2, v{vG}
        v_add_u32 v{vT}, s28, v{vT}                      ; g*4 + wave*16
        """)
        for u in range(18):
            a(f"ds_read_b32 v{AXS+u}, v{vT} offset:{L_XD + 128*u}")
            if u == 8:
                a("s_waitcnt lgkmcnt(0)")
        lw0, lwe = a.label("L_lqw0"), a.label("L_lqwe")
        a(f"s_cmp_eq_u32 s{sWAVE}, 0\n s_cbranch_scc1 {lw0}")
        a(f"s_waitcnt vmcnt({8*(lq_m-lq_pre) + ncp})\n s_branch {lwe}\n {lw0}:\n s_waitcnt vmcnt({8*w0_m})\n {lwe}:")
        a("s_waitcnt lgkmcnt(0)")
        if dbgA:
            a("s_waitcnt vmcnt(0)")
        stamp(12)
        for u in range(18):
            ao = AO if True else AO
            for d in range(4):
                a(f"v_and_b32 v{ao+d}, v{AXS+u}, v{vMASK+d}")
            a("s_nop 1")
            c = "0" if u == 0 else f"v[{vS}:{vS+3}]"
            a(f"v_mfma_f32_16x16x32_bf16 v[{vS}:{vS+3}], v[{ao}:{ao+3}], v[{vW18+4*u}:{vW18+4*u+3}], {c}")
            if dbgB:
                a("s_nop 7")
        a(f"""
        v_lshlrev_b32 v{vT}, 5, v{vN}                 ; c*32
        v_and_b32 v{vT+1}, 1, v{vG}
        v_lshl_add_u32 v{vT}, v{vT+1}, 4, v{vT}       ; + (g&1)*16
        s_lshl_b32 s28, s{sWAVE}, 9
        v_add_u32 v{vT}, s28, v{vT}
        s_nop 4
        ds_write_b128 v{vT}, v[{vS}:{vS+3}] offset:{L_MRG}
        """)
        if lq_m < D or w0_m < D:
            l0, le = a.label("L_lqr0"), a.label("L_lqre")
            a(f"s_cmp_eq_u32 s{sWAVE}, 0\n s_cbranch_scc1 {l0}")
            r1 = lq_late if lq_late is not None else D
            prefetch(lq_m, max(lq_m, min(D, r1)))
            a(f"s_branch {le}\n {l0}:")
            prefetch(w0_m, max(w0_m, min(D, r1)))
            a(f"{le}:")
        a("""
        s_waitcnt lgkmcnt(0)
        s_barrier
        """)
        stamp(13)
        QS = 232
        a(f"""
        s_cmp_lg_u32 s{sWAVE}, 1
        s_cbranch_scc1 L_lq_qdone
        v_and_b32 v{vT}, 31, v{vLANE}
        v_lshlrev_b32 v{vT+1}, 4, v{vT}
        """)
        for w in range(4):
            a(f"ds_read_b128 v[{QS+4*w}:{QS+4*w+3}], v{vT+1} offset:{L_MRG + 512*w}")
        for w in range(4, 8):
            a(f"ds_read_b128 v[{160+4*w}:{160+4*w+3}], v{vT+1} offset:{L_MRG + 512*w}")
        a("s_waitcnt lgkmcnt(0)")
        for r in range(0, 4, 2):
            a(f"v_pk_add_f32 v[{QS+r}:{QS+r+1}], v[{QS+r}:{QS+r+1}], v[{QS+4+r}:{QS+5+r}]")
            a(f"v_pk_add_f32 v[{QS+8+r}:{QS+9+r}], v[{QS+8+r}:{QS+9+r}], v[{QS+12+r}:{QS+13+r}]")
            a(f"v_pk_add_f32 v[{176+r}:{177+r}], v[{176+r}:{177+r}], v[{180+r}:{181+r}]")
            a(f"v_pk_add_f32 v[{184+r}:{185+r}], v[{184+r}:{185+r}], v[{188+r}:{189+r}]")
        for r in range(0, 4, 2):
            a(f"v_pk_add_f32 v[{QS+r}:{QS+r+1}], v[{QS+r}:{QS+r+1}], v[{QS+8+r}:{QS+9+r}]")
            a(f"v_pk_add_f32 v[{176+r}:{177+r}], v[{176+r}:{177+r}], v[{184+r}:{185+r}]")
        for r in range(0, 4, 2):
            a(f"v_pk_add_f32 v[{QS+r}:{QS+r+1}], v[{QS+r}:{QS+r+1}], v[{176+r}:{177+r}]")
        a(f"""
        v_cvt_pk_bf16_f32 v{QS+4}, v{QS}, v{QS+1}
        v_cvt_pk_bf16_f32 v{QS+5}, v{QS+2}, v{QS+3}
        v_lshlrev_b32 v{vT}, 3, v{vT}
        ds_write_b64 v{vT}, v[{QS+4}:{QS+5}] offset:{L_QB}
        s_waitcnt lgkmcnt(0)
        L_lq_qdone:
        s_barrier
        """)
        stamp(14)
        r1 = lq_late if lq_late is not None else D
        if max(lq_m, min(D, r1)) < D or max(w0_m, min(D, r1)) < D:
            l0, le = a.label("L_lqs0"), a.label("L_lqse")
            a(f"s_cmp_eq_u32 s{sWAVE}, 0\n s_cbranch_scc1 {l0}")
            prefetch(max(lq_m, min(D, r1)), D)
            a(f"s_branch {le}\n {l0}:")
            prefetch(max(w0_m, min(D, r1)), D)
            a(f"{le}:")
    else:
        X = P
        a(f"""
        s_cmp_ge_u32 s{sWAVE}, 4
        s_cbranch_scc1 L_nox
        v_lshlrev_b32 v{vT}, 1, v{vLANE}
        s_mul_i32 s28, s{sWAVE}, 1152
        """)
        for i in range(9):
            a(f"buffer_load_ushort v{X+i}, v{vT}, s[{sT}:{sT+3}], s28 offen offset:{128*i} {xflags}")
        a("L_nox:")
        a(f"""
        v_lshlrev_b32 v{vT+1}, 13, v{vG}
        v_lshl_add_u32 v{vT+1}, v{vN}, 4, v{vT+1}        ; g*8192 + c*16
        """)
        for u in range(3):
            a(f"""
            s_add_u32 s29, s{sWAVE}, {8*u}
            s_lshl_b32 s30, s29, 2
            s_mul_i32 s28, s{sJ}, 72
            s_add_u32 s30, s30, s28
            s_mov_b32 s{sROW+u}, s30
            s_lshl_b32 s30, s30, 13
            s_lshl_b32 s31, s{sH}, 8
            s_add_u32 s30, s30, s31
            s_cmp_ge_u32 s29, 18
            s_cselect_b32 s30, {576*8192}, s30
            s_cselect_b32 s{sROW+u}, s28, s{sROW+u}
            buffer_load_dwordx4 v[{vWQ+4*u}:{vWQ+4*u+3}], v{vT+1}, s[{sU}:{sU+3}], s30 offen {wflags}
            """)
        by_class(lambda: prefetch(0, a0), lambda: prefetch(0, b0))
        MASKS()
        Dv = P + 10
        A0, A1, A2, A3, A4, A5 = (P + 20 + i for i in range(6))
        a(f"""
        s_cmp_ge_u32 s{sWAVE}, 4
        s_cbranch_scc1 L_noln
        s_waitcnt vmcnt({3 + 8*a0})
        """)
        stamp(10)
        for i in range(9):
            a(f"v_lshlrev_b32 v{X+i}, 16, v{X+i}")
        a(f"v_add_f32 v{A0}, v{X}, v{X+1}")
        for i in range(2, 9):
            a(f"v_add_f32 v{A0}, v{A0}, v{X+i}")
        wavesum(a, [A0], [A1])
        a(f"v_mul_f32 v{A0}, {INV576}, v{A0}")
        for i in range(9):
            a(f"v_sub_f32 v{Dv+i}, v{X+i}, v{A0}")
        a(f"v_mul_f32 v{A2}, v{Dv}, v{Dv}")
        for i in range(1, 9):
            a(f"v_fmac_f32 v{A2}, v{Dv+i}, v{Dv+i}")
        wavesum(a, [A2], [A1])
        a(f"v_mul_f32 v{A2}, {INV576}, v{A2}")
        rbf(a, [(A0, A2)], [A1])
        a(f"v_add_f32 v{A2}, {EPS}, v{A2}")
        rbf(a, [(A2, A2)], [A1])
        a(f"v_sqrt_f32 v{A2}, v{A2}\n s_nop 0")
        rbf(a, [(A2, A2)], [A1])
        a(f"v_rcp_f32 v{A3}, v{A2}")
        for i in range(9):
            a(f"v_sub_f32 v{Dv+i}, v{X+i}, v{A0}")
        rbf(a, [(Dv, Dv+1), (Dv+2, Dv+3), (Dv+4, Dv+5), (Dv+6, Dv+7), (Dv+8, Dv+8)], [X, X+1, X+2, X+3, X+4])
        for i in range(9):
            fdiv(a, X + i, Dv + i, A3, A2, A4)
        for i in range(9):
            a(f"v_cvt_pk_bf16_f32 v{X+i}, v{X+i}, v{X+i}")
        a(f"""
        s_mul_i32 s28, s{sWAVE}, {576*4}
        v_lshlrev_b32 v{A4}, 2, v{vLANE}
        v_add_u32 v{A4}, s28, v{A4}
        """)
        for i in range(9):
            a(f"ds_write_b32 v{A4}, v{X+i} offset:{L_XD + 256*i}")
        a("L_noln:")
        a("s_waitcnt lgkmcnt(0)\n s_barrier")
        stamp(11)
        AX = P
        AO = P + 8
        QA = P + 12
        a(f"""
        v_lshrrev_b32 v{vT}, 3, v{vN}                 ; m>>3
        v_mul_u32_u24 v{vT}, 576, v{vT}
        v_add_u32 v{vT}, v{vT}, v{vG}
        v_lshlrev_b32 v{vT}, 2, v{vT}                 ; ((m>>3)*576 + g)*4
        """)
        for u in range(3):
            a(f"""
            s_lshl_b32 s28, s{sROW+u}, 2
            v_add_u32 v{vT+1}, s28, v{vT}
            ds_read_b32 v{AX+2*u}, v{vT+1} offset:{L_XD}
            ds_read_b32 v{AX+2*u+1}, v{vT+1} offset:{L_XD + 2*576*4}
            """)
        by_class(lambda: a(f"s_waitcnt vmcnt({8*a0})"), lambda: a(f"s_waitcnt vmcnt({8*b0})"), lambda: a("s_waitcnt vmcnt(0)"))
        a("s_waitcnt lgkmcnt(0)")
        stamp(12)
        for u in range(3):
            for pp in range(2):
                for d in range(4):
                    a(f"v_and_b32 v{AO+d}, v{AX+2*u+pp}, v{vMASK+d}")
                a("s_nop 1")
                c = "0" if u == 0 else f"v[{QA+4*pp}:{QA+4*pp+3}]"
                a(f"v_mfma_f32_16x16x32_bf16 v[{QA+4*pp}:{QA+4*pp+3}], v[{AO}:{AO+3}], v[{vWQ+4*u}:{vWQ+4*u+3}], {c}")
                a("s_nop 1")
        a(f"""
        v_lshrrev_b32 v{vT}, 1, v{vG}
        v_lshlrev_b32 v{vT}, 9, v{vT}
        v_lshl_add_u32 v{vT}, v{vN}, 5, v{vT}
        v_and_b32 v{vT+1}, 1, v{vG}
        v_lshl_add_u32 v{vT}, v{vT+1}, 4, v{vT}
        s_nop 7
        """)
        a(f"s_lshl_b32 s28, s{sWAVE}, 11\n s_add_u32 s28, s28, {L_WG}\n v_add_u32 v{vT}, s28, v{vT}")
        for pp in range(2):
            a(f"ds_write_b128 v{vT}, v[{QA+4*pp}:{QA+4*pp+3}] offset:{pp*1024}")
        a("s_waitcnt lgkmcnt(0)\n s_barrier")
        stamp(13)
        by_class(lambda: prefetch(a0, a0 + a1), lambda: prefetch(b0, b0 + b1))
        G0 = P
        a(f"""
        s_cmp_lg_u32 s{sWAVE}, 7
        s_cbranch_scc1 L_qwait
        v_lshlrev_b32 v{vT}, 4, v{vLANE}
        v_add_u32 v{vT+1}, {L_WG}, v{vT}
        """)
        for half in range(2):
            base = G0 + 8 if half == 0 else G0 + 8
            for w in range(8):
                dst = (G0 + 4*half) if w == 0 else (G0 + 8 + 4*(w-1))
                a(f"ds_read_b128 v[{dst}:{dst+3}], v{vT+1} offset:{2048*w + 1024*half}")
            a("s_waitcnt lgkmcnt(0)")
            for w in range(1, 8):
                for r in range(4):
                    a(f"v_add_f32 v{G0+4*half+r}, v{G0+4*half+r}, v{G0+8+4*(w-1)+r}")
        a(f"""
        s_lshl_b32 s28, s{sH}, 3
        s_add_u32 s28, s28, s{sJ}
        s_lshl_b32 s28, s28, 11
        s_add_u32 s28, s28, {WS_QP}
        """)
        addtag(a, range(G0, G0 + 8))
        a(f"""
        buffer_store_dwordx4 v[{G0}:{G0+3}], v{vT}, s[{sWS}:{sWS+3}], s28 offen sc1
        buffer_store_dwordx4 v[{G0+4}:{G0+7}], v{vT}, s[{sWS}:{sWS+3}], s28 offen offset:1024 sc1
        v_lshrrev_b32 v{vT+1}, 5, v{vLANE}
        v_lshlrev_b32 v{vT+1}, 11, v{vT+1}
        v_and_b32 v{vT+2}, 31, v{vLANE}
        v_lshl_add_u32 v{vT+1}, v{vT+2}, 4, v{vT+1}      ; jj*2048 + c4*16
        s_lshl_b32 s28, s{sH}, 14
        s_lshl_b32 s29, s{sB}, 9
        s_add_u32 s28, s28, s29
        s_add_u32 s28, s28, {WS_QP}
        s_add_u32 s29, s28, 4096
        s_add_u32 s30, s28, 8192
        s_add_u32 s31, s28, 12288
        s_nop 1
        """)
        G1 = P + 8
        poll_head(a, "L_qpoll")
        psleep()
        for i in range(4):
            a(f"buffer_load_dwordx4 v[{G1+4*i}:{G1+4*i+3}], v{vT+1}, s[{sWS}:{sWS+3}], s{28+i} offen sc1")
        a("s_waitcnt vmcnt(0)")
        if not no_q:
            tagcheck(a, list(range(G1, G1 + 16)), vT + 3, "L_qpoll")
        stamp(14)
        for r in range(4):
            a(f"v_add_f32 v{G1+r}, v{G1+r}, v{G1+4+r}")
            a(f"v_add_f32 v{G1+8+r}, v{G1+8+r}, v{G1+12+r}")
        for r in range(4):
            a(f"v_add_f32 v{G1+r}, v{G1+r}, v{G1+8+r}")
        xrow(a, [G1, G1+1, G1+2, G1+3], [G1+4, G1+5, G1+6, G1+7], only32=True)
        a(f"""
        v_cvt_pk_bf16_f32 v{G1+8}, v{G1}, v{G1+1}
        v_cvt_pk_bf16_f32 v{G1+9}, v{G1+2}, v{G1+3}
        v_lshlrev_b32 v{vT+2}, 3, v{vT+2}
        ds_write_b64 v{vT+2}, v[{G1+8}:{G1+9}] offset:{L_QB}
        """)
        a(f"""
        s_waitcnt lgkmcnt(0)
        L_qwait:
        s_barrier
        """)
        by_class(lambda: prefetch(a0 + a1, D), lambda: prefetch(b0 + b1, D), lambda: prefetch(0, D))
    a(f"v_lshlrev_b32 v{vT}, 4, v{vG}")
    a("L_bare:")
    for j in range(4):
        a(f"ds_read_b128 v[{vQ+4*j}:{vQ+4*j+3}], v{vT} offset:{L_QB + 64*j}")
    a(f"""
    v_mov_b32 v{vM}, 0xff800000
    v_mov_b32 v{vL}, 0
    v_mov_b32 v{vO}, 0
    v_mov_b32 v{vO+1}, 0
    v_mov_b32 v{vO+2}, 0
    v_mov_b32 v{vO+3}, 0
    s_mov_b32 s{sCNT}, s{sNT}
    s_waitcnt lgkmcnt(0)
    """)
    stamp(1)
    dbg_max(3)
    if stop == "q":
        a("s_branch L_fin")

    P = vP
    s0, s1, s2, s3 = vT, vT + 1, vT + 2, vT + 3
    u0, u1 = vT + 4, vT + 5
    mx, mt, al, nm = vT + 6, vT + 7, vT + 8, vT + 9
    pk = vT + 10
    Aop = vT + 14
    assert Aop % 2 == 0
    a("L_loop:")
    for s in range(D):
        kb = vSTG + 32 * s
        vb = kb + 16
        a(f"s_waitcnt vmcnt({8*(D-1)+4})")
        for j in range(4):
            c = "0" if j == 0 else f"v[{vS}:{vS+3}]"
            a(f"v_mfma_f32_16x16x32_bf16 v[{vS}:{vS+3}], v[{kb+4*j}:{kb+4*j+3}], v[{vQ+4*j}:{vQ+4*j+3}], {c}")
        nextoff()
        kloads(s)
        a("s_nop 3")
        if no_compute:
            a(f"s_waitcnt vmcnt({8*(D-1)+4})")
            vloads(s)
            a(f"""
            s_sub_u32 s{sCNT}, s{sCNT}, 1
            s_cmp_eq_u32 s{sCNT}, 0
            s_cbranch_scc1 L_loop_end
            """)
            continue
        a(f"""
        v_cvt_pk_bf16_f32 v{u0}, v{vS}, v{vS+1}
        v_cvt_pk_bf16_f32 v{u1}, v{vS+2}, v{vS+3}
        v_lshlrev_b32 v{s0}, 16, v{u0}
        v_and_b32 v{s1}, s{sHI}, v{u0}
        v_lshlrev_b32 v{s2}, 16, v{u1}
        v_and_b32 v{s3}, s{sHI}, v{u1}
        v_mul_f32 v{s0}, s{sSCALE}, v{s0}
        v_mul_f32 v{s1}, s{sSCALE}, v{s1}
        v_mul_f32 v{s2}, s{sSCALE}, v{s2}
        v_mul_f32 v{s3}, s{sSCALE}, v{s3}
        v_cvt_pk_bf16_f32 v{u0}, v{s0}, v{s1}
        v_cvt_pk_bf16_f32 v{u1}, v{s2}, v{s3}
        v_lshlrev_b32 v{s0}, 16, v{u0}
        v_and_b32 v{s1}, s{sHI}, v{u0}
        v_lshlrev_b32 v{s2}, 16, v{u1}
        v_and_b32 v{s3}, s{sHI}, v{u1}
        v_max3_f32 v{mx}, v{s0}, v{s1}, v{s2}
        v_max3_f32 v{mx}, v{mx}, v{s3}, v{vM}
        v_mov_b32 v{mt}, v{mx}
        s_nop 1
        v_permlane16_swap_b32 v{mx}, v{mt}
        s_nop 1
        v_max_f32 v{mx}, v{mx}, v{mt}
        v_mov_b32 v{mt}, v{mx}
        s_nop 1
        v_permlane32_swap_b32 v{mx}, v{mt}
        s_nop 1
        v_max_f32 v{mx}, v{mx}, v{mt}
        v_sub_f32 v{al}, v{vM}, v{mx}
        v_mul_f32 v{nm}, s{sL2E}, v{mx}
        v_mul_f32 v{al}, s{sL2E}, v{al}
        v_fma_f32 v{s0}, v{s0}, s{sL2E}, -v{nm}
        v_fma_f32 v{s1}, v{s1}, s{sL2E}, -v{nm}
        v_fma_f32 v{s2}, v{s2}, s{sL2E}, -v{nm}
        v_fma_f32 v{s3}, v{s3}, s{sL2E}, -v{nm}
        v_exp_f32 v{al}, v{al}
        v_exp_f32 v{s0}, v{s0}
        v_exp_f32 v{s1}, v{s1}
        v_exp_f32 v{s2}, v{s2}
        v_exp_f32 v{s3}, v{s3}
        v_mov_b32 v{vM}, v{mx}
        v_mul_f32 v{vO}, v{vO}, v{al}
        v_mul_f32 v{vO+1}, v{vO+1}, v{al}
        v_mul_f32 v{vO+2}, v{vO+2}, v{al}
        v_mul_f32 v{vO+3}, v{vO+3}, v{al}
        v_cvt_pk_bf16_f32 v{pk}, v{s0}, v{s0}
        v_cvt_pk_bf16_f32 v{pk+1}, v{s1}, v{s1}
        v_cvt_pk_bf16_f32 v{pk+2}, v{s2}, v{s2}
        v_cvt_pk_bf16_f32 v{pk+3}, v{s3}, v{s3}
        v_fma_f32 v{vL}, v{vL}, v{al}, v{s0}
        v_add_f32 v{s1}, v{s1}, v{s2}
        v_add_f32 v{vL}, v{vL}, v{s3}
        v_add_f32 v{vL}, v{vL}, v{s1}
        s_waitcnt vmcnt({8*(D-1)+4})
        """)
        for r in range(4):
            ao = Aop + 4 * (r & 1)
            for d in range(4):
                a(f"v_and_b32 v{ao+d}, v{pk+r}, v{vMASK+d}")
            a("s_nop 1")
            a(f"v_mfma_f32_16x16x32_bf16 v[{vO}:{vO+3}], v[{ao}:{ao+3}], v[{vb+4*r}:{vb+4*r+3}], v[{vO}:{vO+3}]")
        vloads(s)
        a(f"""
        s_sub_u32 s{sCNT}, s{sCNT}, 1
        s_cmp_eq_u32 s{sCNT}, 0
        s_cbranch_scc1 L_loop_end
        """)
    a("s_branch L_loop\n L_loop_end:")
    stamp(2)
    xrow(a, [vL], [vT])
    a(f"""
    s_nop 7
    v_lshlrev_b32 v{vT}, 5, v{vN}                 ; c*32
    v_and_b32 v{vT+1}, 1, v{vG}
    v_lshl_add_u32 v{vT}, v{vT+1}, 4, v{vT}       ; + (g&1)*16
    s_lshl_b32 s28, s{sWAVE}, 9
    v_add_u32 v{vT}, s28, v{vT}
    ds_write_b128 v{vT}, v[{vO}:{vO+3}] offset:{L_MRG}
    s_lshl_b32 s28, s{sWAVE}, 3
    v_mov_b32 v{vT+2}, s28
    v_mov_b32 v{vT+4}, v{vM}
    v_mov_b32 v{vT+5}, v{vL}
    ds_write_b64 v{vT+2}, v[{vT+4}:{vT+5}] offset:{L_ML}
    """)

    def slice_idx():
        a(f"""
        s_mov_b32 s29, s{sSLICE}
        v_lshrrev_b32 v{vT}, 2, v{vLANE}
        v_mul_u32_u24 v{vT}, 9216, v{vT}
        v_and_b32 v{vT+1}, 3, v{vLANE}
        v_lshl_add_u32 v{vT}, v{vT+1}, 4, v{vT}
        v_lshlrev_b32 v{vT+1}, 4, v{vLANE}
        """)

    def dma_mat(which, sq):
        cnt = 9
        if which in "gu":
            ptr, lds0 = (pWG, L_WG) if which == "g" else (pWU, L_WU)
            srd(a, sT, ptr, 576 * 9216)
            a(f"""
            s_mul_i32 s28, s{sq}, {cnt*16*9216}
            s_lshl_b32 s30, s29, 6
            s_add_u32 s28, s28, s30
            s_mul_i32 s31, s{sq}, {cnt*1024}
            """)
            for i in range(cnt):
                a(f"s_add_u32 m0, s31, {lds0 + i*1024}\n s_nop 0")
                a(f"buffer_load_dwordx4 v{vT}, s[{sT}:{sT+3}], s28 offen {wflags} lds")
                a(f"s_add_u32 s28, s28, {16*9216}")
        else:
            srd(a, sT, pWD, 4608 * 1152)
            a(f"""
            s_mul_i32 s28, s29, {32*1152}
            s_mul_i32 s31, s{sq}, {cnt*1024}
            s_add_u32 s28, s28, s31
            """)
            for i in range(cnt):
                a(f"s_add_u32 m0, s31, {L_WD + i*1024}\n s_nop 0")
                a(f"buffer_load_dwordx4 v{vT+1}, s[{sT}:{sT+3}], s28 offen {wflags} lds")
                a(f"s_add_u32 s28, s28, 1024")

    def wo_dma(groups, sq, sg=None):
        a(f"""
        s_mov_b32 s29, s{sIDX}
        s_mul_i32 s30, s29, 21846
        s_lshr_b32 s30, s30, 16            ; h'
        s_mul_i32 s31, s30, 3
        s_sub_u32 s31, s29, s31            ; c
        """)
        srd(a, sT, pWO, 4096 * 1152)
        for q in range(3):
            a(f"""
            v_add_u32 v{vT+3}, {64*q}, v{vLANE}
            v_mul_u32_u24 v{vT+4}, 2731, v{vT+3}
            v_lshrrev_b32 v{vT+4}, 16, v{vT+4}          ; row = l0/24
            v_mul_u32_u24 v{vT+5}, 24, v{vT+4}
            v_sub_u32 v{vT+5}, v{vT+3}, v{vT+5}         ; piece
            v_mul_u32_u24 v{vT+4}, 1152, v{vT+4}
            v_lshl_add_u32 v{vT+q}, v{vT+5}, 4, v{vT+4}
            """)
        a(f"s_lshl_b32 s4, s{sq}, 2")
        if sg is not None:
            a(f"s_add_u32 s4, s4, s{sg}")
        a(f"""
        s_lshl_b32 s28, s30, 7
        s_lshl_b32 s29, s4, 3
        s_add_u32 s28, s28, s29
        s_mul_i32 s28, s28, 1152
        s_mul_i32 s31, s31, 384
        s_add_u32 s28, s28, s31
        s_mul_i32 s31, s4, {3*1024}
        """)
        for grp in groups:
            a(f"s_add_u32 s5, s28, {grp*8*1152}")
            for q in range(3):
                a(f"s_add_u32 m0, s31, {L_WG + (grp*3+q)*1024}\n s_nop 0")
                a(f"buffer_load_dwordx4 v{vT+q}, s[{sT}:{sT+3}], s5 offen {wflags} lds")

    def weights_early():
        lab_wo, lab_done = a.label("L_wwo"), a.label("L_wdone")
        a(f"s_cmp_lg_u32 s{sROLE}, 0\n s_cbranch_scc1 {lab_wo}")
        if early:
            slice_idx()
            for m in early:
                dma_mat(m, sWAVE)
        a(f"s_branch {lab_done}")
        a(f"{lab_wo}:")
        a(f"s_cmp_eq_u32 s{sROLE}, 2\n s_cbranch_scc1 {lab_done}")
        if wo_e > 0:
            wo_dma(list(range(wo_e)), sWAVE)
        a(f"{lab_done}:")

    def weights_late():
        late = [m for m in "gud" if m not in early]
        if not late:
            return
        slice_idx()
        sQ = 73
        a(f"s_and_b32 s{sQ}, s{sWAVE}, 3")
        lo, hi = late[:(len(late) + 1) // 2], late[(len(late) + 1) // 2:]
        lh, le = a.label("L_lateh"), a.label("L_latee")
        a(f"s_cmp_ge_u32 s{sWAVE}, 4\n s_cbranch_scc1 {lh}")
        for m in lo:
            dma_mat(m, sQ)
        a(f"s_branch {le}\n {lh}:")
        for m in hi:
            dma_mat(m, sQ)
        a(f"{le}:")
        a("s_waitcnt vmcnt(0)\n s_barrier")

    a(f"s_cmp_ge_u32 s{sWAVE}, 4\n s_cbranch_scc1 L_now")
    a(f"""
    s_cmp_ge_u32 s{sWAVE}, 2
    s_cbranch_scc1 L_noxr
    s_cmp_eq_u32 s{sROLE}, 0
    s_cbranch_scc1 L_noxr
    s_mul_i32 s28, s{sWAVE}, 112
    s_add_u32 s28, s28, s{sIDX}
    s_cmp_ge_u32 s28, 144
    s_cbranch_scc1 L_noxr
    """)
    srd(a, sT, pX, 4608)
    a(f"""
    v_and_b32 v{vT}, 3, v{vLANE}
    v_lshlrev_b32 v{vT+1}, 1, v{vT}
    s_lshl_b32 s28, s28, 3
    """)
    for b in range(4):
        a(f"buffer_load_ushort v{160+b}, v{vT+1}, s[{sT}:{sT+3}], s28 offen offset:{1152*b} nt")
    a("L_noxr:")
    if not no_w:
        weights_early()
    if tlbw:
        lab = a.label("L_notlb")
        a(f"s_cmp_lg_u32 s{sWAVE}, 3\n s_cbranch_scc1 {lab}")
        tw = vT + 8
        a(f"v_lshlrev_b32 v{tw}, {tlbw}, v{vLANE}\n v_add_u32 v{tw}, 0x{(1 << tlbw) - 128:x}, v{tw}")
        n_ws = max(1, WS_STAMP // (64 << tlbw) + 1)
        for i in range(n_ws):
            a(f"s_mov_b32 s28, {i * (64 << tlbw)}")
            a(f"buffer_load_dword v{tw+1}, v{tw}, s[{sWS}:{sWS+3}], s28 offen")
        for (ptr, nbytes) in ((pWG, 576*9216), (pWU, 576*9216), (pWD, 4608*1152), (pOUT, 4608), (pX, 4608)):
            srd(a, sT, ptr, nbytes)
            n = max(1, (nbytes + (64 << tlbw) - 1) // (64 << tlbw))
            if nbytes < 65536:
                a(f"v_mov_b32 v{tw+2}, 0")
                a(f"buffer_load_dword v{tw+1}, v{tw+2}, s[{sT}:{sT+3}], 0 offen")
            else:
                for i in range(n):
                    a(f"s_mov_b32 s28, {i * (64 << tlbw)}")
                    a(f"buffer_load_dword v{tw+1}, v{tw}, s[{sT}:{sT+3}], s28 offen nt")
        a(f"{lab}:")
    if codepf:
        code_prefetch(4, "L_tail0", "L_code_end", vT + 8)
    if dry:
        a(f"""
        s_waitcnt vmcnt(0) lgkmcnt(0)
        s_mov_b32 s{sDRY}, 1
        s_mov_b32 s{sWS+2}, 0
        s_mov_b32 s{sOUTN}, 0
        s_branch L_tail_dry
        L_dry_done:
        s_mov_b32 s{sDRY}, 0
        s_mov_b32 s{sWS+2}, {WS_SIZE}
        s_mov_b32 s{sOUTN}, 4608
        s_mov_b64 exec, -1
        """)
    a("L_now:")
    a("L_tail0:")
    a("s_waitcnt vmcnt(0) lgkmcnt(0)\n s_barrier")
    a("L_tail_dry:")
    dbg_max(1)
    mark_tail = len(a.L)
    stamp(3)

    MO = P
    MM = P + 32
    a(f"s_cmp_lg_u32 s{sWAVE}, 0\n s_cbranch_scc1 L_nomerge")
    a(f"""
    v_and_b32 v{vT}, 31, v{vLANE}
    v_lshlrev_b32 v{vT}, 4, v{vT}
    v_mov_b32 v{vT+1}, 0
    """)
    for i in range(4):
        a(f"ds_read_b128 v[{MM+4*i}:{MM+4*i+3}], v{vT+1} offset:{L_ML + 16*i}")
    for w in range(8):
        a(f"ds_read_b128 v[{MO+4*w}:{MO+4*w+3}], v{vT} offset:{L_MRG + 512*w}")
    a("s_waitcnt lgkmcnt(8)")
    ms = [MM + 2 * w for w in range(8)]
    mstar = vT + 2
    a(f"v_max3_f32 v{mstar}, v{ms[0]}, v{ms[1]}, v{ms[2]}")
    a(f"v_max3_f32 v{mstar}, v{mstar}, v{ms[3]}, v{ms[4]}")
    a(f"v_max3_f32 v{mstar}, v{mstar}, v{ms[5]}, v{ms[6]}")
    a(f"v_max_f32 v{mstar}, v{mstar}, v{ms[7]}")
    for w in range(8):
        a(f"v_sub_f32 v{ms[w]}, v{ms[w]}, v{mstar}")
    for w in range(8):
        a(f"v_mul_f32 v{ms[w]}, s{sL2E}, v{ms[w]}")
    for w in range(8):
        a(f"v_exp_f32 v{ms[w]}, v{ms[w]}")
    Lt = vT + 3
    a(f"s_nop 0\n v_mul_f32 v{Lt}, v{ms[0]}, v{ms[0]+1}")
    for w in range(1, 8):
        a(f"v_fmac_f32 v{Lt}, v{ms[w]}, v{ms[w]+1}")
    a("s_waitcnt lgkmcnt(0)")
    R = vT + 6
    assert R % 2 == 0
    for r in range(4):
        a(f"v_mul_f32 v{R+r}, v{ms[0]}, v{MO+r}")
    for w in range(1, 8):
        for r in range(4):
            a(f"v_fmac_f32 v{R+r}, v{ms[w]}, v{MO+4*w+r}")
    a(f"""
    v_cmp_eq_u32 vcc, 32, v{vLANE}
    v_mov_b32 v{vT+4}, 0
    s_nop 0
    v_cndmask_b32 v{R}, v{R}, v{mstar}, vcc
    v_cndmask_b32 v{R+1}, v{R+1}, v{Lt}, vcc
    v_cndmask_b32 v{R+2}, v{R+2}, v{vT+4}, vcc
    v_cndmask_b32 v{R+3}, v{R+3}, v{vT+4}, vcc
    """)
    addtag(a, range(R, R + 4))
    a(f"""
    v_lshlrev_b32 v{vT}, 4, v{vLANE}
    s_mul_i32 s28, s{sW}, 640
    s_add_u32 s28, s28, {WS_AP}
    v_cmp_gt_u32 vcc, 33, v{vLANE}
    s_and_saveexec_b64 s[30:31], vcc
    buffer_store_dwordx4 v[{R}:{R+3}], v{vT}, s[{sWS}:{sWS+3}], s28 offen sc1
    s_mov_b64 exec, s[30:31]
    L_nomerge:
    """)
    stamp(4)
    if stop == "attn":
        a("s_branch L_fin")

    a(f"s_cmp_eq_u32 s{sROLE}, 0\n s_cbranch_scc1 L_stageB")
    a(f"s_cmp_eq_u32 s{sROLE}, 2\n s_cbranch_scc1 L_reduce")
    if wo_e < 4 and not no_w:
        rest = list(range(wo_e, 4))
        a(f"s_cmp_eq_u32 s{sDRY}, 1\n s_cbranch_scc1 L_wo_nolate")
        a(f"s_and_b32 s73, s{sWAVE}, 3")
        lo_, hi_ = rest[:(len(rest) + 1) // 2], rest[(len(rest) + 1) // 2:]
        a(f"s_cmp_ge_u32 s{sWAVE}, 4\n s_cbranch_scc1 L_wo_hi")
        wo_dma(lo_, 73)
        a("s_branch L_wo_lw\n L_wo_hi:")
        if hi_:
            wo_dma(hi_, 73)
        a("L_wo_lw:\n s_waitcnt vmcnt(0)\n s_barrier\n L_wo_nolate:")
    a(f"""
    s_mov_b32 s29, s{sIDX}
    s_mul_i32 s{sH}, s29, 21846
    s_lshr_b32 s{sH}, s{sH}, 16         ; h'
    s_mul_i32 s31, s{sH}, 3
    s_sub_u32 s{sJ}, s29, s31           ; c
    """)
    WB = 64
    a(f"""
    v_lshrrev_b32 v{vT}, 2, v{vN}                    ; r
    v_lshl_add_u32 v{vT}, v{vG}, 3, v{vT}            ; 8g + r
    v_mul_u32_u24 v{vT}, 384, v{vT}
    v_and_b32 v{vT+1}, 3, v{vLANE}
    v_lshl_add_u32 v{vT}, v{vT+1}, 3, v{vT}          ; + cc*8
    s_lshl_b32 s28, s{sWAVE}, 5
    s_add_u32 s28, s28, {L_WG}
    v_add_u32 v{vT}, s28, v{vT}                      ; + T*32 + base
    """)
    for ks in range(4):
        a(f"ds_read_b64_tr_b16 v[{WB+4*ks}:{WB+4*ks+1}], v{vT} offset:{ks*32*384}")
        a(f"ds_read_b64_tr_b16 v[{WB+4*ks+2}:{WB+4*ks+3}], v{vT} offset:{ks*32*384 + 4*384}")
    a(f"s_cmp_ge_u32 s{sWAVE}, 4\n s_cbranch_scc1 L_wo_gather_skip")
    a("s_waitcnt lgkmcnt(0)")
    for ks in range(4):
        a(f"ds_read_b64_tr_b16 v[{WB+16+4*ks}:{WB+16+4*ks+1}], v{vT} offset:{ks*32*384 + 256}")
        a(f"ds_read_b64_tr_b16 v[{WB+16+4*ks+2}:{WB+16+4*ks+3}], v{vT} offset:{ks*32*384 + 4*384 + 256}")
    GA = P
    a(f"""
    v_lshrrev_b32 v{vT+1}, 5, v{vLANE}               ; s
    v_mul_u32_u24 v{vT+2}, {640*8 if xmap else 640}, v{vT+1}
    v_and_b32 v{vT+3}, 31, v{vLANE}                  ; c4
    v_lshl_add_u32 v{vT+4}, v{vT+3}, 4, v{vT+2}      ; s*stride + c4*16
    v_add_u32 v{vT+5}, 512, v{vT+2}                  ; s*stride + 512
    """)
    if xmap:
        a(f"""
        s_and_b32 s28, s{sH}, 7
        s_lshl_b32 s29, s{sWAVE}, 4
        s_add_u32 s28, s28, s29
        s_lshr_b32 s29, s{sH}, 3
        s_lshl_b32 s29, s29, 6
        s_add_u32 s28, s28, s29
        """)
    else:
        a(f"""
        s_lshl_b32 s28, s{sWAVE}, 6
        s_lshl_b32 s29, s{sH}, 1
        s_add_u32 s28, s28, s29
        """)
    a(f"""
    s_mul_i32 s28, s28, 640
    s_add_u32 s28, s28, {WS_AP}
    """)
    GAs = [96 + 8 * k for k in range(3)]
    def ap_issue(k):
        a(f"buffer_load_dwordx4 v[{GAs[k]}:{GAs[k]+3}], v{vT+4}, s[{sWS}:{sWS+3}], s28 offen sc1")
        a(f"buffer_load_dwordx4 v[{GAs[k]+4}:{GAs[k]+7}], v{vT+5}, s[{sWS}:{sWS+3}], s28 offen sc1")
    def ap_consume(k):
        for r in range(6):
            a(f"v_mov_b32 v{GA+r}, v{GAs[k]+r}")
    ppoll(a, "L_apoll", ns[0], 2, ap_issue, lambda k: list(range(GAs[k], GAs[k] + 8)), vT + 6, ap_consume, pollsleep, stg)
    tstamp(9)
    mm, ll = GA + 4, GA + 5
    a(f"""
    v_and_b32 v{mm}, s{sHI}, v{mm}
    v_mov_b32 v{vT+6}, v{mm}
    v_mov_b32 v{vT+7}, v{mm}
    s_nop 1
    v_permlane32_swap_b32 v{vT+6}, v{vT+7}
    s_nop 1
    v_max_f32 v{vT+6}, v{vT+6}, v{vT+7}             ; m*
    v_sub_f32 v{mm}, v{mm}, v{vT+6}
    v_mul_f32 v{mm}, s{sL2E}, v{mm}
    v_exp_f32 v{mm}, v{mm}                           ; a
    s_nop 0
    v_mul_f32 v{ll}, v{ll}, v{mm}
    v_mul_f32 v{GA}, v{GA}, v{mm}
    v_mul_f32 v{GA+1}, v{GA+1}, v{mm}
    v_mul_f32 v{GA+2}, v{GA+2}, v{mm}
    v_mul_f32 v{GA+3}, v{GA+3}, v{mm}
    """)
    xrow(a, [GA, GA+1, GA+2, GA+3, ll], [GA+8, GA+9, GA+10, GA+11, GA+12], only32=True)
    a(f"v_rcp_f32 v{vT+6}, v{ll}\n s_nop 0")
    for r in range(4):
        fdiv(a, GA + 8 + r, GA + r, vT + 6, ll, vT + 7)
    a(f"""
    v_cvt_pk_bf16_f32 v{GA+12}, v{GA+8}, v{GA+9}
    v_cvt_pk_bf16_f32 v{GA+13}, v{GA+10}, v{GA+11}
    v_lshlrev_b32 v{vT+3}, 3, v{vT+3}
    s_lshl_b32 s28, s{sWAVE}, 8
    v_add_u32 v{vT+3}, s28, v{vT+3}
    ds_write_b64 v{vT+3}, v[{GA+12}:{GA+13}] offset:{L_OB}
    L_wo_gather_skip:
    s_waitcnt lgkmcnt(0)
    s_barrier
    """)
    AOP = P + 16
    a(f"""
    v_and_b32 v{vT}, 3, v{vN}
    v_lshlrev_b32 v{vT}, 8, v{vT}
    v_lshl_add_u32 v{vT}, v{vG}, 4, v{vT}           ; (m&3)*256 + g*16
    """)
    for ks in range(4):
        a(f"ds_read_b128 v[{AOP+4*ks}:{AOP+4*ks+3}], v{vT} offset:{L_OB + 64*ks}")
    YD = P + 32
    a("s_waitcnt lgkmcnt(0)")
    for ks in range(4):
        c = "0" if ks == 0 else f"v[{YD}:{YD+3}]"
        a(f"v_mfma_f32_16x16x32_bf16 v[{YD}:{YD+3}], v[{AOP+4*ks}:{AOP+4*ks+3}], v[{WB+4*ks}:{WB+4*ks+3}], {c}")
    a(f"s_cmp_ge_u32 s{sWAVE}, 4\n s_cbranch_scc1 L_wo_one")
    for ks in range(4):
        c = "0" if ks == 0 else f"v[{YD+4}:{YD+7}]"
        a(f"v_mfma_f32_16x16x32_bf16 v[{YD+4}:{YD+7}], v[{AOP+4*ks}:{AOP+4*ks+3}], v[{WB+16+4*ks}:{WB+16+4*ks+3}], {c}")
    a("L_wo_one:")
    if cmajY:
        a(f"""
        s_mul_i32 s28, s{sJ}, 48
        s_lshl_b32 s29, s{sWAVE}, 2
        s_add_u32 s28, s28, s29
        s_lshl_b32 s28, s28, 11
        s_lshl_b32 s29, s{sH}, 6
        s_add_u32 s28, s28, s29
        s_add_u32 s28, s28, {WS_Y}
        s_add_u32 s30, s28, {32*2048}
        v_lshrrev_b32 v{vT}, 2, v{vN}
        v_lshlrev_b32 v{vT}, 11, v{vT}
        v_and_b32 v{vT+1}, 3, v{vN}
        v_lshl_add_u32 v{vT}, v{vT+1}, 4, v{vT}
        s_nop 6
        """)
    else:
        a(f"""
        s_mul_i32 s28, s{sH}, 9216
        s_mul_i32 s29, s{sJ}, {192*16}
        s_add_u32 s28, s28, s29
        s_lshl_b32 s29, s{sWAVE}, 8
        s_add_u32 s28, s28, s29
        s_add_u32 s28, s28, {WS_Y}
        s_add_u32 s30, s28, 2048
        v_lshlrev_b32 v{vT}, 4, v{vN}
        s_nop 7
        """)
    addtag(a, range(YD, YD + 4))
    a(f"""
    s_mov_b64 exec, 0xffff
    buffer_store_dwordx4 v[{YD}:{YD+3}], v{vT}, s[{sWS}:{sWS+3}], s28 offen sc1
    s_mov_b64 exec, -1
    s_cmp_ge_u32 s{sWAVE}, 4
    s_cbranch_scc1 L_reduce
    """)
    addtag(a, range(YD + 4, YD + 8))
    a(f"""
    s_mov_b64 exec, 0xffff
    buffer_store_dwordx4 v[{YD+4}:{YD+7}], v{vT}, s[{sWS}:{sWS+3}], s30 offen sc1
    s_mov_b64 exec, -1
    """)
    a("L_reduce:")
    tstamp(10)
    sTASK = 72
    a(f"""
    s_mov_b32 s{sTASK}, s{sIDX}
    s_mul_i32 s28, s{sWAVE}, 112
    s_add_u32 s{sTASK}, s{sTASK}, s28
    s_cmp_ge_u32 s{sTASK}, 144
    s_cbranch_scc1 L_fin
    s_cmp_ge_u32 s{sWAVE}, 2
    s_cbranch_scc1 L_fin
    """)
    XR = 160
    a(f"""
    v_and_b32 v{vT}, 3, v{vLANE}                     ; col
    v_lshlrev_b32 v{vT+1}, 1, v{vT}
    v_lshrrev_b32 v{vT+2}, 2, v{vLANE}               ; hh
    v_mul_u32_u24 v{vT+2}, 9216, v{vT+2}
    v_lshl_add_u32 v{vT+2}, v{vT}, 4, v{vT+2}
    v_lshlrev_b32 v{vT+5}, 4, v{vLANE}               ; lane*16
    """)
    vY = vT + 5 if cmajY else vT + 2
    vZ = vT + 5 if cmajZ else vT + 2
    if cmajY:
        a(f"s_lshl_b32 s28, s{sTASK}, 11\n s_add_u32 s28, s28, {WS_Y}\n s_add_u32 s29, s28, 1024")
    else:
        a(f"s_lshl_b32 s28, s{sTASK}, 6\n s_add_u32 s28, s28, {WS_Y}\n s_add_u32 s29, s28, {16*9216}")
    YG = P + 4
    YGs = [P + 60 + 8 * k for k in range(3)]
    def y_issue(k):
        a(f"buffer_load_dwordx4 v[{YGs[k]}:{YGs[k]+3}], v{vY}, s[{sWS}:{sWS+3}], s28 offen sc1")
        a(f"buffer_load_dwordx4 v[{YGs[k]+4}:{YGs[k]+7}], v{vY}, s[{sWS}:{sWS+3}], s29 offen sc1")
    def y_consume(k):
        for r in range(4):
            a(f"v_add_f32 v{YG+r}, v{YGs[k]+r}, v{YGs[k]+4+r}")
    ppoll(a, "L_ypoll", ns[1], 2, y_issue, lambda k: list(range(YGs[k], YGs[k] + 8)), vT + 3, y_consume, pollsleep, stg,
          probe=((lambda: a(f"buffer_load_dword v{YGs[0]}, v{vY}, s[{sWS}:{sWS+3}], s28 offen sc1")), YGs[0], "1") if probe[1] else None, presleep=presl[1])
    tstamp(11)
    if canB:
        a(f"""
        s_lshl_b32 s30, s{sTASK}, 7
        s_add_u32 s30, s30, {WS_CANB}
        v_mov_b32 v{vT+4}, 0
        s_mov_b64 exec, 1
        buffer_store_dword v{vTAG}, v{vT+4}, s[{sWS}:{sWS+3}], s30 offen sc1
        s_mov_b64 exec, -1
        """)
    hs = [YG, YG + 1, YG + 2, YG + 3]
    row16(a, hs, ctrls=("row_ror:4", "row_ror:8"))
    xrow(a, hs, [YG + 4, YG + 5, YG + 6, YG + 7])
    rbf(a, [(YG, YG+1), (YG+2, YG+3)], [YG+4, YG+5])
    for b in range(4):
        a(f"v_lshlrev_b32 v{XR+b}, 16, v{XR+b}")
        a(f"v_add_f32 v{YG+b}, v{YG+b}, v{XR+b}")
    rbf(a, [(YG, YG+1), (YG+2, YG+3)], [YG+4, YG+5])
    HK = P + 16
    for b in range(4):
        a(f"v_mov_b32 v{HK+b}, v{YG+b}")
    addtag(a, hs)
    a(f"""
    s_lshl_b32 s28, s{sTASK}, 6
    s_add_u32 s28, s28, {WS_HB}
    v_lshlrev_b32 v{vT+3}, 4, v{vT}
    s_mov_b64 exec, 0xf
    buffer_store_dwordx4 v[{YG}:{YG+3}], v{vT+3}, s[{sWS}:{sWS+3}], s28 offen sc1
    s_mov_b64 exec, -1
    """)
    stamp(7)
    ZG = P + 20
    ZGs = [64, 100, 136]
    sPZ = 73
    ZS = [4, 5, 6, 7, 62, 63, 66, 67, 71]
    if cmajZ:
        a(f"s_mul_i32 s28, s{sTASK}, 9216\n s_add_u32 s28, s28, {WS_Z}")
        a(f"s_lshl_b32 s{sPZ}, s{sTASK}, 6\n s_add_u32 s{sPZ}, s{sPZ}, s28")
        for i in range(9):
            a(f"s_add_u32 s{ZS[i]}, s28, {i*1024}")
    else:
        a(f"s_lshl_b32 s28, s{sTASK}, 6\n s_add_u32 s28, s28, {WS_Z}")
        if canC:
            a(f"s_lshl_b32 s{sPZ}, s{sTASK}, 7\n s_add_u32 s{sPZ}, s{sPZ}, {WS_CANC}")
        else:
            a(f"s_mul_i32 s{sPZ}, s{sTASK}, 9216\n s_add_u32 s{sPZ}, s{sPZ}, s28")
        for i in range(9):
            a(f"s_add_u32 s{ZS[i]}, s28, {i*16*9216}")
    def z_issue(k):
        for i in range(9):
            a(f"buffer_load_dwordx4 v[{ZGs[k]+4*i}:{ZGs[k]+4*i+3}], v{vZ}, s[{sWS}:{sWS+3}], s{ZS[i]} offen sc1")
    def z_consume(k):
        z = ZGs[k]
        for (x, y) in ((0, 1), (2, 3), (4, 5), (6, 7), (0, 2), (4, 6), (0, 4)):
            for r in range(0, 4, 2):
                a(f"v_pk_add_f32 v[{z+4*x+r}:{z+4*x+r+1}], v[{z+4*x+r}:{z+4*x+r+1}], v[{z+4*y+r}:{z+4*y+r+1}]")
        for r in range(0, 4, 2):
            a(f"v_pk_add_f32 v[{ZG+r}:{ZG+r+1}], v[{z+r}:{z+r+1}], v[{z+32+r}:{z+32+r+1}]")
    ppoll(a, "L_zpoll", ns[3], 9, z_issue, lambda k: list(range(ZGs[k], ZGs[k] + 36)), vT + 3, z_consume, pollsleep, stg,
          probe=((lambda: a(f"buffer_load_dword v{ZGs[0]}, v{vZ}, s[{sWS}:{sWS+3}], s{sPZ} offen sc1")), ZGs[0], "1") if probe[3] else None, presleep=presl[3])
    tstamp(12)
    zs = [ZG, ZG + 1, ZG + 2, ZG + 3]
    row16(a, zs, ctrls=("row_ror:4", "row_ror:8"))
    xrow(a, zs, [ZG + 4, ZG + 5, ZG + 6, ZG + 7])
    rbf(a, [(ZG, ZG+1), (ZG+2, ZG+3)], [ZG+4, ZG+5])
    for b in range(4):
        a(f"v_add_f32 v{ZG+b}, v{ZG+b}, v{HK+b}")
    a(f"v_cvt_pk_bf16_f32 v{ZG+4}, v{ZG}, v{ZG+1}")
    a(f"v_cvt_pk_bf16_f32 v{ZG+5}, v{ZG+2}, v{ZG+3}")
    srd(a, sT, pOUT, f"s{sOUTN}")
    a(f"""
    s_lshl_b32 s28, s{sTASK}, 3
    s_mov_b64 exec, 0xf
    buffer_store_short v{ZG+4}, v{vT+1}, s[{sT}:{sT+3}], s28 offen {outfl}
    buffer_store_short_d16_hi v{ZG+4}, v{vT+1}, s[{sT}:{sT+3}], s28 offen offset:1152 {outfl}
    buffer_store_short v{ZG+5}, v{vT+1}, s[{sT}:{sT+3}], s28 offen offset:2304 {outfl}
    buffer_store_short_d16_hi v{ZG+5}, v{vT+1}, s[{sT}:{sT+3}], s28 offen offset:3456 {outfl}
    s_mov_b64 exec, -1
    s_cmp_lg_u32 s{sTASK}, 0
    s_cbranch_scc1 L_fin
    v_mov_b32 v{ZG+6}, s{sE}
    v_mov_b32 v{ZG+7}, 0
    s_mov_b64 exec, 1
    buffer_store_dword v{ZG+6}, v{ZG+7}, s[{sWS}:{sWS+3}], 0 offen sc1
    s_mov_b64 exec, -1
    s_branch L_fin
    """)

    a("L_stageB:")
    if gate == 'pair' or isinstance(gate, int) and not isinstance(gate, bool) and gate > 0:
        ns_ = 0 if gate == 'pair' else gate
        a(f"s_cmp_lg_u32 s{sWAVE}, 1\n s_cbranch_scc1 L_gate_done")
        a(f"""
        s_andn2_b32 s29, s{sW}, {16 if rmap else 8}
        v_mul_u32_u24 v{vT}, 37, v{vLANE}
        v_add_u32 v{vT}, s29, v{vT}
        v_and_b32 v{vT}, 255, v{vT}
        s_xor_b32 s28, s{sW}, {16 if rmap else 8}
        v_mov_b32 v{vT+1}, s28
        v_cmp_eq_u32 vcc, {ns_}, v{vLANE}
        s_mov_b32 s28, {WS_AP + 512}
        s_nop 0
        v_cndmask_b32 v{vT}, v{vT}, v{vT+1}, vcc
        v_mul_u32_u24 v{vT}, 640, v{vT}
        s_cmp_eq_u32 s{sDRY}, 1
        s_cbranch_scc1 L_gate_done
        s_mov_b64 exec, {hex((1 << (ns_ + 1)) - 1)}
        """)
        poll_head(a, "L_gpoll")
        if gsleep:
            a(f"s_sleep {gsleep}")
        a(f"buffer_load_dword v{vT+2}, v{vT}, s[{sWS}:{sWS+3}], s28 offen sc1")
        a("s_waitcnt vmcnt(0)")
        tagcheck(a, [vT+2], vT + 6, "L_gpoll")
        a("s_mov_b64 exec, -1")
        a("L_gate_done:\n s_barrier")
    elif gate:
        a(f"s_cmp_lg_u32 s{sWAVE}, 1\n s_cbranch_scc1 L_gate_done")
        a(f"""
        v_mul_u32_u24 v{vT}, 640, v{vLANE}
        s_mov_b32 s28, {WS_AP + 512}
        s_mov_b32 s29, {WS_AP + 512 + 64*640}
        s_mov_b32 s30, {WS_AP + 512 + 128*640}
        s_mov_b32 s31, {WS_AP + 512 + 192*640}
        """)
        poll_head(a, "L_gpoll")
        for i in range(4):
            a(f"buffer_load_dword v{vT+2+i}, v{vT}, s[{sWS}:{sWS+3}], s{28+i} offen sc1")
        a("s_waitcnt vmcnt(0)")
        tagcheck(a, [vT+2, vT+3, vT+4, vT+5], vT + 6, "L_gpoll")
        a("L_gate_done:\n s_barrier")
    a(f"""
    s_cmp_lg_u32 s{sWAVE}, 7
    s_cbranch_scc1 L_noones
    v_mov_b32 v{P}, 0x3f803f80
    v_mov_b32 v{P+1}, 0x3f803f80
    v_mov_b32 v{P+2}, 0x3f803f80
    v_mov_b32 v{P+3}, 0x3f803f80
    v_lshlrev_b32 v{vT}, 4, v{vLANE}
    ds_write_b128 v{vT}, v[{P}:{P+3}] offset:{L_HB + 4*1152}
    s_mov_b64 exec, 0xff
    ds_write_b128 v{vT}, v[{P}:{P+3}] offset:{L_HB + 4*1152 + 1024}
    s_mov_b64 exec, -1
    L_noones:
    """)
    BB = 64
    WDd = 100
    AB = P
    aH, aA, aG, aR, aF1, aF2, aF3, aW = (vT + 4 + i for i in range(8))
    aP = vT + 12
    aBB, aWD = vT + 14, vT + 15
    if bdec:
        late = [m for m in "gud" if m not in early]
        if not no_w and late:
            a(f"s_cmp_lt_u32 s{sWAVE}, 4\n s_cbranch_scc1 L_b_noload")
            a(f"s_cmp_eq_u32 s{sDRY}, 1\n s_cbranch_scc1 L_b_noload")
            slice_idx()
            a(f"s_and_b32 s73, s{sWAVE}, 3")
            for m in late:
                if wd_after and m == "d":
                    continue
                dma_mat(m, 73)
            a("L_b_noload:")
        a(f"""
        v_lshrrev_b32 v{vT}, 2, v{vN}
        v_lshl_add_u32 v{vT}, v{vG}, 3, v{vT}            ; 8g + r
        v_and_b32 v{vT+1}, 3, v{vLANE}                   ; cc
        v_lshlrev_b32 v{aBB}, 6, v{vT}
        v_lshl_add_u32 v{aBB}, v{vT+1}, 3, v{aBB}        ; (8g+r)*64 + cc*8
        s_and_b32 s28, s{sWAVE}, 1
        s_lshl_b32 s28, s28, 5                           ; t*32
        s_bfe_u32 s29, s{sWAVE}, 0x10001
        s_mul_i32 s29, s29, {L_WU - L_WG}
        s_add_u32 s28, s28, s29
        s_add_u32 s28, s28, {L_WG}
        s_lshr_b32 s29, s{sWAVE}, 2
        s_mul_i32 s29, s29, {9*2048}
        s_add_u32 s28, s28, s29
        v_add_u32 v{aBB}, s28, v{aBB}
        v_mul_u32_u24 v{aWD}, 1152, v{vT}
        v_lshl_add_u32 v{aWD}, v{vT+1}, 3, v{aWD}
        s_lshl_b32 s28, s{sWAVE}, 5
        s_add_u32 s28, s28, {L_WD}
        v_add_u32 v{aWD}, s28, v{aWD}
        s_lshl_b32 s28, s{sWAVE}, 8
        v_lshlrev_b32 v{aH}, 1, v{vLANE}
        v_add_u32 v{aH}, s28, v{aH}
        v_and_b32 v{aA}, 3, v{vN}
        v_cmp_eq_u32 vcc, 4, v{vN}
        v_mov_b32 v{aG}, 4
        s_lshr_b32 s28, s{sWAVE}, 2
        v_cndmask_b32 v{aA}, v{aA}, v{aG}, vcc           ; row(m)
        v_mul_u32_u24 v{aA}, 1152, v{aA}
        s_mul_i32 s28, s28, {9*64}
        v_lshl_add_u32 v{aA}, v{vG}, 4, v{aA}
        v_add_u32 v{aA}, s28, v{aA}
        s_lshl_b32 s28, s{sWAVE}, 10
        v_lshlrev_b32 v{aG}, 4, v{vLANE}
        v_add_u32 v{aG}, s28, v{aG}
        s_lshl_b32 s28, s{sWAVE}, 8
        v_lshlrev_b32 v{aR}, 4, v{vN}
        v_add_u32 v{aR}, s28, v{aR}                      ; wave*256 + n*16
        v_lshrrev_b32 v{aW}, 2, v{vLANE}                 ; f'
        v_and_b32 v{aF3}, 3, v{vLANE}                    ; b
        s_lshl_b32 s28, s{sWAVE}, 10
        v_lshlrev_b32 v{aF2}, 4, v{aW}
        v_add_u32 v{aF2}, s28, v{aF2}                    ; tile*1024 + f'*16
        v_lshl_add_u32 v{aF1}, v{aF3}, 2, v{aF2}         ; + b*4
        s_lshl_b32 s28, s{sWAVE}, 5
        v_lshlrev_b32 v{aW}, 1, v{aW}
        v_add_u32 v{aW}, s28, v{aW}                      ; (tile*16 + f')*2
        v_lshl_add_u32 v{aW}, v{aF3}, 6, v{aW}           ; + b*64
        v_lshlrev_b32 v{vT}, 4, v{aF3}                   ; b*16
        v_mov_b32 v{vT+1}, 64
        v_and_b32 v{vT+2}, 4, v{vLANE}
        v_cmp_ne_u32 vcc, 0, v{vT+2}
        v_lshrrev_b32 v{vT+2}, 3, v{vLANE}
        v_lshlrev_b32 v{vT+2}, 8, v{vT+2}                ; (l>>3)*256
        v_cndmask_b32 v{vT}, v{vT}, v{vT+1}, vcc
        v_lshl_add_u32 v{aF3}, v{aF3}, 2, v{vT}
        v_add_u32 v{aF3}, v{aF3}, v{vT+2}
        s_mov_b32 s64, 0xf0f0f0f0
        s_mov_b32 s65, 0xf0f0f0f0
        v_lshlrev_b32 v{aP}, 4, v{vLANE}
        """)
        def bb_reads():
            for ks in range(9):
                a(f"ds_read_b64_tr_b16 v[{BB+4*ks}:{BB+4*ks+1}], v{aBB} offset:{ks*2048}")
                a(f"ds_read_b64_tr_b16 v[{BB+4*ks+2}:{BB+4*ks+3}], v{aBB} offset:{ks*2048+256}")
                if ks == 5:
                    a("s_waitcnt lgkmcnt(0)")
        pre_gate = "g" in early
        if pre_gate:
            a(f"s_bitcmp1_b32 s{sWAVE}, 1\n s_cbranch_scc1 L_b_nopre")
            bb_reads()
            a("L_b_nopre:")
        a(f"s_cmp_ge_u32 s{sWAVE}, 4\n s_cbranch_scc1 L_b_loadwait")
        HGs = [P + 48, P + 60, P + 72]
        a(f"""
        s_lshl_b32 s28, s{sWAVE}, 11
        s_add_u32 s28, s28, {WS_HB}
        s_add_u32 s29, s28, 1024
        s_mov_b32 s31, {WS_HB + 8192}
        """)
        for k in range(ns[2]):
            for r in range(4):
                a(f"v_mov_b32 v{HGs[k]+8+r}, v{vTAG}")
        def h_issue(k, third):
            a(f"buffer_load_dwordx4 v[{HGs[k]}:{HGs[k]+3}], v{aP}, s[{sWS}:{sWS+3}], s28 offen sc1")
            a(f"buffer_load_dwordx4 v[{HGs[k]+4}:{HGs[k]+7}], v{aP}, s[{sWS}:{sWS+3}], s29 offen sc1")
            if third:
                a(f"buffer_load_dwordx4 v[{HGs[k]+8}:{HGs[k]+11}], v{aP}, s[{sWS}:{sWS+3}], s31 offen sc1")
        def h_consume(k, third):
            for b in range(4):
                a(f"ds_write_b16_d16_hi v{aH}, v{HGs[k]+b} offset:{L_HB + 1152*b}")
                a(f"ds_write_b16_d16_hi v{aH}, v{HGs[k]+4+b} offset:{L_HB + 1152*b + 128}")
            if third:
                for b in range(4):
                    a(f"ds_write_b16_d16_hi v{aH}, v{HGs[k]+8+b} offset:{L_HB + 1152*b + 1024}")
        hp = ((lambda: a(f"buffer_load_dword v{HGs[0]}, v{aP}, s[{sWS}:{sWS+3}], s28 offen sc1")), HGs[0], "1") if probe[2] else None
        a(f"s_cmp_lg_u32 s{sWAVE}, 0\n s_cbranch_scc1 L_h1")
        ppoll(a, "L_hpoll2", ns[2], 3, lambda k: h_issue(k, True), lambda k: list(range(HGs[k], HGs[k] + 12)), vT + 13,
              lambda k: h_consume(k, True), pollsleep, stg, probe=hp, presleep=presl[2])
        a("s_branch L_h2\n L_h1:")
        ppoll(a, "L_hpoll1", ns[2], 2, lambda k: h_issue(k, False), lambda k: list(range(HGs[k], HGs[k] + 8)), vT + 13,
              lambda k: h_consume(k, False), pollsleep, stg, probe=hp, presleep=presl[2])
        a("s_branch L_h2")
        a("L_b_loadwait:\n s_waitcnt vmcnt(0)")
        if wd_after and "d" in late and not no_w:
            a(f"s_cmp_eq_u32 s{sDRY}, 1\n s_cbranch_scc1 L_b_nod")
            slice_idx()
            a(f"s_and_b32 s73, s{sWAVE}, 3")
            dma_mat("d", 73)
            a("L_b_nod:")
        stamp(15)
        a("L_h2:")
        stamp(5)
        a("s_waitcnt lgkmcnt(0)\n s_barrier")
        GD = P + 40
        def mm(ks):
            c = "0" if ks == 0 else f"v[{GD}:{GD+3}]"
            a(f"v_mfma_f32_16x16x32_bf16 v[{GD}:{GD+3}], v[{AB+4*ks}:{AB+4*ks+3}], v[{BB+4*ks}:{BB+4*ks+3}], {c}")
        def a_read(ks):
            a(f"ds_read_b128 v[{AB+4*ks}:{AB+4*ks+3}], v{aA} offset:{L_HB + 64*ks}")
        if pre_gate:
            a(f"s_bitcmp1_b32 s{sWAVE}, 1\n s_cbranch_scc1 L_b_full")
            for ks in range(9):
                a_read(ks)
            for ks in range(9):
                a(f"s_waitcnt lgkmcnt({8-ks})")
                mm(ks)
            a("s_branch L_b_mmdone\n L_b_full:")
        def trip(ks):
            a(f"ds_read_b64_tr_b16 v[{BB+4*ks}:{BB+4*ks+1}], v{aBB} offset:{ks*2048}")
            a(f"ds_read_b64_tr_b16 v[{BB+4*ks+2}:{BB+4*ks+3}], v{aBB} offset:{ks*2048+256}")
            a_read(ks)
        for ks in range(4):
            trip(ks)
        for ks in range(9):
            a(f"s_waitcnt lgkmcnt({3 * (min(ks + 3, 8) - ks)})")
            mm(ks)
            if ks + 4 <= 8:
                trip(ks + 4)
        a("L_b_mmdone:")
        for i in range(5 if not wd_after else 0):
            if i == 4:
                a(f"s_cmp_ge_u32 s{sWAVE}, 4\n s_cbranch_scc1 L_no5th")
            a(f"ds_read_b64_tr_b16 v[{WDd+4*i}:{WDd+4*i+1}], v{aWD} offset:{i*256}")
            a(f"ds_read_b64_tr_b16 v[{WDd+4*i+2}:{WDd+4*i+3}], v{aWD} offset:{i*256 + 4*1152}")
        if not wd_after:
            a("L_no5th:")
    else:
        if not no_w:
            a(f"s_cmp_eq_u32 s{sDRY}, 1\n s_cbranch_scc1 L_skip_late")
            weights_late()
            a("L_skip_late:")
        stamp(15)
        BB = 64
        WDd = 100
        a(f"""
        v_lshrrev_b32 v{vT}, 2, v{vN}
        v_lshl_add_u32 v{vT}, v{vG}, 3, v{vT}            ; 8g + r
        v_and_b32 v{vT+1}, 3, v{vLANE}                   ; cc
        v_lshlrev_b32 v{vT+2}, 6, v{vT}
        v_lshl_add_u32 v{vT+2}, v{vT+1}, 3, v{vT+2}      ; (8g+r)*64 + cc*8
        s_and_b32 s28, s{sWAVE}, 1
        s_lshl_b32 s28, s28, 5                           ; t*32
        s_bfe_u32 s29, s{sWAVE}, 0x10001
        s_mul_i32 s29, s29, {L_WU - L_WG}
        s_add_u32 s28, s28, s29
        s_add_u32 s28, s28, {L_WG}
        s_lshr_b32 s29, s{sWAVE}, 2
        s_mul_i32 s29, s29, {9*2048}
        s_add_u32 s28, s28, s29
        v_add_u32 v{vT+2}, s28, v{vT+2}
        """)
        for ks in range(9):
            a(f"ds_read_b64_tr_b16 v[{BB+4*ks}:{BB+4*ks+1}], v{vT+2} offset:{ks*2048}")
            a(f"ds_read_b64_tr_b16 v[{BB+4*ks+2}:{BB+4*ks+3}], v{vT+2} offset:{ks*2048+256}")
            if ks == 5:
                a("s_waitcnt lgkmcnt(0)")
        a(f"""
        v_mul_u32_u24 v{vT+3}, 1152, v{vT}
        v_lshl_add_u32 v{vT+3}, v{vT+1}, 3, v{vT+3}
        s_lshl_b32 s28, s{sWAVE}, 5
        s_add_u32 s28, s28, {L_WD}
        v_add_u32 v{vT+3}, s28, v{vT+3}
        s_waitcnt lgkmcnt(0)
        """)
        for i in range(5):
            if i == 4:
                a(f"s_cmp_ge_u32 s{sWAVE}, 4\n s_cbranch_scc1 L_no5th")
            a(f"ds_read_b64_tr_b16 v[{WDd+4*i}:{WDd+4*i+1}], v{vT+3} offset:{i*256}")
            a(f"ds_read_b64_tr_b16 v[{WDd+4*i+2}:{WDd+4*i+3}], v{vT+3} offset:{i*256 + 4*1152}")
        a("L_no5th:")
        aH, aA, aG, aR, aF1, aF2, aF3, aW = (vT + 4 + i for i in range(8))
        aP = vT + 12
        a(f"""
        s_lshl_b32 s28, s{sWAVE}, 7
        v_lshlrev_b32 v{aH}, 1, v{vLANE}
        v_add_u32 v{aH}, s28, v{aH}
        v_and_b32 v{aA}, 3, v{vN}
        v_cmp_eq_u32 vcc, 4, v{vN}
        v_mov_b32 v{aG}, 4
        s_lshr_b32 s28, s{sWAVE}, 2
        v_cndmask_b32 v{aA}, v{aA}, v{aG}, vcc           ; row(m)
        v_mul_u32_u24 v{aA}, 1152, v{aA}
        s_mul_i32 s28, s28, {9*64}
        v_lshl_add_u32 v{aA}, v{vG}, 4, v{aA}
        v_add_u32 v{aA}, s28, v{aA}
        s_lshl_b32 s28, s{sWAVE}, 10
        v_lshlrev_b32 v{aG}, 4, v{vLANE}
        v_add_u32 v{aG}, s28, v{aG}
        s_lshl_b32 s28, s{sWAVE}, 8
        v_lshlrev_b32 v{aR}, 4, v{vN}
        v_add_u32 v{aR}, s28, v{aR}                      ; wave*256 + n*16
        v_lshrrev_b32 v{aW}, 2, v{vLANE}                 ; f'
        v_and_b32 v{aF3}, 3, v{vLANE}                    ; b
        s_lshl_b32 s28, s{sWAVE}, 10
        v_lshlrev_b32 v{aF2}, 4, v{aW}
        v_add_u32 v{aF2}, s28, v{aF2}                    ; tile*1024 + f'*16
        v_lshl_add_u32 v{aF1}, v{aF3}, 2, v{aF2}         ; + b*4
        s_lshl_b32 s28, s{sWAVE}, 5
        v_lshlrev_b32 v{aW}, 1, v{aW}
        v_add_u32 v{aW}, s28, v{aW}                      ; (tile*16 + f')*2
        v_lshl_add_u32 v{aW}, v{aF3}, 6, v{aW}           ; + b*64
        v_lshlrev_b32 v{vT}, 4, v{aF3}                   ; b*16
        v_mov_b32 v{vT+1}, 64
        v_and_b32 v{vT+2}, 4, v{vLANE}
        v_cmp_ne_u32 vcc, 0, v{vT+2}
        v_lshrrev_b32 v{vT+2}, 3, v{vLANE}
        v_lshlrev_b32 v{vT+2}, 8, v{vT+2}                ; (l>>3)*256
        v_cndmask_b32 v{vT}, v{vT}, v{vT+1}, vcc
        v_lshl_add_u32 v{aF3}, v{aF3}, 2, v{vT}
        v_add_u32 v{aF3}, v{aF3}, v{vT+2}
        s_mov_b32 s64, 0xf0f0f0f0
        s_mov_b32 s65, 0xf0f0f0f0
        v_lshlrev_b32 v{aP}, 4, v{vLANE}
        s_lshl_b32 s28, s{sWAVE}, 10
        s_add_u32 s28, s28, {WS_HB}
        s_mov_b32 s29, {WS_HB + 8192}
        s_lshl_b32 s30, s{sWAVE}, 11
        s_add_u32 s30, s30, {WS_CANB + 8*128}
        """)
        HGs = [P + 48 + 8 * k for k in range(3)]
        for k in range(3):
            for r in range(4):
                a(f"v_mov_b32 v{HGs[k]+4+r}, v{vTAG}")
        def h_issue2(k):
            a(f"buffer_load_dwordx4 v[{HGs[k]}:{HGs[k]+3}], v{aP}, s[{sWS}:{sWS+3}], s28 offen sc1")
            a(f"buffer_load_dwordx4 v[{HGs[k]+4}:{HGs[k]+7}], v{aP}, s[{sWS}:{sWS+3}], s29 offen sc1")
        def h_issue1(k):
            a(f"buffer_load_dwordx4 v[{HGs[k]}:{HGs[k]+3}], v{aP}, s[{sWS}:{sWS+3}], s28 offen sc1")
        def h_consume2(k):
            for b in range(4):
                a(f"ds_write_b16_d16_hi v{aH}, v{HGs[k]+b} offset:{L_HB + 1152*b}")
            for b in range(4):
                a(f"ds_write_b16_d16_hi v{aH}, v{HGs[k]+4+b} offset:{L_HB + 1152*b + 1024}")
        def h_consume1(k):
            for b in range(4):
                a(f"ds_write_b16_d16_hi v{aH}, v{HGs[k]+b} offset:{L_HB + 1152*b}")
        a(f"s_cmp_lg_u32 s{sWAVE}, 0\n s_cbranch_scc1 L_h1")
        ppoll(a, "L_hpoll2", ns[2], 2, h_issue2, lambda k: list(range(HGs[k], HGs[k] + 8)), vT + 13, h_consume2, pollsleep, stg,
              probe=((lambda: a(f"buffer_load_dword v{HGs[0]}, v{aP}, s[{sWS}:{sWS+3}], s{30 if canB else 28} offen sc1")), HGs[0], "1") if probe[2] else None, presleep=presl[2])
        a("s_branch L_h2\n L_h1:")
        ppoll(a, "L_hpoll1", ns[2], 1, h_issue1, lambda k: list(range(HGs[k], HGs[k] + 4)), vT + 13, h_consume1, pollsleep, stg,
              probe=((lambda: a(f"buffer_load_dword v{HGs[0]}, v{aP}, s[{sWS}:{sWS+3}], s{30 if canB else 28} offen sc1")), HGs[0], "1") if probe[2] else None, presleep=presl[2])
        a("L_h2:")
        stamp(5)
        a("s_waitcnt lgkmcnt(0)\n s_barrier")
        AB = P
        for ks in range(9):
            a(f"ds_read_b128 v[{AB+4*ks}:{AB+4*ks+3}], v{aA} offset:{L_HB + 64*ks}")
    GD = P + 40
    GRm = P + 44
    for ks in range(9 if not bdec else 0):
        a(f"s_waitcnt lgkmcnt({8-ks})")
        c = "0" if ks == 0 else f"v[{GD}:{GD+3}]"
        a(f"v_mfma_f32_16x16x32_bf16 v[{GD}:{GD+3}], v[{AB+4*ks}:{AB+4*ks+3}], v[{BB+4*ks}:{BB+4*ks+3}], {c}")
    a(f"s_and_b32 s28, s{sWAVE}, 3")
    lg = [a.label("L_gr") for _ in range(4)]; lge = a.label("L_gre")
    for t in range(1, 4):
        a(f"s_cmp_eq_u32 s28, {t}\n s_cbranch_scc1 {lg[t]}")
    for t in range(4):
        a(f"{lg[t]}:")
        kss = [t, t + 4] + ([8] if t == 0 else [])
        for i, ks in enumerate(kss):
            c = "0" if i == 0 else f"v[{GRm}:{GRm+3}]"
            a(f"v_mfma_f32_16x16x32_bf16 v[{GRm}:{GRm+3}], v[{AB+4*ks}:{AB+4*ks+3}], v[{AB+4*ks}:{AB+4*ks+3}], {c}")
        if t != 3:
            a(f"s_branch {lge}")
    a(f"""
    {lge}:
    s_nop 2
    ds_write_b128 v{aG}, v[{GD}:{GD+3}] offset:{L_GUF}
    s_nop 6
    s_mov_b64 exec, 0xffff
    ds_write_b128 v{aR}, v[{GRm}:{GRm+3}] offset:{L_GR}
    s_mov_b64 exec, -1
    s_waitcnt {"vmcnt(0) " if (bdec and wd_after) else ""}lgkmcnt(0)
    s_barrier
    """)
    def wd_reads(tag):
        for i in range(5):
            if i == 4:
                a(f"s_cmp_ge_u32 s{sWAVE}, 4\n s_cbranch_scc1 L_no5th{tag}")
            a(f"ds_read_b64_tr_b16 v[{WDd+4*i}:{WDd+4*i+1}], v{aWD} offset:{i*256}")
            a(f"ds_read_b64_tr_b16 v[{WDd+4*i+2}:{WDd+4*i+3}], v{aWD} offset:{i*256 + 4*1152}")
        a(f"L_no5th{tag}:")
    if bdec and wd_after:
        a(f"s_cmp_lt_u32 s{sWAVE}, 2\n s_cbranch_scc1 L_wd_later")
        wd_reads("a")
        a("L_wd_later:")
    stamp(6)
    def canc_store():
        lab = a.label("L_nocan")
        a(f"""
        s_cmp_lg_u32 s{sWAVE}, 7
        s_cbranch_scc1 {lab}
        s_lshl_b32 s30, s{sIDX}, 7
        s_add_u32 s30, s30, {WS_CANC}
        v_mov_b32 v{vT+14}, 0
        s_mov_b64 exec, 1
        buffer_store_dword v{vTAG}, v{vT+14}, s[{sWS}:{sWS+3}], s30 offen sc1
        s_mov_b64 exec, -1
        {lab}:
        """)
    if canC == 2:
        canc_store()
    a(f"s_cmp_ge_u32 s{sWAVE}, 2\n s_cbranch_scc1 L_nogelu")
    GE = P
    a(f"""
    ds_read_b32 v{GE+8}, v{aF3} offset:{L_GR}
    ds_read_b32 v{GE}, v{aF1} offset:{L_GUF}
    ds_read_b32 v{GE+1}, v{aF1} offset:{L_GUF+4096}
    ds_read_b32 v{GE+2}, v{aF1} offset:{L_GUF+2048}
    ds_read_b32 v{GE+3}, v{aF1} offset:{L_GUF+2048+4096}
    ds_read_b32 v{GE+4}, v{aF2} offset:{L_GUF+256}
    ds_read_b32 v{GE+5}, v{aF2} offset:{L_GUF+256+4096}
    ds_read_b32 v{GE+6}, v{aF2} offset:{L_GUF+256+2048}
    ds_read_b32 v{GE+7}, v{aF2} offset:{L_GUF+256+2048+4096}
    s_waitcnt lgkmcnt(8)
    """)
    X_, Y_, T_ = GE + 8, GE + 9, GE + 10
    a(f"""
    s_nop 1
    v_add_f32_dpp v{X_}, v{X_}, v{X_} row_ror:8 row_mask:0xf bank_mask:0xf
    """)
    xrow(a, [X_], [T_])
    a(f"""
    s_nop 1
    v_mov_b32_dpp v{Y_}, v{X_} row_ror:4 row_mask:0xf bank_mask:0xf
    s_nop 0
    v_cndmask_b32 v{T_}, v{Y_}, v{X_}, s[64:65]      ; sum
    v_cndmask_b32 v{Y_}, v{X_}, v{Y_}, s[64:65]      ; sumsq
    v_mul_f32 v{T_}, {INV576}, v{T_}                 ; mu
    v_mul_f32 v{Y_}, {INV576}, v{Y_}
    v_fma_f32 v{Y_}, -v{T_}, v{T_}, v{Y_}            ; var
    """)
    rbf(a, [(T_, Y_)], [X_])
    a(f"v_add_f32 v{Y_}, {EPS}, v{Y_}")
    rbf(a, [(Y_, Y_)], [X_])
    a(f"v_sqrt_f32 v{Y_}, v{Y_}\n s_nop 0")
    rbf(a, [(Y_, Y_)], [X_])
    a(f"""
    v_rcp_f32 v{X_}, v{Y_}
    s_waitcnt lgkmcnt(0)
    """)
    if bdec and wd_after:
        wd_reads("b")
    a(f"""
    v_add_f32 v{GE}, v{GE}, v{GE+1}
    v_add_f32 v{GE+2}, v{GE+2}, v{GE+3}
    v_add_f32 v{GE+4}, v{GE+4}, v{GE+5}
    v_add_f32 v{GE+6}, v{GE+6}, v{GE+7}
    v_fma_f32 v{GE}, -v{T_}, v{GE+4}, v{GE}
    v_fma_f32 v{GE+2}, -v{T_}, v{GE+6}, v{GE+2}
    """)
    fdiv(a, GE + 1, GE, X_, Y_, GE + 4)
    fdiv(a, GE + 3, GE + 2, X_, Y_, GE + 5)
    rbf(a, [(GE + 1, GE + 3)], [GE + 4])
    C1, C2 = 0x3d372713, 0x3f4c422a
    TWO_L2E = 0x4038aa3b
    g, t = GE + 1, GE + 4
    a(f"""
    v_mul_f32 v{t}, v{g}, v{g}
    v_mul_f32 v{t}, v{t}, v{g}
    v_mov_b32 v{t+1}, {C1}
    v_fma_f32 v{t}, v{t}, v{t+1}, v{g}
    v_mul_f32 v{t}, {C2}, v{t}
    v_mul_f32 v{t}, {TWO_L2E}, v{t}
    v_exp_f32 v{t}, v{t}
    v_mul_f32 v{t+2}, 0.5, v{g}
    v_add_f32 v{t}, 1.0, v{t}
    v_rcp_f32 v{t}, v{t}
    s_nop 0
    v_fma_f32 v{t}, -2.0, v{t}, 1.0
    v_add_f32 v{t}, 1.0, v{t}
    v_mul_f32 v{g}, v{t+2}, v{t}
    """)
    rbf(a, [(g, g)], [t])
    a(f"""
    v_mul_f32 v{g}, v{g}, v{GE+3}
    v_cvt_pk_bf16_f32 v{t}, v{g}, v{g}
    ds_write_b16 v{aW}, v{t} offset:{L_HF}
    s_waitcnt lgkmcnt(0)
    L_nogelu:
    s_barrier
    """)
    tstamp(14)
    if canC == 1:
        canc_store()
    a(f"""
    v_and_b32 v{vT+5}, 3, v{vN}
    v_lshlrev_b32 v{vT+5}, 6, v{vT+5}
    v_lshl_add_u32 v{vT+5}, v{vG}, 4, v{vT+5}
    ds_read_b128 v[{P}:{P+3}], v{vT+5} offset:{L_HF}
    """)
    if cmajZ:
        a(f"""
        s_lshl_b32 s28, s{sIDX}, 6
        s_add_u32 s28, s28, {WS_Z}
        s_mul_i32 s29, s{sWAVE}, {4*9216}
        s_add_u32 s28, s28, s29
        v_lshrrev_b32 v{vT+6}, 2, v{vN}
        v_mul_u32_u24 v{vT+6}, 9216, v{vT+6}
        v_and_b32 v{vT+7}, 3, v{vN}
        v_lshl_add_u32 v{vT+6}, v{vT+7}, 4, v{vT+6}
        """)
        zstep = 8 * 4 * 9216
    else:
        a(f"""
        s_mul_i32 s28, s{sIDX}, 9216
        s_add_u32 s28, s28, {WS_Z}
        s_lshl_b32 s29, s{sWAVE}, 8
        s_add_u32 s28, s28, s29
        v_lshlrev_b32 v{vT+6}, 4, v{vN}
        """)
        zstep = 2048
    a("s_waitcnt lgkmcnt(0)")
    ZD = P + 8
    for i in range(5):
        if i == 4:
            a(f"s_cmp_ge_u32 s{sWAVE}, 4\n s_cbranch_scc1 L_z4")
        a(f"v_mfma_f32_16x16x32_bf16 v[{ZD+4*i}:{ZD+4*i+3}], v[{P}:{P+3}], v[{WDd+4*i}:{WDd+4*i+3}], 0")
    a("L_z4:\n s_nop 7")
    for i in range(5):
        if i == 4:
            a(f"s_cmp_ge_u32 s{sWAVE}, 4\n s_cbranch_scc1 L_fin")
        addtag(a, range(ZD + 4*i, ZD + 4*i + 4))
        a(f"""
        s_add_u32 s29, s28, {zstep*i}
        s_mov_b64 exec, 0xffff
        buffer_store_dwordx4 v[{ZD+4*i}:{ZD+4*i+3}], v{vT+6}, s[{sWS}:{sWS+3}], s29 offen sc1
        s_mov_b64 exec, -1
        """)

    tstamp(13)
    a("L_fin:")
    for i in range(mark_tail, len(a.L) if dry else 0):
        if a.L[i].strip() == "s_barrier" and "noguard" not in a.L[i]:
            lab = a.label("L_nb")
            a.L[i] = f"    s_cmp_eq_u32 s{sDRY}, 1\n    s_cbranch_scc1 {lab}\n    s_barrier\n{lab}:"
    a(f"s_cmp_eq_u32 s{sDRY}, 1\n s_cbranch_scc1 L_dry_done" if dry else "")
    dbg_max(2)
    if stamps:
        a("s_waitcnt vmcnt(0)")
        stamp(8)
        a(f"""
        s_lshl_b32 s28, s{sW}, 3
        s_add_u32 s28, s28, s{sWAVE}
        s_lshl_b32 s28, s28, 6
        s_add_u32 s28, s28, {WS_STAMP}
        v_mov_b32 v{vT}, 0
        s_mov_b64 exec, 1
        """)
        for i in range(0, NSTAMP, 4):
            for r in range(4):
                a(f"v_mov_b32 v{vT+2+r}, s{sST+i+r}")
            a(f"buffer_store_dwordx4 v[{vT+2}:{vT+5}], v{vT}, s[{sWS}:{sWS+3}], s28 offen offset:{4*i}")
            a("s_nop 1")
        a("s_waitcnt vmcnt(0)")
    a("L_end:\n s_endpgm\n L_code_end:")

    if not dry:
        L2 = []; i = 0
        flat = "\n".join(a.L).split("\n")
        while i < len(flat):
            if flat[i].strip() == f"s_cmp_eq_u32 s{sDRY}, 1" and flat[i+1].strip().startswith("s_cbranch_scc1"):
                i += 2; continue
            if flat[i].strip() in (f"s_mov_b32 s{sDRY}, 0",):
                i += 1; continue
            L2.append(flat[i]); i += 1
        a.L = L2
    hdr = HEADER + f"; @launch grid=(256,1,1) block=(512,1,1) lds={LDS_BYTES}\n"
    hdr += '.amdgcn_target "amdgcn-amd-amdhsa--gfx950"\n.text\n'
    return hdr + kernel_begin(KNAME) + a.text() + kernel_desc(KNAME, 256, 102, 256)


HEADER = """;
;  prologue : LN(x[b]) and q[b,h] = LN(x) Wq[:, h] per workgroup (MFMA, natural-layout weights with a delta-masked A
;             attention partials -> 96 Wo workgroups (merge, o Wo) -> 144 column reducers (h = x + attn) ->
"""

if __name__ == "__main__":
    import sys
    kw = eval(sys.argv[2]) if len(sys.argv) > 2 else {}
    open(sys.argv[1], "w").write(gen(**kw))
```

```python
from asmlib import *

WS_E    = 0x0
WS_QP   = 0x10000
WS_AP   = 0xA0000
WS_Y    = 0xD0000
WS_HB   = 0x120000
WS_Z    = 0x130000
WS_CANB = 0x280000
WS_CANC = 0x288000
WS_STAMP= 0x300000
WS_SIZE = 0x400000

L_XD = 0
L_QB = L_XD + 9216
L_MRG = L_QB + 256
L_ML = L_MRG + 4096
L_OB = L_ML + 64
L_HB = L_OB + 1024
L_GUF = L_HB + 5760
L_GR = L_GUF + 8192
L_HF = L_GR + 2048
L_SMALL_END = L_HF + 256
L_WG = 32768
L_WU = L_WG + 36864
L_WD = L_WU + 36864
L_END = L_WD + 36864
assert L_SMALL_END <= L_WG
LDS_BYTES = 143360
assert L_END <= LDS_BYTES, L_END

LOG2E = 0x3fb8aa3b
SCALE = 0x3db504f3
INV576 = 0x3ae38e39
EPS = 0x3727c5ac

sWAVE = 3
sK, sV, sWS, sT, sU = 8, 12, 16, 20, 24
pX, pK, pV, pWQ, pWO, pBX, pWG, pWU = 32, 34, 36, 38, 40, 42, 44, 46
pWD, pOUT, pDBG, pWSP = 48, 50, 52, 54
sE, sW, sB, sH, sJ, sTO, sKV, sIT = 56, 57, 58, 59, 60, 61, 62, 63
sROW = 64
sOFF = 67
sL2E, sSCALE, sHI = 68, 69, 70
sCNT = 71
sDRY, sOUTN = 94, 95
sROLE, sIDX, sSLICE, sNT, sROT, sXTRA = 96, 97, 98, 99, 100, 101
sST = 74
NSTAMP = 16
vLANE, vN, vG, vOFFK, vOFFV = 0, 1, 2, 3, 4
vMASK = 5
vM, vL = 9, 10
vO = 12
vS = 16
vQ = 20
vTAG, vFF = 36, 37
vT = 38
vSTG = 64
vWQ = 192
vP = 172
vPP = 204


def srd(a, s, ptr, nbytes):
    a(f"""
    s_mov_b32 s{s}, s{ptr}
    s_and_b32 s{s+1}, s{ptr+1}, 0xffff
    s_mov_b32 s{s+2}, {nbytes}
    s_mov_b32 s{s+3}, 0x00020000
    """)


def row16(a, regs, op="add", ctrls=("quad_perm:[1,0,3,2]", "quad_perm:[2,3,0,1]", "row_half_mirror", "row_mirror")):
    ins = "v_add_f32" if op == "add" else "v_max_f32"
    n = len(regs)
    a("s_nop 1")
    for ctrl in ctrls:
        for r in regs:
            a(f"{ins}_dpp v{r}, v{r}, v{r} {ctrl} row_mask:0xf bank_mask:0xf")
        if n < 3:
            a(f"s_nop {2 - n}")


def xrow(a, regs, tmp, op="add", only32=False):
    ins = "v_add_f32" if op == "add" else "v_max_f32"
    sws = ("v_permlane16_swap_b32", "v_permlane32_swap_b32")
    if only32:
        sws = sws[1:]
    for sw in sws:
        for r, t in zip(regs, tmp):
            a(f"v_mov_b32 v{t}, v{r}")
        a("s_nop 1")
        for r, t in zip(regs, tmp):
            a(f"{sw} v{r}, v{t}")
        a("s_nop 1")
        for r, t in zip(regs, tmp):
            a(f"{ins} v{r}, v{r}, v{t}")


def wavesum(a, regs, tmp, op="add"):
    row16(a, regs, op)
    xrow(a, regs, tmp, op)


def rbf(a, pairs, t):
    for (x, y), tt in zip(pairs, t):
        a(f"v_cvt_pk_bf16_f32 v{tt}, v{x}, v{y}")
    for (x, y), tt in zip(pairs, t):
        a(f"v_lshlrev_b32 v{x}, 16, v{tt}")
        if y != x:
            a(f"v_and_b32 v{y}, s{sHI}, v{tt}")


def tagcheck(a, regs, acc, retry):
    a(f"v_xor_b32 v{acc}, v{regs[0]}, v{vTAG}")
    for r in regs[1:]:
        a(f"v_bitop3_b32 v{acc}, v{acc}, v{r}, v{vTAG} bitop3:0xf6")
    a(f"v_and_b32 v{acc}, v{acc}, v{vFF}")
    a(f"v_cmp_ne_u32 vcc, 0, v{acc}")
    a(f"s_cbranch_vccnz {retry}")


def addtag(a, regs):
    for r in regs:
        a(f"v_bfi_b32 v{r}, v{vFF}, v{vTAG}, v{r}")


def poll_head(a, name, bail="L_end"):
    a(f"{name}:")
    a(f"s_sub_u32 s{sTO}, s{sTO}, 1")
    a(f"s_cbranch_scc1 {bail}")


DRYG = False

def ppoll(a, name, nsets, nloads, issue, regs, acc, consume, sleep=0, stagger=0, probe=None, presleep=0):
    if DRYG:
        a(f"s_cmp_eq_u32 s{sDRY}, 1\n s_cbranch_scc1 {name}_ok0")
    if presleep:
        n = presleep
        while n > 0:
            a(f"s_sleep {min(n, 100)}")
            n -= 100
    if probe:
        emit, preg, mask = probe
        a(f"s_mov_b64 exec, {mask}")
        a(f"{name}_probe:")
        a(f"s_sub_u32 s{sTO}, s{sTO}, 1")
        a(f"s_cbranch_scc1 L_end")
        emit()
        a("s_waitcnt vmcnt(0)")
        a(f"v_xor_b32 v{acc}, v{preg}, v{vTAG}")
        a(f"v_and_b32 v{acc}, v{acc}, v{vFF}")
        a(f"v_cmp_ne_u32 vcc, 0, v{acc}")
        a(f"s_cbranch_vccnz {name}_probe")
        a("s_mov_b64 exec, -1")
    for k in range(nsets):
        issue(k)
        if stagger and k != nsets - 1:
            a(f"s_sleep {stagger}")
    a(f"{name}:")
    a(f"s_sub_u32 s{sTO}, s{sTO}, 1")
    a(f"s_cbranch_scc1 L_end")
    for k in range(nsets):
        a(f"s_waitcnt vmcnt({(nsets-1)*nloads})")
        r = regs(k)
        a(f"v_xor_b32 v{acc}, v{r[0]}, v{vTAG}")
        for x in r[1:]:
            a(f"v_bitop3_b32 v{acc}, v{acc}, v{x}, v{vTAG} bitop3:0xf6")
        a(f"v_and_b32 v{acc}, v{acc}, v{vFF}")
        a(f"v_cmp_ne_u32 vcc, 0, v{acc}")
        a(f"s_cbranch_vccz {name}_ok{k}")
        if sleep:
            a(f"s_sleep {sleep}")
        issue(k)
    a(f"s_branch {name}")
    for k in range(nsets):
        a(f"{name}_ok{k}:")
        consume(k)
        if k != nsets - 1:
            a(f"s_branch {name}_done")
    a(f"{name}_done:")


def fdiv(a, out, num, den_rcp, den, t):
    a(f"v_mul_f32 v{out}, v{num}, v{den_rcp}")
    a(f"v_fma_f32 v{t}, -v{out}, v{den}, v{num}")
    a(f"v_fma_f32 v{out}, v{t}, v{den_rcp}, v{out}")


def gen(D=3, stamps=False, stop=None, kvflags="nt", wflags="nt", late_w=False, pollsleep=0, codepf='tail', xflags="nt", cyc=False, pre=(0, 1, 2, 0), no_w=False, no_compute=False, no_q=False, early='', wo_late=False, gate='pair', bare=False, tailst=False, ns=(1, 1, 1, 1), stg=0, probe=(0, 1, 1, 1), presl=(0, 0, 0, 0), dry=False, shift=0, rotw=False, only=None, canB=False, canC=0, outfl='sc1', tlbw=0, locq=True, lq_pre=1, lq_mid=1, w0_mid=1, xmap=True, dbgA=False, dbgB=False, lq_late=2, gsleep=0, bdec=True, wo_e=4, wd_after=False, dbgtime=False, cmajY=False, cmajZ=False, rmap=True, sh2=0, wrot=0, zpack=True):
    global DRYG
    DRYG = bool(dry)
    a = Asm()
    NT = 32
    KV_OOB = 0x10000000
    P = vPP

    def tstamp(idx):
        if tailst:
            stamp(idx, True)

    def stamp(idx, force=False):
        if only is not None and idx not in only:
            return
        if tailst and idx in (9, 10, 11, 12, 13, 14) and not force:
            return
        if stamps:
            ins = "s_memtime" if cyc else "s_memrealtime"
            a(f"{ins} s[90:91]\n s_waitcnt lgkmcnt(0)\n s_mov_b32 s{sST+idx}, s90")

    def psleep():
        if pollsleep:
            a(f"s_sleep {pollsleep}")

    def code_prefetch(nwaves, lo, hi, tmp, dst=None):
        a(f"""
        s_getpc_b64 s[92:93]
        {a.label("L_pc")}:
        """)
        lab = a.L[-1].strip()[:-1]
        a(f"""
        s_add_u32 s92, s92, {lo}-{lab}
        s_addc_u32 s93, s93, {-1 if lo == "L_code0" else 0}
        s_lshl_b32 s28, s{sWAVE}, 10
        v_lshlrev_b32 v{tmp+4}, 4, v{vLANE}
        v_add_u32 v{tmp+4}, s28, v{tmp+4}
        s_mov_b32 s29, {hi}-{lo}-16
        """)
        for i in range(NPF[(lo, hi)]):
            a(f"v_min_u32 v{tmp+5}, s29, v{tmp+4}")
            d_ = tmp if dst is None else dst
            a(f"global_load_dwordx4 v[{d_}:{d_+3}], v{tmp+5}, s[92:93]")
            a(f"v_add_u32 v{tmp+4}, {1024*nwaves}, v{tmp+4}")
    NPF = {("L_code0", "L_code_end"): 2, ("L_tail0", "L_code_end"): 2}
    ROLES_OLD = f"""    ; ---- roles: even w < 224: Wo (w < 192) or spare ; otherwise stage B
    s_lshr_b32 s29, s2, 1                  ; P
    s_mov_b32 s{sIDX}, s29
    s_cmp_lt_u32 s29, 96
    s_cselect_b32 s{sROLE}, 1, 2
    s_cselect_b32 s30, {shift}, 0
    s_cmp_eq_u32 s28, 1
    s_cselect_b32 s{sROLE}, 0, s{sROLE}
    s_lshr_b32 s31, s29, 3
    s_lshl_b32 s31, s31, 2
    s_and_b32 s4, s29, 3
    s_add_u32 s31, s31, s4
    s_lshl_b32 s31, s31, 1
    s_bfe_u32 s4, s29, 0x10002
    s_add_u32 s{sSLICE}, s31, s4
    s_cmp_lt_u32 s2, 224
    s_cbranch_scc1 L_role_done
    s_mov_b32 s{sROLE}, 0
    s_sub_u32 s4, s2, 224                  ; p'
    s_add_u32 s{sIDX}, s4, 112
    s_lshr_b32 s31, s4, 4
    s_lshl_b32 s31, s31, 3
    s_and_b32 s5, s4, 7
    s_add_u32 s31, s31, s5
    s_lshl_b32 s31, s31, 1
    s_bfe_u32 s5, s4, 0x10003
    s_add_u32 s31, s31, s5
    s_add_u32 s{sSLICE}, s31, 112
    L_role_done:
    s_sub_u32 s30, 256, s30
    s_and_b32 s28, s{sJ}, 1
    s_cmp_eq_u32 s28, 1
    s_cselect_b32 s4, s30, 0               ; t0
    s_cselect_b32 s5, 512, s30             ; t1
    """
    ROLES_NEW = f"""
    s_and_b32 s29, s2, 7                   ; x
    s_lshr_b32 s30, s2, 4                  ; r
    s_lshl_b32 s31, s30, 3
    s_add_u32 s{sIDX}, s31, s29            ; r*8 + x
    s_lshr_b32 s31, s30, 1
    s_lshl_b32 s31, s31, 3
    s_add_u32 s31, s31, s29
    s_lshl_b32 s31, s31, 1
    s_and_b32 s4, s30, 1
    s_add_u32 s{sSLICE}, s31, s4           ; ((r>>1)*8 + x)*2 + (r&1)
    s_mov_b32 s{sROLE}, 0
    s_bitcmp1_b32 s2, 3
    s_cbranch_scc1 L_role_done
    s_cmp_lt_u32 s30, 12
    s_cselect_b32 s{sROLE}, 1, 2
    s_cmp_lt_u32 s30, 14
    s_cbranch_scc1 L_role_done
    s_mov_b32 s{sROLE}, 0
    s_add_u32 s{sIDX}, s{sIDX}, {128 - 14*8}
    s_lshl_b32 s31, s29, 1
    s_sub_u32 s4, s30, 14
    s_add_u32 s31, s31, s4
    s_add_u32 s{sSLICE}, s31, 128
    L_role_done:
    s_cmp_lt_u32 s30, 12
    s_cselect_b32 s30, {sh2}, 0
    s_and_b32 s28, s{sJ}, 1
    s_sub_u32 s5, 256, s30                 ; s=0: t1 = 256 - sh
    s_mov_b32 s4, 0
    s_mov_b32 s6, 0
    s_cmp_eq_u32 s28, 1
    s_cselect_b32 s4, 256, 0
    s_cselect_b32 s5, 512, s5
    s_cselect_b32 s6, s30, 0
    """
    ROLES = ROLES_NEW if rmap else ROLES_OLD
    XMAP = "" if not xmap else f"""
    s_and_b32 s29, s2, 7
    s_lshr_b32 s30, s2, 6
    s_lshl_b32 s30, s30, 3
    s_add_u32 s{sH}, s29, s30              ; h = (w&7) + 8*(w>>6)
    s_bfe_u32 s{sJ}, s2, 0x30003           ; j = (w>>3)&7
    s_lshr_b32 s{sB}, s{sJ}, 1
    """
    def dbg_max(slot, invert=False):
        if not dbgtime:
            return
        lab = a.label("L_dbg")
        a(f"s_cmp_ge_u32 s{sWAVE}, {2 if slot == 2 else 1}\n s_cbranch_scc1 {lab}")
        a(f"""
        s_memrealtime s[90:91]
        s_waitcnt lgkmcnt(0)
        {"s_not_b32 s90, s90" if invert else ""}
        v_mov_b32 v62, s90
        v_mov_b32 v63, {4*slot}
        s_mov_b64 exec, 1
        global_atomic_umax v63, v62, s[{pDBG}:{pDBG+1}]
        s_mov_b64 exec, -1
        {lab}:
        """)

    a(f"""
    L_code0:
    s_cmp_ge_u32 s2, 256
    s_cbranch_scc1 L_end
    s_load_dwordx16 s[32:47], s[0:1], 0
    s_load_dwordx8 s[48:55], s[0:1], 64
    v_lshrrev_b32 v{P}, 6, v0
    v_and_b32 v{vLANE}, 63, v0
    v_readfirstlane_b32 s{sWAVE}, v{P}
    v_and_b32 v{vN}, 15, v{vLANE}
    v_lshrrev_b32 v{vG}, 4, v{vLANE}
    v_lshlrev_b32 v{vOFFK}, 8, v{vN}
    v_lshl_add_u32 v{vOFFK}, v{vG}, 4, v{vOFFK}
    v_lshlrev_b32 v{vOFFV}, 10, v{vG}
    v_lshl_add_u32 v{vOFFV}, v{vN}, 4, v{vOFFV}
    s_mov_b32 s{sW}, s2
    s_lshr_b32 s{sB}, s2, 6
    s_lshr_b32 s{sH}, s2, 1
    s_and_b32 s{sH}, s{sH}, 31
    s_and_b32 s28, s2, 1
    s_lshl_b32 s{sJ}, s{sB}, 1
    s_add_u32 s{sJ}, s{sJ}, s28
    {XMAP}
    s_mov_b32 s{sTO}, 2000000
    {ROLES}
    s_mov_b32 s{sL2E}, {LOG2E}
    s_mov_b32 s{sSCALE}, {SCALE}
    s_mov_b32 s{sHI}, 0xffff0000
    s_mov_b32 s{sDRY}, 0
    s_mov_b32 s{sOUTN}, 4608
    """)
    if stamps:
        for i in range(NSTAMP):
            a(f"s_mov_b32 s{sST+i}, 0")
    stamp(0)
    if codepf is True and not locq:
        code_prefetch(8, "L_code0", "L_code_end", vPP + 44)
    a("s_waitcnt lgkmcnt(0)")
    stamp(9)
    dbg_max(0, True)
    a(f"s_load_dword s{sE}, s[{pWSP}:{pWSP+1}], 0")
    srd(a, sK, pK, 0x10000000)
    srd(a, sV, pV, 0x10000000)
    srd(a, sWS, pWSP, WS_SIZE)
    srd(a, sT, pX, 4608)
    srd(a, sU, pWQ, 576 * 8192)
    WROT = "" if not wrot else f"""
    s_mul_i32 s{sROT}, s{sW}, {wrot}
    s_add_u32 s{sROT}, s{sROT}, s{sWAVE}
    s_lshl_b32 s{sROT}, s{sROT}, 12
    """
    XTRA = "" if not rmap else f"""
    s_cmp_lt_u32 s{sWAVE}, s6
    s_addc_u32 s{sNT}, s{sNT}, 0
    s_sub_u32 s28, 256, s6
    s_add_u32 s28, s28, s{sWAVE}
    s_lshl_b32 s28, s28, 12
    s_lshl_b32 s{sXTRA}, s{sB}, 5
    s_add_u32 s{sXTRA}, s{sXTRA}, s{sH}
    s_lshl_b32 s{sXTRA}, s{sXTRA}, 21
    s_add_u32 s{sXTRA}, s{sXTRA}, s28
    """
    a(f"""
    s_lshl_b32 s{sKV}, s{sB}, 5
    s_add_u32 s{sKV}, s{sKV}, s{sH}
    s_lshl_b32 s{sKV}, s{sKV}, 21
    s_lshl_b32 s28, s4, 12
    s_add_u32 s{sKV}, s{sKV}, s28
    s_sub_u32 s29, s5, s4                  ; L
    s_lshr_b32 s{sNT}, s29, 3
    s_and_b32 s29, s29, 7                  ; remainder
    {'s_add_u32 s28, s%d, s%d' % (sNT, sWAVE) if rotw else 's_mov_b32 s28, s%d' % sWAVE}
    s_and_b32 s28, s28, 7
    s_cmp_lt_u32 s28, s29
    s_addc_u32 s{sNT}, s{sNT}, 0
    {XTRA}
    {WROT}
    s_mov_b32 s{sIT}, 0
    """)

    def kloads(s):
        r = vSTG + 32 * s
        for j in range(4):
            a(f"buffer_load_dwordx4 v[{r+4*j}:{r+4*j+3}], v{vOFFK}, s[{sK}:{sK+3}], s{sOFF} offen offset:{64*j} {kvflags}")

    def vloads(s):
        r = vSTG + 32 * s + 16
        for j in range(4):
            a(f"buffer_load_dwordx4 v[{r+4*j}:{r+4*j+3}], v{vOFFV}, s[{sV}:{sV+3}], s{sOFF} offen offset:{256*j} {kvflags}")

    def nextoff():
        if wrot:
            a(f"""
            s_and_b32 s{sOFF}, s{sROT}, 0xfffff
            s_add_u32 s{sOFF}, s{sOFF}, s{sKV}
            s_add_u32 s{sROT}, s{sROT}, 32768
            s_cmp_ge_u32 s{sIT}, s{sNT}
            s_cselect_b32 s{sOFF}, {KV_OOB}, s{sOFF}
            s_add_u32 s{sIT}, s{sIT}, 1
            """)
            return
        if rotw:
            a(f"""
            s_add_u32 s{sOFF}, s{sIT}, s{sWAVE}
            s_and_b32 s{sOFF}, s{sOFF}, 7
            s_lshl_b32 s{sOFF}, s{sOFF}, 12
            s_add_u32 s{sOFF}, s{sOFF}, s{sKV}
            """)
        else:
            a(f"""
            s_lshl_b32 s{sOFF}, s{sWAVE}, 12
            s_add_u32 s{sOFF}, s{sOFF}, s{sKV}
            """)
        if rmap and sh2:
            a(f"s_cmp_eq_u32 s{sIT}, 32\n s_cselect_b32 s{sOFF}, s{sXTRA}, s{sOFF}")
        a(f"""
        s_cmp_ge_u32 s{sIT}, s{sNT}
        s_cselect_b32 s{sOFF}, {KV_OOB}, s{sOFF}
        s_add_u32 s{sKV}, s{sKV}, 32768
        s_add_u32 s{sIT}, s{sIT}, 1
        """)

    def prefetch(lo=0, hi=D):
        for s in range(lo, hi):
            nextoff(); kloads(s); vloads(s)

    a0, a1, b0, b1 = pre

    def by_class(fa, fb, f7=None):
        la, lb, le = a.label("L_cA"), a.label("L_cB"), a.label("L_cE")
        a(f"s_cmp_lt_u32 s{sWAVE}, 4\n s_cbranch_scc1 {la}")
        a(f"s_cmp_lt_u32 s{sWAVE}, 7\n s_cbranch_scc1 {lb}")
        if f7: f7()
        a(f"s_branch {le}\n {la}:")
        fa()
        a(f"s_branch {le}\n {lb}:")
        fb()
        a(f"{le}:")

    def MASKS():
        t0, t1, t2 = vT + 2, vT + 3, vT + 4
        a(f"""
        v_and_b32 v{t0}, 7, v{vN}
        v_and_b32 v{t1}, 1, v{t0}
        v_lshlrev_b32 v{t1}, 4, v{t1}
        v_mov_b32 v{t2}, 0xffff
        v_lshlrev_b32 v{t1}, v{t1}, v{t2}
        v_lshrrev_b32 v{t0}, 1, v{t0}
        v_mov_b32 v{vFF}, 0xff
        """)
        for d in range(4):
            a(f"v_cmp_eq_u32 vcc, {d}, v{t0}\n s_nop 1\n v_cndmask_b32 v{vMASK+d}, 0, v{t1}, vcc")
        a(f"""
        s_waitcnt lgkmcnt(0)
        s_add_u32 s{sE}, s{sE}, 1
        s_and_b32 s28, s{sE}, 0xff
        v_mov_b32 v{vTAG}, s28
        """)

    if bare:
        prefetch(0, D)
        MASKS()
        a("s_branch L_bare")
    if locq:
        X, Dv = 64, 74
        A0, A1, A2, A3, A4 = 84, 85, 86, 87, 88
        vW18, AXS, AO = 160, 232, 250
        a(f"""
        v_lshlrev_b32 v{vT+1}, 13, v{vG}
        v_lshl_add_u32 v{vT+1}, v{vN}, 4, v{vT+1}        ; g*8192 + c*16
        s_lshl_b32 s30, s{sWAVE}, 15
        s_lshl_b32 s31, s{sH}, 8
        s_add_u32 s30, s30, s31
        s_cmp_lg_u32 s{sWAVE}, 0
        s_cbranch_scc1 L_lq_other
        v_lshlrev_b32 v{vT}, 1, v{vLANE}
        s_mul_i32 s28, s{sB}, 1152
        """)
        for i in range(9):
            a(f"buffer_load_ushort v{X+i}, v{vT}, s[{sT}:{sT+3}], s28 offen offset:{128*i} {xflags}")
        def wq18():
            for u in range(18):
                a(f"buffer_load_dwordx4 v[{vW18+4*u}:{vW18+4*u+3}], v{vT+1}, s[{sU}:{sU+3}], s30 offen {wflags}")
                if u != 17:
                    a(f"s_add_u32 s30, s30, {32*8192}")
        wq18()
        a("s_branch L_lq_issued\n L_lq_other:")
        lq_m = min(D, lq_pre + lq_mid)
        w0_m = min(D, w0_mid)
        prefetch(0, lq_pre)
        wq18()
        prefetch(lq_pre, lq_m)
        a("L_lq_issued:")
        if codepf is True:
            code_prefetch(8, "L_code0", "L_code_end", vT + 8, dst=60)
        MASKS()
        ncp = 0
        a(f"s_cmp_lg_u32 s{sWAVE}, 0\n s_cbranch_scc1 L_lq_noln")
        a(f"s_waitcnt vmcnt({18 + ncp})")
        stamp(10)
        for i in range(9):
            a(f"v_lshlrev_b32 v{X+i}, 16, v{X+i}")
        a(f"v_add_f32 v{A0}, v{X}, v{X+1}")
        a(f"v_mul_f32 v{A2}, v{X}, v{X}")
        for i in range(1, 9):
            if i >= 2:
                a(f"v_add_f32 v{A0}, v{A0}, v{X+i}")
            a(f"v_fmac_f32 v{A2}, v{X+i}, v{X+i}")
        wavesum(a, [A0, A2], [A1, A3])
        a(f"""
        v_mul_f32 v{A0}, {INV576}, v{A0}
        v_mul_f32 v{A2}, {INV576}, v{A2}
        v_fma_f32 v{A2}, -v{A0}, v{A0}, v{A2}
        """)
        rbf(a, [(A0, A2)], [A1])
        a(f"v_add_f32 v{A2}, {EPS}, v{A2}")
        rbf(a, [(A2, A2)], [A1])
        a(f"v_sqrt_f32 v{A2}, v{A2}\n s_nop 0")
        rbf(a, [(A2, A2)], [A1])
        a(f"v_rcp_f32 v{A3}, v{A2}")
        for i in range(9):
            a(f"v_sub_f32 v{Dv+i}, v{X+i}, v{A0}")
        rbf(a, [(Dv, Dv+1), (Dv+2, Dv+3), (Dv+4, Dv+5), (Dv+6, Dv+7), (Dv+8, Dv+8)], [X, X+1, X+2, X+3, X+4])
        for i in range(9):
            fdiv(a, X + i, Dv + i, A3, A2, A4)
        for i in range(9):
            a(f"v_cvt_pk_bf16_f32 v{X+i}, v{X+i}, v{X+i}")
        a(f"v_lshlrev_b32 v{A4}, 2, v{vLANE}")
        for i in range(9):
            a(f"ds_write_b32 v{A4}, v{X+i} offset:{L_XD + 256*i}")
        a("s_waitcnt lgkmcnt(0)")
        prefetch(0, w0_m)
        a("L_lq_noln:")
        a("s_barrier")
        stamp(11)
        a(f"""
        s_lshl_b32 s28, s{sWAVE}, 4
        v_lshlrev_b32 v{vT}, 2, v{vG}
        v_add_u32 v{vT}, s28, v{vT}                      ; g*4 + wave*16
        """)
        for u in range(18):
            a(f"ds_read_b32 v{AXS+u}, v{vT} offset:{L_XD + 128*u}")
            if u == 8:
                a("s_waitcnt lgkmcnt(0)")
        lw0, lwe = a.label("L_lqw0"), a.label("L_lqwe")
        a(f"s_cmp_eq_u32 s{sWAVE}, 0\n s_cbranch_scc1 {lw0}")
        a(f"s_waitcnt vmcnt({8*(lq_m-lq_pre) + ncp})\n s_branch {lwe}\n {lw0}:\n s_waitcnt vmcnt({8*w0_m})\n {lwe}:")
        a("s_waitcnt lgkmcnt(0)")
        if dbgA:
            a("s_waitcnt vmcnt(0)")
        stamp(12)
        for u in range(18):
            ao = AO if True else AO
            for d in range(4):
                a(f"v_and_b32 v{ao+d}, v{AXS+u}, v{vMASK+d}")
            a("s_nop 1")
            c = "0" if u == 0 else f"v[{vS}:{vS+3}]"
            a(f"v_mfma_f32_16x16x32_bf16 v[{vS}:{vS+3}], v[{ao}:{ao+3}], v[{vW18+4*u}:{vW18+4*u+3}], {c}")
            if dbgB:
                a("s_nop 7")
        a(f"""
        v_lshlrev_b32 v{vT}, 5, v{vN}                 ; c*32
        v_and_b32 v{vT+1}, 1, v{vG}
        v_lshl_add_u32 v{vT}, v{vT+1}, 4, v{vT}       ; + (g&1)*16
        s_lshl_b32 s28, s{sWAVE}, 9
        v_add_u32 v{vT}, s28, v{vT}
        s_nop 4
        ds_write_b128 v{vT}, v[{vS}:{vS+3}] offset:{L_MRG}
        """)
        if lq_m < D or w0_m < D:
            l0, le = a.label("L_lqr0"), a.label("L_lqre")
            a(f"s_cmp_eq_u32 s{sWAVE}, 0\n s_cbranch_scc1 {l0}")
            r1 = lq_late if lq_late is not None else D
            prefetch(lq_m, max(lq_m, min(D, r1)))
            a(f"s_branch {le}\n {l0}:")
            prefetch(w0_m, max(w0_m, min(D, r1)))
            a(f"{le}:")
        a("""
        s_waitcnt lgkmcnt(0)
        s_barrier
        """)
        stamp(13)
        QS = 232
        a(f"""
        s_cmp_lg_u32 s{sWAVE}, 1
        s_cbranch_scc1 L_lq_qdone
        v_and_b32 v{vT}, 31, v{vLANE}
        v_lshlrev_b32 v{vT+1}, 4, v{vT}
        """)
        for w in range(4):
            a(f"ds_read_b128 v[{QS+4*w}:{QS+4*w+3}], v{vT+1} offset:{L_MRG + 512*w}")
        for w in range(4, 8):
            a(f"ds_read_b128 v[{160+4*w}:{160+4*w+3}], v{vT+1} offset:{L_MRG + 512*w}")
        a("s_waitcnt lgkmcnt(0)")
        for r in range(0, 4, 2):
            a(f"v_pk_add_f32 v[{QS+r}:{QS+r+1}], v[{QS+r}:{QS+r+1}], v[{QS+4+r}:{QS+5+r}]")
            a(f"v_pk_add_f32 v[{QS+8+r}:{QS+9+r}], v[{QS+8+r}:{QS+9+r}], v[{QS+12+r}:{QS+13+r}]")
            a(f"v_pk_add_f32 v[{176+r}:{177+r}], v[{176+r}:{177+r}], v[{180+r}:{181+r}]")
            a(f"v_pk_add_f32 v[{184+r}:{185+r}], v[{184+r}:{185+r}], v[{188+r}:{189+r}]")
        for r in range(0, 4, 2):
            a(f"v_pk_add_f32 v[{QS+r}:{QS+r+1}], v[{QS+r}:{QS+r+1}], v[{QS+8+r}:{QS+9+r}]")
            a(f"v_pk_add_f32 v[{176+r}:{177+r}], v[{176+r}:{177+r}], v[{184+r}:{185+r}]")
        for r in range(0, 4, 2):
            a(f"v_pk_add_f32 v[{QS+r}:{QS+r+1}], v[{QS+r}:{QS+r+1}], v[{176+r}:{177+r}]")
        a(f"""
        v_cvt_pk_bf16_f32 v{QS+4}, v{QS}, v{QS+1}
        v_cvt_pk_bf16_f32 v{QS+5}, v{QS+2}, v{QS+3}
        v_lshlrev_b32 v{vT}, 3, v{vT}
        ds_write_b64 v{vT}, v[{QS+4}:{QS+5}] offset:{L_QB}
        s_waitcnt lgkmcnt(0)
        L_lq_qdone:
        s_barrier
        """)
        stamp(14)
        r1 = lq_late if lq_late is not None else D
        if max(lq_m, min(D, r1)) < D or max(w0_m, min(D, r1)) < D:
            l0, le = a.label("L_lqs0"), a.label("L_lqse")
            a(f"s_cmp_eq_u32 s{sWAVE}, 0\n s_cbranch_scc1 {l0}")
            prefetch(max(lq_m, min(D, r1)), D)
            a(f"s_branch {le}\n {l0}:")
            prefetch(max(w0_m, min(D, r1)), D)
            a(f"{le}:")
    else:
        X = P
        a(f"""
        s_cmp_ge_u32 s{sWAVE}, 4
        s_cbranch_scc1 L_nox
        v_lshlrev_b32 v{vT}, 1, v{vLANE}
        s_mul_i32 s28, s{sWAVE}, 1152
        """)
        for i in range(9):
            a(f"buffer_load_ushort v{X+i}, v{vT}, s[{sT}:{sT+3}], s28 offen offset:{128*i} {xflags}")
        a("L_nox:")
        a(f"""
        v_lshlrev_b32 v{vT+1}, 13, v{vG}
        v_lshl_add_u32 v{vT+1}, v{vN}, 4, v{vT+1}        ; g*8192 + c*16
        """)
        for u in range(3):
            a(f"""
            s_add_u32 s29, s{sWAVE}, {8*u}
            s_lshl_b32 s30, s29, 2
            s_mul_i32 s28, s{sJ}, 72
            s_add_u32 s30, s30, s28
            s_mov_b32 s{sROW+u}, s30
            s_lshl_b32 s30, s30, 13
            s_lshl_b32 s31, s{sH}, 8
            s_add_u32 s30, s30, s31
            s_cmp_ge_u32 s29, 18
            s_cselect_b32 s30, {576*8192}, s30
            s_cselect_b32 s{sROW+u}, s28, s{sROW+u}
            buffer_load_dwordx4 v[{vWQ+4*u}:{vWQ+4*u+3}], v{vT+1}, s[{sU}:{sU+3}], s30 offen {wflags}
            """)
        by_class(lambda: prefetch(0, a0), lambda: prefetch(0, b0))
        MASKS()
        Dv = P + 10
        A0, A1, A2, A3, A4, A5 = (P + 20 + i for i in range(6))
        a(f"""
        s_cmp_ge_u32 s{sWAVE}, 4
        s_cbranch_scc1 L_noln
        s_waitcnt vmcnt({3 + 8*a0})
        """)
        stamp(10)
        for i in range(9):
            a(f"v_lshlrev_b32 v{X+i}, 16, v{X+i}")
        a(f"v_add_f32 v{A0}, v{X}, v{X+1}")
        for i in range(2, 9):
            a(f"v_add_f32 v{A0}, v{A0}, v{X+i}")
        wavesum(a, [A0], [A1])
        a(f"v_mul_f32 v{A0}, {INV576}, v{A0}")
        for i in range(9):
            a(f"v_sub_f32 v{Dv+i}, v{X+i}, v{A0}")
        a(f"v_mul_f32 v{A2}, v{Dv}, v{Dv}")
        for i in range(1, 9):
            a(f"v_fmac_f32 v{A2}, v{Dv+i}, v{Dv+i}")
        wavesum(a, [A2], [A1])
        a(f"v_mul_f32 v{A2}, {INV576}, v{A2}")
        rbf(a, [(A0, A2)], [A1])
        a(f"v_add_f32 v{A2}, {EPS}, v{A2}")
        rbf(a, [(A2, A2)], [A1])
        a(f"v_sqrt_f32 v{A2}, v{A2}\n s_nop 0")
        rbf(a, [(A2, A2)], [A1])
        a(f"v_rcp_f32 v{A3}, v{A2}")
        for i in range(9):
            a(f"v_sub_f32 v{Dv+i}, v{X+i}, v{A0}")
        rbf(a, [(Dv, Dv+1), (Dv+2, Dv+3), (Dv+4, Dv+5), (Dv+6, Dv+7), (Dv+8, Dv+8)], [X, X+1, X+2, X+3, X+4])
        for i in range(9):
            fdiv(a, X + i, Dv + i, A3, A2, A4)
        for i in range(9):
            a(f"v_cvt_pk_bf16_f32 v{X+i}, v{X+i}, v{X+i}")
        a(f"""
        s_mul_i32 s28, s{sWAVE}, {576*4}
        v_lshlrev_b32 v{A4}, 2, v{vLANE}
        v_add_u32 v{A4}, s28, v{A4}
        """)
        for i in range(9):
            a(f"ds_write_b32 v{A4}, v{X+i} offset:{L_XD + 256*i}")
        a("L_noln:")
        a("s_waitcnt lgkmcnt(0)\n s_barrier")
        stamp(11)
        AX = P
        AO = P + 8
        QA = P + 12
        a(f"""
        v_lshrrev_b32 v{vT}, 3, v{vN}                 ; m>>3
        v_mul_u32_u24 v{vT}, 576, v{vT}
        v_add_u32 v{vT}, v{vT}, v{vG}
        v_lshlrev_b32 v{vT}, 2, v{vT}                 ; ((m>>3)*576 + g)*4
        """)
        for u in range(3):
            a(f"""
            s_lshl_b32 s28, s{sROW+u}, 2
            v_add_u32 v{vT+1}, s28, v{vT}
            ds_read_b32 v{AX+2*u}, v{vT+1} offset:{L_XD}
            ds_read_b32 v{AX+2*u+1}, v{vT+1} offset:{L_XD + 2*576*4}
            """)
        by_class(lambda: a(f"s_waitcnt vmcnt({8*a0})"), lambda: a(f"s_waitcnt vmcnt({8*b0})"), lambda: a("s_waitcnt vmcnt(0)"))
        a("s_waitcnt lgkmcnt(0)")
        stamp(12)
        for u in range(3):
            for pp in range(2):
                for d in range(4):
                    a(f"v_and_b32 v{AO+d}, v{AX+2*u+pp}, v{vMASK+d}")
                a("s_nop 1")
                c = "0" if u == 0 else f"v[{QA+4*pp}:{QA+4*pp+3}]"
                a(f"v_mfma_f32_16x16x32_bf16 v[{QA+4*pp}:{QA+4*pp+3}], v[{AO}:{AO+3}], v[{vWQ+4*u}:{vWQ+4*u+3}], {c}")
                a("s_nop 1")
        a(f"""
        v_lshrrev_b32 v{vT}, 1, v{vG}
        v_lshlrev_b32 v{vT}, 9, v{vT}
        v_lshl_add_u32 v{vT}, v{vN}, 5, v{vT}
        v_and_b32 v{vT+1}, 1, v{vG}
        v_lshl_add_u32 v{vT}, v{vT+1}, 4, v{vT}
        s_nop 7
        """)
        a(f"s_lshl_b32 s28, s{sWAVE}, 11\n s_add_u32 s28, s28, {L_WG}\n v_add_u32 v{vT}, s28, v{vT}")
        for pp in range(2):
            a(f"ds_write_b128 v{vT}, v[{QA+4*pp}:{QA+4*pp+3}] offset:{pp*1024}")
        a("s_waitcnt lgkmcnt(0)\n s_barrier")
        stamp(13)
        by_class(lambda: prefetch(a0, a0 + a1), lambda: prefetch(b0, b0 + b1))
        G0 = P
        a(f"""
        s_cmp_lg_u32 s{sWAVE}, 7
        s_cbranch_scc1 L_qwait
        v_lshlrev_b32 v{vT}, 4, v{vLANE}
        v_add_u32 v{vT+1}, {L_WG}, v{vT}
        """)
        for half in range(2):
            base = G0 + 8 if half == 0 else G0 + 8
            for w in range(8):
                dst = (G0 + 4*half) if w == 0 else (G0 + 8 + 4*(w-1))
                a(f"ds_read_b128 v[{dst}:{dst+3}], v{vT+1} offset:{2048*w + 1024*half}")
            a("s_waitcnt lgkmcnt(0)")
            for w in range(1, 8):
                for r in range(4):
                    a(f"v_add_f32 v{G0+4*half+r}, v{G0+4*half+r}, v{G0+8+4*(w-1)+r}")
        a(f"""
        s_lshl_b32 s28, s{sH}, 3
        s_add_u32 s28, s28, s{sJ}
        s_lshl_b32 s28, s28, 11
        s_add_u32 s28, s28, {WS_QP}
        """)
        addtag(a, range(G0, G0 + 8))
        a(f"""
        buffer_store_dwordx4 v[{G0}:{G0+3}], v{vT}, s[{sWS}:{sWS+3}], s28 offen sc1
        buffer_store_dwordx4 v[{G0+4}:{G0+7}], v{vT}, s[{sWS}:{sWS+3}], s28 offen offset:1024 sc1
        v_lshrrev_b32 v{vT+1}, 5, v{vLANE}
        v_lshlrev_b32 v{vT+1}, 11, v{vT+1}
        v_and_b32 v{vT+2}, 31, v{vLANE}
        v_lshl_add_u32 v{vT+1}, v{vT+2}, 4, v{vT+1}      ; jj*2048 + c4*16
        s_lshl_b32 s28, s{sH}, 14
        s_lshl_b32 s29, s{sB}, 9
        s_add_u32 s28, s28, s29
        s_add_u32 s28, s28, {WS_QP}
        s_add_u32 s29, s28, 4096
        s_add_u32 s30, s28, 8192
        s_add_u32 s31, s28, 12288
        s_nop 1
        """)
        G1 = P + 8
        poll_head(a, "L_qpoll")
        psleep()
        for i in range(4):
            a(f"buffer_load_dwordx4 v[{G1+4*i}:{G1+4*i+3}], v{vT+1}, s[{sWS}:{sWS+3}], s{28+i} offen sc1")
        a("s_waitcnt vmcnt(0)")
        if not no_q:
            tagcheck(a, list(range(G1, G1 + 16)), vT + 3, "L_qpoll")
        stamp(14)
        for r in range(4):
            a(f"v_add_f32 v{G1+r}, v{G1+r}, v{G1+4+r}")
            a(f"v_add_f32 v{G1+8+r}, v{G1+8+r}, v{G1+12+r}")
        for r in range(4):
            a(f"v_add_f32 v{G1+r}, v{G1+r}, v{G1+8+r}")
        xrow(a, [G1, G1+1, G1+2, G1+3], [G1+4, G1+5, G1+6, G1+7], only32=True)
        a(f"""
        v_cvt_pk_bf16_f32 v{G1+8}, v{G1}, v{G1+1}
        v_cvt_pk_bf16_f32 v{G1+9}, v{G1+2}, v{G1+3}
        v_lshlrev_b32 v{vT+2}, 3, v{vT+2}
        ds_write_b64 v{vT+2}, v[{G1+8}:{G1+9}] offset:{L_QB}
        """)
        a(f"""
        s_waitcnt lgkmcnt(0)
        L_qwait:
        s_barrier
        """)
        by_class(lambda: prefetch(a0 + a1, D), lambda: prefetch(b0 + b1, D), lambda: prefetch(0, D))
    a(f"v_lshlrev_b32 v{vT}, 4, v{vG}")
    a("L_bare:")
    for j in range(4):
        a(f"ds_read_b128 v[{vQ+4*j}:{vQ+4*j+3}], v{vT} offset:{L_QB + 64*j}")
    a(f"""
    v_mov_b32 v{vM}, 0xff800000
    v_mov_b32 v{vL}, 0
    v_mov_b32 v{vO}, 0
    v_mov_b32 v{vO+1}, 0
    v_mov_b32 v{vO+2}, 0
    v_mov_b32 v{vO+3}, 0
    s_mov_b32 s{sCNT}, s{sNT}
    s_waitcnt lgkmcnt(0)
    """)
    stamp(1)
    dbg_max(3)
    if stop == "q":
        a("s_branch L_fin")

    P = vP
    s0, s1, s2, s3 = vT, vT + 1, vT + 2, vT + 3
    u0, u1 = vT + 4, vT + 5
    mx, mt, al, nm = vT + 6, vT + 7, vT + 8, vT + 9
    pk = vT + 10
    Aop = vT + 14
    assert Aop % 2 == 0
    a("L_loop:")
    for s in range(D):
        kb = vSTG + 32 * s
        vb = kb + 16
        a(f"s_waitcnt vmcnt({8*(D-1)+4})")
        for j in range(4):
            c = "0" if j == 0 else f"v[{vS}:{vS+3}]"
            a(f"v_mfma_f32_16x16x32_bf16 v[{vS}:{vS+3}], v[{kb+4*j}:{kb+4*j+3}], v[{vQ+4*j}:{vQ+4*j+3}], {c}")
        nextoff()
        kloads(s)
        a("s_nop 3")
        if no_compute:
            a(f"s_waitcnt vmcnt({8*(D-1)+4})")
            vloads(s)
            a(f"""
            s_sub_u32 s{sCNT}, s{sCNT}, 1
            s_cmp_eq_u32 s{sCNT}, 0
            s_cbranch_scc1 L_loop_end
            """)
            continue
        a(f"""
        v_cvt_pk_bf16_f32 v{u0}, v{vS}, v{vS+1}
        v_cvt_pk_bf16_f32 v{u1}, v{vS+2}, v{vS+3}
        v_lshlrev_b32 v{s0}, 16, v{u0}
        v_and_b32 v{s1}, s{sHI}, v{u0}
        v_lshlrev_b32 v{s2}, 16, v{u1}
        v_and_b32 v{s3}, s{sHI}, v{u1}
        v_mul_f32 v{s0}, s{sSCALE}, v{s0}
        v_mul_f32 v{s1}, s{sSCALE}, v{s1}
        v_mul_f32 v{s2}, s{sSCALE}, v{s2}
        v_mul_f32 v{s3}, s{sSCALE}, v{s3}
        v_cvt_pk_bf16_f32 v{u0}, v{s0}, v{s1}
        v_cvt_pk_bf16_f32 v{u1}, v{s2}, v{s3}
        v_lshlrev_b32 v{s0}, 16, v{u0}
        v_and_b32 v{s1}, s{sHI}, v{u0}
        v_lshlrev_b32 v{s2}, 16, v{u1}
        v_and_b32 v{s3}, s{sHI}, v{u1}
        v_max3_f32 v{mx}, v{s0}, v{s1}, v{s2}
        v_max3_f32 v{mx}, v{mx}, v{s3}, v{vM}
        v_mov_b32 v{mt}, v{mx}
        s_nop 1
        v_permlane16_swap_b32 v{mx}, v{mt}
        s_nop 1
        v_max_f32 v{mx}, v{mx}, v{mt}
        v_mov_b32 v{mt}, v{mx}
        s_nop 1
        v_permlane32_swap_b32 v{mx}, v{mt}
        s_nop 1
        v_max_f32 v{mx}, v{mx}, v{mt}
        v_sub_f32 v{al}, v{vM}, v{mx}
        v_mul_f32 v{nm}, s{sL2E}, v{mx}
        v_mul_f32 v{al}, s{sL2E}, v{al}
        v_fma_f32 v{s0}, v{s0}, s{sL2E}, -v{nm}
        v_fma_f32 v{s1}, v{s1}, s{sL2E}, -v{nm}
        v_fma_f32 v{s2}, v{s2}, s{sL2E}, -v{nm}
        v_fma_f32 v{s3}, v{s3}, s{sL2E}, -v{nm}
        v_exp_f32 v{al}, v{al}
        v_exp_f32 v{s0}, v{s0}
        v_exp_f32 v{s1}, v{s1}
        v_exp_f32 v{s2}, v{s2}
        v_exp_f32 v{s3}, v{s3}
        v_mov_b32 v{vM}, v{mx}
        v_mul_f32 v{vO}, v{vO}, v{al}
        v_mul_f32 v{vO+1}, v{vO+1}, v{al}
        v_mul_f32 v{vO+2}, v{vO+2}, v{al}
        v_mul_f32 v{vO+3}, v{vO+3}, v{al}
        v_cvt_pk_bf16_f32 v{pk}, v{s0}, v{s0}
        v_cvt_pk_bf16_f32 v{pk+1}, v{s1}, v{s1}
        v_cvt_pk_bf16_f32 v{pk+2}, v{s2}, v{s2}
        v_cvt_pk_bf16_f32 v{pk+3}, v{s3}, v{s3}
        v_fma_f32 v{vL}, v{vL}, v{al}, v{s0}
        v_add_f32 v{s1}, v{s1}, v{s2}
        v_add_f32 v{vL}, v{vL}, v{s3}
        v_add_f32 v{vL}, v{vL}, v{s1}
        s_waitcnt vmcnt({8*(D-1)+4})
        """)
        for r in range(4):
            ao = Aop + 4 * (r & 1)
            for d in range(4):
                a(f"v_and_b32 v{ao+d}, v{pk+r}, v{vMASK+d}")
            a("s_nop 1")
            a(f"v_mfma_f32_16x16x32_bf16 v[{vO}:{vO+3}], v[{ao}:{ao+3}], v[{vb+4*r}:{vb+4*r+3}], v[{vO}:{vO+3}]")
        vloads(s)
        a(f"""
        s_sub_u32 s{sCNT}, s{sCNT}, 1
        s_cmp_eq_u32 s{sCNT}, 0
        s_cbranch_scc1 L_loop_end
        """)
    a("s_branch L_loop\n L_loop_end:")
    stamp(2)
    xrow(a, [vL], [vT])
    a(f"""
    s_nop 7
    v_lshlrev_b32 v{vT}, 5, v{vN}                 ; c*32
    v_and_b32 v{vT+1}, 1, v{vG}
    v_lshl_add_u32 v{vT}, v{vT+1}, 4, v{vT}       ; + (g&1)*16
    s_lshl_b32 s28, s{sWAVE}, 9
    v_add_u32 v{vT}, s28, v{vT}
    ds_write_b128 v{vT}, v[{vO}:{vO+3}] offset:{L_MRG}
    s_lshl_b32 s28, s{sWAVE}, 3
    v_mov_b32 v{vT+2}, s28
    v_mov_b32 v{vT+4}, v{vM}
    v_mov_b32 v{vT+5}, v{vL}
    ds_write_b64 v{vT+2}, v[{vT+4}:{vT+5}] offset:{L_ML}
    """)

    def slice_idx():
        a(f"""
        s_mov_b32 s29, s{sSLICE}
        v_lshrrev_b32 v{vT}, 2, v{vLANE}
        v_mul_u32_u24 v{vT}, 9216, v{vT}
        v_and_b32 v{vT+1}, 3, v{vLANE}
        v_lshl_add_u32 v{vT}, v{vT+1}, 4, v{vT}
        v_lshlrev_b32 v{vT+1}, 4, v{vLANE}
        """)

    def dma_mat(which, sq):
        cnt = 9
        if which in "gu":
            ptr, lds0 = (pWG, L_WG) if which == "g" else (pWU, L_WU)
            srd(a, sT, ptr, 576 * 9216)
            a(f"""
            s_mul_i32 s28, s{sq}, {cnt*16*9216}
            s_lshl_b32 s30, s29, 6
            s_add_u32 s28, s28, s30
            s_mul_i32 s31, s{sq}, {cnt*1024}
            """)
            for i in range(cnt):
                a(f"s_add_u32 m0, s31, {lds0 + i*1024}\n s_nop 0")
                a(f"buffer_load_dwordx4 v{vT}, s[{sT}:{sT+3}], s28 offen {wflags} lds")
                a(f"s_add_u32 s28, s28, {16*9216}")
        else:
            srd(a, sT, pWD, 4608 * 1152)
            a(f"""
            s_mul_i32 s28, s29, {32*1152}
            s_mul_i32 s31, s{sq}, {cnt*1024}
            s_add_u32 s28, s28, s31
            """)
            for i in range(cnt):
                a(f"s_add_u32 m0, s31, {L_WD + i*1024}\n s_nop 0")
                a(f"buffer_load_dwordx4 v{vT+1}, s[{sT}:{sT+3}], s28 offen {wflags} lds")
                a(f"s_add_u32 s28, s28, 1024")

    def wo_dma(groups, sq, sg=None):
        a(f"""
        s_mov_b32 s29, s{sIDX}
        s_mul_i32 s30, s29, 21846
        s_lshr_b32 s30, s30, 16            ; h'
        s_mul_i32 s31, s30, 3
        s_sub_u32 s31, s29, s31            ; c
        """)
        srd(a, sT, pWO, 4096 * 1152)
        for q in range(3):
            a(f"""
            v_add_u32 v{vT+3}, {64*q}, v{vLANE}
            v_mul_u32_u24 v{vT+4}, 2731, v{vT+3}
            v_lshrrev_b32 v{vT+4}, 16, v{vT+4}          ; row = l0/24
            v_mul_u32_u24 v{vT+5}, 24, v{vT+4}
            v_sub_u32 v{vT+5}, v{vT+3}, v{vT+5}         ; piece
            v_mul_u32_u24 v{vT+4}, 1152, v{vT+4}
            v_lshl_add_u32 v{vT+q}, v{vT+5}, 4, v{vT+4}
            """)
        a(f"s_lshl_b32 s4, s{sq}, 2")
        if sg is not None:
            a(f"s_add_u32 s4, s4, s{sg}")
        a(f"""
        s_lshl_b32 s28, s30, 7
        s_lshl_b32 s29, s4, 3
        s_add_u32 s28, s28, s29
        s_mul_i32 s28, s28, 1152
        s_mul_i32 s31, s31, 384
        s_add_u32 s28, s28, s31
        s_mul_i32 s31, s4, {3*1024}
        """)
        for grp in groups:
            a(f"s_add_u32 s5, s28, {grp*8*1152}")
            for q in range(3):
                a(f"s_add_u32 m0, s31, {L_WG + (grp*3+q)*1024}\n s_nop 0")
                a(f"buffer_load_dwordx4 v{vT+q}, s[{sT}:{sT+3}], s5 offen {wflags} lds")

    def weights_early():
        lab_wo, lab_done = a.label("L_wwo"), a.label("L_wdone")
        a(f"s_cmp_lg_u32 s{sROLE}, 0\n s_cbranch_scc1 {lab_wo}")
        if early:
            slice_idx()
            for m in early:
                dma_mat(m, sWAVE)
        a(f"s_branch {lab_done}")
        a(f"{lab_wo}:")
        a(f"s_cmp_eq_u32 s{sROLE}, 2\n s_cbranch_scc1 {lab_done}")
        if wo_e > 0:
            wo_dma(list(range(wo_e)), sWAVE)
        a(f"{lab_done}:")

    def weights_late():
        late = [m for m in "gud" if m not in early]
        if not late:
            return
        slice_idx()
        sQ = 73
        a(f"s_and_b32 s{sQ}, s{sWAVE}, 3")
        lo, hi = late[:(len(late) + 1) // 2], late[(len(late) + 1) // 2:]
        lh, le = a.label("L_lateh"), a.label("L_latee")
        a(f"s_cmp_ge_u32 s{sWAVE}, 4\n s_cbranch_scc1 {lh}")
        for m in lo:
            dma_mat(m, sQ)
        a(f"s_branch {le}\n {lh}:")
        for m in hi:
            dma_mat(m, sQ)
        a(f"{le}:")
        a("s_waitcnt vmcnt(0)\n s_barrier")

    a(f"s_cmp_ge_u32 s{sWAVE}, 4\n s_cbranch_scc1 L_now")
    a(f"""
    s_cmp_ge_u32 s{sWAVE}, 2
    s_cbranch_scc1 L_noxr
    s_cmp_eq_u32 s{sROLE}, 0
    s_cbranch_scc1 L_noxr
    s_mul_i32 s28, s{sWAVE}, 112
    s_add_u32 s28, s28, s{sIDX}
    s_cmp_ge_u32 s28, 144
    s_cbranch_scc1 L_noxr
    """)
    srd(a, sT, pX, 4608)
    a(f"""
    v_and_b32 v{vT}, 3, v{vLANE}
    v_lshlrev_b32 v{vT+1}, 1, v{vT}
    s_lshl_b32 s28, s28, 3
    """)
    for b in range(4):
        a(f"buffer_load_ushort v{160+b}, v{vT+1}, s[{sT}:{sT+3}], s28 offen offset:{1152*b} nt")
    a("L_noxr:")
    if not no_w:
        weights_early()
    if tlbw:
        lab = a.label("L_notlb")
        a(f"s_cmp_lg_u32 s{sWAVE}, 3\n s_cbranch_scc1 {lab}")
        tw = vT + 8
        a(f"v_lshlrev_b32 v{tw}, {tlbw}, v{vLANE}\n v_add_u32 v{tw}, 0x{(1 << tlbw) - 128:x}, v{tw}")
        n_ws = max(1, WS_STAMP // (64 << tlbw) + 1)
        for i in range(n_ws):
            a(f"s_mov_b32 s28, {i * (64 << tlbw)}")
            a(f"buffer_load_dword v{tw+1}, v{tw}, s[{sWS}:{sWS+3}], s28 offen")
        for (ptr, nbytes) in ((pWG, 576*9216), (pWU, 576*9216), (pWD, 4608*1152), (pOUT, 4608), (pX, 4608)):
            srd(a, sT, ptr, nbytes)
            n = max(1, (nbytes + (64 << tlbw) - 1) // (64 << tlbw))
            if nbytes < 65536:
                a(f"v_mov_b32 v{tw+2}, 0")
                a(f"buffer_load_dword v{tw+1}, v{tw+2}, s[{sT}:{sT+3}], 0 offen")
            else:
                for i in range(n):
                    a(f"s_mov_b32 s28, {i * (64 << tlbw)}")
                    a(f"buffer_load_dword v{tw+1}, v{tw}, s[{sT}:{sT+3}], s28 offen nt")
        a(f"{lab}:")
    if codepf:
        code_prefetch(4, "L_tail0", "L_code_end", vT + 8)
    if dry:
        a(f"""
        s_waitcnt vmcnt(0) lgkmcnt(0)
        s_mov_b32 s{sDRY}, 1
        s_mov_b32 s{sWS+2}, 0
        s_mov_b32 s{sOUTN}, 0
        s_branch L_tail_dry
        L_dry_done:
        s_mov_b32 s{sDRY}, 0
        s_mov_b32 s{sWS+2}, {WS_SIZE}
        s_mov_b32 s{sOUTN}, 4608
        s_mov_b64 exec, -1
        """)
    a("L_now:")
    a("L_tail0:")
    a("s_waitcnt vmcnt(0) lgkmcnt(0)\n s_barrier")
    a("L_tail_dry:")
    dbg_max(1)
    mark_tail = len(a.L)
    stamp(3)

    MO = P
    MM = P + 32
    a(f"s_cmp_lg_u32 s{sWAVE}, 0\n s_cbranch_scc1 L_nomerge")
    a(f"""
    v_and_b32 v{vT}, 31, v{vLANE}
    v_lshlrev_b32 v{vT}, 4, v{vT}
    v_mov_b32 v{vT+1}, 0
    """)
    for i in range(4):
        a(f"ds_read_b128 v[{MM+4*i}:{MM+4*i+3}], v{vT+1} offset:{L_ML + 16*i}")
    for w in range(8):
        a(f"ds_read_b128 v[{MO+4*w}:{MO+4*w+3}], v{vT} offset:{L_MRG + 512*w}")
    a("s_waitcnt lgkmcnt(8)")
    ms = [MM + 2 * w for w in range(8)]
    mstar = vT + 2
    a(f"v_max3_f32 v{mstar}, v{ms[0]}, v{ms[1]}, v{ms[2]}")
    a(f"v_max3_f32 v{mstar}, v{mstar}, v{ms[3]}, v{ms[4]}")
    a(f"v_max3_f32 v{mstar}, v{mstar}, v{ms[5]}, v{ms[6]}")
    a(f"v_max_f32 v{mstar}, v{mstar}, v{ms[7]}")
    for w in range(8):
        a(f"v_sub_f32 v{ms[w]}, v{ms[w]}, v{mstar}")
    for w in range(8):
        a(f"v_mul_f32 v{ms[w]}, s{sL2E}, v{ms[w]}")
    for w in range(8):
        a(f"v_exp_f32 v{ms[w]}, v{ms[w]}")
    Lt = vT + 3
    a(f"s_nop 0\n v_mul_f32 v{Lt}, v{ms[0]}, v{ms[0]+1}")
    for w in range(1, 8):
        a(f"v_fmac_f32 v{Lt}, v{ms[w]}, v{ms[w]+1}")
    a("s_waitcnt lgkmcnt(0)")
    R = vT + 6
    assert R % 2 == 0
    for r in range(4):
        a(f"v_mul_f32 v{R+r}, v{ms[0]}, v{MO+r}")
    for w in range(1, 8):
        for r in range(4):
            a(f"v_fmac_f32 v{R+r}, v{ms[w]}, v{MO+4*w+r}")
    a(f"""
    v_cmp_eq_u32 vcc, 32, v{vLANE}
    v_mov_b32 v{vT+4}, 0
    s_nop 0
    v_cndmask_b32 v{R}, v{R}, v{mstar}, vcc
    v_cndmask_b32 v{R+1}, v{R+1}, v{Lt}, vcc
    v_cndmask_b32 v{R+2}, v{R+2}, v{vT+4}, vcc
    v_cndmask_b32 v{R+3}, v{R+3}, v{vT+4}, vcc
    """)
    addtag(a, range(R, R + 4))
    a(f"""
    v_lshlrev_b32 v{vT}, 4, v{vLANE}
    s_mul_i32 s28, s{sW}, 640
    s_add_u32 s28, s28, {WS_AP}
    v_cmp_gt_u32 vcc, 33, v{vLANE}
    s_and_saveexec_b64 s[30:31], vcc
    buffer_store_dwordx4 v[{R}:{R+3}], v{vT}, s[{sWS}:{sWS+3}], s28 offen sc1
    s_mov_b64 exec, s[30:31]
    L_nomerge:
    """)
    stamp(4)
    if stop == "attn":
        a("s_branch L_fin")

    a(f"s_cmp_eq_u32 s{sROLE}, 0\n s_cbranch_scc1 L_stageB")
    a(f"s_cmp_eq_u32 s{sROLE}, 2\n s_cbranch_scc1 L_reduce")
    if wo_e < 4 and not no_w:
        rest = list(range(wo_e, 4))
        a(f"s_cmp_eq_u32 s{sDRY}, 1\n s_cbranch_scc1 L_wo_nolate")
        a(f"s_and_b32 s73, s{sWAVE}, 3")
        lo_, hi_ = rest[:(len(rest) + 1) // 2], rest[(len(rest) + 1) // 2:]
        a(f"s_cmp_ge_u32 s{sWAVE}, 4\n s_cbranch_scc1 L_wo_hi")
        wo_dma(lo_, 73)
        a("s_branch L_wo_lw\n L_wo_hi:")
        if hi_:
            wo_dma(hi_, 73)
        a("L_wo_lw:\n s_waitcnt vmcnt(0)\n s_barrier\n L_wo_nolate:")
    a(f"""
    s_mov_b32 s29, s{sIDX}
    s_mul_i32 s{sH}, s29, 21846
    s_lshr_b32 s{sH}, s{sH}, 16         ; h'
    s_mul_i32 s31, s{sH}, 3
    s_sub_u32 s{sJ}, s29, s31           ; c
    """)
    WB = 64
    a(f"""
    v_lshrrev_b32 v{vT}, 2, v{vN}                    ; r
    v_lshl_add_u32 v{vT}, v{vG}, 3, v{vT}            ; 8g + r
    v_mul_u32_u24 v{vT}, 384, v{vT}
    v_and_b32 v{vT+1}, 3, v{vLANE}
    v_lshl_add_u32 v{vT}, v{vT+1}, 3, v{vT}          ; + cc*8
    s_lshl_b32 s28, s{sWAVE}, 5
    s_add_u32 s28, s28, {L_WG}
    v_add_u32 v{vT}, s28, v{vT}                      ; + T*32 + base
    """)
    for ks in range(4):
        a(f"ds_read_b64_tr_b16 v[{WB+4*ks}:{WB+4*ks+1}], v{vT} offset:{ks*32*384}")
        a(f"ds_read_b64_tr_b16 v[{WB+4*ks+2}:{WB+4*ks+3}], v{vT} offset:{ks*32*384 + 4*384}")
    a(f"s_cmp_ge_u32 s{sWAVE}, 4\n s_cbranch_scc1 L_wo_gather_skip")
    a("s_waitcnt lgkmcnt(0)")
    for ks in range(4):
        a(f"ds_read_b64_tr_b16 v[{WB+16+4*ks}:{WB+16+4*ks+1}], v{vT} offset:{ks*32*384 + 256}")
        a(f"ds_read_b64_tr_b16 v[{WB+16+4*ks+2}:{WB+16+4*ks+3}], v{vT} offset:{ks*32*384 + 4*384 + 256}")
    GA = P
    a(f"""
    v_lshrrev_b32 v{vT+1}, 5, v{vLANE}               ; s
    v_mul_u32_u24 v{vT+2}, {640*8 if xmap else 640}, v{vT+1}
    v_and_b32 v{vT+3}, 31, v{vLANE}                  ; c4
    v_lshl_add_u32 v{vT+4}, v{vT+3}, 4, v{vT+2}      ; s*stride + c4*16
    v_add_u32 v{vT+5}, 512, v{vT+2}                  ; s*stride + 512
    """)
    if xmap:
        a(f"""
        s_and_b32 s28, s{sH}, 7
        s_lshl_b32 s29, s{sWAVE}, 4
        s_add_u32 s28, s28, s29
        s_lshr_b32 s29, s{sH}, 3
        s_lshl_b32 s29, s29, 6
        s_add_u32 s28, s28, s29
        """)
    else:
        a(f"""
        s_lshl_b32 s28, s{sWAVE}, 6
        s_lshl_b32 s29, s{sH}, 1
        s_add_u32 s28, s28, s29
        """)
    a(f"""
    s_mul_i32 s28, s28, 640
    s_add_u32 s28, s28, {WS_AP}
    """)
    GAs = [96 + 8 * k for k in range(3)]
    def ap_issue(k):
        a(f"buffer_load_dwordx4 v[{GAs[k]}:{GAs[k]+3}], v{vT+4}, s[{sWS}:{sWS+3}], s28 offen sc1")
        a(f"buffer_load_dwordx4 v[{GAs[k]+4}:{GAs[k]+7}], v{vT+5}, s[{sWS}:{sWS+3}], s28 offen sc1")
    def ap_consume(k):
        for r in range(6):
            a(f"v_mov_b32 v{GA+r}, v{GAs[k]+r}")
    ppoll(a, "L_apoll", ns[0], 2, ap_issue, lambda k: list(range(GAs[k], GAs[k] + 8)), vT + 6, ap_consume, pollsleep, stg)
    tstamp(9)
    mm, ll = GA + 4, GA + 5
    a(f"""
    v_and_b32 v{mm}, s{sHI}, v{mm}
    v_mov_b32 v{vT+6}, v{mm}
    v_mov_b32 v{vT+7}, v{mm}
    s_nop 1
    v_permlane32_swap_b32 v{vT+6}, v{vT+7}
    s_nop 1
    v_max_f32 v{vT+6}, v{vT+6}, v{vT+7}             ; m*
    v_sub_f32 v{mm}, v{mm}, v{vT+6}
    v_mul_f32 v{mm}, s{sL2E}, v{mm}
    v_exp_f32 v{mm}, v{mm}                           ; a
    s_nop 0
    v_mul_f32 v{ll}, v{ll}, v{mm}
    v_mul_f32 v{GA}, v{GA}, v{mm}
    v_mul_f32 v{GA+1}, v{GA+1}, v{mm}
    v_mul_f32 v{GA+2}, v{GA+2}, v{mm}
    v_mul_f32 v{GA+3}, v{GA+3}, v{mm}
    """)
    xrow(a, [GA, GA+1, GA+2, GA+3, ll], [GA+8, GA+9, GA+10, GA+11, GA+12], only32=True)
    a(f"v_rcp_f32 v{vT+6}, v{ll}\n s_nop 0")
    for r in range(4):
        fdiv(a, GA + 8 + r, GA + r, vT + 6, ll, vT + 7)
    a(f"""
    v_cvt_pk_bf16_f32 v{GA+12}, v{GA+8}, v{GA+9}
    v_cvt_pk_bf16_f32 v{GA+13}, v{GA+10}, v{GA+11}
    v_lshlrev_b32 v{vT+3}, 3, v{vT+3}
    s_lshl_b32 s28, s{sWAVE}, 8
    v_add_u32 v{vT+3}, s28, v{vT+3}
    ds_write_b64 v{vT+3}, v[{GA+12}:{GA+13}] offset:{L_OB}
    L_wo_gather_skip:
    s_waitcnt lgkmcnt(0)
    s_barrier
    """)
    AOP = P + 16
    a(f"""
    v_and_b32 v{vT}, 3, v{vN}
    v_lshlrev_b32 v{vT}, 8, v{vT}
    v_lshl_add_u32 v{vT}, v{vG}, 4, v{vT}           ; (m&3)*256 + g*16
    """)
    for ks in range(4):
        a(f"ds_read_b128 v[{AOP+4*ks}:{AOP+4*ks+3}], v{vT} offset:{L_OB + 64*ks}")
    YD = P + 32
    a("s_waitcnt lgkmcnt(0)")
    for ks in range(4):
        c = "0" if ks == 0 else f"v[{YD}:{YD+3}]"
        a(f"v_mfma_f32_16x16x32_bf16 v[{YD}:{YD+3}], v[{AOP+4*ks}:{AOP+4*ks+3}], v[{WB+4*ks}:{WB+4*ks+3}], {c}")
    a(f"s_cmp_ge_u32 s{sWAVE}, 4\n s_cbranch_scc1 L_wo_one")
    for ks in range(4):
        c = "0" if ks == 0 else f"v[{YD+4}:{YD+7}]"
        a(f"v_mfma_f32_16x16x32_bf16 v[{YD+4}:{YD+7}], v[{AOP+4*ks}:{AOP+4*ks+3}], v[{WB+16+4*ks}:{WB+16+4*ks+3}], {c}")
    a("L_wo_one:")
    if cmajY:
        a(f"""
        s_mul_i32 s28, s{sJ}, 48
        s_lshl_b32 s29, s{sWAVE}, 2
        s_add_u32 s28, s28, s29
        s_lshl_b32 s28, s28, 11
        s_lshl_b32 s29, s{sH}, 6
        s_add_u32 s28, s28, s29
        s_add_u32 s28, s28, {WS_Y}
        s_add_u32 s30, s28, {32*2048}
        v_lshrrev_b32 v{vT}, 2, v{vN}
        v_lshlrev_b32 v{vT}, 11, v{vT}
        v_and_b32 v{vT+1}, 3, v{vN}
        v_lshl_add_u32 v{vT}, v{vT+1}, 4, v{vT}
        s_nop 6
        """)
    else:
        a(f"""
        s_mul_i32 s28, s{sH}, 9216
        s_mul_i32 s29, s{sJ}, {192*16}
        s_add_u32 s28, s28, s29
        s_lshl_b32 s29, s{sWAVE}, 8
        s_add_u32 s28, s28, s29
        s_add_u32 s28, s28, {WS_Y}
        s_add_u32 s30, s28, 2048
        v_lshlrev_b32 v{vT}, 4, v{vN}
        s_nop 7
        """)
    addtag(a, range(YD, YD + 4))
    a(f"""
    s_mov_b64 exec, 0xffff
    buffer_store_dwordx4 v[{YD}:{YD+3}], v{vT}, s[{sWS}:{sWS+3}], s28 offen sc1
    s_mov_b64 exec, -1
    s_cmp_ge_u32 s{sWAVE}, 4
    s_cbranch_scc1 L_reduce
    """)
    addtag(a, range(YD + 4, YD + 8))
    a(f"""
    s_mov_b64 exec, 0xffff
    buffer_store_dwordx4 v[{YD+4}:{YD+7}], v{vT}, s[{sWS}:{sWS+3}], s30 offen sc1
    s_mov_b64 exec, -1
    """)
    a("L_reduce:")
    tstamp(10)
    sTASK = 72
    a(f"""
    s_mov_b32 s{sTASK}, s{sIDX}
    s_mul_i32 s28, s{sWAVE}, 112
    s_add_u32 s{sTASK}, s{sTASK}, s28
    s_cmp_ge_u32 s{sTASK}, 144
    s_cbranch_scc1 L_fin
    s_cmp_ge_u32 s{sWAVE}, 2
    s_cbranch_scc1 L_fin
    """)
    XR = 160
    a(f"""
    v_and_b32 v{vT}, 3, v{vLANE}                     ; col
    v_lshlrev_b32 v{vT+1}, 1, v{vT}
    v_lshrrev_b32 v{vT+2}, 2, v{vLANE}               ; hh
    v_mul_u32_u24 v{vT+2}, 9216, v{vT+2}
    v_lshl_add_u32 v{vT+2}, v{vT}, 4, v{vT+2}
    v_lshlrev_b32 v{vT+5}, 4, v{vLANE}               ; lane*16
    """)
    vY = vT + 5 if cmajY else vT + 2
    vZ = vT + 5 if cmajZ else vT + 2
    if cmajY:
        a(f"s_lshl_b32 s28, s{sTASK}, 11\n s_add_u32 s28, s28, {WS_Y}\n s_add_u32 s29, s28, 1024")
    else:
        a(f"s_lshl_b32 s28, s{sTASK}, 6\n s_add_u32 s28, s28, {WS_Y}\n s_add_u32 s29, s28, {16*9216}")
    YG = P + 4
    YGs = [P + 60 + 8 * k for k in range(3)]
    def y_issue(k):
        a(f"buffer_load_dwordx4 v[{YGs[k]}:{YGs[k]+3}], v{vY}, s[{sWS}:{sWS+3}], s28 offen sc1")
        a(f"buffer_load_dwordx4 v[{YGs[k]+4}:{YGs[k]+7}], v{vY}, s[{sWS}:{sWS+3}], s29 offen sc1")
    def y_consume(k):
        for r in range(4):
            a(f"v_add_f32 v{YG+r}, v{YGs[k]+r}, v{YGs[k]+4+r}")
    ppoll(a, "L_ypoll", ns[1], 2, y_issue, lambda k: list(range(YGs[k], YGs[k] + 8)), vT + 3, y_consume, pollsleep, stg,
          probe=((lambda: a(f"buffer_load_dword v{YGs[0]}, v{vY}, s[{sWS}:{sWS+3}], s28 offen sc1")), YGs[0], "1") if probe[1] else None, presleep=presl[1])
    tstamp(11)
    if canB:
        a(f"""
        s_lshl_b32 s30, s{sTASK}, 7
        s_add_u32 s30, s30, {WS_CANB}
        v_mov_b32 v{vT+4}, 0
        s_mov_b64 exec, 1
        buffer_store_dword v{vTAG}, v{vT+4}, s[{sWS}:{sWS+3}], s30 offen sc1
        s_mov_b64 exec, -1
        """)
    hs = [YG, YG + 1, YG + 2, YG + 3]
    row16(a, hs, ctrls=("row_ror:4", "row_ror:8"))
    xrow(a, hs, [YG + 4, YG + 5, YG + 6, YG + 7])
    rbf(a, [(YG, YG+1), (YG+2, YG+3)], [YG+4, YG+5])
    for b in range(4):
        a(f"v_lshlrev_b32 v{XR+b}, 16, v{XR+b}")
        a(f"v_add_f32 v{YG+b}, v{YG+b}, v{XR+b}")
    rbf(a, [(YG, YG+1), (YG+2, YG+3)], [YG+4, YG+5])
    HK = P + 16
    for b in range(4):
        a(f"v_mov_b32 v{HK+b}, v{YG+b}")
    addtag(a, hs)
    a(f"""
    s_lshl_b32 s28, s{sTASK}, 6
    s_add_u32 s28, s28, {WS_HB}
    v_lshlrev_b32 v{vT+3}, 4, v{vT}
    s_mov_b64 exec, 0xf
    buffer_store_dwordx4 v[{YG}:{YG+3}], v{vT+3}, s[{sWS}:{sWS+3}], s28 offen sc1
    s_mov_b64 exec, -1
    """)
    stamp(7)
    ZG = P + 20
    ZGs = [64, 100, 136]
    sPZ = 73
    ZS = [4, 5, 6, 7, 62, 63, 66, 67, 71]
    if cmajZ:
        a(f"s_mul_i32 s28, s{sTASK}, 9216\n s_add_u32 s28, s28, {WS_Z}")
        a(f"s_lshl_b32 s{sPZ}, s{sTASK}, 6\n s_add_u32 s{sPZ}, s{sPZ}, s28")
        for i in range(9):
            a(f"s_add_u32 s{ZS[i]}, s28, {i*1024}")
    else:
        a(f"s_lshl_b32 s28, s{sTASK}, 6\n s_add_u32 s28, s28, {WS_Z}")
        if canC:
            a(f"s_lshl_b32 s{sPZ}, s{sTASK}, 7\n s_add_u32 s{sPZ}, s{sPZ}, {WS_CANC}")
        else:
            a(f"s_mul_i32 s{sPZ}, s{sTASK}, 9216\n s_add_u32 s{sPZ}, s{sPZ}, s28")
        for i in range(9):
            a(f"s_add_u32 s{ZS[i]}, s28, {i*16*9216}")
    def z_issue(k):
        for i in range(9):
            a(f"buffer_load_dwordx4 v[{ZGs[k]+4*i}:{ZGs[k]+4*i+3}], v{vZ}, s[{sWS}:{sWS+3}], s{ZS[i]} offen sc1")
    def z_consume(k):
        z = ZGs[k]
        for (x, y) in ((0, 1), (2, 3), (4, 5), (6, 7), (0, 2), (4, 6), (0, 4)):
            for r in range(0, 4, 2):
                a(f"v_pk_add_f32 v[{z+4*x+r}:{z+4*x+r+1}], v[{z+4*x+r}:{z+4*x+r+1}], v[{z+4*y+r}:{z+4*y+r+1}]")
        for r in range(0, 4, 2):
            a(f"v_pk_add_f32 v[{ZG+r}:{ZG+r+1}], v[{z+r}:{z+r+1}], v[{z+32+r}:{z+32+r+1}]")
    ppoll(a, "L_zpoll", ns[3], 9, z_issue, lambda k: list(range(ZGs[k], ZGs[k] + 36)), vT + 3, z_consume, pollsleep, stg,
          probe=((lambda: a(f"buffer_load_dword v{ZGs[0]}, v{vZ}, s[{sWS}:{sWS+3}], s{sPZ} offen sc1")), ZGs[0], "1") if probe[3] else None, presleep=presl[3])
    tstamp(12)
    zs = [ZG, ZG + 1, ZG + 2, ZG + 3]
    row16(a, zs, ctrls=("row_ror:4", "row_ror:8"))
    xrow(a, zs, [ZG + 4, ZG + 5, ZG + 6, ZG + 7])
    rbf(a, [(ZG, ZG+1), (ZG+2, ZG+3)], [ZG+4, ZG+5])
    for b in range(4):
        a(f"v_add_f32 v{ZG+b}, v{ZG+b}, v{HK+b}")
    a(f"v_cvt_pk_bf16_f32 v{ZG+4}, v{ZG}, v{ZG+1}")
    a(f"v_cvt_pk_bf16_f32 v{ZG+5}, v{ZG+2}, v{ZG+3}")
    srd(a, sT, pOUT, f"s{sOUTN}")
    a(f"""
    s_lshl_b32 s28, s{sTASK}, 3
    s_mov_b64 exec, 0xf
    buffer_store_short v{ZG+4}, v{vT+1}, s[{sT}:{sT+3}], s28 offen {outfl}
    buffer_store_short_d16_hi v{ZG+4}, v{vT+1}, s[{sT}:{sT+3}], s28 offen offset:1152 {outfl}
    buffer_store_short v{ZG+5}, v{vT+1}, s[{sT}:{sT+3}], s28 offen offset:2304 {outfl}
    buffer_store_short_d16_hi v{ZG+5}, v{vT+1}, s[{sT}:{sT+3}], s28 offen offset:3456 {outfl}
    s_mov_b64 exec, -1
    s_cmp_lg_u32 s{sTASK}, 0
    s_cbranch_scc1 L_fin
    v_mov_b32 v{ZG+6}, s{sE}
    v_mov_b32 v{ZG+7}, 0
    s_mov_b64 exec, 1
    buffer_store_dword v{ZG+6}, v{ZG+7}, s[{sWS}:{sWS+3}], 0 offen sc1
    s_mov_b64 exec, -1
    s_branch L_fin
    """)

    a("L_stageB:")
    if gate == 'pair' or isinstance(gate, int) and not isinstance(gate, bool) and gate > 0:
        ns_ = 0 if gate == 'pair' else gate
        a(f"s_cmp_lg_u32 s{sWAVE}, 1\n s_cbranch_scc1 L_gate_done")
        a(f"""
        s_andn2_b32 s29, s{sW}, {16 if rmap else 8}
        v_mul_u32_u24 v{vT}, 37, v{vLANE}
        v_add_u32 v{vT}, s29, v{vT}
        v_and_b32 v{vT}, 255, v{vT}
        s_xor_b32 s28, s{sW}, {16 if rmap else 8}
        v_mov_b32 v{vT+1}, s28
        v_cmp_eq_u32 vcc, {ns_}, v{vLANE}
        s_mov_b32 s28, {WS_AP + 512}
        s_nop 0
        v_cndmask_b32 v{vT}, v{vT}, v{vT+1}, vcc
        v_mul_u32_u24 v{vT}, 640, v{vT}
        s_cmp_eq_u32 s{sDRY}, 1
        s_cbranch_scc1 L_gate_done
        s_mov_b64 exec, {hex((1 << (ns_ + 1)) - 1)}
        """)
        poll_head(a, "L_gpoll")
        if gsleep:
            a(f"s_sleep {gsleep}")
        a(f"buffer_load_dword v{vT+2}, v{vT}, s[{sWS}:{sWS+3}], s28 offen sc1")
        a("s_waitcnt vmcnt(0)")
        tagcheck(a, [vT+2], vT + 6, "L_gpoll")
        a("s_mov_b64 exec, -1")
        a("L_gate_done:\n s_barrier")
    elif gate:
        a(f"s_cmp_lg_u32 s{sWAVE}, 1\n s_cbranch_scc1 L_gate_done")
        a(f"""
        v_mul_u32_u24 v{vT}, 640, v{vLANE}
        s_mov_b32 s28, {WS_AP + 512}
        s_mov_b32 s29, {WS_AP + 512 + 64*640}
        s_mov_b32 s30, {WS_AP + 512 + 128*640}
        s_mov_b32 s31, {WS_AP + 512 + 192*640}
        """)
        poll_head(a, "L_gpoll")
        for i in range(4):
            a(f"buffer_load_dword v{vT+2+i}, v{vT}, s[{sWS}:{sWS+3}], s{28+i} offen sc1")
        a("s_waitcnt vmcnt(0)")
        tagcheck(a, [vT+2, vT+3, vT+4, vT+5], vT + 6, "L_gpoll")
        a("L_gate_done:\n s_barrier")
    a(f"""
    s_cmp_lg_u32 s{sWAVE}, 7
    s_cbranch_scc1 L_noones
    v_mov_b32 v{P}, 0x3f803f80
    v_mov_b32 v{P+1}, 0x3f803f80
    v_mov_b32 v{P+2}, 0x3f803f80
    v_mov_b32 v{P+3}, 0x3f803f80
    v_lshlrev_b32 v{vT}, 4, v{vLANE}
    ds_write_b128 v{vT}, v[{P}:{P+3}] offset:{L_HB + 4*1152}
    s_mov_b64 exec, 0xff
    ds_write_b128 v{vT}, v[{P}:{P+3}] offset:{L_HB + 4*1152 + 1024}
    s_mov_b64 exec, -1
    L_noones:
    """)
    BB = 64
    WDd = 100
    AB = P
    aH, aA, aG, aR, aF1, aF2, aF3, aW = (vT + 4 + i for i in range(8))
    aP = vT + 12
    aBB, aWD = vT + 14, vT + 15
    if bdec:
        late = [m for m in "gud" if m not in early]
        if not no_w and late:
            a(f"s_cmp_lt_u32 s{sWAVE}, 4\n s_cbranch_scc1 L_b_noload")
            a(f"s_cmp_eq_u32 s{sDRY}, 1\n s_cbranch_scc1 L_b_noload")
            slice_idx()
            a(f"s_and_b32 s73, s{sWAVE}, 3")
            for m in late:
                if wd_after and m == "d":
                    continue
                dma_mat(m, 73)
            a("L_b_noload:")
        a(f"""
        v_lshrrev_b32 v{vT}, 2, v{vN}
        v_lshl_add_u32 v{vT}, v{vG}, 3, v{vT}            ; 8g + r
        v_and_b32 v{vT+1}, 3, v{vLANE}                   ; cc
        v_lshlrev_b32 v{aBB}, 6, v{vT}
        v_lshl_add_u32 v{aBB}, v{vT+1}, 3, v{aBB}        ; (8g+r)*64 + cc*8
        s_and_b32 s28, s{sWAVE}, 1
        s_lshl_b32 s28, s28, 5                           ; t*32
        s_bfe_u32 s29, s{sWAVE}, 0x10001
        s_mul_i32 s29, s29, {L_WU - L_WG}
        s_add_u32 s28, s28, s29
        s_add_u32 s28, s28, {L_WG}
        s_lshr_b32 s29, s{sWAVE}, 2
        s_mul_i32 s29, s29, {9*2048}
        s_add_u32 s28, s28, s29
        v_add_u32 v{aBB}, s28, v{aBB}
        v_mul_u32_u24 v{aWD}, 1152, v{vT}
        v_lshl_add_u32 v{aWD}, v{vT+1}, 3, v{aWD}
        s_lshl_b32 s28, s{sWAVE}, {7 if zpack else 5}
        s_add_u32 s28, s28, {L_WD}
        v_add_u32 v{aWD}, s28, v{aWD}
        s_lshl_b32 s28, s{sWAVE}, 8
        v_lshlrev_b32 v{aH}, 1, v{vLANE}
        v_add_u32 v{aH}, s28, v{aH}
        v_and_b32 v{aA}, 3, v{vN}
        v_cmp_eq_u32 vcc, 4, v{vN}
        v_mov_b32 v{aG}, 4
        s_lshr_b32 s28, s{sWAVE}, 2
        v_cndmask_b32 v{aA}, v{aA}, v{aG}, vcc           ; row(m)
        v_mul_u32_u24 v{aA}, 1152, v{aA}
        s_mul_i32 s28, s28, {9*64}
        v_lshl_add_u32 v{aA}, v{vG}, 4, v{aA}
        v_add_u32 v{aA}, s28, v{aA}
        s_lshl_b32 s28, s{sWAVE}, 10
        v_lshlrev_b32 v{aG}, 4, v{vLANE}
        v_add_u32 v{aG}, s28, v{aG}
        s_lshl_b32 s28, s{sWAVE}, 8
        v_lshlrev_b32 v{aR}, 4, v{vN}
        v_add_u32 v{aR}, s28, v{aR}                      ; wave*256 + n*16
        v_lshrrev_b32 v{aW}, 2, v{vLANE}                 ; f'
        v_and_b32 v{aF3}, 3, v{vLANE}                    ; b
        s_lshl_b32 s28, s{sWAVE}, 10
        v_lshlrev_b32 v{aF2}, 4, v{aW}
        v_add_u32 v{aF2}, s28, v{aF2}                    ; tile*1024 + f'*16
        v_lshl_add_u32 v{aF1}, v{aF3}, 2, v{aF2}         ; + b*4
        s_lshl_b32 s28, s{sWAVE}, 5
        v_lshlrev_b32 v{aW}, 1, v{aW}
        v_add_u32 v{aW}, s28, v{aW}                      ; (tile*16 + f')*2
        v_lshl_add_u32 v{aW}, v{aF3}, 6, v{aW}           ; + b*64
        v_lshlrev_b32 v{vT}, 4, v{aF3}                   ; b*16
        v_mov_b32 v{vT+1}, 64
        v_and_b32 v{vT+2}, 4, v{vLANE}
        v_cmp_ne_u32 vcc, 0, v{vT+2}
        v_lshrrev_b32 v{vT+2}, 3, v{vLANE}
        v_lshlrev_b32 v{vT+2}, 8, v{vT+2}                ; (l>>3)*256
        v_cndmask_b32 v{vT}, v{vT}, v{vT+1}, vcc
        v_lshl_add_u32 v{aF3}, v{aF3}, 2, v{vT}
        v_add_u32 v{aF3}, v{aF3}, v{vT+2}
        s_mov_b32 s64, 0xf0f0f0f0
        s_mov_b32 s65, 0xf0f0f0f0
        v_lshlrev_b32 v{aP}, 4, v{vLANE}
        """)
        def bb_reads():
            for ks in range(9):
                a(f"ds_read_b64_tr_b16 v[{BB+4*ks}:{BB+4*ks+1}], v{aBB} offset:{ks*2048}")
                a(f"ds_read_b64_tr_b16 v[{BB+4*ks+2}:{BB+4*ks+3}], v{aBB} offset:{ks*2048+256}")
                if ks == 5:
                    a("s_waitcnt lgkmcnt(0)")
        pre_gate = "g" in early
        if pre_gate:
            a(f"s_bitcmp1_b32 s{sWAVE}, 1\n s_cbranch_scc1 L_b_nopre")
            bb_reads()
            a("L_b_nopre:")
        a(f"s_cmp_ge_u32 s{sWAVE}, 4\n s_cbranch_scc1 L_b_loadwait")
        HGs = [P + 48, P + 60, P + 72]
        a(f"""
        s_lshl_b32 s28, s{sWAVE}, 11
        s_add_u32 s28, s28, {WS_HB}
        s_add_u32 s29, s28, 1024
        s_mov_b32 s31, {WS_HB + 8192}
        """)
        for k in range(ns[2]):
            for r in range(4):
                a(f"v_mov_b32 v{HGs[k]+8+r}, v{vTAG}")
        def h_issue(k, third):
            a(f"buffer_load_dwordx4 v[{HGs[k]}:{HGs[k]+3}], v{aP}, s[{sWS}:{sWS+3}], s28 offen sc1")
            a(f"buffer_load_dwordx4 v[{HGs[k]+4}:{HGs[k]+7}], v{aP}, s[{sWS}:{sWS+3}], s29 offen sc1")
            if third:
                a(f"buffer_load_dwordx4 v[{HGs[k]+8}:{HGs[k]+11}], v{aP}, s[{sWS}:{sWS+3}], s31 offen sc1")
        def h_consume(k, third):
            for b in range(4):
                a(f"ds_write_b16_d16_hi v{aH}, v{HGs[k]+b} offset:{L_HB + 1152*b}")
                a(f"ds_write_b16_d16_hi v{aH}, v{HGs[k]+4+b} offset:{L_HB + 1152*b + 128}")
            if third:
                for b in range(4):
                    a(f"ds_write_b16_d16_hi v{aH}, v{HGs[k]+8+b} offset:{L_HB + 1152*b + 1024}")
        hp = ((lambda: a(f"buffer_load_dword v{HGs[0]}, v{aP}, s[{sWS}:{sWS+3}], s28 offen sc1")), HGs[0], "1") if probe[2] else None
        a(f"s_cmp_lg_u32 s{sWAVE}, 0\n s_cbranch_scc1 L_h1")
        ppoll(a, "L_hpoll2", ns[2], 3, lambda k: h_issue(k, True), lambda k: list(range(HGs[k], HGs[k] + 12)), vT + 13,
              lambda k: h_consume(k, True), pollsleep, stg, probe=hp, presleep=presl[2])
        a("s_branch L_h2\n L_h1:")
        ppoll(a, "L_hpoll1", ns[2], 2, lambda k: h_issue(k, False), lambda k: list(range(HGs[k], HGs[k] + 8)), vT + 13,
              lambda k: h_consume(k, False), pollsleep, stg, probe=hp, presleep=presl[2])
        a("s_branch L_h2")
        a("L_b_loadwait:\n s_waitcnt vmcnt(0)")
        if wd_after and "d" in late and not no_w:
            a(f"s_cmp_eq_u32 s{sDRY}, 1\n s_cbranch_scc1 L_b_nod")
            slice_idx()
            a(f"s_and_b32 s73, s{sWAVE}, 3")
            dma_mat("d", 73)
            a("L_b_nod:")
        stamp(15)
        a("L_h2:")
        stamp(5)
        a("s_waitcnt lgkmcnt(0)\n s_barrier")
        GD = P + 40
        def mm(ks):
            c = "0" if ks == 0 else f"v[{GD}:{GD+3}]"
            a(f"v_mfma_f32_16x16x32_bf16 v[{GD}:{GD+3}], v[{AB+4*ks}:{AB+4*ks+3}], v[{BB+4*ks}:{BB+4*ks+3}], {c}")
        def a_read(ks):
            a(f"ds_read_b128 v[{AB+4*ks}:{AB+4*ks+3}], v{aA} offset:{L_HB + 64*ks}")
        if pre_gate:
            a(f"s_bitcmp1_b32 s{sWAVE}, 1\n s_cbranch_scc1 L_b_full")
            for ks in range(9):
                a_read(ks)
            for ks in range(9):
                a(f"s_waitcnt lgkmcnt({8-ks})")
                mm(ks)
            a("s_branch L_b_mmdone\n L_b_full:")
        def trip(ks):
            a(f"ds_read_b64_tr_b16 v[{BB+4*ks}:{BB+4*ks+1}], v{aBB} offset:{ks*2048}")
            a(f"ds_read_b64_tr_b16 v[{BB+4*ks+2}:{BB+4*ks+3}], v{aBB} offset:{ks*2048+256}")
            a_read(ks)
        for ks in range(4):
            trip(ks)
        for ks in range(9):
            a(f"s_waitcnt lgkmcnt({3 * (min(ks + 3, 8) - ks)})")
            mm(ks)
            if ks + 4 <= 8:
                trip(ks + 4)
        a("L_b_mmdone:")
        def wd_read(i):
            if zpack and i == 4:
                a(f"s_mul_i32 s28, s{sWAVE}, 96\n s_sub_u32 s28, 1024, s28\n v_add_u32 v{vT+16}, s28, v{aWD}")
                a(f"ds_read_b64_tr_b16 v[{WDd+16}:{WDd+17}], v{vT+16} offset:0")
                a(f"ds_read_b64_tr_b16 v[{WDd+18}:{WDd+19}], v{vT+16} offset:{4*1152}")
                return
            st_ = 32 if zpack else 256
            a(f"ds_read_b64_tr_b16 v[{WDd+4*i}:{WDd+4*i+1}], v{aWD} offset:{i*st_}")
            a(f"ds_read_b64_tr_b16 v[{WDd+4*i+2}:{WDd+4*i+3}], v{aWD} offset:{i*st_ + 4*1152}")
        for i in range(5 if not wd_after else 0):
            if i == 4:
                a(f"s_cmp_ge_u32 s{sWAVE}, 4\n s_cbranch_scc1 L_no5th")
            wd_read(i)
        if not wd_after:
            a("L_no5th:")
    else:
        if not no_w:
            a(f"s_cmp_eq_u32 s{sDRY}, 1\n s_cbranch_scc1 L_skip_late")
            weights_late()
            a("L_skip_late:")
        stamp(15)
        BB = 64
        WDd = 100
        a(f"""
        v_lshrrev_b32 v{vT}, 2, v{vN}
        v_lshl_add_u32 v{vT}, v{vG}, 3, v{vT}            ; 8g + r
        v_and_b32 v{vT+1}, 3, v{vLANE}                   ; cc
        v_lshlrev_b32 v{vT+2}, 6, v{vT}
        v_lshl_add_u32 v{vT+2}, v{vT+1}, 3, v{vT+2}      ; (8g+r)*64 + cc*8
        s_and_b32 s28, s{sWAVE}, 1
        s_lshl_b32 s28, s28, 5                           ; t*32
        s_bfe_u32 s29, s{sWAVE}, 0x10001
        s_mul_i32 s29, s29, {L_WU - L_WG}
        s_add_u32 s28, s28, s29
        s_add_u32 s28, s28, {L_WG}
        s_lshr_b32 s29, s{sWAVE}, 2
        s_mul_i32 s29, s29, {9*2048}
        s_add_u32 s28, s28, s29
        v_add_u32 v{vT+2}, s28, v{vT+2}
        """)
        for ks in range(9):
            a(f"ds_read_b64_tr_b16 v[{BB+4*ks}:{BB+4*ks+1}], v{vT+2} offset:{ks*2048}")
            a(f"ds_read_b64_tr_b16 v[{BB+4*ks+2}:{BB+4*ks+3}], v{vT+2} offset:{ks*2048+256}")
            if ks == 5:
                a("s_waitcnt lgkmcnt(0)")
        a(f"""
        v_mul_u32_u24 v{vT+3}, 1152, v{vT}
        v_lshl_add_u32 v{vT+3}, v{vT+1}, 3, v{vT+3}
        s_lshl_b32 s28, s{sWAVE}, 5
        s_add_u32 s28, s28, {L_WD}
        v_add_u32 v{vT+3}, s28, v{vT+3}
        s_waitcnt lgkmcnt(0)
        """)
        for i in range(5):
            if i == 4:
                a(f"s_cmp_ge_u32 s{sWAVE}, 4\n s_cbranch_scc1 L_no5th")
            a(f"ds_read_b64_tr_b16 v[{WDd+4*i}:{WDd+4*i+1}], v{vT+3} offset:{i*256}")
            a(f"ds_read_b64_tr_b16 v[{WDd+4*i+2}:{WDd+4*i+3}], v{vT+3} offset:{i*256 + 4*1152}")
        a("L_no5th:")
        aH, aA, aG, aR, aF1, aF2, aF3, aW = (vT + 4 + i for i in range(8))
        aP = vT + 12
        a(f"""
        s_lshl_b32 s28, s{sWAVE}, 7
        v_lshlrev_b32 v{aH}, 1, v{vLANE}
        v_add_u32 v{aH}, s28, v{aH}
        v_and_b32 v{aA}, 3, v{vN}
        v_cmp_eq_u32 vcc, 4, v{vN}
        v_mov_b32 v{aG}, 4
        s_lshr_b32 s28, s{sWAVE}, 2
        v_cndmask_b32 v{aA}, v{aA}, v{aG}, vcc           ; row(m)
        v_mul_u32_u24 v{aA}, 1152, v{aA}
        s_mul_i32 s28, s28, {9*64}
        v_lshl_add_u32 v{aA}, v{vG}, 4, v{aA}
        v_add_u32 v{aA}, s28, v{aA}
        s_lshl_b32 s28, s{sWAVE}, 10
        v_lshlrev_b32 v{aG}, 4, v{vLANE}
        v_add_u32 v{aG}, s28, v{aG}
        s_lshl_b32 s28, s{sWAVE}, 8
        v_lshlrev_b32 v{aR}, 4, v{vN}
        v_add_u32 v{aR}, s28, v{aR}                      ; wave*256 + n*16
        v_lshrrev_b32 v{aW}, 2, v{vLANE}                 ; f'
        v_and_b32 v{aF3}, 3, v{vLANE}                    ; b
        s_lshl_b32 s28, s{sWAVE}, 10
        v_lshlrev_b32 v{aF2}, 4, v{aW}
        v_add_u32 v{aF2}, s28, v{aF2}                    ; tile*1024 + f'*16
        v_lshl_add_u32 v{aF1}, v{aF3}, 2, v{aF2}         ; + b*4
        s_lshl_b32 s28, s{sWAVE}, 5
        v_lshlrev_b32 v{aW}, 1, v{aW}
        v_add_u32 v{aW}, s28, v{aW}                      ; (tile*16 + f')*2
        v_lshl_add_u32 v{aW}, v{aF3}, 6, v{aW}           ; + b*64
        v_lshlrev_b32 v{vT}, 4, v{aF3}                   ; b*16
        v_mov_b32 v{vT+1}, 64
        v_and_b32 v{vT+2}, 4, v{vLANE}
        v_cmp_ne_u32 vcc, 0, v{vT+2}
        v_lshrrev_b32 v{vT+2}, 3, v{vLANE}
        v_lshlrev_b32 v{vT+2}, 8, v{vT+2}                ; (l>>3)*256
        v_cndmask_b32 v{vT}, v{vT}, v{vT+1}, vcc
        v_lshl_add_u32 v{aF3}, v{aF3}, 2, v{vT}
        v_add_u32 v{aF3}, v{aF3}, v{vT+2}
        s_mov_b32 s64, 0xf0f0f0f0
        s_mov_b32 s65, 0xf0f0f0f0
        v_lshlrev_b32 v{aP}, 4, v{vLANE}
        s_lshl_b32 s28, s{sWAVE}, 10
        s_add_u32 s28, s28, {WS_HB}
        s_mov_b32 s29, {WS_HB + 8192}
        s_lshl_b32 s30, s{sWAVE}, 11
        s_add_u32 s30, s30, {WS_CANB + 8*128}
        """)
        HGs = [P + 48 + 8 * k for k in range(3)]
        for k in range(3):
            for r in range(4):
                a(f"v_mov_b32 v{HGs[k]+4+r}, v{vTAG}")
        def h_issue2(k):
            a(f"buffer_load_dwordx4 v[{HGs[k]}:{HGs[k]+3}], v{aP}, s[{sWS}:{sWS+3}], s28 offen sc1")
            a(f"buffer_load_dwordx4 v[{HGs[k]+4}:{HGs[k]+7}], v{aP}, s[{sWS}:{sWS+3}], s29 offen sc1")
        def h_issue1(k):
            a(f"buffer_load_dwordx4 v[{HGs[k]}:{HGs[k]+3}], v{aP}, s[{sWS}:{sWS+3}], s28 offen sc1")
        def h_consume2(k):
            for b in range(4):
                a(f"ds_write_b16_d16_hi v{aH}, v{HGs[k]+b} offset:{L_HB + 1152*b}")
            for b in range(4):
                a(f"ds_write_b16_d16_hi v{aH}, v{HGs[k]+4+b} offset:{L_HB + 1152*b + 1024}")
        def h_consume1(k):
            for b in range(4):
                a(f"ds_write_b16_d16_hi v{aH}, v{HGs[k]+b} offset:{L_HB + 1152*b}")
        a(f"s_cmp_lg_u32 s{sWAVE}, 0\n s_cbranch_scc1 L_h1")
        ppoll(a, "L_hpoll2", ns[2], 2, h_issue2, lambda k: list(range(HGs[k], HGs[k] + 8)), vT + 13, h_consume2, pollsleep, stg,
              probe=((lambda: a(f"buffer_load_dword v{HGs[0]}, v{aP}, s[{sWS}:{sWS+3}], s{30 if canB else 28} offen sc1")), HGs[0], "1") if probe[2] else None, presleep=presl[2])
        a("s_branch L_h2\n L_h1:")
        ppoll(a, "L_hpoll1", ns[2], 1, h_issue1, lambda k: list(range(HGs[k], HGs[k] + 4)), vT + 13, h_consume1, pollsleep, stg,
              probe=((lambda: a(f"buffer_load_dword v{HGs[0]}, v{aP}, s[{sWS}:{sWS+3}], s{30 if canB else 28} offen sc1")), HGs[0], "1") if probe[2] else None, presleep=presl[2])
        a("L_h2:")
        stamp(5)
        a("s_waitcnt lgkmcnt(0)\n s_barrier")
        AB = P
        for ks in range(9):
            a(f"ds_read_b128 v[{AB+4*ks}:{AB+4*ks+3}], v{aA} offset:{L_HB + 64*ks}")
    GD = P + 40
    GRm = P + 44
    for ks in range(9 if not bdec else 0):
        a(f"s_waitcnt lgkmcnt({8-ks})")
        c = "0" if ks == 0 else f"v[{GD}:{GD+3}]"
        a(f"v_mfma_f32_16x16x32_bf16 v[{GD}:{GD+3}], v[{AB+4*ks}:{AB+4*ks+3}], v[{BB+4*ks}:{BB+4*ks+3}], {c}")
    a(f"s_and_b32 s28, s{sWAVE}, 3")
    lg = [a.label("L_gr") for _ in range(4)]; lge = a.label("L_gre")
    for t in range(1, 4):
        a(f"s_cmp_eq_u32 s28, {t}\n s_cbranch_scc1 {lg[t]}")
    for t in range(4):
        a(f"{lg[t]}:")
        kss = [t, t + 4] + ([8] if t == 0 else [])
        for i, ks in enumerate(kss):
            c = "0" if i == 0 else f"v[{GRm}:{GRm+3}]"
            a(f"v_mfma_f32_16x16x32_bf16 v[{GRm}:{GRm+3}], v[{AB+4*ks}:{AB+4*ks+3}], v[{AB+4*ks}:{AB+4*ks+3}], {c}")
        if t != 3:
            a(f"s_branch {lge}")
    a(f"""
    {lge}:
    s_nop 2
    ds_write_b128 v{aG}, v[{GD}:{GD+3}] offset:{L_GUF}
    s_nop 6
    s_mov_b64 exec, 0xffff
    ds_write_b128 v{aR}, v[{GRm}:{GRm+3}] offset:{L_GR}
    s_mov_b64 exec, -1
    s_waitcnt {"vmcnt(0) " if (bdec and wd_after) else ""}lgkmcnt(0)
    s_barrier
    """)
    def wd_reads(tag):
        for i in range(5):
            if i == 4:
                a(f"s_cmp_ge_u32 s{sWAVE}, 4\n s_cbranch_scc1 L_no5th{tag}")
            a(f"ds_read_b64_tr_b16 v[{WDd+4*i}:{WDd+4*i+1}], v{aWD} offset:{i*256}")
            a(f"ds_read_b64_tr_b16 v[{WDd+4*i+2}:{WDd+4*i+3}], v{aWD} offset:{i*256 + 4*1152}")
        a(f"L_no5th{tag}:")
    if bdec and wd_after:
        a(f"s_cmp_lt_u32 s{sWAVE}, 2\n s_cbranch_scc1 L_wd_later")
        wd_reads("a")
        a("L_wd_later:")
    stamp(6)
    def canc_store():
        lab = a.label("L_nocan")
        a(f"""
        s_cmp_lg_u32 s{sWAVE}, 7
        s_cbranch_scc1 {lab}
        s_lshl_b32 s30, s{sIDX}, 7
        s_add_u32 s30, s30, {WS_CANC}
        v_mov_b32 v{vT+14}, 0
        s_mov_b64 exec, 1
        buffer_store_dword v{vTAG}, v{vT+14}, s[{sWS}:{sWS+3}], s30 offen sc1
        s_mov_b64 exec, -1
        {lab}:
        """)
    if canC == 2:
        canc_store()
    a(f"s_cmp_ge_u32 s{sWAVE}, 2\n s_cbranch_scc1 L_nogelu")
    GE = P
    a(f"""
    ds_read_b32 v{GE+8}, v{aF3} offset:{L_GR}
    ds_read_b32 v{GE}, v{aF1} offset:{L_GUF}
    ds_read_b32 v{GE+1}, v{aF1} offset:{L_GUF+4096}
    ds_read_b32 v{GE+2}, v{aF1} offset:{L_GUF+2048}
    ds_read_b32 v{GE+3}, v{aF1} offset:{L_GUF+2048+4096}
    ds_read_b32 v{GE+4}, v{aF2} offset:{L_GUF+256}
    ds_read_b32 v{GE+5}, v{aF2} offset:{L_GUF+256+4096}
    ds_read_b32 v{GE+6}, v{aF2} offset:{L_GUF+256+2048}
    ds_read_b32 v{GE+7}, v{aF2} offset:{L_GUF+256+2048+4096}
    s_waitcnt lgkmcnt(8)
    """)
    X_, Y_, T_ = GE + 8, GE + 9, GE + 10
    a(f"""
    s_nop 1
    v_add_f32_dpp v{X_}, v{X_}, v{X_} row_ror:8 row_mask:0xf bank_mask:0xf
    """)
    xrow(a, [X_], [T_])
    a(f"""
    s_nop 1
    v_mov_b32_dpp v{Y_}, v{X_} row_ror:4 row_mask:0xf bank_mask:0xf
    s_nop 0
    v_cndmask_b32 v{T_}, v{Y_}, v{X_}, s[64:65]      ; sum
    v_cndmask_b32 v{Y_}, v{X_}, v{Y_}, s[64:65]      ; sumsq
    v_mul_f32 v{T_}, {INV576}, v{T_}                 ; mu
    v_mul_f32 v{Y_}, {INV576}, v{Y_}
    v_fma_f32 v{Y_}, -v{T_}, v{T_}, v{Y_}            ; var
    """)
    rbf(a, [(T_, Y_)], [X_])
    a(f"v_add_f32 v{Y_}, {EPS}, v{Y_}")
    rbf(a, [(Y_, Y_)], [X_])
    a(f"v_sqrt_f32 v{Y_}, v{Y_}\n s_nop 0")
    rbf(a, [(Y_, Y_)], [X_])
    a(f"""
    v_rcp_f32 v{X_}, v{Y_}
    s_waitcnt lgkmcnt(0)
    """)
    if bdec and wd_after:
        wd_reads("b")
    a(f"""
    v_add_f32 v{GE}, v{GE}, v{GE+1}
    v_add_f32 v{GE+2}, v{GE+2}, v{GE+3}
    v_add_f32 v{GE+4}, v{GE+4}, v{GE+5}
    v_add_f32 v{GE+6}, v{GE+6}, v{GE+7}
    v_fma_f32 v{GE}, -v{T_}, v{GE+4}, v{GE}
    v_fma_f32 v{GE+2}, -v{T_}, v{GE+6}, v{GE+2}
    """)
    fdiv(a, GE + 1, GE, X_, Y_, GE + 4)
    fdiv(a, GE + 3, GE + 2, X_, Y_, GE + 5)
    rbf(a, [(GE + 1, GE + 3)], [GE + 4])
    C1, C2 = 0x3d372713, 0x3f4c422a
    TWO_L2E = 0x4038aa3b
    g, t = GE + 1, GE + 4
    a(f"""
    v_mul_f32 v{t}, v{g}, v{g}
    v_mul_f32 v{t}, v{t}, v{g}
    v_mov_b32 v{t+1}, {C1}
    v_fma_f32 v{t}, v{t}, v{t+1}, v{g}
    v_mul_f32 v{t}, {C2}, v{t}
    v_mul_f32 v{t}, {TWO_L2E}, v{t}
    v_exp_f32 v{t}, v{t}
    v_mul_f32 v{t+2}, 0.5, v{g}
    v_add_f32 v{t}, 1.0, v{t}
    v_rcp_f32 v{t}, v{t}
    s_nop 0
    v_fma_f32 v{t}, -2.0, v{t}, 1.0
    v_add_f32 v{t}, 1.0, v{t}
    v_mul_f32 v{g}, v{t+2}, v{t}
    """)
    rbf(a, [(g, g)], [t])
    a(f"""
    v_mul_f32 v{g}, v{g}, v{GE+3}
    v_cvt_pk_bf16_f32 v{t}, v{g}, v{g}
    ds_write_b16 v{aW}, v{t} offset:{L_HF}
    s_waitcnt lgkmcnt(0)
    L_nogelu:
    s_barrier
    """)
    tstamp(14)
    if canC == 1:
        canc_store()
    a(f"""
    v_and_b32 v{vT+5}, 3, v{vN}
    v_lshlrev_b32 v{vT+5}, 6, v{vT+5}
    v_lshl_add_u32 v{vT+5}, v{vG}, 4, v{vT+5}
    ds_read_b128 v[{P}:{P+3}], v{vT+5} offset:{L_HF}
    """)
    if cmajZ:
        a(f"""
        s_lshl_b32 s28, s{sIDX}, 6
        s_add_u32 s28, s28, {WS_Z}
        s_mul_i32 s29, s{sWAVE}, {4*9216}
        s_add_u32 s28, s28, s29
        v_lshrrev_b32 v{vT+6}, 2, v{vN}
        v_mul_u32_u24 v{vT+6}, 9216, v{vT+6}
        v_and_b32 v{vT+7}, 3, v{vN}
        v_lshl_add_u32 v{vT+6}, v{vT+7}, 4, v{vT+6}
        """)
        zstep = 8 * 4 * 9216
    else:
        a(f"""
        s_mul_i32 s28, s{sIDX}, 9216
        s_add_u32 s28, s28, {WS_Z}
        s_lshl_b32 s29, s{sWAVE}, 8
        s_add_u32 s28, s28, s29
        v_lshlrev_b32 v{vT+6}, 4, v{vN}
        """)
        zstep = 2048
    a("s_waitcnt lgkmcnt(0)")
    ZD = P + 8
    for i in range(5):
        if i == 4:
            a(f"s_cmp_ge_u32 s{sWAVE}, 4\n s_cbranch_scc1 L_z4")
        a(f"v_mfma_f32_16x16x32_bf16 v[{ZD+4*i}:{ZD+4*i+3}], v[{P}:{P+3}], v[{WDd+4*i}:{WDd+4*i+3}], 0")
    if zpack:
        assert not cmajZ and bdec and not wd_after
        a(f"""
        L_z4:
        s_mul_i32 s28, s{sIDX}, 9216
        s_add_u32 s28, s28, {WS_Z}
        s_lshl_b32 s29, s{sWAVE}, 10
        s_add_u32 s29, s29, s28                ; tiles 4w..4w+3: 1 KB contiguous
        v_lshlrev_b32 v{vT+6}, 4, v{vLANE}
        s_lshl_b32 s30, s{sWAVE}, 8
        s_add_u32 s30, s30, s28
        s_add_u32 s30, s30, 8192
        s_nop 1
        """)
        for r in range(4):
            a(f"v_permlane16_swap_b32 v{ZD+r}, v{ZD+4+r}")
        for r in range(4):
            a(f"v_permlane16_swap_b32 v{ZD+8+r}, v{ZD+12+r}")
        a("s_nop 1")
        for r in range(4):
            a(f"v_permlane32_swap_b32 v{ZD+r}, v{ZD+8+r}")
        a("s_nop 1")
        addtag(a, range(ZD, ZD + 4))
        a(f"buffer_store_dwordx4 v[{ZD}:{ZD+3}], v{vT+6}, s[{sWS}:{sWS+3}], s29 offen sc1")
        a(f"s_cmp_ge_u32 s{sWAVE}, 4\n s_cbranch_scc1 L_fin")
        addtag(a, range(ZD + 16, ZD + 20))
        a(f"""
        s_mov_b64 exec, 0xffff
        buffer_store_dwordx4 v[{ZD+16}:{ZD+19}], v{vT+6}, s[{sWS}:{sWS+3}], s30 offen sc1
        s_mov_b64 exec, -1
        """)
    else:
        a("L_z4:\n s_nop 7")
        for i in range(5):
            if i == 4:
                a(f"s_cmp_ge_u32 s{sWAVE}, 4\n s_cbranch_scc1 L_fin")
            addtag(a, range(ZD + 4*i, ZD + 4*i + 4))
            a(f"""
            s_add_u32 s29, s28, {zstep*i}
            s_mov_b64 exec, 0xffff
            buffer_store_dwordx4 v[{ZD+4*i}:{ZD+4*i+3}], v{vT+6}, s[{sWS}:{sWS+3}], s29 offen sc1
            s_mov_b64 exec, -1
            """)

    tstamp(13)
    a("L_fin:")
    for i in range(mark_tail, len(a.L) if dry else 0):
        if a.L[i].strip() == "s_barrier" and "noguard" not in a.L[i]:
            lab = a.label("L_nb")
            a.L[i] = f"    s_cmp_eq_u32 s{sDRY}, 1\n    s_cbranch_scc1 {lab}\n    s_barrier\n{lab}:"
    a(f"s_cmp_eq_u32 s{sDRY}, 1\n s_cbranch_scc1 L_dry_done" if dry else "")
    dbg_max(2)
    if stamps:
        a("s_waitcnt vmcnt(0)")
        stamp(8)
        a(f"""
        s_lshl_b32 s28, s{sW}, 3
        s_add_u32 s28, s28, s{sWAVE}
        s_lshl_b32 s28, s28, 6
        s_add_u32 s28, s28, {WS_STAMP}
        v_mov_b32 v{vT}, 0
        s_mov_b64 exec, 1
        """)
        for i in range(0, NSTAMP, 4):
            for r in range(4):
                a(f"v_mov_b32 v{vT+2+r}, s{sST+i+r}")
            a(f"buffer_store_dwordx4 v[{vT+2}:{vT+5}], v{vT}, s[{sWS}:{sWS+3}], s28 offen offset:{4*i}")
            a("s_nop 1")
        a("s_waitcnt vmcnt(0)")
    a("L_end:\n s_endpgm\n L_code_end:")

    if not dry:
        L2 = []; i = 0
        flat = "\n".join(a.L).split("\n")
        while i < len(flat):
            if flat[i].strip() == f"s_cmp_eq_u32 s{sDRY}, 1" and flat[i+1].strip().startswith("s_cbranch_scc1"):
                i += 2; continue
            if flat[i].strip() in (f"s_mov_b32 s{sDRY}, 0",):
                i += 1; continue
            L2.append(flat[i]); i += 1
        a.L = L2
    hdr = HEADER + f"; @launch grid=(256,1,1) block=(512,1,1) lds={LDS_BYTES}\n"
    hdr += '.amdgcn_target "amdgcn-amd-amdhsa--gfx950"\n.text\n'
    return hdr + kernel_begin(KNAME) + a.text() + kernel_desc(KNAME, 256, 102, 256)


HEADER = """;
;  prologue : LN(x[b]) and q[b,h] = LN(x) Wq[:, h] per workgroup (MFMA, natural-layout weights with a delta-masked A
;             attention partials -> 96 Wo workgroups (merge, o Wo) -> 144 column reducers (h = x + attn) ->
"""

if __name__ == "__main__":
    import sys
    kw = eval(sys.argv[2]) if len(sys.argv) > 2 else {}
    open(sys.argv[1], "w").write(gen(**kw))
```

```python
from asmlib import *

WS_E    = 0x0
WS_QP   = 0x10000
WS_AP   = 0xA0000
WS_Y    = 0xD0000
WS_HB   = 0x120000
WS_Z    = 0x130000
WS_CANB = 0x280000
WS_CANC = 0x288000
WS_STAMP= 0x300000
WS_SIZE = 0x400000

L_XD = 0
L_QB = L_XD + 9216
L_MRG = L_QB + 256
L_ML = L_MRG + 4096
L_OB = L_ML + 64
L_HB = L_OB + 1024
L_GUF = L_HB + 5760
L_GR = L_GUF + 8192
L_HF = L_GR + 2048
L_SMALL_END = L_HF + 256
L_WG = 32768
L_WU = L_WG + 36864
L_WD = L_WU + 36864
L_END = L_WD + 36864
assert L_SMALL_END <= L_WG
LDS_BYTES = 143360
assert L_END <= LDS_BYTES, L_END

LOG2E = 0x3fb8aa3b
SCALE = 0x3db504f3
INV576 = 0x3ae38e39
EPS = 0x3727c5ac

sWAVE = 3
sK, sV, sWS, sT, sU = 8, 12, 16, 20, 24
pX, pK, pV, pWQ, pWO, pBX, pWG, pWU = 32, 34, 36, 38, 40, 42, 44, 46
pWD, pOUT, pDBG, pWSP = 48, 50, 52, 54
sE, sW, sB, sH, sJ, sTO, sKV, sIT = 56, 57, 58, 59, 60, 61, 62, 63
sROW = 64
sOFF = 67
sL2E, sSCALE, sHI = 68, 69, 70
sCNT = 71
sDRY, sOUTN = 94, 95
sROLE, sIDX, sSLICE, sNT, sROT, sXTRA = 96, 97, 98, 99, 100, 101
sST = 74
NSTAMP = 16
vLANE, vN, vG, vOFFK, vOFFV = 0, 1, 2, 3, 4
vMASK = 5
vM, vL = 9, 10
vO = 12
vS = 16
vQ = 20
vTAG, vFF = 36, 37
vT = 38
vSTG = 64
vWQ = 192
vP = 172
vPP = 204


def srd(a, s, ptr, nbytes):
    a(f"""
    s_mov_b32 s{s}, s{ptr}
    s_and_b32 s{s+1}, s{ptr+1}, 0xffff
    s_mov_b32 s{s+2}, {nbytes}
    s_mov_b32 s{s+3}, 0x00020000
    """)


def row16(a, regs, op="add", ctrls=("quad_perm:[1,0,3,2]", "quad_perm:[2,3,0,1]", "row_half_mirror", "row_mirror")):
    ins = "v_add_f32" if op == "add" else "v_max_f32"
    n = len(regs)
    a("s_nop 1")
    for ctrl in ctrls:
        for r in regs:
            a(f"{ins}_dpp v{r}, v{r}, v{r} {ctrl} row_mask:0xf bank_mask:0xf")
        if n < 3:
            a(f"s_nop {2 - n}")


def xrow(a, regs, tmp, op="add", only32=False):
    ins = "v_add_f32" if op == "add" else "v_max_f32"
    sws = ("v_permlane16_swap_b32", "v_permlane32_swap_b32")
    if only32:
        sws = sws[1:]
    for sw in sws:
        for r, t in zip(regs, tmp):
            a(f"v_mov_b32 v{t}, v{r}")
        a("s_nop 1")
        for r, t in zip(regs, tmp):
            a(f"{sw} v{r}, v{t}")
        a("s_nop 1")
        for r, t in zip(regs, tmp):
            a(f"{ins} v{r}, v{r}, v{t}")


def wavesum(a, regs, tmp, op="add"):
    row16(a, regs, op)
    xrow(a, regs, tmp, op)


def rbf(a, pairs, t):
    for (x, y), tt in zip(pairs, t):
        a(f"v_cvt_pk_bf16_f32 v{tt}, v{x}, v{y}")
    for (x, y), tt in zip(pairs, t):
        a(f"v_lshlrev_b32 v{x}, 16, v{tt}")
        if y != x:
            a(f"v_and_b32 v{y}, s{sHI}, v{tt}")


def tagcheck(a, regs, acc, retry):
    a(f"v_xor_b32 v{acc}, v{regs[0]}, v{vTAG}")
    for r in regs[1:]:
        a(f"v_bitop3_b32 v{acc}, v{acc}, v{r}, v{vTAG} bitop3:0xf6")
    a(f"v_and_b32 v{acc}, v{acc}, v{vFF}")
    a(f"v_cmp_ne_u32 vcc, 0, v{acc}")
    a(f"s_cbranch_vccnz {retry}")


def addtag(a, regs):
    for r in regs:
        a(f"v_bfi_b32 v{r}, v{vFF}, v{vTAG}, v{r}")


def poll_head(a, name, bail="L_end"):
    a(f"{name}:")
    a(f"s_sub_u32 s{sTO}, s{sTO}, 1")
    a(f"s_cbranch_scc1 {bail}")


DRYG = False

def ppoll(a, name, nsets, nloads, issue, regs, acc, consume, sleep=0, stagger=0, probe=None, presleep=0):
    if DRYG:
        a(f"s_cmp_eq_u32 s{sDRY}, 1\n s_cbranch_scc1 {name}_ok0")
    if presleep:
        n = presleep
        while n > 0:
            a(f"s_sleep {min(n, 100)}")
            n -= 100
    if probe:
        emit, preg, mask = probe
        a(f"s_mov_b64 exec, {mask}")
        a(f"{name}_probe:")
        a(f"s_sub_u32 s{sTO}, s{sTO}, 1")
        a(f"s_cbranch_scc1 L_end")
        emit()
        a("s_waitcnt vmcnt(0)")
        a(f"v_xor_b32 v{acc}, v{preg}, v{vTAG}")
        a(f"v_and_b32 v{acc}, v{acc}, v{vFF}")
        a(f"v_cmp_ne_u32 vcc, 0, v{acc}")
        a(f"s_cbranch_vccnz {name}_probe")
        a("s_mov_b64 exec, -1")
    for k in range(nsets):
        issue(k)
        if stagger and k != nsets - 1:
            a(f"s_sleep {stagger}")
    a(f"{name}:")
    a(f"s_sub_u32 s{sTO}, s{sTO}, 1")
    a(f"s_cbranch_scc1 L_end")
    for k in range(nsets):
        a(f"s_waitcnt vmcnt({(nsets-1)*nloads})")
        r = regs(k)
        a(f"v_xor_b32 v{acc}, v{r[0]}, v{vTAG}")
        for x in r[1:]:
            a(f"v_bitop3_b32 v{acc}, v{acc}, v{x}, v{vTAG} bitop3:0xf6")
        a(f"v_and_b32 v{acc}, v{acc}, v{vFF}")
        a(f"v_cmp_ne_u32 vcc, 0, v{acc}")
        a(f"s_cbranch_vccz {name}_ok{k}")
        if sleep:
            a(f"s_sleep {sleep}")
        issue(k)
    a(f"s_branch {name}")
    for k in range(nsets):
        a(f"{name}_ok{k}:")
        consume(k)
        if k != nsets - 1:
            a(f"s_branch {name}_done")
    a(f"{name}_done:")


def fdiv(a, out, num, den_rcp, den, t):
    a(f"v_mul_f32 v{out}, v{num}, v{den_rcp}")
    a(f"v_fma_f32 v{t}, -v{out}, v{den}, v{num}")
    a(f"v_fma_f32 v{out}, v{t}, v{den_rcp}, v{out}")


def gen(D=2, stamps=False, stop=None, kvflags="nt", wflags="nt", late_w=False, pollsleep=0, codepf='tail', xflags="nt", cyc=False, pre=(0, 1, 2, 0), no_w=False, no_compute=False, no_q=False, early='', wo_late=False, gate='pair', bare=False, tailst=False, ns=(1, 1, 1, 1), stg=0, probe=(0, 1, 1, 1), presl=(0, 0, 0, 0), dry=False, shift=0, rotw=False, only=None, canB=False, canC=0, outfl='sc1', tlbw=0, locq=True, lq_pre=1, lq_mid=1, w0_mid=1, xmap=True, dbgA=False, dbgB=False, lq_late=2, gsleep=0, bdec=True, wo_e=4, wd_after=False, dbgtime=False, cmajY=False, cmajZ=False, rmap=True, sh2=0, wrot=0, zpack=True):
    global DRYG
    DRYG = bool(dry)
    a = Asm()
    NT = 32
    KV_OOB = 0x10000000
    P = vPP

    def tstamp(idx):
        if tailst:
            stamp(idx, True)

    def stamp(idx, force=False):
        if only is not None and idx not in only:
            return
        if tailst and idx in (9, 10, 11, 12, 13, 14) and not force:
            return
        if stamps:
            ins = "s_memtime" if cyc else "s_memrealtime"
            a(f"{ins} s[90:91]\n s_waitcnt lgkmcnt(0)\n s_mov_b32 s{sST+idx}, s90")

    def psleep():
        if pollsleep:
            a(f"s_sleep {pollsleep}")

    def code_prefetch(nwaves, lo, hi, tmp, dst=None):
        a(f"""
        s_getpc_b64 s[92:93]
        {a.label("L_pc")}:
        """)
        lab = a.L[-1].strip()[:-1]
        a(f"""
        s_add_u32 s92, s92, {lo}-{lab}
        s_addc_u32 s93, s93, {-1 if lo == "L_code0" else 0}
        s_lshl_b32 s28, s{sWAVE}, 10
        v_lshlrev_b32 v{tmp+4}, 4, v{vLANE}
        v_add_u32 v{tmp+4}, s28, v{tmp+4}
        s_mov_b32 s29, {hi}-{lo}-16
        """)
        for i in range(NPF[(lo, hi)]):
            a(f"v_min_u32 v{tmp+5}, s29, v{tmp+4}")
            d_ = tmp if dst is None else dst
            a(f"global_load_dwordx4 v[{d_}:{d_+3}], v{tmp+5}, s[92:93]")
            a(f"v_add_u32 v{tmp+4}, {1024*nwaves}, v{tmp+4}")
    NPF = {("L_code0", "L_code_end"): 2, ("L_tail0", "L_code_end"): 2}
    ROLES_OLD = f"""    ; ---- roles: even w < 224: Wo (w < 192) or spare ; otherwise stage B
    s_lshr_b32 s29, s2, 1                  ; P
    s_mov_b32 s{sIDX}, s29
    s_cmp_lt_u32 s29, 96
    s_cselect_b32 s{sROLE}, 1, 2
    s_cselect_b32 s30, {shift}, 0
    s_cmp_eq_u32 s28, 1
    s_cselect_b32 s{sROLE}, 0, s{sROLE}
    s_lshr_b32 s31, s29, 3
    s_lshl_b32 s31, s31, 2
    s_and_b32 s4, s29, 3
    s_add_u32 s31, s31, s4
    s_lshl_b32 s31, s31, 1
    s_bfe_u32 s4, s29, 0x10002
    s_add_u32 s{sSLICE}, s31, s4
    s_cmp_lt_u32 s2, 224
    s_cbranch_scc1 L_role_done
    s_mov_b32 s{sROLE}, 0
    s_sub_u32 s4, s2, 224                  ; p'
    s_add_u32 s{sIDX}, s4, 112
    s_lshr_b32 s31, s4, 4
    s_lshl_b32 s31, s31, 3
    s_and_b32 s5, s4, 7
    s_add_u32 s31, s31, s5
    s_lshl_b32 s31, s31, 1
    s_bfe_u32 s5, s4, 0x10003
    s_add_u32 s31, s31, s5
    s_add_u32 s{sSLICE}, s31, 112
    L_role_done:
    s_sub_u32 s30, 256, s30
    s_and_b32 s28, s{sJ}, 1
    s_cmp_eq_u32 s28, 1
    s_cselect_b32 s4, s30, 0               ; t0
    s_cselect_b32 s5, 512, s30             ; t1
    """
    ROLES_NEW = f"""
    s_and_b32 s29, s2, 7                   ; x
    s_lshr_b32 s30, s2, 4                  ; r
    s_lshl_b32 s31, s30, 3
    s_add_u32 s{sIDX}, s31, s29            ; r*8 + x
    s_lshr_b32 s31, s30, 1
    s_lshl_b32 s31, s31, 3
    s_add_u32 s31, s31, s29
    s_lshl_b32 s31, s31, 1
    s_and_b32 s4, s30, 1
    s_add_u32 s{sSLICE}, s31, s4           ; ((r>>1)*8 + x)*2 + (r&1)
    s_mov_b32 s{sROLE}, 0
    s_bitcmp1_b32 s2, 3
    s_cbranch_scc1 L_role_done
    s_cmp_lt_u32 s30, 12
    s_cselect_b32 s{sROLE}, 1, 2
    s_cmp_lt_u32 s30, 14
    s_cbranch_scc1 L_role_done
    s_mov_b32 s{sROLE}, 0
    s_add_u32 s{sIDX}, s{sIDX}, {128 - 14*8}
    s_lshl_b32 s31, s29, 1
    s_sub_u32 s4, s30, 14
    s_add_u32 s31, s31, s4
    s_add_u32 s{sSLICE}, s31, 128
    L_role_done:
    s_cmp_lt_u32 s30, 12
    s_cselect_b32 s30, {sh2}, 0
    s_and_b32 s28, s{sJ}, 1
    s_sub_u32 s5, 256, s30                 ; s=0: t1 = 256 - sh
    s_mov_b32 s4, 0
    s_mov_b32 s6, 0
    s_cmp_eq_u32 s28, 1
    s_cselect_b32 s4, 256, 0
    s_cselect_b32 s5, 512, s5
    s_cselect_b32 s6, s30, 0
    """
    ROLES = ROLES_NEW if rmap else ROLES_OLD
    XMAP = "" if not xmap else f"""
    s_and_b32 s29, s2, 7
    s_lshr_b32 s30, s2, 6
    s_lshl_b32 s30, s30, 3
    s_add_u32 s{sH}, s29, s30              ; h = (w&7) + 8*(w>>6)
    s_bfe_u32 s{sJ}, s2, 0x30003           ; j = (w>>3)&7
    s_lshr_b32 s{sB}, s{sJ}, 1
    """
    def dbg_max(slot, invert=False):
        if not dbgtime:
            return
        lab = a.label("L_dbg")
        a(f"s_cmp_ge_u32 s{sWAVE}, {2 if slot == 2 else 1}\n s_cbranch_scc1 {lab}")
        a(f"""
        s_memrealtime s[90:91]
        s_waitcnt lgkmcnt(0)
        {"s_not_b32 s90, s90" if invert else ""}
        v_mov_b32 v62, s90
        v_mov_b32 v63, {4*slot}
        s_mov_b64 exec, 1
        global_atomic_umax v63, v62, s[{pDBG}:{pDBG+1}]
        s_mov_b64 exec, -1
        {lab}:
        """)

    a(f"""
    L_code0:
    s_cmp_ge_u32 s2, 256
    s_cbranch_scc1 L_end
    s_load_dwordx16 s[32:47], s[0:1], 0
    s_load_dwordx8 s[48:55], s[0:1], 64
    v_lshrrev_b32 v{P}, 6, v0
    v_and_b32 v{vLANE}, 63, v0
    v_readfirstlane_b32 s{sWAVE}, v{P}
    v_and_b32 v{vN}, 15, v{vLANE}
    v_lshrrev_b32 v{vG}, 4, v{vLANE}
    v_lshlrev_b32 v{vOFFK}, 8, v{vN}
    v_lshl_add_u32 v{vOFFK}, v{vG}, 4, v{vOFFK}
    v_lshlrev_b32 v{vOFFV}, 10, v{vG}
    v_lshl_add_u32 v{vOFFV}, v{vN}, 4, v{vOFFV}
    s_mov_b32 s{sW}, s2
    s_lshr_b32 s{sB}, s2, 6
    s_lshr_b32 s{sH}, s2, 1
    s_and_b32 s{sH}, s{sH}, 31
    s_and_b32 s28, s2, 1
    s_lshl_b32 s{sJ}, s{sB}, 1
    s_add_u32 s{sJ}, s{sJ}, s28
    {XMAP}
    s_mov_b32 s{sTO}, 2000000
    {ROLES}
    s_mov_b32 s{sL2E}, {LOG2E}
    s_mov_b32 s{sSCALE}, {SCALE}
    s_mov_b32 s{sHI}, 0xffff0000
    s_mov_b32 s{sDRY}, 0
    s_mov_b32 s{sOUTN}, 4608
    """)
    if stamps:
        for i in range(NSTAMP):
            a(f"s_mov_b32 s{sST+i}, 0")
    stamp(0)
    if codepf is True and not locq:
        code_prefetch(8, "L_code0", "L_code_end", vPP + 44)
    a("s_waitcnt lgkmcnt(0)")
    stamp(9)
    dbg_max(0, True)
    a(f"s_load_dword s{sE}, s[{pWSP}:{pWSP+1}], 0")
    srd(a, sK, pK, 0x10000000)
    srd(a, sV, pV, 0x10000000)
    srd(a, sWS, pWSP, WS_SIZE)
    srd(a, sT, pX, 4608)
    srd(a, sU, pWQ, 576 * 8192)
    WROT = "" if not wrot else f"""
    s_mul_i32 s{sROT}, s{sW}, {wrot}
    s_add_u32 s{sROT}, s{sROT}, s{sWAVE}
    s_lshl_b32 s{sROT}, s{sROT}, 12
    """
    XTRA = "" if not rmap else f"""
    s_cmp_lt_u32 s{sWAVE}, s6
    s_addc_u32 s{sNT}, s{sNT}, 0
    s_sub_u32 s28, 256, s6
    s_add_u32 s28, s28, s{sWAVE}
    s_lshl_b32 s28, s28, 12
    s_lshl_b32 s{sXTRA}, s{sB}, 5
    s_add_u32 s{sXTRA}, s{sXTRA}, s{sH}
    s_lshl_b32 s{sXTRA}, s{sXTRA}, 21
    s_add_u32 s{sXTRA}, s{sXTRA}, s28
    """
    a(f"""
    s_lshl_b32 s{sKV}, s{sB}, 5
    s_add_u32 s{sKV}, s{sKV}, s{sH}
    s_lshl_b32 s{sKV}, s{sKV}, 21
    s_lshl_b32 s28, s4, 12
    s_add_u32 s{sKV}, s{sKV}, s28
    s_sub_u32 s29, s5, s4                  ; L
    s_lshr_b32 s{sNT}, s29, 3
    s_and_b32 s29, s29, 7                  ; remainder
    {'s_add_u32 s28, s%d, s%d' % (sNT, sWAVE) if rotw else 's_mov_b32 s28, s%d' % sWAVE}
    s_and_b32 s28, s28, 7
    s_cmp_lt_u32 s28, s29
    s_addc_u32 s{sNT}, s{sNT}, 0
    {XTRA}
    {WROT}
    s_mov_b32 s{sIT}, 0
    """)

    def kloads(s):
        r = vSTG + 32 * s
        for j in range(4):
            a(f"buffer_load_dwordx4 v[{r+4*j}:{r+4*j+3}], v{vOFFK}, s[{sK}:{sK+3}], s{sOFF} offen offset:{64*j} {kvflags}")

    def vloads(s):
        r = vSTG + 32 * s + 16
        for j in range(4):
            a(f"buffer_load_dwordx4 v[{r+4*j}:{r+4*j+3}], v{vOFFV}, s[{sV}:{sV+3}], s{sOFF} offen offset:{256*j} {kvflags}")

    def nextoff():
        if wrot:
            a(f"""
            s_and_b32 s{sOFF}, s{sROT}, 0xfffff
            s_add_u32 s{sOFF}, s{sOFF}, s{sKV}
            s_add_u32 s{sROT}, s{sROT}, 32768
            s_cmp_ge_u32 s{sIT}, s{sNT}
            s_cselect_b32 s{sOFF}, {KV_OOB}, s{sOFF}
            s_add_u32 s{sIT}, s{sIT}, 1
            """)
            return
        if rotw:
            a(f"""
            s_add_u32 s{sOFF}, s{sIT}, s{sWAVE}
            s_and_b32 s{sOFF}, s{sOFF}, 7
            s_lshl_b32 s{sOFF}, s{sOFF}, 12
            s_add_u32 s{sOFF}, s{sOFF}, s{sKV}
            """)
        else:
            a(f"""
            s_lshl_b32 s{sOFF}, s{sWAVE}, 12
            s_add_u32 s{sOFF}, s{sOFF}, s{sKV}
            """)
        if rmap and sh2:
            a(f"s_cmp_eq_u32 s{sIT}, 32\n s_cselect_b32 s{sOFF}, s{sXTRA}, s{sOFF}")
        a(f"""
        s_cmp_ge_u32 s{sIT}, s{sNT}
        s_cselect_b32 s{sOFF}, {KV_OOB}, s{sOFF}
        s_add_u32 s{sKV}, s{sKV}, 32768
        s_add_u32 s{sIT}, s{sIT}, 1
        """)

    def prefetch(lo=0, hi=D):
        for s in range(lo, hi):
            nextoff(); kloads(s); vloads(s)

    a0, a1, b0, b1 = pre

    def by_class(fa, fb, f7=None):
        la, lb, le = a.label("L_cA"), a.label("L_cB"), a.label("L_cE")
        a(f"s_cmp_lt_u32 s{sWAVE}, 4\n s_cbranch_scc1 {la}")
        a(f"s_cmp_lt_u32 s{sWAVE}, 7\n s_cbranch_scc1 {lb}")
        if f7: f7()
        a(f"s_branch {le}\n {la}:")
        fa()
        a(f"s_branch {le}\n {lb}:")
        fb()
        a(f"{le}:")

    def MASKS():
        t0, t1, t2 = vT + 2, vT + 3, vT + 4
        a(f"""
        v_and_b32 v{t0}, 7, v{vN}
        v_and_b32 v{t1}, 1, v{t0}
        v_lshlrev_b32 v{t1}, 4, v{t1}
        v_mov_b32 v{t2}, 0xffff
        v_lshlrev_b32 v{t1}, v{t1}, v{t2}
        v_lshrrev_b32 v{t0}, 1, v{t0}
        v_mov_b32 v{vFF}, 0xff
        """)
        for d in range(4):
            a(f"v_cmp_eq_u32 vcc, {d}, v{t0}\n s_nop 1\n v_cndmask_b32 v{vMASK+d}, 0, v{t1}, vcc")
        a(f"""
        s_waitcnt lgkmcnt(0)
        s_add_u32 s{sE}, s{sE}, 1
        s_and_b32 s28, s{sE}, 0xff
        v_mov_b32 v{vTAG}, s28
        """)

    if bare:
        prefetch(0, D)
        MASKS()
        a("s_branch L_bare")
    if locq:
        X, Dv = 64, 74
        A0, A1, A2, A3, A4 = 84, 85, 86, 87, 88
        vW18, AXS, AO = 160, 232, 250
        a(f"""
        v_lshlrev_b32 v{vT+1}, 13, v{vG}
        v_lshl_add_u32 v{vT+1}, v{vN}, 4, v{vT+1}        ; g*8192 + c*16
        s_lshl_b32 s30, s{sWAVE}, 15
        s_lshl_b32 s31, s{sH}, 8
        s_add_u32 s30, s30, s31
        s_cmp_lg_u32 s{sWAVE}, 0
        s_cbranch_scc1 L_lq_other
        v_lshlrev_b32 v{vT}, 1, v{vLANE}
        s_mul_i32 s28, s{sB}, 1152
        """)
        for i in range(9):
            a(f"buffer_load_ushort v{X+i}, v{vT}, s[{sT}:{sT+3}], s28 offen offset:{128*i} {xflags}")
        def wq18():
            for u in range(18):
                a(f"buffer_load_dwordx4 v[{vW18+4*u}:{vW18+4*u+3}], v{vT+1}, s[{sU}:{sU+3}], s30 offen {wflags}")
                if u != 17:
                    a(f"s_add_u32 s30, s30, {32*8192}")
        wq18()
        a("s_branch L_lq_issued\n L_lq_other:")
        lq_m = min(D, lq_pre + lq_mid)
        w0_m = min(D, w0_mid)
        prefetch(0, lq_pre)
        wq18()
        prefetch(lq_pre, lq_m)
        a("L_lq_issued:")
        if codepf is True:
            code_prefetch(8, "L_code0", "L_code_end", vT + 8, dst=60)
        MASKS()
        ncp = 0
        a(f"s_cmp_lg_u32 s{sWAVE}, 0\n s_cbranch_scc1 L_lq_noln")
        a(f"s_waitcnt vmcnt({18 + ncp})")
        stamp(10)
        for i in range(9):
            a(f"v_lshlrev_b32 v{X+i}, 16, v{X+i}")
        a(f"v_add_f32 v{A0}, v{X}, v{X+1}")
        for i in range(2, 9):
            a(f"v_add_f32 v{A0}, v{A0}, v{X+i}")
        wavesum(a, [A0], [A1])
        a(f"v_mul_f32 v{A0}, {INV576}, v{A0}")
        for i in range(9):
            a(f"v_sub_f32 v{Dv+i}, v{X+i}, v{A0}")
        a(f"v_mul_f32 v{A2}, v{Dv}, v{Dv}")
        for i in range(1, 9):
            a(f"v_fmac_f32 v{A2}, v{Dv+i}, v{Dv+i}")
        wavesum(a, [A2], [A1])
        a(f"v_mul_f32 v{A2}, {INV576}, v{A2}")
        rbf(a, [(A0, A2)], [A1])
        a(f"v_add_f32 v{A2}, {EPS}, v{A2}")
        rbf(a, [(A2, A2)], [A1])
        a(f"v_sqrt_f32 v{A2}, v{A2}\n s_nop 0")
        rbf(a, [(A2, A2)], [A1])
        a(f"v_rcp_f32 v{A3}, v{A2}")
        for i in range(9):
            a(f"v_sub_f32 v{Dv+i}, v{X+i}, v{A0}")
        rbf(a, [(Dv, Dv+1), (Dv+2, Dv+3), (Dv+4, Dv+5), (Dv+6, Dv+7), (Dv+8, Dv+8)], [X, X+1, X+2, X+3, X+4])
        for i in range(9):
            fdiv(a, X + i, Dv + i, A3, A2, A4)
        for i in range(9):
            a(f"v_cvt_pk_bf16_f32 v{X+i}, v{X+i}, v{X+i}")
        a(f"v_lshlrev_b32 v{A4}, 2, v{vLANE}")
        for i in range(9):
            a(f"ds_write_b32 v{A4}, v{X+i} offset:{L_XD + 256*i}")
        a("s_waitcnt lgkmcnt(0)")
        prefetch(0, w0_m)
        a("L_lq_noln:")
        a("s_barrier")
        stamp(11)
        a(f"""
        s_lshl_b32 s28, s{sWAVE}, 4
        v_lshlrev_b32 v{vT}, 2, v{vG}
        v_add_u32 v{vT}, s28, v{vT}                      ; g*4 + wave*16
        """)
        for u in range(18):
            a(f"ds_read_b32 v{AXS+u}, v{vT} offset:{L_XD + 128*u}")
            if u == 8:
                a("s_waitcnt lgkmcnt(0)")
        lw0, lwe = a.label("L_lqw0"), a.label("L_lqwe")
        a(f"s_cmp_eq_u32 s{sWAVE}, 0\n s_cbranch_scc1 {lw0}")
        a(f"s_waitcnt vmcnt({8*(lq_m-lq_pre) + ncp})\n s_branch {lwe}\n {lw0}:\n s_waitcnt vmcnt({8*w0_m})\n {lwe}:")
        a("s_waitcnt lgkmcnt(0)")
        if dbgA:
            a("s_waitcnt vmcnt(0)")
        stamp(12)
        for u in range(18):
            ao = AO if True else AO
            for d in range(4):
                a(f"v_and_b32 v{ao+d}, v{AXS+u}, v{vMASK+d}")
            a("s_nop 1")
            c = "0" if u == 0 else f"v[{vS}:{vS+3}]"
            a(f"v_mfma_f32_16x16x32_bf16 v[{vS}:{vS+3}], v[{ao}:{ao+3}], v[{vW18+4*u}:{vW18+4*u+3}], {c}")
            if dbgB:
                a("s_nop 7")
        a(f"""
        v_lshlrev_b32 v{vT}, 5, v{vN}                 ; c*32
        v_and_b32 v{vT+1}, 1, v{vG}
        v_lshl_add_u32 v{vT}, v{vT+1}, 4, v{vT}       ; + (g&1)*16
        s_lshl_b32 s28, s{sWAVE}, 9
        v_add_u32 v{vT}, s28, v{vT}
        s_nop 4
        ds_write_b128 v{vT}, v[{vS}:{vS+3}] offset:{L_MRG}
        """)
        if lq_m < D or w0_m < D:
            l0, le = a.label("L_lqr0"), a.label("L_lqre")
            a(f"s_cmp_eq_u32 s{sWAVE}, 0\n s_cbranch_scc1 {l0}")
            r1 = lq_late if lq_late is not None else D
            prefetch(lq_m, max(lq_m, min(D, r1)))
            a(f"s_branch {le}\n {l0}:")
            prefetch(w0_m, max(w0_m, min(D, r1)))
            a(f"{le}:")
        a("""
        s_waitcnt lgkmcnt(0)
        s_barrier
        """)
        stamp(13)
        QS = 232
        a(f"""
        s_cmp_lg_u32 s{sWAVE}, 1
        s_cbranch_scc1 L_lq_qdone
        v_and_b32 v{vT}, 31, v{vLANE}
        v_lshlrev_b32 v{vT+1}, 4, v{vT}
        """)
        for w in range(4):
            a(f"ds_read_b128 v[{QS+4*w}:{QS+4*w+3}], v{vT+1} offset:{L_MRG + 512*w}")
        for w in range(4, 8):
            a(f"ds_read_b128 v[{160+4*w}:{160+4*w+3}], v{vT+1} offset:{L_MRG + 512*w}")
        a("s_waitcnt lgkmcnt(0)")
        for r in range(0, 4, 2):
            a(f"v_pk_add_f32 v[{QS+r}:{QS+r+1}], v[{QS+r}:{QS+r+1}], v[{QS+4+r}:{QS+5+r}]")
            a(f"v_pk_add_f32 v[{QS+8+r}:{QS+9+r}], v[{QS+8+r}:{QS+9+r}], v[{QS+12+r}:{QS+13+r}]")
            a(f"v_pk_add_f32 v[{176+r}:{177+r}], v[{176+r}:{177+r}], v[{180+r}:{181+r}]")
            a(f"v_pk_add_f32 v[{184+r}:{185+r}], v[{184+r}:{185+r}], v[{188+r}:{189+r}]")
        for r in range(0, 4, 2):
            a(f"v_pk_add_f32 v[{QS+r}:{QS+r+1}], v[{QS+r}:{QS+r+1}], v[{QS+8+r}:{QS+9+r}]")
            a(f"v_pk_add_f32 v[{176+r}:{177+r}], v[{176+r}:{177+r}], v[{184+r}:{185+r}]")
        for r in range(0, 4, 2):
            a(f"v_pk_add_f32 v[{QS+r}:{QS+r+1}], v[{QS+r}:{QS+r+1}], v[{176+r}:{177+r}]")
        a(f"""
        v_cvt_pk_bf16_f32 v{QS+4}, v{QS}, v{QS+1}
        v_cvt_pk_bf16_f32 v{QS+5}, v{QS+2}, v{QS+3}
        v_lshlrev_b32 v{vT}, 3, v{vT}
        ds_write_b64 v{vT}, v[{QS+4}:{QS+5}] offset:{L_QB}
        s_waitcnt lgkmcnt(0)
        L_lq_qdone:
        s_barrier
        """)
        stamp(14)
        r1 = lq_late if lq_late is not None else D
        if max(lq_m, min(D, r1)) < D or max(w0_m, min(D, r1)) < D:
            l0, le = a.label("L_lqs0"), a.label("L_lqse")
            a(f"s_cmp_eq_u32 s{sWAVE}, 0\n s_cbranch_scc1 {l0}")
            prefetch(max(lq_m, min(D, r1)), D)
            a(f"s_branch {le}\n {l0}:")
            prefetch(max(w0_m, min(D, r1)), D)
            a(f"{le}:")
    else:
        X = P
        a(f"""
        s_cmp_ge_u32 s{sWAVE}, 4
        s_cbranch_scc1 L_nox
        v_lshlrev_b32 v{vT}, 1, v{vLANE}
        s_mul_i32 s28, s{sWAVE}, 1152
        """)
        for i in range(9):
            a(f"buffer_load_ushort v{X+i}, v{vT}, s[{sT}:{sT+3}], s28 offen offset:{128*i} {xflags}")
        a("L_nox:")
        a(f"""
        v_lshlrev_b32 v{vT+1}, 13, v{vG}
        v_lshl_add_u32 v{vT+1}, v{vN}, 4, v{vT+1}        ; g*8192 + c*16
        """)
        for u in range(3):
            a(f"""
            s_add_u32 s29, s{sWAVE}, {8*u}
            s_lshl_b32 s30, s29, 2
            s_mul_i32 s28, s{sJ}, 72
            s_add_u32 s30, s30, s28
            s_mov_b32 s{sROW+u}, s30
            s_lshl_b32 s30, s30, 13
            s_lshl_b32 s31, s{sH}, 8
            s_add_u32 s30, s30, s31
            s_cmp_ge_u32 s29, 18
            s_cselect_b32 s30, {576*8192}, s30
            s_cselect_b32 s{sROW+u}, s28, s{sROW+u}
            buffer_load_dwordx4 v[{vWQ+4*u}:{vWQ+4*u+3}], v{vT+1}, s[{sU}:{sU+3}], s30 offen {wflags}
            """)
        by_class(lambda: prefetch(0, a0), lambda: prefetch(0, b0))
        MASKS()
        Dv = P + 10
        A0, A1, A2, A3, A4, A5 = (P + 20 + i for i in range(6))
        a(f"""
        s_cmp_ge_u32 s{sWAVE}, 4
        s_cbranch_scc1 L_noln
        s_waitcnt vmcnt({3 + 8*a0})
        """)
        stamp(10)
        for i in range(9):
            a(f"v_lshlrev_b32 v{X+i}, 16, v{X+i}")
        a(f"v_add_f32 v{A0}, v{X}, v{X+1}")
        for i in range(2, 9):
            a(f"v_add_f32 v{A0}, v{A0}, v{X+i}")
        wavesum(a, [A0], [A1])
        a(f"v_mul_f32 v{A0}, {INV576}, v{A0}")
        for i in range(9):
            a(f"v_sub_f32 v{Dv+i}, v{X+i}, v{A0}")
        a(f"v_mul_f32 v{A2}, v{Dv}, v{Dv}")
        for i in range(1, 9):
            a(f"v_fmac_f32 v{A2}, v{Dv+i}, v{Dv+i}")
        wavesum(a, [A2], [A1])
        a(f"v_mul_f32 v{A2}, {INV576}, v{A2}")
        rbf(a, [(A0, A2)], [A1])
        a(f"v_add_f32 v{A2}, {EPS}, v{A2}")
        rbf(a, [(A2, A2)], [A1])
        a(f"v_sqrt_f32 v{A2}, v{A2}\n s_nop 0")
        rbf(a, [(A2, A2)], [A1])
        a(f"v_rcp_f32 v{A3}, v{A2}")
        for i in range(9):
            a(f"v_sub_f32 v{Dv+i}, v{X+i}, v{A0}")
        rbf(a, [(Dv, Dv+1), (Dv+2, Dv+3), (Dv+4, Dv+5), (Dv+6, Dv+7), (Dv+8, Dv+8)], [X, X+1, X+2, X+3, X+4])
        for i in range(9):
            fdiv(a, X + i, Dv + i, A3, A2, A4)
        for i in range(9):
            a(f"v_cvt_pk_bf16_f32 v{X+i}, v{X+i}, v{X+i}")
        a(f"""
        s_mul_i32 s28, s{sWAVE}, {576*4}
        v_lshlrev_b32 v{A4}, 2, v{vLANE}
        v_add_u32 v{A4}, s28, v{A4}
        """)
        for i in range(9):
            a(f"ds_write_b32 v{A4}, v{X+i} offset:{L_XD + 256*i}")
        a("L_noln:")
        a("s_waitcnt lgkmcnt(0)\n s_barrier")
        stamp(11)
        AX = P
        AO = P + 8
        QA = P + 12
        a(f"""
        v_lshrrev_b32 v{vT}, 3, v{vN}                 ; m>>3
        v_mul_u32_u24 v{vT}, 576, v{vT}
        v_add_u32 v{vT}, v{vT}, v{vG}
        v_lshlrev_b32 v{vT}, 2, v{vT}                 ; ((m>>3)*576 + g)*4
        """)
        for u in range(3):
            a(f"""
            s_lshl_b32 s28, s{sROW+u}, 2
            v_add_u32 v{vT+1}, s28, v{vT}
            ds_read_b32 v{AX+2*u}, v{vT+1} offset:{L_XD}
            ds_read_b32 v{AX+2*u+1}, v{vT+1} offset:{L_XD + 2*576*4}
            """)
        by_class(lambda: a(f"s_waitcnt vmcnt({8*a0})"), lambda: a(f"s_waitcnt vmcnt({8*b0})"), lambda: a("s_waitcnt vmcnt(0)"))
        a("s_waitcnt lgkmcnt(0)")
        stamp(12)
        for u in range(3):
            for pp in range(2):
                for d in range(4):
                    a(f"v_and_b32 v{AO+d}, v{AX+2*u+pp}, v{vMASK+d}")
                a("s_nop 1")
                c = "0" if u == 0 else f"v[{QA+4*pp}:{QA+4*pp+3}]"
                a(f"v_mfma_f32_16x16x32_bf16 v[{QA+4*pp}:{QA+4*pp+3}], v[{AO}:{AO+3}], v[{vWQ+4*u}:{vWQ+4*u+3}], {c}")
                a("s_nop 1")
        a(f"""
        v_lshrrev_b32 v{vT}, 1, v{vG}
        v_lshlrev_b32 v{vT}, 9, v{vT}
        v_lshl_add_u32 v{vT}, v{vN}, 5, v{vT}
        v_and_b32 v{vT+1}, 1, v{vG}
        v_lshl_add_u32 v{vT}, v{vT+1}, 4, v{vT}
        s_nop 7
        """)
        a(f"s_lshl_b32 s28, s{sWAVE}, 11\n s_add_u32 s28, s28, {L_WG}\n v_add_u32 v{vT}, s28, v{vT}")
        for pp in range(2):
            a(f"ds_write_b128 v{vT}, v[{QA+4*pp}:{QA+4*pp+3}] offset:{pp*1024}")
        a("s_waitcnt lgkmcnt(0)\n s_barrier")
        stamp(13)
        by_class(lambda: prefetch(a0, a0 + a1), lambda: prefetch(b0, b0 + b1))
        G0 = P
        a(f"""
        s_cmp_lg_u32 s{sWAVE}, 7
        s_cbranch_scc1 L_qwait
        v_lshlrev_b32 v{vT}, 4, v{vLANE}
        v_add_u32 v{vT+1}, {L_WG}, v{vT}
        """)
        for half in range(2):
            base = G0 + 8 if half == 0 else G0 + 8
            for w in range(8):
                dst = (G0 + 4*half) if w == 0 else (G0 + 8 + 4*(w-1))
                a(f"ds_read_b128 v[{dst}:{dst+3}], v{vT+1} offset:{2048*w + 1024*half}")
            a("s_waitcnt lgkmcnt(0)")
            for w in range(1, 8):
                for r in range(4):
                    a(f"v_add_f32 v{G0+4*half+r}, v{G0+4*half+r}, v{G0+8+4*(w-1)+r}")
        a(f"""
        s_lshl_b32 s28, s{sH}, 3
        s_add_u32 s28, s28, s{sJ}
        s_lshl_b32 s28, s28, 11
        s_add_u32 s28, s28, {WS_QP}
        """)
        addtag(a, range(G0, G0 + 8))
        a(f"""
        buffer_store_dwordx4 v[{G0}:{G0+3}], v{vT}, s[{sWS}:{sWS+3}], s28 offen sc1
        buffer_store_dwordx4 v[{G0+4}:{G0+7}], v{vT}, s[{sWS}:{sWS+3}], s28 offen offset:1024 sc1
        v_lshrrev_b32 v{vT+1}, 5, v{vLANE}
        v_lshlrev_b32 v{vT+1}, 11, v{vT+1}
        v_and_b32 v{vT+2}, 31, v{vLANE}
        v_lshl_add_u32 v{vT+1}, v{vT+2}, 4, v{vT+1}      ; jj*2048 + c4*16
        s_lshl_b32 s28, s{sH}, 14
        s_lshl_b32 s29, s{sB}, 9
        s_add_u32 s28, s28, s29
        s_add_u32 s28, s28, {WS_QP}
        s_add_u32 s29, s28, 4096
        s_add_u32 s30, s28, 8192
        s_add_u32 s31, s28, 12288
        s_nop 1
        """)
        G1 = P + 8
        poll_head(a, "L_qpoll")
        psleep()
        for i in range(4):
            a(f"buffer_load_dwordx4 v[{G1+4*i}:{G1+4*i+3}], v{vT+1}, s[{sWS}:{sWS+3}], s{28+i} offen sc1")
        a("s_waitcnt vmcnt(0)")
        if not no_q:
            tagcheck(a, list(range(G1, G1 + 16)), vT + 3, "L_qpoll")
        stamp(14)
        for r in range(4):
            a(f"v_add_f32 v{G1+r}, v{G1+r}, v{G1+4+r}")
            a(f"v_add_f32 v{G1+8+r}, v{G1+8+r}, v{G1+12+r}")
        for r in range(4):
            a(f"v_add_f32 v{G1+r}, v{G1+r}, v{G1+8+r}")
        xrow(a, [G1, G1+1, G1+2, G1+3], [G1+4, G1+5, G1+6, G1+7], only32=True)
        a(f"""
        v_cvt_pk_bf16_f32 v{G1+8}, v{G1}, v{G1+1}
        v_cvt_pk_bf16_f32 v{G1+9}, v{G1+2}, v{G1+3}
        v_lshlrev_b32 v{vT+2}, 3, v{vT+2}
        ds_write_b64 v{vT+2}, v[{G1+8}:{G1+9}] offset:{L_QB}
        """)
        a(f"""
        s_waitcnt lgkmcnt(0)
        L_qwait:
        s_barrier
        """)
        by_class(lambda: prefetch(a0 + a1, D), lambda: prefetch(b0 + b1, D), lambda: prefetch(0, D))
    a(f"v_lshlrev_b32 v{vT}, 4, v{vG}")
    a("L_bare:")
    for j in range(4):
        a(f"ds_read_b128 v[{vQ+4*j}:{vQ+4*j+3}], v{vT} offset:{L_QB + 64*j}")
    a(f"""
    v_mov_b32 v{vM}, 0xff800000
    v_mov_b32 v{vL}, 0
    v_mov_b32 v{vO}, 0
    v_mov_b32 v{vO+1}, 0
    v_mov_b32 v{vO+2}, 0
    v_mov_b32 v{vO+3}, 0
    s_mov_b32 s{sCNT}, s{sNT}
    s_waitcnt lgkmcnt(0)
    """)
    stamp(1)
    dbg_max(3)
    if stop == "q":
        a("s_branch L_fin")

    P = vP
    s0, s1, s2, s3 = vT, vT + 1, vT + 2, vT + 3
    u0, u1 = vT + 4, vT + 5
    mx, mt, al, nm = vT + 6, vT + 7, vT + 8, vT + 9
    pk = vT + 10
    Aop = vT + 14
    assert Aop % 2 == 0
    a("L_loop:")
    for s in range(D):
        kb = vSTG + 32 * s
        vb = kb + 16
        a(f"s_waitcnt vmcnt({8*(D-1)+4})")
        for j in range(4):
            c = "0" if j == 0 else f"v[{vS}:{vS+3}]"
            a(f"v_mfma_f32_16x16x32_bf16 v[{vS}:{vS+3}], v[{kb+4*j}:{kb+4*j+3}], v[{vQ+4*j}:{vQ+4*j+3}], {c}")
        nextoff()
        kloads(s)
        a("s_nop 3")
        if no_compute:
            a(f"s_waitcnt vmcnt({8*(D-1)+4})")
            vloads(s)
            a(f"""
            s_sub_u32 s{sCNT}, s{sCNT}, 1
            s_cmp_eq_u32 s{sCNT}, 0
            s_cbranch_scc1 L_loop_end
            """)
            continue
        a(f"""
        v_cvt_pk_bf16_f32 v{u0}, v{vS}, v{vS+1}
        v_cvt_pk_bf16_f32 v{u1}, v{vS+2}, v{vS+3}
        v_lshlrev_b32 v{s0}, 16, v{u0}
        v_and_b32 v{s1}, s{sHI}, v{u0}
        v_lshlrev_b32 v{s2}, 16, v{u1}
        v_and_b32 v{s3}, s{sHI}, v{u1}
        v_mul_f32 v{s0}, s{sSCALE}, v{s0}
        v_mul_f32 v{s1}, s{sSCALE}, v{s1}
        v_mul_f32 v{s2}, s{sSCALE}, v{s2}
        v_mul_f32 v{s3}, s{sSCALE}, v{s3}
        v_cvt_pk_bf16_f32 v{u0}, v{s0}, v{s1}
        v_cvt_pk_bf16_f32 v{u1}, v{s2}, v{s3}
        v_lshlrev_b32 v{s0}, 16, v{u0}
        v_and_b32 v{s1}, s{sHI}, v{u0}
        v_lshlrev_b32 v{s2}, 16, v{u1}
        v_and_b32 v{s3}, s{sHI}, v{u1}
        v_max3_f32 v{mx}, v{s0}, v{s1}, v{s2}
        v_max3_f32 v{mx}, v{mx}, v{s3}, v{vM}
        v_mov_b32 v{mt}, v{mx}
        s_nop 1
        v_permlane16_swap_b32 v{mx}, v{mt}
        s_nop 1
        v_max_f32 v{mx}, v{mx}, v{mt}
        v_mov_b32 v{mt}, v{mx}
        s_nop 1
        v_permlane32_swap_b32 v{mx}, v{mt}
        s_nop 1
        v_max_f32 v{mx}, v{mx}, v{mt}
        v_sub_f32 v{al}, v{vM}, v{mx}
        v_mul_f32 v{nm}, s{sL2E}, v{mx}
        v_mul_f32 v{al}, s{sL2E}, v{al}
        v_fma_f32 v{s0}, v{s0}, s{sL2E}, -v{nm}
        v_fma_f32 v{s1}, v{s1}, s{sL2E}, -v{nm}
        v_fma_f32 v{s2}, v{s2}, s{sL2E}, -v{nm}
        v_fma_f32 v{s3}, v{s3}, s{sL2E}, -v{nm}
        v_exp_f32 v{al}, v{al}
        v_exp_f32 v{s0}, v{s0}
        v_exp_f32 v{s1}, v{s1}
        v_exp_f32 v{s2}, v{s2}
        v_exp_f32 v{s3}, v{s3}
        v_mov_b32 v{vM}, v{mx}
        v_mul_f32 v{vO}, v{vO}, v{al}
        v_mul_f32 v{vO+1}, v{vO+1}, v{al}
        v_mul_f32 v{vO+2}, v{vO+2}, v{al}
        v_mul_f32 v{vO+3}, v{vO+3}, v{al}
        v_cvt_pk_bf16_f32 v{pk}, v{s0}, v{s0}
        v_cvt_pk_bf16_f32 v{pk+1}, v{s1}, v{s1}
        v_cvt_pk_bf16_f32 v{pk+2}, v{s2}, v{s2}
        v_cvt_pk_bf16_f32 v{pk+3}, v{s3}, v{s3}
        v_fma_f32 v{vL}, v{vL}, v{al}, v{s0}
        v_add_f32 v{s1}, v{s1}, v{s2}
        v_add_f32 v{vL}, v{vL}, v{s3}
        v_add_f32 v{vL}, v{vL}, v{s1}
        s_waitcnt vmcnt({8*(D-1)+4})
        """)
        for r in range(4):
            ao = Aop + 4 * (r & 1)
            for d in range(4):
                a(f"v_and_b32 v{ao+d}, v{pk+r}, v{vMASK+d}")
            a("s_nop 1")
            a(f"v_mfma_f32_16x16x32_bf16 v[{vO}:{vO+3}], v[{ao}:{ao+3}], v[{vb+4*r}:{vb+4*r+3}], v[{vO}:{vO+3}]")
        vloads(s)
        a(f"""
        s_sub_u32 s{sCNT}, s{sCNT}, 1
        s_cmp_eq_u32 s{sCNT}, 0
        s_cbranch_scc1 L_loop_end
        """)
    a("s_branch L_loop\n L_loop_end:")
    stamp(2)
    xrow(a, [vL], [vT])
    a(f"""
    s_nop 7
    v_lshlrev_b32 v{vT}, 5, v{vN}                 ; c*32
    v_and_b32 v{vT+1}, 1, v{vG}
    v_lshl_add_u32 v{vT}, v{vT+1}, 4, v{vT}       ; + (g&1)*16
    s_lshl_b32 s28, s{sWAVE}, 9
    v_add_u32 v{vT}, s28, v{vT}
    ds_write_b128 v{vT}, v[{vO}:{vO+3}] offset:{L_MRG}
    s_lshl_b32 s28, s{sWAVE}, 3
    v_mov_b32 v{vT+2}, s28
    v_mov_b32 v{vT+4}, v{vM}
    v_mov_b32 v{vT+5}, v{vL}
    ds_write_b64 v{vT+2}, v[{vT+4}:{vT+5}] offset:{L_ML}
    """)

    def slice_idx():
        a(f"""
        s_mov_b32 s29, s{sSLICE}
        v_lshrrev_b32 v{vT}, 2, v{vLANE}
        v_mul_u32_u24 v{vT}, 9216, v{vT}
        v_and_b32 v{vT+1}, 3, v{vLANE}
        v_lshl_add_u32 v{vT}, v{vT+1}, 4, v{vT}
        v_lshlrev_b32 v{vT+1}, 4, v{vLANE}
        """)

    def dma_mat(which, sq):
        cnt = 9
        if which in "gu":
            ptr, lds0 = (pWG, L_WG) if which == "g" else (pWU, L_WU)
            srd(a, sT, ptr, 576 * 9216)
            a(f"""
            s_mul_i32 s28, s{sq}, {cnt*16*9216}
            s_lshl_b32 s30, s29, 6
            s_add_u32 s28, s28, s30
            s_mul_i32 s31, s{sq}, {cnt*1024}
            """)
            for i in range(cnt):
                a(f"s_add_u32 m0, s31, {lds0 + i*1024}\n s_nop 0")
                a(f"buffer_load_dwordx4 v{vT}, s[{sT}:{sT+3}], s28 offen {wflags} lds")
                a(f"s_add_u32 s28, s28, {16*9216}")
        else:
            srd(a, sT, pWD, 4608 * 1152)
            a(f"""
            s_mul_i32 s28, s29, {32*1152}
            s_mul_i32 s31, s{sq}, {cnt*1024}
            s_add_u32 s28, s28, s31
            """)
            for i in range(cnt):
                a(f"s_add_u32 m0, s31, {L_WD + i*1024}\n s_nop 0")
                a(f"buffer_load_dwordx4 v{vT+1}, s[{sT}:{sT+3}], s28 offen {wflags} lds")
                a(f"s_add_u32 s28, s28, 1024")

    def wo_dma(groups, sq, sg=None):
        a(f"""
        s_mov_b32 s29, s{sIDX}
        s_mul_i32 s30, s29, 21846
        s_lshr_b32 s30, s30, 16            ; h'
        s_mul_i32 s31, s30, 3
        s_sub_u32 s31, s29, s31            ; c
        """)
        srd(a, sT, pWO, 4096 * 1152)
        for q in range(3):
            a(f"""
            v_add_u32 v{vT+3}, {64*q}, v{vLANE}
            v_mul_u32_u24 v{vT+4}, 2731, v{vT+3}
            v_lshrrev_b32 v{vT+4}, 16, v{vT+4}          ; row = l0/24
            v_mul_u32_u24 v{vT+5}, 24, v{vT+4}
            v_sub_u32 v{vT+5}, v{vT+3}, v{vT+5}         ; piece
            v_mul_u32_u24 v{vT+4}, 1152, v{vT+4}
            v_lshl_add_u32 v{vT+q}, v{vT+5}, 4, v{vT+4}
            """)
        a(f"s_lshl_b32 s4, s{sq}, 2")
        if sg is not None:
            a(f"s_add_u32 s4, s4, s{sg}")
        a(f"""
        s_lshl_b32 s28, s30, 7
        s_lshl_b32 s29, s4, 3
        s_add_u32 s28, s28, s29
        s_mul_i32 s28, s28, 1152
        s_mul_i32 s31, s31, 384
        s_add_u32 s28, s28, s31
        s_mul_i32 s31, s4, {3*1024}
        """)
        for grp in groups:
            a(f"s_add_u32 s5, s28, {grp*8*1152}")
            for q in range(3):
                a(f"s_add_u32 m0, s31, {L_WG + (grp*3+q)*1024}\n s_nop 0")
                a(f"buffer_load_dwordx4 v{vT+q}, s[{sT}:{sT+3}], s5 offen {wflags} lds")

    def weights_early():
        lab_wo, lab_done = a.label("L_wwo"), a.label("L_wdone")
        a(f"s_cmp_lg_u32 s{sROLE}, 0\n s_cbranch_scc1 {lab_wo}")
        if early:
            slice_idx()
            for m in early:
                dma_mat(m, sWAVE)
        a(f"s_branch {lab_done}")
        a(f"{lab_wo}:")
        a(f"s_cmp_eq_u32 s{sROLE}, 2\n s_cbranch_scc1 {lab_done}")
        if wo_e > 0:
            wo_dma(list(range(wo_e)), sWAVE)
        a(f"{lab_done}:")

    def weights_late():
        late = [m for m in "gud" if m not in early]
        if not late:
            return
        slice_idx()
        sQ = 73
        a(f"s_and_b32 s{sQ}, s{sWAVE}, 3")
        lo, hi = late[:(len(late) + 1) // 2], late[(len(late) + 1) // 2:]
        lh, le = a.label("L_lateh"), a.label("L_latee")
        a(f"s_cmp_ge_u32 s{sWAVE}, 4\n s_cbranch_scc1 {lh}")
        for m in lo:
            dma_mat(m, sQ)
        a(f"s_branch {le}\n {lh}:")
        for m in hi:
            dma_mat(m, sQ)
        a(f"{le}:")
        a("s_waitcnt vmcnt(0)\n s_barrier")

    a(f"s_cmp_ge_u32 s{sWAVE}, 4\n s_cbranch_scc1 L_now")
    a(f"""
    s_cmp_ge_u32 s{sWAVE}, 2
    s_cbranch_scc1 L_noxr
    s_cmp_eq_u32 s{sROLE}, 0
    s_cbranch_scc1 L_noxr
    s_mul_i32 s28, s{sWAVE}, 112
    s_add_u32 s28, s28, s{sIDX}
    s_cmp_ge_u32 s28, 144
    s_cbranch_scc1 L_noxr
    """)
    srd(a, sT, pX, 4608)
    a(f"""
    v_and_b32 v{vT}, 3, v{vLANE}
    v_lshlrev_b32 v{vT+1}, 1, v{vT}
    s_lshl_b32 s28, s28, 3
    """)
    for b in range(4):
        a(f"buffer_load_ushort v{160+b}, v{vT+1}, s[{sT}:{sT+3}], s28 offen offset:{1152*b} nt")
    a("L_noxr:")
    if not no_w:
        weights_early()
    if tlbw:
        lab = a.label("L_notlb")
        a(f"s_cmp_lg_u32 s{sWAVE}, 3\n s_cbranch_scc1 {lab}")
        tw = vT + 8
        a(f"v_lshlrev_b32 v{tw}, {tlbw}, v{vLANE}\n v_add_u32 v{tw}, 0x{(1 << tlbw) - 128:x}, v{tw}")
        n_ws = max(1, WS_STAMP // (64 << tlbw) + 1)
        for i in range(n_ws):
            a(f"s_mov_b32 s28, {i * (64 << tlbw)}")
            a(f"buffer_load_dword v{tw+1}, v{tw}, s[{sWS}:{sWS+3}], s28 offen")
        for (ptr, nbytes) in ((pWG, 576*9216), (pWU, 576*9216), (pWD, 4608*1152), (pOUT, 4608), (pX, 4608)):
            srd(a, sT, ptr, nbytes)
            n = max(1, (nbytes + (64 << tlbw) - 1) // (64 << tlbw))
            if nbytes < 65536:
                a(f"v_mov_b32 v{tw+2}, 0")
                a(f"buffer_load_dword v{tw+1}, v{tw+2}, s[{sT}:{sT+3}], 0 offen")
            else:
                for i in range(n):
                    a(f"s_mov_b32 s28, {i * (64 << tlbw)}")
                    a(f"buffer_load_dword v{tw+1}, v{tw}, s[{sT}:{sT+3}], s28 offen nt")
        a(f"{lab}:")
    if codepf:
        code_prefetch(4, "L_tail0", "L_code_end", vT + 8)
    if dry:
        a(f"""
        s_waitcnt vmcnt(0) lgkmcnt(0)
        s_mov_b32 s{sDRY}, 1
        s_mov_b32 s{sWS+2}, 0
        s_mov_b32 s{sOUTN}, 0
        s_branch L_tail_dry
        L_dry_done:
        s_mov_b32 s{sDRY}, 0
        s_mov_b32 s{sWS+2}, {WS_SIZE}
        s_mov_b32 s{sOUTN}, 4608
        s_mov_b64 exec, -1
        """)
    a("L_now:")
    a("L_tail0:")
    a("s_waitcnt vmcnt(0) lgkmcnt(0)\n s_barrier")
    a("L_tail_dry:")
    dbg_max(1)
    mark_tail = len(a.L)
    stamp(3)

    MO = P
    MM = P + 32
    a(f"s_cmp_lg_u32 s{sWAVE}, 0\n s_cbranch_scc1 L_nomerge")
    a(f"""
    v_and_b32 v{vT}, 31, v{vLANE}
    v_lshlrev_b32 v{vT}, 4, v{vT}
    v_mov_b32 v{vT+1}, 0
    """)
    for i in range(4):
        a(f"ds_read_b128 v[{MM+4*i}:{MM+4*i+3}], v{vT+1} offset:{L_ML + 16*i}")
    for w in range(8):
        a(f"ds_read_b128 v[{MO+4*w}:{MO+4*w+3}], v{vT} offset:{L_MRG + 512*w}")
    a("s_waitcnt lgkmcnt(8)")
    ms = [MM + 2 * w for w in range(8)]
    mstar = vT + 2
    a(f"v_max3_f32 v{mstar}, v{ms[0]}, v{ms[1]}, v{ms[2]}")
    a(f"v_max3_f32 v{mstar}, v{mstar}, v{ms[3]}, v{ms[4]}")
    a(f"v_max3_f32 v{mstar}, v{mstar}, v{ms[5]}, v{ms[6]}")
    a(f"v_max_f32 v{mstar}, v{mstar}, v{ms[7]}")
    for w in range(8):
        a(f"v_sub_f32 v{ms[w]}, v{ms[w]}, v{mstar}")
    for w in range(8):
        a(f"v_mul_f32 v{ms[w]}, s{sL2E}, v{ms[w]}")
    for w in range(8):
        a(f"v_exp_f32 v{ms[w]}, v{ms[w]}")
    Lt = vT + 3
    a(f"s_nop 0\n v_mul_f32 v{Lt}, v{ms[0]}, v{ms[0]+1}")
    for w in range(1, 8):
        a(f"v_fmac_f32 v{Lt}, v{ms[w]}, v{ms[w]+1}")
    a("s_waitcnt lgkmcnt(0)")
    R = vT + 6
    assert R % 2 == 0
    for r in range(4):
        a(f"v_mul_f32 v{R+r}, v{ms[0]}, v{MO+r}")
    for w in range(1, 8):
        for r in range(4):
            a(f"v_fmac_f32 v{R+r}, v{ms[w]}, v{MO+4*w+r}")
    a(f"""
    v_cmp_eq_u32 vcc, 32, v{vLANE}
    v_mov_b32 v{vT+4}, 0
    s_nop 0
    v_cndmask_b32 v{R}, v{R}, v{mstar}, vcc
    v_cndmask_b32 v{R+1}, v{R+1}, v{Lt}, vcc
    v_cndmask_b32 v{R+2}, v{R+2}, v{vT+4}, vcc
    v_cndmask_b32 v{R+3}, v{R+3}, v{vT+4}, vcc
    """)
    addtag(a, range(R, R + 4))
    a(f"""
    v_lshlrev_b32 v{vT}, 4, v{vLANE}
    s_mul_i32 s28, s{sW}, 640
    s_add_u32 s28, s28, {WS_AP}
    v_cmp_gt_u32 vcc, 33, v{vLANE}
    s_and_saveexec_b64 s[30:31], vcc
    buffer_store_dwordx4 v[{R}:{R+3}], v{vT}, s[{sWS}:{sWS+3}], s28 offen sc1
    s_mov_b64 exec, s[30:31]
    L_nomerge:
    """)
    stamp(4)
    if stop == "attn":
        a("s_branch L_fin")

    a(f"s_cmp_eq_u32 s{sROLE}, 0\n s_cbranch_scc1 L_stageB")
    a(f"s_cmp_eq_u32 s{sROLE}, 2\n s_cbranch_scc1 L_reduce")
    if wo_e < 4 and not no_w:
        rest = list(range(wo_e, 4))
        a(f"s_cmp_eq_u32 s{sDRY}, 1\n s_cbranch_scc1 L_wo_nolate")
        a(f"s_and_b32 s73, s{sWAVE}, 3")
        lo_, hi_ = rest[:(len(rest) + 1) // 2], rest[(len(rest) + 1) // 2:]
        a(f"s_cmp_ge_u32 s{sWAVE}, 4\n s_cbranch_scc1 L_wo_hi")
        wo_dma(lo_, 73)
        a("s_branch L_wo_lw\n L_wo_hi:")
        if hi_:
            wo_dma(hi_, 73)
        a("L_wo_lw:\n s_waitcnt vmcnt(0)\n s_barrier\n L_wo_nolate:")
    a(f"""
    s_mov_b32 s29, s{sIDX}
    s_mul_i32 s{sH}, s29, 21846
    s_lshr_b32 s{sH}, s{sH}, 16         ; h'
    s_mul_i32 s31, s{sH}, 3
    s_sub_u32 s{sJ}, s29, s31           ; c
    """)
    WB = 64
    a(f"""
    v_lshrrev_b32 v{vT}, 2, v{vN}                    ; r
    v_lshl_add_u32 v{vT}, v{vG}, 3, v{vT}            ; 8g + r
    v_mul_u32_u24 v{vT}, 384, v{vT}
    v_and_b32 v{vT+1}, 3, v{vLANE}
    v_lshl_add_u32 v{vT}, v{vT+1}, 3, v{vT}          ; + cc*8
    s_lshl_b32 s28, s{sWAVE}, 5
    s_add_u32 s28, s28, {L_WG}
    v_add_u32 v{vT}, s28, v{vT}                      ; + T*32 + base
    """)
    for ks in range(4):
        a(f"ds_read_b64_tr_b16 v[{WB+4*ks}:{WB+4*ks+1}], v{vT} offset:{ks*32*384}")
        a(f"ds_read_b64_tr_b16 v[{WB+4*ks+2}:{WB+4*ks+3}], v{vT} offset:{ks*32*384 + 4*384}")
    a(f"s_cmp_ge_u32 s{sWAVE}, 4\n s_cbranch_scc1 L_wo_gather_skip")
    a("s_waitcnt lgkmcnt(0)")
    for ks in range(4):
        a(f"ds_read_b64_tr_b16 v[{WB+16+4*ks}:{WB+16+4*ks+1}], v{vT} offset:{ks*32*384 + 256}")
        a(f"ds_read_b64_tr_b16 v[{WB+16+4*ks+2}:{WB+16+4*ks+3}], v{vT} offset:{ks*32*384 + 4*384 + 256}")
    GA = P
    a(f"""
    v_lshrrev_b32 v{vT+1}, 5, v{vLANE}               ; s
    v_mul_u32_u24 v{vT+2}, {640*8 if xmap else 640}, v{vT+1}
    v_and_b32 v{vT+3}, 31, v{vLANE}                  ; c4
    v_lshl_add_u32 v{vT+4}, v{vT+3}, 4, v{vT+2}      ; s*stride + c4*16
    v_add_u32 v{vT+5}, 512, v{vT+2}                  ; s*stride + 512
    """)
    if xmap:
        a(f"""
        s_and_b32 s28, s{sH}, 7
        s_lshl_b32 s29, s{sWAVE}, 4
        s_add_u32 s28, s28, s29
        s_lshr_b32 s29, s{sH}, 3
        s_lshl_b32 s29, s29, 6
        s_add_u32 s28, s28, s29
        """)
    else:
        a(f"""
        s_lshl_b32 s28, s{sWAVE}, 6
        s_lshl_b32 s29, s{sH}, 1
        s_add_u32 s28, s28, s29
        """)
    a(f"""
    s_mul_i32 s28, s28, 640
    s_add_u32 s28, s28, {WS_AP}
    """)
    GAs = [96 + 8 * k for k in range(3)]
    def ap_issue(k):
        a(f"buffer_load_dwordx4 v[{GAs[k]}:{GAs[k]+3}], v{vT+4}, s[{sWS}:{sWS+3}], s28 offen sc1")
        a(f"buffer_load_dwordx4 v[{GAs[k]+4}:{GAs[k]+7}], v{vT+5}, s[{sWS}:{sWS+3}], s28 offen sc1")
    def ap_consume(k):
        for r in range(6):
            a(f"v_mov_b32 v{GA+r}, v{GAs[k]+r}")
    ppoll(a, "L_apoll", ns[0], 2, ap_issue, lambda k: list(range(GAs[k], GAs[k] + 8)), vT + 6, ap_consume, pollsleep, stg)
    tstamp(9)
    mm, ll = GA + 4, GA + 5
    a(f"""
    v_and_b32 v{mm}, s{sHI}, v{mm}
    v_mov_b32 v{vT+6}, v{mm}
    v_mov_b32 v{vT+7}, v{mm}
    s_nop 1
    v_permlane32_swap_b32 v{vT+6}, v{vT+7}
    s_nop 1
    v_max_f32 v{vT+6}, v{vT+6}, v{vT+7}             ; m*
    v_sub_f32 v{mm}, v{mm}, v{vT+6}
    v_mul_f32 v{mm}, s{sL2E}, v{mm}
    v_exp_f32 v{mm}, v{mm}                           ; a
    s_nop 0
    v_mul_f32 v{ll}, v{ll}, v{mm}
    v_mul_f32 v{GA}, v{GA}, v{mm}
    v_mul_f32 v{GA+1}, v{GA+1}, v{mm}
    v_mul_f32 v{GA+2}, v{GA+2}, v{mm}
    v_mul_f32 v{GA+3}, v{GA+3}, v{mm}
    """)
    xrow(a, [GA, GA+1, GA+2, GA+3, ll], [GA+8, GA+9, GA+10, GA+11, GA+12], only32=True)
    a(f"v_rcp_f32 v{vT+6}, v{ll}\n s_nop 0")
    for r in range(4):
        fdiv(a, GA + 8 + r, GA + r, vT + 6, ll, vT + 7)
    a(f"""
    v_cvt_pk_bf16_f32 v{GA+12}, v{GA+8}, v{GA+9}
    v_cvt_pk_bf16_f32 v{GA+13}, v{GA+10}, v{GA+11}
    v_lshlrev_b32 v{vT+3}, 3, v{vT+3}
    s_lshl_b32 s28, s{sWAVE}, 8
    v_add_u32 v{vT+3}, s28, v{vT+3}
    ds_write_b64 v{vT+3}, v[{GA+12}:{GA+13}] offset:{L_OB}
    L_wo_gather_skip:
    s_waitcnt lgkmcnt(0)
    s_barrier
    """)
    AOP = P + 16
    a(f"""
    v_and_b32 v{vT}, 3, v{vN}
    v_lshlrev_b32 v{vT}, 8, v{vT}
    v_lshl_add_u32 v{vT}, v{vG}, 4, v{vT}           ; (m&3)*256 + g*16
    """)
    for ks in range(4):
        a(f"ds_read_b128 v[{AOP+4*ks}:{AOP+4*ks+3}], v{vT} offset:{L_OB + 64*ks}")
    YD = P + 32
    a("s_waitcnt lgkmcnt(0)")
    for ks in range(4):
        c = "0" if ks == 0 else f"v[{YD}:{YD+3}]"
        a(f"v_mfma_f32_16x16x32_bf16 v[{YD}:{YD+3}], v[{AOP+4*ks}:{AOP+4*ks+3}], v[{WB+4*ks}:{WB+4*ks+3}], {c}")
    a(f"s_cmp_ge_u32 s{sWAVE}, 4\n s_cbranch_scc1 L_wo_one")
    for ks in range(4):
        c = "0" if ks == 0 else f"v[{YD+4}:{YD+7}]"
        a(f"v_mfma_f32_16x16x32_bf16 v[{YD+4}:{YD+7}], v[{AOP+4*ks}:{AOP+4*ks+3}], v[{WB+16+4*ks}:{WB+16+4*ks+3}], {c}")
    a("L_wo_one:")
    if cmajY:
        a(f"""
        s_mul_i32 s28, s{sJ}, 48
        s_lshl_b32 s29, s{sWAVE}, 2
        s_add_u32 s28, s28, s29
        s_lshl_b32 s28, s28, 11
        s_lshl_b32 s29, s{sH}, 6
        s_add_u32 s28, s28, s29
        s_add_u32 s28, s28, {WS_Y}
        s_add_u32 s30, s28, {32*2048}
        v_lshrrev_b32 v{vT}, 2, v{vN}
        v_lshlrev_b32 v{vT}, 11, v{vT}
        v_and_b32 v{vT+1}, 3, v{vN}
        v_lshl_add_u32 v{vT}, v{vT+1}, 4, v{vT}
        s_nop 6
        """)
    else:
        a(f"""
        s_mul_i32 s28, s{sH}, 9216
        s_mul_i32 s29, s{sJ}, {192*16}
        s_add_u32 s28, s28, s29
        s_lshl_b32 s29, s{sWAVE}, 8
        s_add_u32 s28, s28, s29
        s_add_u32 s28, s28, {WS_Y}
        s_add_u32 s30, s28, 2048
        v_lshlrev_b32 v{vT}, 4, v{vN}
        s_nop 7
        """)
    addtag(a, range(YD, YD + 4))
    a(f"""
    s_mov_b64 exec, 0xffff
    buffer_store_dwordx4 v[{YD}:{YD+3}], v{vT}, s[{sWS}:{sWS+3}], s28 offen sc1
    s_mov_b64 exec, -1
    s_cmp_ge_u32 s{sWAVE}, 4
    s_cbranch_scc1 L_reduce
    """)
    addtag(a, range(YD + 4, YD + 8))
    a(f"""
    s_mov_b64 exec, 0xffff
    buffer_store_dwordx4 v[{YD+4}:{YD+7}], v{vT}, s[{sWS}:{sWS+3}], s30 offen sc1
    s_mov_b64 exec, -1
    """)
    a("L_reduce:")
    tstamp(10)
    sTASK = 72
    a(f"""
    s_mov_b32 s{sTASK}, s{sIDX}
    s_mul_i32 s28, s{sWAVE}, 112
    s_add_u32 s{sTASK}, s{sTASK}, s28
    s_cmp_ge_u32 s{sTASK}, 144
    s_cbranch_scc1 L_fin
    s_cmp_ge_u32 s{sWAVE}, 2
    s_cbranch_scc1 L_fin
    """)
    XR = 160
    a(f"""
    v_and_b32 v{vT}, 3, v{vLANE}                     ; col
    v_lshlrev_b32 v{vT+1}, 1, v{vT}
    v_lshrrev_b32 v{vT+2}, 2, v{vLANE}               ; hh
    v_mul_u32_u24 v{vT+2}, 9216, v{vT+2}
    v_lshl_add_u32 v{vT+2}, v{vT}, 4, v{vT+2}
    v_lshlrev_b32 v{vT+5}, 4, v{vLANE}               ; lane*16
    """)
    vY = vT + 5 if cmajY else vT + 2
    vZ = vT + 5 if cmajZ else vT + 2
    if cmajY:
        a(f"s_lshl_b32 s28, s{sTASK}, 11\n s_add_u32 s28, s28, {WS_Y}\n s_add_u32 s29, s28, 1024")
    else:
        a(f"s_lshl_b32 s28, s{sTASK}, 6\n s_add_u32 s28, s28, {WS_Y}\n s_add_u32 s29, s28, {16*9216}")
    YG = P + 4
    YGs = [P + 60 + 8 * k for k in range(3)]
    def y_issue(k):
        a(f"buffer_load_dwordx4 v[{YGs[k]}:{YGs[k]+3}], v{vY}, s[{sWS}:{sWS+3}], s28 offen sc1")
        a(f"buffer_load_dwordx4 v[{YGs[k]+4}:{YGs[k]+7}], v{vY}, s[{sWS}:{sWS+3}], s29 offen sc1")
    def y_consume(k):
        for r in range(4):
            a(f"v_add_f32 v{YG+r}, v{YGs[k]+r}, v{YGs[k]+4+r}")
    ppoll(a, "L_ypoll", ns[1], 2, y_issue, lambda k: list(range(YGs[k], YGs[k] + 8)), vT + 3, y_consume, pollsleep, stg,
          probe=((lambda: a(f"buffer_load_dword v{YGs[0]}, v{vY}, s[{sWS}:{sWS+3}], s28 offen sc1")), YGs[0], "1") if probe[1] else None, presleep=presl[1])
    tstamp(11)
    if canB:
        a(f"""
        s_lshl_b32 s30, s{sTASK}, 7
        s_add_u32 s30, s30, {WS_CANB}
        v_mov_b32 v{vT+4}, 0
        s_mov_b64 exec, 1
        buffer_store_dword v{vTAG}, v{vT+4}, s[{sWS}:{sWS+3}], s30 offen sc1
        s_mov_b64 exec, -1
        """)
    hs = [YG, YG + 1, YG + 2, YG + 3]
    row16(a, hs, ctrls=("row_ror:4", "row_ror:8"))
    xrow(a, hs, [YG + 4, YG + 5, YG + 6, YG + 7])
    rbf(a, [(YG, YG+1), (YG+2, YG+3)], [YG+4, YG+5])
    for b in range(4):
        a(f"v_lshlrev_b32 v{XR+b}, 16, v{XR+b}")
        a(f"v_add_f32 v{YG+b}, v{YG+b}, v{XR+b}")
    rbf(a, [(YG, YG+1), (YG+2, YG+3)], [YG+4, YG+5])
    HK = P + 16
    for b in range(4):
        a(f"v_mov_b32 v{HK+b}, v{YG+b}")
    addtag(a, hs)
    a(f"""
    s_lshl_b32 s28, s{sTASK}, 6
    s_add_u32 s28, s28, {WS_HB}
    v_lshlrev_b32 v{vT+3}, 4, v{vT}
    s_mov_b64 exec, 0xf
    buffer_store_dwordx4 v[{YG}:{YG+3}], v{vT+3}, s[{sWS}:{sWS+3}], s28 offen sc1
    s_mov_b64 exec, -1
    """)
    stamp(7)
    ZG = P + 20
    ZGs = [64, 100, 136]
    sPZ = 73
    ZS = [4, 5, 6, 7, 62, 63, 66, 67, 71]
    if cmajZ:
        a(f"s_mul_i32 s28, s{sTASK}, 9216\n s_add_u32 s28, s28, {WS_Z}")
        a(f"s_lshl_b32 s{sPZ}, s{sTASK}, 6\n s_add_u32 s{sPZ}, s{sPZ}, s28")
        for i in range(9):
            a(f"s_add_u32 s{ZS[i]}, s28, {i*1024}")
    else:
        a(f"s_lshl_b32 s28, s{sTASK}, 6\n s_add_u32 s28, s28, {WS_Z}")
        if canC:
            a(f"s_lshl_b32 s{sPZ}, s{sTASK}, 7\n s_add_u32 s{sPZ}, s{sPZ}, {WS_CANC}")
        else:
            a(f"s_mul_i32 s{sPZ}, s{sTASK}, 9216\n s_add_u32 s{sPZ}, s{sPZ}, s28")
        for i in range(9):
            a(f"s_add_u32 s{ZS[i]}, s28, {i*16*9216}")
    def z_issue(k):
        for i in range(9):
            a(f"buffer_load_dwordx4 v[{ZGs[k]+4*i}:{ZGs[k]+4*i+3}], v{vZ}, s[{sWS}:{sWS+3}], s{ZS[i]} offen sc1")
    def z_consume(k):
        z = ZGs[k]
        for (x, y) in ((0, 1), (2, 3), (4, 5), (6, 7), (0, 2), (4, 6), (0, 4)):
            for r in range(0, 4, 2):
                a(f"v_pk_add_f32 v[{z+4*x+r}:{z+4*x+r+1}], v[{z+4*x+r}:{z+4*x+r+1}], v[{z+4*y+r}:{z+4*y+r+1}]")
        for r in range(0, 4, 2):
            a(f"v_pk_add_f32 v[{ZG+r}:{ZG+r+1}], v[{z+r}:{z+r+1}], v[{z+32+r}:{z+32+r+1}]")
    ppoll(a, "L_zpoll", ns[3], 9, z_issue, lambda k: list(range(ZGs[k], ZGs[k] + 36)), vT + 3, z_consume, pollsleep, stg,
          probe=((lambda: a(f"buffer_load_dword v{ZGs[0]}, v{vZ}, s[{sWS}:{sWS+3}], s{sPZ} offen sc1")), ZGs[0], "1") if probe[3] else None, presleep=presl[3])
    tstamp(12)
    zs = [ZG, ZG + 1, ZG + 2, ZG + 3]
    row16(a, zs, ctrls=("row_ror:4", "row_ror:8"))
    xrow(a, zs, [ZG + 4, ZG + 5, ZG + 6, ZG + 7])
    rbf(a, [(ZG, ZG+1), (ZG+2, ZG+3)], [ZG+4, ZG+5])
    for b in range(4):
        a(f"v_add_f32 v{ZG+b}, v{ZG+b}, v{HK+b}")
    a(f"v_cvt_pk_bf16_f32 v{ZG+4}, v{ZG}, v{ZG+1}")
    a(f"v_cvt_pk_bf16_f32 v{ZG+5}, v{ZG+2}, v{ZG+3}")
    srd(a, sT, pOUT, f"s{sOUTN}")
    a(f"""
    s_lshl_b32 s28, s{sTASK}, 3
    s_mov_b64 exec, 0xf
    buffer_store_short v{ZG+4}, v{vT+1}, s[{sT}:{sT+3}], s28 offen {outfl}
    buffer_store_short_d16_hi v{ZG+4}, v{vT+1}, s[{sT}:{sT+3}], s28 offen offset:1152 {outfl}
    buffer_store_short v{ZG+5}, v{vT+1}, s[{sT}:{sT+3}], s28 offen offset:2304 {outfl}
    buffer_store_short_d16_hi v{ZG+5}, v{vT+1}, s[{sT}:{sT+3}], s28 offen offset:3456 {outfl}
    s_mov_b64 exec, -1
    s_cmp_lg_u32 s{sTASK}, 0
    s_cbranch_scc1 L_fin
    v_mov_b32 v{ZG+6}, s{sE}
    v_mov_b32 v{ZG+7}, 0
    s_mov_b64 exec, 1
    buffer_store_dword v{ZG+6}, v{ZG+7}, s[{sWS}:{sWS+3}], 0 offen sc1
    s_mov_b64 exec, -1
    s_branch L_fin
    """)

    a("L_stageB:")
    if gate == 'pair' or isinstance(gate, int) and not isinstance(gate, bool) and gate > 0:
        ns_ = 0 if gate == 'pair' else gate
        a(f"s_cmp_lg_u32 s{sWAVE}, 1\n s_cbranch_scc1 L_gate_done")
        a(f"""
        s_andn2_b32 s29, s{sW}, {16 if rmap else 8}
        v_mul_u32_u24 v{vT}, 37, v{vLANE}
        v_add_u32 v{vT}, s29, v{vT}
        v_and_b32 v{vT}, 255, v{vT}
        s_xor_b32 s28, s{sW}, {16 if rmap else 8}
        v_mov_b32 v{vT+1}, s28
        v_cmp_eq_u32 vcc, {ns_}, v{vLANE}
        s_mov_b32 s28, {WS_AP + 512}
        s_nop 0
        v_cndmask_b32 v{vT}, v{vT}, v{vT+1}, vcc
        v_mul_u32_u24 v{vT}, 640, v{vT}
        s_cmp_eq_u32 s{sDRY}, 1
        s_cbranch_scc1 L_gate_done
        s_mov_b64 exec, {hex((1 << (ns_ + 1)) - 1)}
        """)
        poll_head(a, "L_gpoll")
        if gsleep:
            a(f"s_sleep {gsleep}")
        a(f"buffer_load_dword v{vT+2}, v{vT}, s[{sWS}:{sWS+3}], s28 offen sc1")
        a("s_waitcnt vmcnt(0)")
        tagcheck(a, [vT+2], vT + 6, "L_gpoll")
        a("s_mov_b64 exec, -1")
        a("L_gate_done:\n s_barrier")
    elif gate:
        a(f"s_cmp_lg_u32 s{sWAVE}, 1\n s_cbranch_scc1 L_gate_done")
        a(f"""
        v_mul_u32_u24 v{vT}, 640, v{vLANE}
        s_mov_b32 s28, {WS_AP + 512}
        s_mov_b32 s29, {WS_AP + 512 + 64*640}
        s_mov_b32 s30, {WS_AP + 512 + 128*640}
        s_mov_b32 s31, {WS_AP + 512 + 192*640}
        """)
        poll_head(a, "L_gpoll")
        for i in range(4):
            a(f"buffer_load_dword v{vT+2+i}, v{vT}, s[{sWS}:{sWS+3}], s{28+i} offen sc1")
        a("s_waitcnt vmcnt(0)")
        tagcheck(a, [vT+2, vT+3, vT+4, vT+5], vT + 6, "L_gpoll")
        a("L_gate_done:\n s_barrier")
    a(f"""
    s_cmp_lg_u32 s{sWAVE}, 7
    s_cbranch_scc1 L_noones
    v_mov_b32 v{P}, 0x3f803f80
    v_mov_b32 v{P+1}, 0x3f803f80
    v_mov_b32 v{P+2}, 0x3f803f80
    v_mov_b32 v{P+3}, 0x3f803f80
    v_lshlrev_b32 v{vT}, 4, v{vLANE}
    ds_write_b128 v{vT}, v[{P}:{P+3}] offset:{L_HB + 4*1152}
    s_mov_b64 exec, 0xff
    ds_write_b128 v{vT}, v[{P}:{P+3}] offset:{L_HB + 4*1152 + 1024}
    s_mov_b64 exec, -1
    L_noones:
    """)
    BB = 64
    WDd = 100
    AB = P
    aH, aA, aG, aR, aF1, aF2, aF3, aW = (vT + 4 + i for i in range(8))
    aP = vT + 12
    aBB, aWD = vT + 14, vT + 15
    if bdec:
        late = [m for m in "gud" if m not in early]
        if not no_w and late:
            a(f"s_cmp_lt_u32 s{sWAVE}, 4\n s_cbranch_scc1 L_b_noload")
            a(f"s_cmp_eq_u32 s{sDRY}, 1\n s_cbranch_scc1 L_b_noload")
            slice_idx()
            a(f"s_and_b32 s73, s{sWAVE}, 3")
            for m in late:
                if wd_after and m == "d":
                    continue
                dma_mat(m, 73)
            a("L_b_noload:")
        a(f"""
        v_lshrrev_b32 v{vT}, 2, v{vN}
        v_lshl_add_u32 v{vT}, v{vG}, 3, v{vT}            ; 8g + r
        v_and_b32 v{vT+1}, 3, v{vLANE}                   ; cc
        v_lshlrev_b32 v{aBB}, 6, v{vT}
        v_lshl_add_u32 v{aBB}, v{vT+1}, 3, v{aBB}        ; (8g+r)*64 + cc*8
        s_and_b32 s28, s{sWAVE}, 1
        s_lshl_b32 s28, s28, 5                           ; t*32
        s_bfe_u32 s29, s{sWAVE}, 0x10001
        s_mul_i32 s29, s29, {L_WU - L_WG}
        s_add_u32 s28, s28, s29
        s_add_u32 s28, s28, {L_WG}
        s_lshr_b32 s29, s{sWAVE}, 2
        s_mul_i32 s29, s29, {9*2048}
        s_add_u32 s28, s28, s29
        v_add_u32 v{aBB}, s28, v{aBB}
        v_mul_u32_u24 v{aWD}, 1152, v{vT}
        v_lshl_add_u32 v{aWD}, v{vT+1}, 3, v{aWD}
        s_lshl_b32 s28, s{sWAVE}, {7 if zpack else 5}
        s_add_u32 s28, s28, {L_WD}
        v_add_u32 v{aWD}, s28, v{aWD}
        s_lshl_b32 s28, s{sWAVE}, 8
        v_lshlrev_b32 v{aH}, 1, v{vLANE}
        v_add_u32 v{aH}, s28, v{aH}
        v_and_b32 v{aA}, 3, v{vN}
        v_cmp_eq_u32 vcc, 4, v{vN}
        v_mov_b32 v{aG}, 4
        s_lshr_b32 s28, s{sWAVE}, 2
        v_cndmask_b32 v{aA}, v{aA}, v{aG}, vcc           ; row(m)
        v_mul_u32_u24 v{aA}, 1152, v{aA}
        s_mul_i32 s28, s28, {9*64}
        v_lshl_add_u32 v{aA}, v{vG}, 4, v{aA}
        v_add_u32 v{aA}, s28, v{aA}
        s_lshl_b32 s28, s{sWAVE}, 10
        v_lshlrev_b32 v{aG}, 4, v{vLANE}
        v_add_u32 v{aG}, s28, v{aG}
        s_lshl_b32 s28, s{sWAVE}, 8
        v_lshlrev_b32 v{aR}, 4, v{vN}
        v_add_u32 v{aR}, s28, v{aR}                      ; wave*256 + n*16
        v_lshrrev_b32 v{aW}, 2, v{vLANE}                 ; f'
        v_and_b32 v{aF3}, 3, v{vLANE}                    ; b
        s_lshl_b32 s28, s{sWAVE}, 10
        v_lshlrev_b32 v{aF2}, 4, v{aW}
        v_add_u32 v{aF2}, s28, v{aF2}                    ; tile*1024 + f'*16
        v_lshl_add_u32 v{aF1}, v{aF3}, 2, v{aF2}         ; + b*4
        s_lshl_b32 s28, s{sWAVE}, 5
        v_lshlrev_b32 v{aW}, 1, v{aW}
        v_add_u32 v{aW}, s28, v{aW}                      ; (tile*16 + f')*2
        v_lshl_add_u32 v{aW}, v{aF3}, 6, v{aW}           ; + b*64
        v_lshlrev_b32 v{vT}, 4, v{aF3}                   ; b*16
        v_mov_b32 v{vT+1}, 64
        v_and_b32 v{vT+2}, 4, v{vLANE}
        v_cmp_ne_u32 vcc, 0, v{vT+2}
        v_lshrrev_b32 v{vT+2}, 3, v{vLANE}
        v_lshlrev_b32 v{vT+2}, 8, v{vT+2}                ; (l>>3)*256
        v_cndmask_b32 v{vT}, v{vT}, v{vT+1}, vcc
        v_lshl_add_u32 v{aF3}, v{aF3}, 2, v{vT}
        v_add_u32 v{aF3}, v{aF3}, v{vT+2}
        s_mov_b32 s64, 0xf0f0f0f0
        s_mov_b32 s65, 0xf0f0f0f0
        v_lshlrev_b32 v{aP}, 4, v{vLANE}
        """)
        def bb_reads():
            for ks in range(9):
                a(f"ds_read_b64_tr_b16 v[{BB+4*ks}:{BB+4*ks+1}], v{aBB} offset:{ks*2048}")
                a(f"ds_read_b64_tr_b16 v[{BB+4*ks+2}:{BB+4*ks+3}], v{aBB} offset:{ks*2048+256}")
                if ks == 5:
                    a("s_waitcnt lgkmcnt(0)")
        pre_gate = "g" in early
        if pre_gate:
            a(f"s_bitcmp1_b32 s{sWAVE}, 1\n s_cbranch_scc1 L_b_nopre")
            bb_reads()
            a("L_b_nopre:")
        a(f"s_cmp_ge_u32 s{sWAVE}, 4\n s_cbranch_scc1 L_b_loadwait")
        HGs = [P + 48, P + 60, P + 72]
        a(f"""
        s_lshl_b32 s28, s{sWAVE}, 11
        s_add_u32 s28, s28, {WS_HB}
        s_add_u32 s29, s28, 1024
        s_mov_b32 s31, {WS_HB + 8192}
        """)
        for k in range(ns[2]):
            for r in range(4):
                a(f"v_mov_b32 v{HGs[k]+8+r}, v{vTAG}")
        def h_issue(k, third):
            a(f"buffer_load_dwordx4 v[{HGs[k]}:{HGs[k]+3}], v{aP}, s[{sWS}:{sWS+3}], s28 offen sc1")
            a(f"buffer_load_dwordx4 v[{HGs[k]+4}:{HGs[k]+7}], v{aP}, s[{sWS}:{sWS+3}], s29 offen sc1")
            if third:
                a(f"buffer_load_dwordx4 v[{HGs[k]+8}:{HGs[k]+11}], v{aP}, s[{sWS}:{sWS+3}], s31 offen sc1")
        def h_consume(k, third):
            for b in range(4):
                a(f"ds_write_b16_d16_hi v{aH}, v{HGs[k]+b} offset:{L_HB + 1152*b}")
                a(f"ds_write_b16_d16_hi v{aH}, v{HGs[k]+4+b} offset:{L_HB + 1152*b + 128}")
            if third:
                for b in range(4):
                    a(f"ds_write_b16_d16_hi v{aH}, v{HGs[k]+8+b} offset:{L_HB + 1152*b + 1024}")
        hp = ((lambda: a(f"buffer_load_dword v{HGs[0]}, v{aP}, s[{sWS}:{sWS+3}], s28 offen sc1")), HGs[0], "1") if probe[2] else None
        a(f"s_cmp_lg_u32 s{sWAVE}, 0\n s_cbranch_scc1 L_h1")
        ppoll(a, "L_hpoll2", ns[2], 3, lambda k: h_issue(k, True), lambda k: list(range(HGs[k], HGs[k] + 12)), vT + 13,
              lambda k: h_consume(k, True), pollsleep, stg, probe=hp, presleep=presl[2])
        a("s_branch L_h2\n L_h1:")
        ppoll(a, "L_hpoll1", ns[2], 2, lambda k: h_issue(k, False), lambda k: list(range(HGs[k], HGs[k] + 8)), vT + 13,
              lambda k: h_consume(k, False), pollsleep, stg, probe=hp, presleep=presl[2])
        a("s_branch L_h2")
        a("L_b_loadwait:\n s_waitcnt vmcnt(0)")
        if wd_after and "d" in late and not no_w:
            a(f"s_cmp_eq_u32 s{sDRY}, 1\n s_cbranch_scc1 L_b_nod")
            slice_idx()
            a(f"s_and_b32 s73, s{sWAVE}, 3")
            dma_mat("d", 73)
            a("L_b_nod:")
        stamp(15)
        a("L_h2:")
        stamp(5)
        a("s_waitcnt lgkmcnt(0)\n s_barrier")
        GD = P + 40
        def mm(ks):
            c = "0" if ks == 0 else f"v[{GD}:{GD+3}]"
            a(f"v_mfma_f32_16x16x32_bf16 v[{GD}:{GD+3}], v[{AB+4*ks}:{AB+4*ks+3}], v[{BB+4*ks}:{BB+4*ks+3}], {c}")
        def a_read(ks):
            a(f"ds_read_b128 v[{AB+4*ks}:{AB+4*ks+3}], v{aA} offset:{L_HB + 64*ks}")
        if pre_gate:
            a(f"s_bitcmp1_b32 s{sWAVE}, 1\n s_cbranch_scc1 L_b_full")
            for ks in range(9):
                a_read(ks)
            for ks in range(9):
                a(f"s_waitcnt lgkmcnt({8-ks})")
                mm(ks)
            a("s_branch L_b_mmdone\n L_b_full:")
        def trip(ks):
            a(f"ds_read_b64_tr_b16 v[{BB+4*ks}:{BB+4*ks+1}], v{aBB} offset:{ks*2048}")
            a(f"ds_read_b64_tr_b16 v[{BB+4*ks+2}:{BB+4*ks+3}], v{aBB} offset:{ks*2048+256}")
            a_read(ks)
        for ks in range(4):
            trip(ks)
        for ks in range(9):
            a(f"s_waitcnt lgkmcnt({3 * (min(ks + 3, 8) - ks)})")
            mm(ks)
            if ks + 4 <= 8:
                trip(ks + 4)
        a("L_b_mmdone:")
        def wd_read(i):
            if zpack and i == 4:
                a(f"s_mul_i32 s28, s{sWAVE}, 96\n s_sub_u32 s28, 1024, s28\n v_add_u32 v{vT+16}, s28, v{aWD}")
                a(f"ds_read_b64_tr_b16 v[{WDd+16}:{WDd+17}], v{vT+16} offset:0")
                a(f"ds_read_b64_tr_b16 v[{WDd+18}:{WDd+19}], v{vT+16} offset:{4*1152}")
                return
            st_ = 32 if zpack else 256
            a(f"ds_read_b64_tr_b16 v[{WDd+4*i}:{WDd+4*i+1}], v{aWD} offset:{i*st_}")
            a(f"ds_read_b64_tr_b16 v[{WDd+4*i+2}:{WDd+4*i+3}], v{aWD} offset:{i*st_ + 4*1152}")
        for i in range(5 if not wd_after else 0):
            if i == 4:
                a(f"s_cmp_ge_u32 s{sWAVE}, 4\n s_cbranch_scc1 L_no5th")
            wd_read(i)
        if not wd_after:
            a("L_no5th:")
    else:
        if not no_w:
            a(f"s_cmp_eq_u32 s{sDRY}, 1\n s_cbranch_scc1 L_skip_late")
            weights_late()
            a("L_skip_late:")
        stamp(15)
        BB = 64
        WDd = 100
        a(f"""
        v_lshrrev_b32 v{vT}, 2, v{vN}
        v_lshl_add_u32 v{vT}, v{vG}, 3, v{vT}            ; 8g + r
        v_and_b32 v{vT+1}, 3, v{vLANE}                   ; cc
        v_lshlrev_b32 v{vT+2}, 6, v{vT}
        v_lshl_add_u32 v{vT+2}, v{vT+1}, 3, v{vT+2}      ; (8g+r)*64 + cc*8
        s_and_b32 s28, s{sWAVE}, 1
        s_lshl_b32 s28, s28, 5                           ; t*32
        s_bfe_u32 s29, s{sWAVE}, 0x10001
        s_mul_i32 s29, s29, {L_WU - L_WG}
        s_add_u32 s28, s28, s29
        s_add_u32 s28, s28, {L_WG}
        s_lshr_b32 s29, s{sWAVE}, 2
        s_mul_i32 s29, s29, {9*2048}
        s_add_u32 s28, s28, s29
        v_add_u32 v{vT+2}, s28, v{vT+2}
        """)
        for ks in range(9):
            a(f"ds_read_b64_tr_b16 v[{BB+4*ks}:{BB+4*ks+1}], v{vT+2} offset:{ks*2048}")
            a(f"ds_read_b64_tr_b16 v[{BB+4*ks+2}:{BB+4*ks+3}], v{vT+2} offset:{ks*2048+256}")
            if ks == 5:
                a("s_waitcnt lgkmcnt(0)")
        a(f"""
        v_mul_u32_u24 v{vT+3}, 1152, v{vT}
        v_lshl_add_u32 v{vT+3}, v{vT+1}, 3, v{vT+3}
        s_lshl_b32 s28, s{sWAVE}, 5
        s_add_u32 s28, s28, {L_WD}
        v_add_u32 v{vT+3}, s28, v{vT+3}
        s_waitcnt lgkmcnt(0)
        """)
        for i in range(5):
            if i == 4:
                a(f"s_cmp_ge_u32 s{sWAVE}, 4\n s_cbranch_scc1 L_no5th")
            a(f"ds_read_b64_tr_b16 v[{WDd+4*i}:{WDd+4*i+1}], v{vT+3} offset:{i*256}")
            a(f"ds_read_b64_tr_b16 v[{WDd+4*i+2}:{WDd+4*i+3}], v{vT+3} offset:{i*256 + 4*1152}")
        a("L_no5th:")
        aH, aA, aG, aR, aF1, aF2, aF3, aW = (vT + 4 + i for i in range(8))
        aP = vT + 12
        a(f"""
        s_lshl_b32 s28, s{sWAVE}, 7
        v_lshlrev_b32 v{aH}, 1, v{vLANE}
        v_add_u32 v{aH}, s28, v{aH}
        v_and_b32 v{aA}, 3, v{vN}
        v_cmp_eq_u32 vcc, 4, v{vN}
        v_mov_b32 v{aG}, 4
        s_lshr_b32 s28, s{sWAVE}, 2
        v_cndmask_b32 v{aA}, v{aA}, v{aG}, vcc           ; row(m)
        v_mul_u32_u24 v{aA}, 1152, v{aA}
        s_mul_i32 s28, s28, {9*64}
        v_lshl_add_u32 v{aA}, v{vG}, 4, v{aA}
        v_add_u32 v{aA}, s28, v{aA}
        s_lshl_b32 s28, s{sWAVE}, 10
        v_lshlrev_b32 v{aG}, 4, v{vLANE}
        v_add_u32 v{aG}, s28, v{aG}
        s_lshl_b32 s28, s{sWAVE}, 8
        v_lshlrev_b32 v{aR}, 4, v{vN}
        v_add_u32 v{aR}, s28, v{aR}                      ; wave*256 + n*16
        v_lshrrev_b32 v{aW}, 2, v{vLANE}                 ; f'
        v_and_b32 v{aF3}, 3, v{vLANE}                    ; b
        s_lshl_b32 s28, s{sWAVE}, 10
        v_lshlrev_b32 v{aF2}, 4, v{aW}
        v_add_u32 v{aF2}, s28, v{aF2}                    ; tile*1024 + f'*16
        v_lshl_add_u32 v{aF1}, v{aF3}, 2, v{aF2}         ; + b*4
        s_lshl_b32 s28, s{sWAVE}, 5
        v_lshlrev_b32 v{aW}, 1, v{aW}
        v_add_u32 v{aW}, s28, v{aW}                      ; (tile*16 + f')*2
        v_lshl_add_u32 v{aW}, v{aF3}, 6, v{aW}           ; + b*64
        v_lshlrev_b32 v{vT}, 4, v{aF3}                   ; b*16
        v_mov_b32 v{vT+1}, 64
        v_and_b32 v{vT+2}, 4, v{vLANE}
        v_cmp_ne_u32 vcc, 0, v{vT+2}
        v_lshrrev_b32 v{vT+2}, 3, v{vLANE}
        v_lshlrev_b32 v{vT+2}, 8, v{vT+2}                ; (l>>3)*256
        v_cndmask_b32 v{vT}, v{vT}, v{vT+1}, vcc
        v_lshl_add_u32 v{aF3}, v{aF3}, 2, v{vT}
        v_add_u32 v{aF3}, v{aF3}, v{vT+2}
        s_mov_b32 s64, 0xf0f0f0f0
        s_mov_b32 s65, 0xf0f0f0f0
        v_lshlrev_b32 v{aP}, 4, v{vLANE}
        s_lshl_b32 s28, s{sWAVE}, 10
        s_add_u32 s28, s28, {WS_HB}
        s_mov_b32 s29, {WS_HB + 8192}
        s_lshl_b32 s30, s{sWAVE}, 11
        s_add_u32 s30, s30, {WS_CANB + 8*128}
        """)
        HGs = [P + 48 + 8 * k for k in range(3)]
        for k in range(3):
            for r in range(4):
                a(f"v_mov_b32 v{HGs[k]+4+r}, v{vTAG}")
        def h_issue2(k):
            a(f"buffer_load_dwordx4 v[{HGs[k]}:{HGs[k]+3}], v{aP}, s[{sWS}:{sWS+3}], s28 offen sc1")
            a(f"buffer_load_dwordx4 v[{HGs[k]+4}:{HGs[k]+7}], v{aP}, s[{sWS}:{sWS+3}], s29 offen sc1")
        def h_issue1(k):
            a(f"buffer_load_dwordx4 v[{HGs[k]}:{HGs[k]+3}], v{aP}, s[{sWS}:{sWS+3}], s28 offen sc1")
        def h_consume2(k):
            for b in range(4):
                a(f"ds_write_b16_d16_hi v{aH}, v{HGs[k]+b} offset:{L_HB + 1152*b}")
            for b in range(4):
                a(f"ds_write_b16_d16_hi v{aH}, v{HGs[k]+4+b} offset:{L_HB + 1152*b + 1024}")
        def h_consume1(k):
            for b in range(4):
                a(f"ds_write_b16_d16_hi v{aH}, v{HGs[k]+b} offset:{L_HB + 1152*b}")
        a(f"s_cmp_lg_u32 s{sWAVE}, 0\n s_cbranch_scc1 L_h1")
        ppoll(a, "L_hpoll2", ns[2], 2, h_issue2, lambda k: list(range(HGs[k], HGs[k] + 8)), vT + 13, h_consume2, pollsleep, stg,
              probe=((lambda: a(f"buffer_load_dword v{HGs[0]}, v{aP}, s[{sWS}:{sWS+3}], s{30 if canB else 28} offen sc1")), HGs[0], "1") if probe[2] else None, presleep=presl[2])
        a("s_branch L_h2\n L_h1:")
        ppoll(a, "L_hpoll1", ns[2], 1, h_issue1, lambda k: list(range(HGs[k], HGs[k] + 4)), vT + 13, h_consume1, pollsleep, stg,
              probe=((lambda: a(f"buffer_load_dword v{HGs[0]}, v{aP}, s[{sWS}:{sWS+3}], s{30 if canB else 28} offen sc1")), HGs[0], "1") if probe[2] else None, presleep=presl[2])
        a("L_h2:")
        stamp(5)
        a("s_waitcnt lgkmcnt(0)\n s_barrier")
        AB = P
        for ks in range(9):
            a(f"ds_read_b128 v[{AB+4*ks}:{AB+4*ks+3}], v{aA} offset:{L_HB + 64*ks}")
    GD = P + 40
    GRm = P + 44
    for ks in range(9 if not bdec else 0):
        a(f"s_waitcnt lgkmcnt({8-ks})")
        c = "0" if ks == 0 else f"v[{GD}:{GD+3}]"
        a(f"v_mfma_f32_16x16x32_bf16 v[{GD}:{GD+3}], v[{AB+4*ks}:{AB+4*ks+3}], v[{BB+4*ks}:{BB+4*ks+3}], {c}")
    a(f"s_and_b32 s28, s{sWAVE}, 3")
    lg = [a.label("L_gr") for _ in range(4)]; lge = a.label("L_gre")
    for t in range(1, 4):
        a(f"s_cmp_eq_u32 s28, {t}\n s_cbranch_scc1 {lg[t]}")
    for t in range(4):
        a(f"{lg[t]}:")
        kss = [t, t + 4] + ([8] if t == 0 else [])
        for i, ks in enumerate(kss):
            c = "0" if i == 0 else f"v[{GRm}:{GRm+3}]"
            a(f"v_mfma_f32_16x16x32_bf16 v[{GRm}:{GRm+3}], v[{AB+4*ks}:{AB+4*ks+3}], v[{AB+4*ks}:{AB+4*ks+3}], {c}")
        if t != 3:
            a(f"s_branch {lge}")
    a(f"""
    {lge}:
    s_nop 2
    ds_write_b128 v{aG}, v[{GD}:{GD+3}] offset:{L_GUF}
    s_nop 6
    s_mov_b64 exec, 0xffff
    ds_write_b128 v{aR}, v[{GRm}:{GRm+3}] offset:{L_GR}
    s_mov_b64 exec, -1
    s_waitcnt {"vmcnt(0) " if (bdec and wd_after) else ""}lgkmcnt(0)
    s_barrier
    """)
    def wd_reads(tag):
        for i in range(5):
            if i == 4:
                a(f"s_cmp_ge_u32 s{sWAVE}, 4\n s_cbranch_scc1 L_no5th{tag}")
            a(f"ds_read_b64_tr_b16 v[{WDd+4*i}:{WDd+4*i+1}], v{aWD} offset:{i*256}")
            a(f"ds_read_b64_tr_b16 v[{WDd+4*i+2}:{WDd+4*i+3}], v{aWD} offset:{i*256 + 4*1152}")
        a(f"L_no5th{tag}:")
    if bdec and wd_after:
        a(f"s_cmp_lt_u32 s{sWAVE}, 2\n s_cbranch_scc1 L_wd_later")
        wd_reads("a")
        a("L_wd_later:")
    stamp(6)
    def canc_store():
        lab = a.label("L_nocan")
        a(f"""
        s_cmp_lg_u32 s{sWAVE}, 7
        s_cbranch_scc1 {lab}
        s_lshl_b32 s30, s{sIDX}, 7
        s_add_u32 s30, s30, {WS_CANC}
        v_mov_b32 v{vT+14}, 0
        s_mov_b64 exec, 1
        buffer_store_dword v{vTAG}, v{vT+14}, s[{sWS}:{sWS+3}], s30 offen sc1
        s_mov_b64 exec, -1
        {lab}:
        """)
    if canC == 2:
        canc_store()
    a(f"s_cmp_ge_u32 s{sWAVE}, 2\n s_cbranch_scc1 L_nogelu")
    GE = P
    a(f"""
    ds_read_b32 v{GE+8}, v{aF3} offset:{L_GR}
    ds_read_b32 v{GE}, v{aF1} offset:{L_GUF}
    ds_read_b32 v{GE+1}, v{aF1} offset:{L_GUF+4096}
    ds_read_b32 v{GE+2}, v{aF1} offset:{L_GUF+2048}
    ds_read_b32 v{GE+3}, v{aF1} offset:{L_GUF+2048+4096}
    ds_read_b32 v{GE+4}, v{aF2} offset:{L_GUF+256}
    ds_read_b32 v{GE+5}, v{aF2} offset:{L_GUF+256+4096}
    ds_read_b32 v{GE+6}, v{aF2} offset:{L_GUF+256+2048}
    ds_read_b32 v{GE+7}, v{aF2} offset:{L_GUF+256+2048+4096}
    s_waitcnt lgkmcnt(8)
    """)
    X_, Y_, T_ = GE + 8, GE + 9, GE + 10
    a(f"""
    s_nop 1
    v_add_f32_dpp v{X_}, v{X_}, v{X_} row_ror:8 row_mask:0xf bank_mask:0xf
    """)
    xrow(a, [X_], [T_])
    a(f"""
    s_nop 1
    v_mov_b32_dpp v{Y_}, v{X_} row_ror:4 row_mask:0xf bank_mask:0xf
    s_nop 0
    v_cndmask_b32 v{T_}, v{Y_}, v{X_}, s[64:65]      ; sum
    v_cndmask_b32 v{Y_}, v{X_}, v{Y_}, s[64:65]      ; sumsq
    v_mul_f32 v{T_}, {INV576}, v{T_}                 ; mu
    v_mul_f32 v{Y_}, {INV576}, v{Y_}
    v_fma_f32 v{Y_}, -v{T_}, v{T_}, v{Y_}            ; var
    v_max_f32 v{Y_}, 0, v{Y_}
    """)
    rbf(a, [(T_, Y_)], [X_])
    a(f"v_add_f32 v{Y_}, {EPS}, v{Y_}")
    rbf(a, [(Y_, Y_)], [X_])
    a(f"v_sqrt_f32 v{Y_}, v{Y_}\n s_nop 0")
    rbf(a, [(Y_, Y_)], [X_])
    a(f"""
    v_rcp_f32 v{X_}, v{Y_}
    s_waitcnt lgkmcnt(0)
    """)
    if bdec and wd_after:
        wd_reads("b")
    a(f"""
    v_add_f32 v{GE}, v{GE}, v{GE+1}
    v_add_f32 v{GE+2}, v{GE+2}, v{GE+3}
    v_add_f32 v{GE+4}, v{GE+4}, v{GE+5}
    v_add_f32 v{GE+6}, v{GE+6}, v{GE+7}
    v_fma_f32 v{GE}, -v{T_}, v{GE+4}, v{GE}
    v_fma_f32 v{GE+2}, -v{T_}, v{GE+6}, v{GE+2}
    """)
    fdiv(a, GE + 1, GE, X_, Y_, GE + 4)
    fdiv(a, GE + 3, GE + 2, X_, Y_, GE + 5)
    rbf(a, [(GE + 1, GE + 3)], [GE + 4])
    C1, C2 = 0x3d372713, 0x3f4c422a
    TWO_L2E = 0x4038aa3b
    g, t = GE + 1, GE + 4
    a(f"""
    v_mul_f32 v{t}, v{g}, v{g}
    v_mul_f32 v{t}, v{t}, v{g}
    v_mov_b32 v{t+1}, {C1}
    v_fma_f32 v{t}, v{t}, v{t+1}, v{g}
    v_mul_f32 v{t}, {C2}, v{t}
    v_mul_f32 v{t}, {TWO_L2E}, v{t}
    v_exp_f32 v{t}, v{t}
    v_mul_f32 v{t+2}, 0.5, v{g}
    v_add_f32 v{t}, 1.0, v{t}
    v_rcp_f32 v{t}, v{t}
    s_nop 0
    v_fma_f32 v{t}, -2.0, v{t}, 1.0
    v_add_f32 v{t}, 1.0, v{t}
    v_mul_f32 v{g}, v{t+2}, v{t}
    """)
    rbf(a, [(g, g)], [t])
    a(f"""
    v_mul_f32 v{g}, v{g}, v{GE+3}
    v_cvt_pk_bf16_f32 v{t}, v{g}, v{g}
    ds_write_b16 v{aW}, v{t} offset:{L_HF}
    s_waitcnt lgkmcnt(0)
    L_nogelu:
    s_barrier
    """)
    tstamp(14)
    if canC == 1:
        canc_store()
    a(f"""
    v_and_b32 v{vT+5}, 3, v{vN}
    v_lshlrev_b32 v{vT+5}, 6, v{vT+5}
    v_lshl_add_u32 v{vT+5}, v{vG}, 4, v{vT+5}
    ds_read_b128 v[{P}:{P+3}], v{vT+5} offset:{L_HF}
    """)
    if cmajZ:
        a(f"""
        s_lshl_b32 s28, s{sIDX}, 6
        s_add_u32 s28, s28, {WS_Z}
        s_mul_i32 s29, s{sWAVE}, {4*9216}
        s_add_u32 s28, s28, s29
        v_lshrrev_b32 v{vT+6}, 2, v{vN}
        v_mul_u32_u24 v{vT+6}, 9216, v{vT+6}
        v_and_b32 v{vT+7}, 3, v{vN}
        v_lshl_add_u32 v{vT+6}, v{vT+7}, 4, v{vT+6}
        """)
        zstep = 8 * 4 * 9216
    else:
        a(f"""
        s_mul_i32 s28, s{sIDX}, 9216
        s_add_u32 s28, s28, {WS_Z}
        s_lshl_b32 s29, s{sWAVE}, 8
        s_add_u32 s28, s28, s29
        v_lshlrev_b32 v{vT+6}, 4, v{vN}
        """)
        zstep = 2048
    a("s_waitcnt lgkmcnt(0)")
    ZD = P + 8
    for i in range(5):
        if i == 4:
            a(f"s_cmp_ge_u32 s{sWAVE}, 4\n s_cbranch_scc1 L_z4")
        a(f"v_mfma_f32_16x16x32_bf16 v[{ZD+4*i}:{ZD+4*i+3}], v[{P}:{P+3}], v[{WDd+4*i}:{WDd+4*i+3}], 0")
    if zpack:
        assert not cmajZ and bdec and not wd_after
        a(f"""
        L_z4:
        s_mul_i32 s28, s{sIDX}, 9216
        s_add_u32 s28, s28, {WS_Z}
        s_lshl_b32 s29, s{sWAVE}, 10
        s_add_u32 s29, s29, s28                ; tiles 4w..4w+3: 1 KB contiguous
        v_lshlrev_b32 v{vT+6}, 4, v{vLANE}
        s_lshl_b32 s30, s{sWAVE}, 8
        s_add_u32 s30, s30, s28
        s_add_u32 s30, s30, 8192
        s_nop 1
        """)
        for r in range(4):
            a(f"v_permlane16_swap_b32 v{ZD+r}, v{ZD+4+r}")
        for r in range(4):
            a(f"v_permlane16_swap_b32 v{ZD+8+r}, v{ZD+12+r}")
        a("s_nop 1")
        for r in range(4):
            a(f"v_permlane32_swap_b32 v{ZD+r}, v{ZD+8+r}")
        a("s_nop 1")
        addtag(a, range(ZD, ZD + 4))
        a(f"buffer_store_dwordx4 v[{ZD}:{ZD+3}], v{vT+6}, s[{sWS}:{sWS+3}], s29 offen sc1")
        a(f"s_cmp_ge_u32 s{sWAVE}, 4\n s_cbranch_scc1 L_fin")
        addtag(a, range(ZD + 16, ZD + 20))
        a(f"""
        s_mov_b64 exec, 0xffff
        buffer_store_dwordx4 v[{ZD+16}:{ZD+19}], v{vT+6}, s[{sWS}:{sWS+3}], s30 offen sc1
        s_mov_b64 exec, -1
        """)
    else:
        a("L_z4:\n s_nop 7")
        for i in range(5):
            if i == 4:
                a(f"s_cmp_ge_u32 s{sWAVE}, 4\n s_cbranch_scc1 L_fin")
            addtag(a, range(ZD + 4*i, ZD + 4*i + 4))
            a(f"""
            s_add_u32 s29, s28, {zstep*i}
            s_mov_b64 exec, 0xffff
            buffer_store_dwordx4 v[{ZD+4*i}:{ZD+4*i+3}], v{vT+6}, s[{sWS}:{sWS+3}], s29 offen sc1
            s_mov_b64 exec, -1
            """)

    tstamp(13)
    a("L_fin:")
    for i in range(mark_tail, len(a.L) if dry else 0):
        if a.L[i].strip() == "s_barrier" and "noguard" not in a.L[i]:
            lab = a.label("L_nb")
            a.L[i] = f"    s_cmp_eq_u32 s{sDRY}, 1\n    s_cbranch_scc1 {lab}\n    s_barrier\n{lab}:"
    a(f"s_cmp_eq_u32 s{sDRY}, 1\n s_cbranch_scc1 L_dry_done" if dry else "")
    dbg_max(2)
    if stamps:
        a("s_waitcnt vmcnt(0)")
        stamp(8)
        a(f"""
        s_lshl_b32 s28, s{sW}, 3
        s_add_u32 s28, s28, s{sWAVE}
        s_lshl_b32 s28, s28, 6
        s_add_u32 s28, s28, {WS_STAMP}
        v_mov_b32 v{vT}, 0
        s_mov_b64 exec, 1
        """)
        for i in range(0, NSTAMP, 4):
            for r in range(4):
                a(f"v_mov_b32 v{vT+2+r}, s{sST+i+r}")
            a(f"buffer_store_dwordx4 v[{vT+2}:{vT+5}], v{vT}, s[{sWS}:{sWS+3}], s28 offen offset:{4*i}")
            a("s_nop 1")
        a("s_waitcnt vmcnt(0)")
    a("L_end:\n s_endpgm\n L_code_end:")

    if not dry:
        L2 = []; i = 0
        flat = "\n".join(a.L).split("\n")
        while i < len(flat):
            if flat[i].strip() == f"s_cmp_eq_u32 s{sDRY}, 1" and flat[i+1].strip().startswith("s_cbranch_scc1"):
                i += 2; continue
            if flat[i].strip() in (f"s_mov_b32 s{sDRY}, 0",):
                i += 1; continue
            L2.append(flat[i]); i += 1
        a.L = L2
    hdr = HEADER + f"; @launch grid=(256,1,1) block=(512,1,1) lds={LDS_BYTES}\n"
    hdr += '.amdgcn_target "amdgcn-amd-amdhsa--gfx950"\n.text\n'
    return hdr + kernel_begin(KNAME) + a.text() + kernel_desc(KNAME, 256, 102, 256)


HEADER = """;
;  prologue : LN(x[b]) and q[b,h] = LN(x) Wq[:, h] per workgroup (MFMA, natural-layout weights with a delta-masked A
;             attention partials -> 96 Wo workgroups (merge, o Wo) -> 144 column reducers (h = x + attn) ->
"""

if __name__ == "__main__":
    import sys
    kw = eval(sys.argv[2]) if len(sys.argv) > 2 else {}
    open(sys.argv[1], "w").write(gen(**kw))
```

```python
from asmlib import *

WS_E    = 0x0
WS_QP   = 0x10000
WS_AP   = 0xA0000
WS_Y    = 0xD0000
WS_HB   = 0x120000
WS_Z    = 0x130000
WS_CANB = 0x280000
WS_CANC = 0x288000
WS_STAMP= 0x300000
WS_SIZE = 0x400000

L_XD = 0
L_QB = L_XD + 9216
L_MRG = L_QB + 256
L_ML = L_MRG + 4096
L_OB = L_ML + 64
L_HB = L_OB + 1024
L_GUF = L_HB + 5760
L_GR = L_GUF + 8192
L_HF = L_GR + 2048
L_SMALL_END = L_HF + 256
L_WG = 32768
L_WU = L_WG + 36864
L_WD = L_WU + 36864
L_END = L_WD + 36864
assert L_SMALL_END <= L_WG
LDS_BYTES = 143360
assert L_END <= LDS_BYTES, L_END

LOG2E = 0x3fb8aa3b
SCALE = 0x3db504f3
INV576 = 0x3ae38e39
EPS = 0x3727c5ac

sWAVE = 3
sK, sV, sWS, sT, sU = 8, 12, 16, 20, 24
pX, pK, pV, pWQ, pWO, pBX, pWG, pWU = 32, 34, 36, 38, 40, 42, 44, 46
pWD, pOUT, pDBG, pWSP = 48, 50, 52, 54
sE, sW, sB, sH, sJ, sTO, sKV, sIT = 56, 57, 58, 59, 60, 61, 62, 63
sROW = 64
sOFF = 67
sL2E, sSCALE, sHI = 68, 69, 70
sCNT = 71
sDRY, sOUTN = 94, 95
sROLE, sIDX, sSLICE, sNT, sROT, sXTRA = 96, 97, 98, 99, 100, 101
sST = 74
NSTAMP = 16
vLANE, vN, vG, vOFFK, vOFFV = 0, 1, 2, 3, 4
vMASK = 5
vM, vL = 9, 10
vO = 12
vS = 16
vQ = 20
vTAG, vFF = 36, 37
vT = 38
vSTG = 64
vWQ = 192
vP = 172
vPP = 204


def srd(a, s, ptr, nbytes):
    a(f"""
    s_mov_b32 s{s}, s{ptr}
    s_and_b32 s{s+1}, s{ptr+1}, 0xffff
    s_mov_b32 s{s+2}, {nbytes}
    s_mov_b32 s{s+3}, 0x00020000
    """)


def row16(a, regs, op="add", ctrls=("quad_perm:[1,0,3,2]", "quad_perm:[2,3,0,1]", "row_half_mirror", "row_mirror")):
    ins = "v_add_f32" if op == "add" else "v_max_f32"
    n = len(regs)
    a("s_nop 1")
    for ctrl in ctrls:
        for r in regs:
            a(f"{ins}_dpp v{r}, v{r}, v{r} {ctrl} row_mask:0xf bank_mask:0xf")
        if n < 3:
            a(f"s_nop {2 - n}")


def xrow(a, regs, tmp, op="add", only32=False):
    ins = "v_add_f32" if op == "add" else "v_max_f32"
    sws = ("v_permlane16_swap_b32", "v_permlane32_swap_b32")
    if only32:
        sws = sws[1:]
    for sw in sws:
        for r, t in zip(regs, tmp):
            a(f"v_mov_b32 v{t}, v{r}")
        a("s_nop 1")
        for r, t in zip(regs, tmp):
            a(f"{sw} v{r}, v{t}")
        a("s_nop 1")
        for r, t in zip(regs, tmp):
            a(f"{ins} v{r}, v{r}, v{t}")


def wavesum(a, regs, tmp, op="add"):
    row16(a, regs, op)
    xrow(a, regs, tmp, op)


def rbf(a, pairs, t):
    for (x, y), tt in zip(pairs, t):
        a(f"v_cvt_pk_bf16_f32 v{tt}, v{x}, v{y}")
    for (x, y), tt in zip(pairs, t):
        a(f"v_lshlrev_b32 v{x}, 16, v{tt}")
        if y != x:
            a(f"v_and_b32 v{y}, s{sHI}, v{tt}")


def tagcheck(a, regs, acc, retry):
    a(f"v_xor_b32 v{acc}, v{regs[0]}, v{vTAG}")
    for r in regs[1:]:
        a(f"v_bitop3_b32 v{acc}, v{acc}, v{r}, v{vTAG} bitop3:0xf6")
    a(f"v_and_b32 v{acc}, v{acc}, v{vFF}")
    a(f"v_cmp_ne_u32 vcc, 0, v{acc}")
    a(f"s_cbranch_vccnz {retry}")


def addtag(a, regs):
    for r in regs:
        a(f"v_bfi_b32 v{r}, v{vFF}, v{vTAG}, v{r}")


def poll_head(a, name, bail="L_end"):
    a(f"{name}:")
    a(f"s_sub_u32 s{sTO}, s{sTO}, 1")
    a(f"s_cbranch_scc1 {bail}")


DRYG = False

def ppoll(a, name, nsets, nloads, issue, regs, acc, consume, sleep=0, stagger=0, probe=None, presleep=0):
    if DRYG:
        a(f"s_cmp_eq_u32 s{sDRY}, 1\n s_cbranch_scc1 {name}_ok0")
    if presleep:
        n = presleep
        while n > 0:
            a(f"s_sleep {min(n, 100)}")
            n -= 100
    if probe:
        emit, preg, mask = probe
        a(f"s_mov_b64 exec, {mask}")
        a(f"{name}_probe:")
        a(f"s_sub_u32 s{sTO}, s{sTO}, 1")
        a(f"s_cbranch_scc1 L_end")
        emit()
        a("s_waitcnt vmcnt(0)")
        a(f"v_xor_b32 v{acc}, v{preg}, v{vTAG}")
        a(f"v_and_b32 v{acc}, v{acc}, v{vFF}")
        a(f"v_cmp_ne_u32 vcc, 0, v{acc}")
        a(f"s_cbranch_vccnz {name}_probe")
        a("s_mov_b64 exec, -1")
    for k in range(nsets):
        issue(k)
        if stagger and k != nsets - 1:
            a(f"s_sleep {stagger}")
    a(f"{name}:")
    a(f"s_sub_u32 s{sTO}, s{sTO}, 1")
    a(f"s_cbranch_scc1 L_end")
    for k in range(nsets):
        a(f"s_waitcnt vmcnt({(nsets-1)*nloads})")
        r = regs(k)
        a(f"v_xor_b32 v{acc}, v{r[0]}, v{vTAG}")
        for x in r[1:]:
            a(f"v_bitop3_b32 v{acc}, v{acc}, v{x}, v{vTAG} bitop3:0xf6")
        a(f"v_and_b32 v{acc}, v{acc}, v{vFF}")
        a(f"v_cmp_ne_u32 vcc, 0, v{acc}")
        a(f"s_cbranch_vccz {name}_ok{k}")
        if sleep:
            a(f"s_sleep {sleep}")
        issue(k)
    a(f"s_branch {name}")
    for k in range(nsets):
        a(f"{name}_ok{k}:")
        consume(k)
        if k != nsets - 1:
            a(f"s_branch {name}_done")
    a(f"{name}_done:")


def fdiv(a, out, num, den_rcp, den, t):
    a(f"v_mul_f32 v{out}, v{num}, v{den_rcp}")
    a(f"v_fma_f32 v{t}, -v{out}, v{den}, v{num}")
    a(f"v_fma_f32 v{out}, v{t}, v{den_rcp}, v{out}")


def gen(D=2, stamps=False, stop=None, kvflags="nt", wflags="nt", late_w=False, pollsleep=0, codepf='tail', xflags="nt", cyc=False, pre=(0, 1, 2, 0), no_w=False, no_compute=False, no_q=False, early='', wo_late=False, gate='pair', bare=False, tailst=False, ns=(1, 1, 1, 1), stg=0, probe=(0, 1, 1, 1), presl=(0, 0, 0, 0), dry=False, shift=0, rotw=False, only=None, canB=False, canC=0, outfl='sc1', tlbw=0, locq=True, lq_pre=1, lq_mid=1, w0_mid=1, xmap=True, dbgA=False, dbgB=False, lq_late=2, gsleep=0, bdec=True, wo_e=4, wd_after=False, dbgtime=False, cmajY=False, cmajZ=False, rmap=True, sh2=0, wrot=0, zpack=True):
    global DRYG
    DRYG = bool(dry)
    a = Asm()
    NT = 32
    KV_OOB = 0x10000000
    P = vPP

    def tstamp(idx):
        if tailst:
            stamp(idx, True)

    def stamp(idx, force=False):
        if only is not None and idx not in only:
            return
        if tailst and idx in (9, 10, 11, 12, 13, 14) and not force:
            return
        if stamps:
            ins = "s_memtime" if cyc else "s_memrealtime"
            a(f"{ins} s[90:91]\n s_waitcnt lgkmcnt(0)\n s_mov_b32 s{sST+idx}, s90")

    def psleep():
        if pollsleep:
            a(f"s_sleep {pollsleep}")

    def code_prefetch(nwaves, lo, hi, tmp, dst=None):
        a(f"""
        s_getpc_b64 s[92:93]
        {a.label("L_pc")}:
        """)
        lab = a.L[-1].strip()[:-1]
        a(f"""
        s_add_u32 s92, s92, {lo}-{lab}
        s_addc_u32 s93, s93, {-1 if lo == "L_code0" else 0}
        s_lshl_b32 s28, s{sWAVE}, 10
        v_lshlrev_b32 v{tmp+4}, 4, v{vLANE}
        v_add_u32 v{tmp+4}, s28, v{tmp+4}
        s_mov_b32 s29, {hi}-{lo}-16
        """)
        for i in range(NPF[(lo, hi)]):
            a(f"v_min_u32 v{tmp+5}, s29, v{tmp+4}")
            d_ = tmp if dst is None else dst
            a(f"global_load_dwordx4 v[{d_}:{d_+3}], v{tmp+5}, s[92:93]")
            a(f"v_add_u32 v{tmp+4}, {1024*nwaves}, v{tmp+4}")
    NPF = {("L_code0", "L_code_end"): 2, ("L_tail0", "L_code_end"): 2}
    ROLES_OLD = f"""    ; ---- roles: even w < 224: Wo (w < 192) or spare ; otherwise stage B
    s_lshr_b32 s29, s2, 1                  ; P
    s_mov_b32 s{sIDX}, s29
    s_cmp_lt_u32 s29, 96
    s_cselect_b32 s{sROLE}, 1, 2
    s_cselect_b32 s30, {shift}, 0
    s_cmp_eq_u32 s28, 1
    s_cselect_b32 s{sROLE}, 0, s{sROLE}
    s_lshr_b32 s31, s29, 3
    s_lshl_b32 s31, s31, 2
    s_and_b32 s4, s29, 3
    s_add_u32 s31, s31, s4
    s_lshl_b32 s31, s31, 1
    s_bfe_u32 s4, s29, 0x10002
    s_add_u32 s{sSLICE}, s31, s4
    s_cmp_lt_u32 s2, 224
    s_cbranch_scc1 L_role_done
    s_mov_b32 s{sROLE}, 0
    s_sub_u32 s4, s2, 224                  ; p'
    s_add_u32 s{sIDX}, s4, 112
    s_lshr_b32 s31, s4, 4
    s_lshl_b32 s31, s31, 3
    s_and_b32 s5, s4, 7
    s_add_u32 s31, s31, s5
    s_lshl_b32 s31, s31, 1
    s_bfe_u32 s5, s4, 0x10003
    s_add_u32 s31, s31, s5
    s_add_u32 s{sSLICE}, s31, 112
    L_role_done:
    s_sub_u32 s30, 256, s30
    s_and_b32 s28, s{sJ}, 1
    s_cmp_eq_u32 s28, 1
    s_cselect_b32 s4, s30, 0               ; t0
    s_cselect_b32 s5, 512, s30             ; t1
    """
    ROLES_NEW = f"""
    s_and_b32 s29, s2, 7                   ; x
    s_lshr_b32 s30, s2, 4                  ; r
    s_lshl_b32 s31, s30, 3
    s_add_u32 s{sIDX}, s31, s29            ; r*8 + x
    s_lshr_b32 s31, s30, 1
    s_lshl_b32 s31, s31, 3
    s_add_u32 s31, s31, s29
    s_lshl_b32 s31, s31, 1
    s_and_b32 s4, s30, 1
    s_add_u32 s{sSLICE}, s31, s4           ; ((r>>1)*8 + x)*2 + (r&1)
    s_mov_b32 s{sROLE}, 0
    s_bitcmp1_b32 s2, 3
    s_cbranch_scc1 L_role_done
    s_cmp_lt_u32 s30, 12
    s_cselect_b32 s{sROLE}, 1, 2
    s_cmp_lt_u32 s30, 14
    s_cbranch_scc1 L_role_done
    s_mov_b32 s{sROLE}, 0
    s_add_u32 s{sIDX}, s{sIDX}, {128 - 14*8}
    s_lshl_b32 s31, s29, 1
    s_sub_u32 s4, s30, 14
    s_add_u32 s31, s31, s4
    s_add_u32 s{sSLICE}, s31, 128
    L_role_done:
    s_cmp_lt_u32 s30, 12
    s_cselect_b32 s30, {sh2}, 0
    s_and_b32 s28, s{sJ}, 1
    s_sub_u32 s5, 256, s30                 ; s=0: t1 = 256 - sh
    s_mov_b32 s4, 0
    s_mov_b32 s6, 0
    s_cmp_eq_u32 s28, 1
    s_cselect_b32 s4, 256, 0
    s_cselect_b32 s5, 512, s5
    s_cselect_b32 s6, s30, 0
    """
    ROLES = ROLES_NEW if rmap else ROLES_OLD
    XMAP = "" if not xmap else f"""
    s_and_b32 s29, s2, 7
    s_lshr_b32 s30, s2, 6
    s_lshl_b32 s30, s30, 3
    s_add_u32 s{sH}, s29, s30              ; h = (w&7) + 8*(w>>6)
    s_bfe_u32 s{sJ}, s2, 0x30003           ; j = (w>>3)&7
    s_lshr_b32 s{sB}, s{sJ}, 1
    """
    def dbg_max(slot, invert=False):
        if not dbgtime:
            return
        lab = a.label("L_dbg")
        a(f"s_cmp_ge_u32 s{sWAVE}, {2 if slot == 2 else 1}\n s_cbranch_scc1 {lab}")
        a(f"""
        s_memrealtime s[90:91]
        s_waitcnt lgkmcnt(0)
        {"s_not_b32 s90, s90" if invert else ""}
        v_mov_b32 v62, s90
        v_mov_b32 v63, {4*slot}
        s_mov_b64 exec, 1
        global_atomic_umax v63, v62, s[{pDBG}:{pDBG+1}]
        s_mov_b64 exec, -1
        {lab}:
        """)

    a(f"""
    L_code0:
    s_cmp_ge_u32 s2, 256
    s_cbranch_scc1 L_end
    s_load_dwordx16 s[32:47], s[0:1], 0
    s_load_dwordx8 s[48:55], s[0:1], 64
    v_lshrrev_b32 v{P}, 6, v0
    v_and_b32 v{vLANE}, 63, v0
    v_readfirstlane_b32 s{sWAVE}, v{P}
    v_and_b32 v{vN}, 15, v{vLANE}
    v_lshrrev_b32 v{vG}, 4, v{vLANE}
    v_lshlrev_b32 v{vOFFK}, 8, v{vN}
    v_lshl_add_u32 v{vOFFK}, v{vG}, 4, v{vOFFK}
    v_lshlrev_b32 v{vOFFV}, 10, v{vG}
    v_lshl_add_u32 v{vOFFV}, v{vN}, 4, v{vOFFV}
    s_mov_b32 s{sW}, s2
    s_lshr_b32 s{sB}, s2, 6
    s_lshr_b32 s{sH}, s2, 1
    s_and_b32 s{sH}, s{sH}, 31
    s_and_b32 s28, s2, 1
    s_lshl_b32 s{sJ}, s{sB}, 1
    s_add_u32 s{sJ}, s{sJ}, s28
    {XMAP}
    s_mov_b32 s{sTO}, 2000000
    {ROLES}
    s_mov_b32 s{sL2E}, {LOG2E}
    s_mov_b32 s{sSCALE}, {SCALE}
    s_mov_b32 s{sHI}, 0xffff0000
    s_mov_b32 s{sDRY}, 0
    s_mov_b32 s{sOUTN}, 4608
    """)
    if stamps:
        for i in range(NSTAMP):
            a(f"s_mov_b32 s{sST+i}, 0")
    stamp(0)
    if codepf is True and not locq:
        code_prefetch(8, "L_code0", "L_code_end", vPP + 44)
    WROT = "" if not wrot else f"""
    s_mul_i32 s{sROT}, s{sW}, {wrot}
    s_add_u32 s{sROT}, s{sROT}, s{sWAVE}
    s_lshl_b32 s{sROT}, s{sROT}, 12
    """
    XTRA = "" if not (rmap and sh2) else f"""
    s_cmp_lt_u32 s{sWAVE}, s6
    s_addc_u32 s{sNT}, s{sNT}, 0
    s_sub_u32 s28, 256, s6
    s_add_u32 s28, s28, s{sWAVE}
    s_lshl_b32 s28, s28, 12
    s_lshl_b32 s{sXTRA}, s{sB}, 5
    s_add_u32 s{sXTRA}, s{sXTRA}, s{sH}
    s_lshl_b32 s{sXTRA}, s{sXTRA}, 21
    s_add_u32 s{sXTRA}, s{sXTRA}, s28
    """
    a(f"""
    s_lshl_b32 s{sKV}, s{sB}, 5
    s_add_u32 s{sKV}, s{sKV}, s{sH}
    s_lshl_b32 s{sKV}, s{sKV}, 21
    s_lshl_b32 s28, s4, 12
    s_add_u32 s{sKV}, s{sKV}, s28
    s_sub_u32 s29, s5, s4                  ; L
    s_lshr_b32 s{sNT}, s29, 3
    s_and_b32 s29, s29, 7                  ; remainder
    {'s_add_u32 s28, s%d, s%d' % (sNT, sWAVE) if rotw else 's_mov_b32 s28, s%d' % sWAVE}
    s_and_b32 s28, s28, 7
    s_cmp_lt_u32 s28, s29
    s_addc_u32 s{sNT}, s{sNT}, 0
    {XTRA}
    {WROT}
    s_mov_b32 s{sIT}, 0
    """)

    if locq:
        a(f"""
        v_lshlrev_b32 v{vT+1}, 13, v{vG}
        v_lshl_add_u32 v{vT+1}, v{vN}, 4, v{vT+1}        ; g*8192 + c*16
        s_lshl_b32 s30, s{sWAVE}, 15
        s_lshl_b32 s31, s{sH}, 8
        s_add_u32 s30, s30, s31
        """)
    for (sr, nb) in ((sK, 0x10000000), (sV, 0x10000000), (sU, 576 * 8192), (sT, 4608)):
        a(f"s_mov_b32 s{sr+2}, {nb}\n s_mov_b32 s{sr+3}, 0x00020000")
    a("s_waitcnt lgkmcnt(0)")
    stamp(9)
    dbg_max(0, True)
    for (sr, ptr) in ((sK, pK), (sV, pV), (sU, pWQ), (sT, pX)):
        a(f"s_mov_b32 s{sr}, s{ptr}\n s_and_b32 s{sr+1}, s{ptr+1}, 0xffff")
    if not locq or bare:
        a(f"s_load_dword s{sE}, s[{pWSP}:{pWSP+1}], 0")
        srd(a, sWS, pWSP, WS_SIZE)
    def kloads(s):
        r = vSTG + 32 * s
        for j in range(4):
            a(f"buffer_load_dwordx4 v[{r+4*j}:{r+4*j+3}], v{vOFFK}, s[{sK}:{sK+3}], s{sOFF} offen offset:{64*j} {kvflags}")

    def vloads(s):
        r = vSTG + 32 * s + 16
        for j in range(4):
            a(f"buffer_load_dwordx4 v[{r+4*j}:{r+4*j+3}], v{vOFFV}, s[{sV}:{sV+3}], s{sOFF} offen offset:{256*j} {kvflags}")

    def nextoff():
        if wrot:
            a(f"""
            s_and_b32 s{sOFF}, s{sROT}, 0xfffff
            s_add_u32 s{sOFF}, s{sOFF}, s{sKV}
            s_add_u32 s{sROT}, s{sROT}, 32768
            s_cmp_ge_u32 s{sIT}, s{sNT}
            s_cselect_b32 s{sOFF}, {KV_OOB}, s{sOFF}
            s_add_u32 s{sIT}, s{sIT}, 1
            """)
            return
        if rotw:
            a(f"""
            s_add_u32 s{sOFF}, s{sIT}, s{sWAVE}
            s_and_b32 s{sOFF}, s{sOFF}, 7
            s_lshl_b32 s{sOFF}, s{sOFF}, 12
            s_add_u32 s{sOFF}, s{sOFF}, s{sKV}
            """)
        else:
            a(f"""
            s_lshl_b32 s{sOFF}, s{sWAVE}, 12
            s_add_u32 s{sOFF}, s{sOFF}, s{sKV}
            """)
        if rmap and sh2:
            a(f"s_cmp_eq_u32 s{sIT}, 32\n s_cselect_b32 s{sOFF}, s{sXTRA}, s{sOFF}")
        a(f"""
        s_cmp_ge_u32 s{sIT}, s{sNT}
        s_cselect_b32 s{sOFF}, {KV_OOB}, s{sOFF}
        s_add_u32 s{sKV}, s{sKV}, 32768
        s_add_u32 s{sIT}, s{sIT}, 1
        """)

    def prefetch(lo=0, hi=D):
        for s in range(lo, hi):
            nextoff(); kloads(s); vloads(s)

    a0, a1, b0, b1 = pre

    def by_class(fa, fb, f7=None):
        la, lb, le = a.label("L_cA"), a.label("L_cB"), a.label("L_cE")
        a(f"s_cmp_lt_u32 s{sWAVE}, 4\n s_cbranch_scc1 {la}")
        a(f"s_cmp_lt_u32 s{sWAVE}, 7\n s_cbranch_scc1 {lb}")
        if f7: f7()
        a(f"s_branch {le}\n {la}:")
        fa()
        a(f"s_branch {le}\n {lb}:")
        fb()
        a(f"{le}:")

    def MASKS():
        t0, t1, t2 = vT + 2, vT + 3, vT + 4
        a(f"""
        v_and_b32 v{t0}, 7, v{vN}
        v_and_b32 v{t1}, 1, v{t0}
        v_lshlrev_b32 v{t1}, 4, v{t1}
        v_mov_b32 v{t2}, 0xffff
        v_lshlrev_b32 v{t1}, v{t1}, v{t2}
        v_lshrrev_b32 v{t0}, 1, v{t0}
        v_mov_b32 v{vFF}, 0xff
        """)
        for d in range(4):
            a(f"v_cmp_eq_u32 vcc, {d}, v{t0}\n s_nop 1\n v_cndmask_b32 v{vMASK+d}, 0, v{t1}, vcc")
        a(f"""
        s_waitcnt lgkmcnt(0)
        s_add_u32 s{sE}, s{sE}, 1
        s_and_b32 s28, s{sE}, 0xff
        v_mov_b32 v{vTAG}, s28
        """)

    if bare:
        prefetch(0, D)
        MASKS()
        a("s_branch L_bare")
    if locq:
        X, Dv = 64, 74
        A0, A1, A2, A3, A4 = 84, 85, 86, 87, 88
        vW18, AXS, AO = 160, 232, 250
        a(f"""
        s_cmp_lg_u32 s{sWAVE}, 0
        s_cbranch_scc1 L_lq_other
        v_lshlrev_b32 v{vT}, 1, v{vLANE}
        s_mul_i32 s28, s{sB}, 1152
        """)
        for i in range(9):
            a(f"buffer_load_ushort v{X+i}, v{vT}, s[{sT}:{sT+3}], s28 offen offset:{128*i} {xflags}")
        def wq18():
            for u in range(18):
                a(f"buffer_load_dwordx4 v[{vW18+4*u}:{vW18+4*u+3}], v{vT+1}, s[{sU}:{sU+3}], s30 offen {wflags}")
                if u != 17:
                    a(f"s_add_u32 s30, s30, {32*8192}")
        wq18()
        a("s_branch L_lq_issued\n L_lq_other:")
        lq_m = min(D, lq_pre + lq_mid)
        w0_m = min(D, w0_mid)
        prefetch(0, lq_pre)
        wq18()
        prefetch(lq_pre, lq_m)
        a("L_lq_issued:")
        a(f"s_load_dword s{sE}, s[{pWSP}:{pWSP+1}], 0")
        srd(a, sWS, pWSP, WS_SIZE)
        if codepf is True:
            code_prefetch(8, "L_code0", "L_code_end", vT + 8, dst=60)
        MASKS()
        ncp = 0
        a(f"s_cmp_lg_u32 s{sWAVE}, 0\n s_cbranch_scc1 L_lq_noln")
        a(f"s_waitcnt vmcnt({18 + ncp})")
        stamp(10)
        for i in range(9):
            a(f"v_lshlrev_b32 v{X+i}, 16, v{X+i}")
        a(f"v_add_f32 v{A0}, v{X}, v{X+1}")
        for i in range(2, 9):
            a(f"v_add_f32 v{A0}, v{A0}, v{X+i}")
        wavesum(a, [A0], [A1])
        a(f"v_mul_f32 v{A0}, {INV576}, v{A0}")
        for i in range(9):
            a(f"v_sub_f32 v{Dv+i}, v{X+i}, v{A0}")
        a(f"v_mul_f32 v{A2}, v{Dv}, v{Dv}")
        for i in range(1, 9):
            a(f"v_fmac_f32 v{A2}, v{Dv+i}, v{Dv+i}")
        wavesum(a, [A2], [A1])
        a(f"v_mul_f32 v{A2}, {INV576}, v{A2}")
        rbf(a, [(A0, A2)], [A1])
        a(f"v_add_f32 v{A2}, {EPS}, v{A2}")
        rbf(a, [(A2, A2)], [A1])
        a(f"v_sqrt_f32 v{A2}, v{A2}\n s_nop 0")
        rbf(a, [(A2, A2)], [A1])
        a(f"v_rcp_f32 v{A3}, v{A2}")
        for i in range(9):
            a(f"v_sub_f32 v{Dv+i}, v{X+i}, v{A0}")
        rbf(a, [(Dv, Dv+1), (Dv+2, Dv+3), (Dv+4, Dv+5), (Dv+6, Dv+7), (Dv+8, Dv+8)], [X, X+1, X+2, X+3, X+4])
        for i in range(9):
            fdiv(a, X + i, Dv + i, A3, A2, A4)
        for i in range(9):
            a(f"v_cvt_pk_bf16_f32 v{X+i}, v{X+i}, v{X+i}")
        a(f"v_lshlrev_b32 v{A4}, 2, v{vLANE}")
        for i in range(9):
            a(f"ds_write_b32 v{A4}, v{X+i} offset:{L_XD + 256*i}")
        a("s_waitcnt lgkmcnt(0)")
        prefetch(0, w0_m)
        a("L_lq_noln:")
        a("s_barrier")
        stamp(11)
        a(f"""
        s_lshl_b32 s28, s{sWAVE}, 4
        v_lshlrev_b32 v{vT}, 2, v{vG}
        v_add_u32 v{vT}, s28, v{vT}                      ; g*4 + wave*16
        """)
        for u in range(18):
            a(f"ds_read_b32 v{AXS+u}, v{vT} offset:{L_XD + 128*u}")
            if u == 8:
                a("s_waitcnt lgkmcnt(0)")
        lw0, lwe = a.label("L_lqw0"), a.label("L_lqwe")
        a(f"s_cmp_eq_u32 s{sWAVE}, 0\n s_cbranch_scc1 {lw0}")
        a(f"s_waitcnt vmcnt({8*(lq_m-lq_pre) + ncp})\n s_branch {lwe}\n {lw0}:\n s_waitcnt vmcnt({8*w0_m})\n {lwe}:")
        a("s_waitcnt lgkmcnt(0)")
        if dbgA:
            a("s_waitcnt vmcnt(0)")
        stamp(12)
        for u in range(18):
            ao = AO if True else AO
            for d in range(4):
                a(f"v_and_b32 v{ao+d}, v{AXS+u}, v{vMASK+d}")
            a("s_nop 1")
            c = "0" if u == 0 else f"v[{vS}:{vS+3}]"
            a(f"v_mfma_f32_16x16x32_bf16 v[{vS}:{vS+3}], v[{ao}:{ao+3}], v[{vW18+4*u}:{vW18+4*u+3}], {c}")
            if dbgB:
                a("s_nop 7")
        a(f"""
        v_lshlrev_b32 v{vT}, 5, v{vN}                 ; c*32
        v_and_b32 v{vT+1}, 1, v{vG}
        v_lshl_add_u32 v{vT}, v{vT+1}, 4, v{vT}       ; + (g&1)*16
        s_lshl_b32 s28, s{sWAVE}, 9
        v_add_u32 v{vT}, s28, v{vT}
        s_nop 4
        ds_write_b128 v{vT}, v[{vS}:{vS+3}] offset:{L_MRG}
        """)
        if lq_m < D or w0_m < D:
            l0, le = a.label("L_lqr0"), a.label("L_lqre")
            a(f"s_cmp_eq_u32 s{sWAVE}, 0\n s_cbranch_scc1 {l0}")
            r1 = lq_late if lq_late is not None else D
            prefetch(lq_m, max(lq_m, min(D, r1)))
            a(f"s_branch {le}\n {l0}:")
            prefetch(w0_m, max(w0_m, min(D, r1)))
            a(f"{le}:")
        a("""
        s_waitcnt lgkmcnt(0)
        s_barrier
        """)
        stamp(13)
        QS = 232
        a(f"""
        s_cmp_lg_u32 s{sWAVE}, 1
        s_cbranch_scc1 L_lq_qdone
        v_and_b32 v{vT}, 31, v{vLANE}
        v_lshlrev_b32 v{vT+1}, 4, v{vT}
        """)
        for w in range(4):
            a(f"ds_read_b128 v[{QS+4*w}:{QS+4*w+3}], v{vT+1} offset:{L_MRG + 512*w}")
        for w in range(4, 8):
            a(f"ds_read_b128 v[{160+4*w}:{160+4*w+3}], v{vT+1} offset:{L_MRG + 512*w}")
        a("s_waitcnt lgkmcnt(0)")
        for r in range(0, 4, 2):
            a(f"v_pk_add_f32 v[{QS+r}:{QS+r+1}], v[{QS+r}:{QS+r+1}], v[{QS+4+r}:{QS+5+r}]")
            a(f"v_pk_add_f32 v[{QS+8+r}:{QS+9+r}], v[{QS+8+r}:{QS+9+r}], v[{QS+12+r}:{QS+13+r}]")
            a(f"v_pk_add_f32 v[{176+r}:{177+r}], v[{176+r}:{177+r}], v[{180+r}:{181+r}]")
            a(f"v_pk_add_f32 v[{184+r}:{185+r}], v[{184+r}:{185+r}], v[{188+r}:{189+r}]")
        for r in range(0, 4, 2):
            a(f"v_pk_add_f32 v[{QS+r}:{QS+r+1}], v[{QS+r}:{QS+r+1}], v[{QS+8+r}:{QS+9+r}]")
            a(f"v_pk_add_f32 v[{176+r}:{177+r}], v[{176+r}:{177+r}], v[{184+r}:{185+r}]")
        for r in range(0, 4, 2):
            a(f"v_pk_add_f32 v[{QS+r}:{QS+r+1}], v[{QS+r}:{QS+r+1}], v[{176+r}:{177+r}]")
        a(f"""
        v_cvt_pk_bf16_f32 v{QS+4}, v{QS}, v{QS+1}
        v_cvt_pk_bf16_f32 v{QS+5}, v{QS+2}, v{QS+3}
        v_lshlrev_b32 v{vT}, 3, v{vT}
        ds_write_b64 v{vT}, v[{QS+4}:{QS+5}] offset:{L_QB}
        s_waitcnt lgkmcnt(0)
        L_lq_qdone:
        s_barrier
        """)
        stamp(14)
        r1 = lq_late if lq_late is not None else D
        if max(lq_m, min(D, r1)) < D or max(w0_m, min(D, r1)) < D:
            l0, le = a.label("L_lqs0"), a.label("L_lqse")
            a(f"s_cmp_eq_u32 s{sWAVE}, 0\n s_cbranch_scc1 {l0}")
            prefetch(max(lq_m, min(D, r1)), D)
            a(f"s_branch {le}\n {l0}:")
            prefetch(max(w0_m, min(D, r1)), D)
            a(f"{le}:")
    else:
        X = P
        a(f"""
        s_cmp_ge_u32 s{sWAVE}, 4
        s_cbranch_scc1 L_nox
        v_lshlrev_b32 v{vT}, 1, v{vLANE}
        s_mul_i32 s28, s{sWAVE}, 1152
        """)
        for i in range(9):
            a(f"buffer_load_ushort v{X+i}, v{vT}, s[{sT}:{sT+3}], s28 offen offset:{128*i} {xflags}")
        a("L_nox:")
        a(f"""
        v_lshlrev_b32 v{vT+1}, 13, v{vG}
        v_lshl_add_u32 v{vT+1}, v{vN}, 4, v{vT+1}        ; g*8192 + c*16
        """)
        for u in range(3):
            a(f"""
            s_add_u32 s29, s{sWAVE}, {8*u}
            s_lshl_b32 s30, s29, 2
            s_mul_i32 s28, s{sJ}, 72
            s_add_u32 s30, s30, s28
            s_mov_b32 s{sROW+u}, s30
            s_lshl_b32 s30, s30, 13
            s_lshl_b32 s31, s{sH}, 8
            s_add_u32 s30, s30, s31
            s_cmp_ge_u32 s29, 18
            s_cselect_b32 s30, {576*8192}, s30
            s_cselect_b32 s{sROW+u}, s28, s{sROW+u}
            buffer_load_dwordx4 v[{vWQ+4*u}:{vWQ+4*u+3}], v{vT+1}, s[{sU}:{sU+3}], s30 offen {wflags}
            """)
        by_class(lambda: prefetch(0, a0), lambda: prefetch(0, b0))
        MASKS()
        Dv = P + 10
        A0, A1, A2, A3, A4, A5 = (P + 20 + i for i in range(6))
        a(f"""
        s_cmp_ge_u32 s{sWAVE}, 4
        s_cbranch_scc1 L_noln
        s_waitcnt vmcnt({3 + 8*a0})
        """)
        stamp(10)
        for i in range(9):
            a(f"v_lshlrev_b32 v{X+i}, 16, v{X+i}")
        a(f"v_add_f32 v{A0}, v{X}, v{X+1}")
        for i in range(2, 9):
            a(f"v_add_f32 v{A0}, v{A0}, v{X+i}")
        wavesum(a, [A0], [A1])
        a(f"v_mul_f32 v{A0}, {INV576}, v{A0}")
        for i in range(9):
            a(f"v_sub_f32 v{Dv+i}, v{X+i}, v{A0}")
        a(f"v_mul_f32 v{A2}, v{Dv}, v{Dv}")
        for i in range(1, 9):
            a(f"v_fmac_f32 v{A2}, v{Dv+i}, v{Dv+i}")
        wavesum(a, [A2], [A1])
        a(f"v_mul_f32 v{A2}, {INV576}, v{A2}")
        rbf(a, [(A0, A2)], [A1])
        a(f"v_add_f32 v{A2}, {EPS}, v{A2}")
        rbf(a, [(A2, A2)], [A1])
        a(f"v_sqrt_f32 v{A2}, v{A2}\n s_nop 0")
        rbf(a, [(A2, A2)], [A1])
        a(f"v_rcp_f32 v{A3}, v{A2}")
        for i in range(9):
            a(f"v_sub_f32 v{Dv+i}, v{X+i}, v{A0}")
        rbf(a, [(Dv, Dv+1), (Dv+2, Dv+3), (Dv+4, Dv+5), (Dv+6, Dv+7), (Dv+8, Dv+8)], [X, X+1, X+2, X+3, X+4])
        for i in range(9):
            fdiv(a, X + i, Dv + i, A3, A2, A4)
        for i in range(9):
            a(f"v_cvt_pk_bf16_f32 v{X+i}, v{X+i}, v{X+i}")
        a(f"""
        s_mul_i32 s28, s{sWAVE}, {576*4}
        v_lshlrev_b32 v{A4}, 2, v{vLANE}
        v_add_u32 v{A4}, s28, v{A4}
        """)
        for i in range(9):
            a(f"ds_write_b32 v{A4}, v{X+i} offset:{L_XD + 256*i}")
        a("L_noln:")
        a("s_waitcnt lgkmcnt(0)\n s_barrier")
        stamp(11)
        AX = P
        AO = P + 8
        QA = P + 12
        a(f"""
        v_lshrrev_b32 v{vT}, 3, v{vN}                 ; m>>3
        v_mul_u32_u24 v{vT}, 576, v{vT}
        v_add_u32 v{vT}, v{vT}, v{vG}
        v_lshlrev_b32 v{vT}, 2, v{vT}                 ; ((m>>3)*576 + g)*4
        """)
        for u in range(3):
            a(f"""
            s_lshl_b32 s28, s{sROW+u}, 2
            v_add_u32 v{vT+1}, s28, v{vT}
            ds_read_b32 v{AX+2*u}, v{vT+1} offset:{L_XD}
            ds_read_b32 v{AX+2*u+1}, v{vT+1} offset:{L_XD + 2*576*4}
            """)
        by_class(lambda: a(f"s_waitcnt vmcnt({8*a0})"), lambda: a(f"s_waitcnt vmcnt({8*b0})"), lambda: a("s_waitcnt vmcnt(0)"))
        a("s_waitcnt lgkmcnt(0)")
        stamp(12)
        for u in range(3):
            for pp in range(2):
                for d in range(4):
                    a(f"v_and_b32 v{AO+d}, v{AX+2*u+pp}, v{vMASK+d}")
                a("s_nop 1")
                c = "0" if u == 0 else f"v[{QA+4*pp}:{QA+4*pp+3}]"
                a(f"v_mfma_f32_16x16x32_bf16 v[{QA+4*pp}:{QA+4*pp+3}], v[{AO}:{AO+3}], v[{vWQ+4*u}:{vWQ+4*u+3}], {c}")
                a("s_nop 1")
        a(f"""
        v_lshrrev_b32 v{vT}, 1, v{vG}
        v_lshlrev_b32 v{vT}, 9, v{vT}
        v_lshl_add_u32 v{vT}, v{vN}, 5, v{vT}
        v_and_b32 v{vT+1}, 1, v{vG}
        v_lshl_add_u32 v{vT}, v{vT+1}, 4, v{vT}
        s_nop 7
        """)
        a(f"s_lshl_b32 s28, s{sWAVE}, 11\n s_add_u32 s28, s28, {L_WG}\n v_add_u32 v{vT}, s28, v{vT}")
        for pp in range(2):
            a(f"ds_write_b128 v{vT}, v[{QA+4*pp}:{QA+4*pp+3}] offset:{pp*1024}")
        a("s_waitcnt lgkmcnt(0)\n s_barrier")
        stamp(13)
        by_class(lambda: prefetch(a0, a0 + a1), lambda: prefetch(b0, b0 + b1))
        G0 = P
        a(f"""
        s_cmp_lg_u32 s{sWAVE}, 7
        s_cbranch_scc1 L_qwait
        v_lshlrev_b32 v{vT}, 4, v{vLANE}
        v_add_u32 v{vT+1}, {L_WG}, v{vT}
        """)
        for half in range(2):
            base = G0 + 8 if half == 0 else G0 + 8
            for w in range(8):
                dst = (G0 + 4*half) if w == 0 else (G0 + 8 + 4*(w-1))
                a(f"ds_read_b128 v[{dst}:{dst+3}], v{vT+1} offset:{2048*w + 1024*half}")
            a("s_waitcnt lgkmcnt(0)")
            for w in range(1, 8):
                for r in range(4):
                    a(f"v_add_f32 v{G0+4*half+r}, v{G0+4*half+r}, v{G0+8+4*(w-1)+r}")
        a(f"""
        s_lshl_b32 s28, s{sH}, 3
        s_add_u32 s28, s28, s{sJ}
        s_lshl_b32 s28, s28, 11
        s_add_u32 s28, s28, {WS_QP}
        """)
        addtag(a, range(G0, G0 + 8))
        a(f"""
        buffer_store_dwordx4 v[{G0}:{G0+3}], v{vT}, s[{sWS}:{sWS+3}], s28 offen sc1
        buffer_store_dwordx4 v[{G0+4}:{G0+7}], v{vT}, s[{sWS}:{sWS+3}], s28 offen offset:1024 sc1
        v_lshrrev_b32 v{vT+1}, 5, v{vLANE}
        v_lshlrev_b32 v{vT+1}, 11, v{vT+1}
        v_and_b32 v{vT+2}, 31, v{vLANE}
        v_lshl_add_u32 v{vT+1}, v{vT+2}, 4, v{vT+1}      ; jj*2048 + c4*16
        s_lshl_b32 s28, s{sH}, 14
        s_lshl_b32 s29, s{sB}, 9
        s_add_u32 s28, s28, s29
        s_add_u32 s28, s28, {WS_QP}
        s_add_u32 s29, s28, 4096
        s_add_u32 s30, s28, 8192
        s_add_u32 s31, s28, 12288
        s_nop 1
        """)
        G1 = P + 8
        poll_head(a, "L_qpoll")
        psleep()
        for i in range(4):
            a(f"buffer_load_dwordx4 v[{G1+4*i}:{G1+4*i+3}], v{vT+1}, s[{sWS}:{sWS+3}], s{28+i} offen sc1")
        a("s_waitcnt vmcnt(0)")
        if not no_q:
            tagcheck(a, list(range(G1, G1 + 16)), vT + 3, "L_qpoll")
        stamp(14)
        for r in range(4):
            a(f"v_add_f32 v{G1+r}, v{G1+r}, v{G1+4+r}")
            a(f"v_add_f32 v{G1+8+r}, v{G1+8+r}, v{G1+12+r}")
        for r in range(4):
            a(f"v_add_f32 v{G1+r}, v{G1+r}, v{G1+8+r}")
        xrow(a, [G1, G1+1, G1+2, G1+3], [G1+4, G1+5, G1+6, G1+7], only32=True)
        a(f"""
        v_cvt_pk_bf16_f32 v{G1+8}, v{G1}, v{G1+1}
        v_cvt_pk_bf16_f32 v{G1+9}, v{G1+2}, v{G1+3}
        v_lshlrev_b32 v{vT+2}, 3, v{vT+2}
        ds_write_b64 v{vT+2}, v[{G1+8}:{G1+9}] offset:{L_QB}
        """)
        a(f"""
        s_waitcnt lgkmcnt(0)
        L_qwait:
        s_barrier
        """)
        by_class(lambda: prefetch(a0 + a1, D), lambda: prefetch(b0 + b1, D), lambda: prefetch(0, D))
    a(f"v_lshlrev_b32 v{vT}, 4, v{vG}")
    a("L_bare:")
    for j in range(4):
        a(f"ds_read_b128 v[{vQ+4*j}:{vQ+4*j+3}], v{vT} offset:{L_QB + 64*j}")
    a(f"""
    v_mov_b32 v{vM}, 0xff800000
    v_mov_b32 v{vL}, 0
    v_mov_b32 v{vO}, 0
    v_mov_b32 v{vO+1}, 0
    v_mov_b32 v{vO+2}, 0
    v_mov_b32 v{vO+3}, 0
    s_mov_b32 s{sCNT}, s{sNT}
    s_waitcnt lgkmcnt(0)
    """)
    stamp(1)
    dbg_max(3)
    if stop == "q":
        a("s_branch L_fin")

    P = vP
    s0, s1, s2, s3 = vT, vT + 1, vT + 2, vT + 3
    u0, u1 = vT + 4, vT + 5
    mx, mt, al, nm = vT + 6, vT + 7, vT + 8, vT + 9
    pk = vT + 10
    Aop = vT + 14
    assert Aop % 2 == 0
    a("L_loop:")
    for s in range(D):
        kb = vSTG + 32 * s
        vb = kb + 16
        a(f"s_waitcnt vmcnt({8*(D-1)+4})")
        for j in range(4):
            c = "0" if j == 0 else f"v[{vS}:{vS+3}]"
            a(f"v_mfma_f32_16x16x32_bf16 v[{vS}:{vS+3}], v[{kb+4*j}:{kb+4*j+3}], v[{vQ+4*j}:{vQ+4*j+3}], {c}")
        nextoff()
        kloads(s)
        a("s_nop 3")
        if no_compute:
            a(f"s_waitcnt vmcnt({8*(D-1)+4})")
            vloads(s)
            a(f"""
            s_sub_u32 s{sCNT}, s{sCNT}, 1
            s_cmp_eq_u32 s{sCNT}, 0
            s_cbranch_scc1 L_loop_end
            """)
            continue
        a(f"""
        v_cvt_pk_bf16_f32 v{u0}, v{vS}, v{vS+1}
        v_cvt_pk_bf16_f32 v{u1}, v{vS+2}, v{vS+3}
        v_lshlrev_b32 v{s0}, 16, v{u0}
        v_and_b32 v{s1}, s{sHI}, v{u0}
        v_lshlrev_b32 v{s2}, 16, v{u1}
        v_and_b32 v{s3}, s{sHI}, v{u1}
        v_mul_f32 v{s0}, s{sSCALE}, v{s0}
        v_mul_f32 v{s1}, s{sSCALE}, v{s1}
        v_mul_f32 v{s2}, s{sSCALE}, v{s2}
        v_mul_f32 v{s3}, s{sSCALE}, v{s3}
        v_cvt_pk_bf16_f32 v{u0}, v{s0}, v{s1}
        v_cvt_pk_bf16_f32 v{u1}, v{s2}, v{s3}
        v_lshlrev_b32 v{s0}, 16, v{u0}
        v_and_b32 v{s1}, s{sHI}, v{u0}
        v_lshlrev_b32 v{s2}, 16, v{u1}
        v_and_b32 v{s3}, s{sHI}, v{u1}
        v_max3_f32 v{mx}, v{s0}, v{s1}, v{s2}
        v_max3_f32 v{mx}, v{mx}, v{s3}, v{vM}
        v_mov_b32 v{mt}, v{mx}
        s_nop 1
        v_permlane16_swap_b32 v{mx}, v{mt}
        s_nop 1
        v_max_f32 v{mx}, v{mx}, v{mt}
        v_mov_b32 v{mt}, v{mx}
        s_nop 1
        v_permlane32_swap_b32 v{mx}, v{mt}
        s_nop 1
        v_max_f32 v{mx}, v{mx}, v{mt}
        v_sub_f32 v{al}, v{vM}, v{mx}
        v_mul_f32 v{nm}, s{sL2E}, v{mx}
        v_mul_f32 v{al}, s{sL2E}, v{al}
        v_fma_f32 v{s0}, v{s0}, s{sL2E}, -v{nm}
        v_fma_f32 v{s1}, v{s1}, s{sL2E}, -v{nm}
        v_fma_f32 v{s2}, v{s2}, s{sL2E}, -v{nm}
        v_fma_f32 v{s3}, v{s3}, s{sL2E}, -v{nm}
        v_exp_f32 v{al}, v{al}
        v_exp_f32 v{s0}, v{s0}
        v_exp_f32 v{s1}, v{s1}
        v_exp_f32 v{s2}, v{s2}
        v_exp_f32 v{s3}, v{s3}
        v_mov_b32 v{vM}, v{mx}
        v_mul_f32 v{vO}, v{vO}, v{al}
        v_mul_f32 v{vO+1}, v{vO+1}, v{al}
        v_mul_f32 v{vO+2}, v{vO+2}, v{al}
        v_mul_f32 v{vO+3}, v{vO+3}, v{al}
        v_cvt_pk_bf16_f32 v{pk}, v{s0}, v{s0}
        v_cvt_pk_bf16_f32 v{pk+1}, v{s1}, v{s1}
        v_cvt_pk_bf16_f32 v{pk+2}, v{s2}, v{s2}
        v_cvt_pk_bf16_f32 v{pk+3}, v{s3}, v{s3}
        v_fma_f32 v{vL}, v{vL}, v{al}, v{s0}
        v_add_f32 v{s1}, v{s1}, v{s2}
        v_add_f32 v{vL}, v{vL}, v{s3}
        v_add_f32 v{vL}, v{vL}, v{s1}
        s_waitcnt vmcnt({8*(D-1)+4})
        """)
        for r in range(4):
            ao = Aop + 4 * (r & 1)
            for d in range(4):
                a(f"v_and_b32 v{ao+d}, v{pk+r}, v{vMASK+d}")
            a("s_nop 1")
            a(f"v_mfma_f32_16x16x32_bf16 v[{vO}:{vO+3}], v[{ao}:{ao+3}], v[{vb+4*r}:{vb+4*r+3}], v[{vO}:{vO+3}]")
        vloads(s)
        a(f"""
        s_sub_u32 s{sCNT}, s{sCNT}, 1
        s_cmp_eq_u32 s{sCNT}, 0
        s_cbranch_scc1 L_loop_end
        """)
    a("s_branch L_loop\n L_loop_end:")
    stamp(2)
    xrow(a, [vL], [vT])
    a(f"""
    s_nop 7
    v_lshlrev_b32 v{vT}, 5, v{vN}                 ; c*32
    v_and_b32 v{vT+1}, 1, v{vG}
    v_lshl_add_u32 v{vT}, v{vT+1}, 4, v{vT}       ; + (g&1)*16
    s_lshl_b32 s28, s{sWAVE}, 9
    v_add_u32 v{vT}, s28, v{vT}
    ds_write_b128 v{vT}, v[{vO}:{vO+3}] offset:{L_MRG}
    s_lshl_b32 s28, s{sWAVE}, 3
    v_mov_b32 v{vT+2}, s28
    v_mov_b32 v{vT+4}, v{vM}
    v_mov_b32 v{vT+5}, v{vL}
    ds_write_b64 v{vT+2}, v[{vT+4}:{vT+5}] offset:{L_ML}
    """)

    def slice_idx():
        a(f"""
        s_mov_b32 s29, s{sSLICE}
        v_lshrrev_b32 v{vT}, 2, v{vLANE}
        v_mul_u32_u24 v{vT}, 9216, v{vT}
        v_and_b32 v{vT+1}, 3, v{vLANE}
        v_lshl_add_u32 v{vT}, v{vT+1}, 4, v{vT}
        v_lshlrev_b32 v{vT+1}, 4, v{vLANE}
        """)

    def dma_mat(which, sq):
        cnt = 9
        if which in "gu":
            ptr, lds0 = (pWG, L_WG) if which == "g" else (pWU, L_WU)
            srd(a, sT, ptr, 576 * 9216)
            a(f"""
            s_mul_i32 s28, s{sq}, {cnt*16*9216}
            s_lshl_b32 s30, s29, 6
            s_add_u32 s28, s28, s30
            s_mul_i32 s31, s{sq}, {cnt*1024}
            """)
            for i in range(cnt):
                a(f"s_add_u32 m0, s31, {lds0 + i*1024}\n s_nop 0")
                a(f"buffer_load_dwordx4 v{vT}, s[{sT}:{sT+3}], s28 offen {wflags} lds")
                a(f"s_add_u32 s28, s28, {16*9216}")
        else:
            srd(a, sT, pWD, 4608 * 1152)
            a(f"""
            s_mul_i32 s28, s29, {32*1152}
            s_mul_i32 s31, s{sq}, {cnt*1024}
            s_add_u32 s28, s28, s31
            """)
            for i in range(cnt):
                a(f"s_add_u32 m0, s31, {L_WD + i*1024}\n s_nop 0")
                a(f"buffer_load_dwordx4 v{vT+1}, s[{sT}:{sT+3}], s28 offen {wflags} lds")
                a(f"s_add_u32 s28, s28, 1024")

    def wo_dma(groups, sq, sg=None):
        a(f"""
        s_mov_b32 s29, s{sIDX}
        s_mul_i32 s30, s29, 21846
        s_lshr_b32 s30, s30, 16            ; h'
        s_mul_i32 s31, s30, 3
        s_sub_u32 s31, s29, s31            ; c
        """)
        srd(a, sT, pWO, 4096 * 1152)
        for q in range(3):
            a(f"""
            v_add_u32 v{vT+3}, {64*q}, v{vLANE}
            v_mul_u32_u24 v{vT+4}, 2731, v{vT+3}
            v_lshrrev_b32 v{vT+4}, 16, v{vT+4}          ; row = l0/24
            v_mul_u32_u24 v{vT+5}, 24, v{vT+4}
            v_sub_u32 v{vT+5}, v{vT+3}, v{vT+5}         ; piece
            v_mul_u32_u24 v{vT+4}, 1152, v{vT+4}
            v_lshl_add_u32 v{vT+q}, v{vT+5}, 4, v{vT+4}
            """)
        a(f"s_lshl_b32 s4, s{sq}, 2")
        if sg is not None:
            a(f"s_add_u32 s4, s4, s{sg}")
        a(f"""
        s_lshl_b32 s28, s30, 7
        s_lshl_b32 s29, s4, 3
        s_add_u32 s28, s28, s29
        s_mul_i32 s28, s28, 1152
        s_mul_i32 s31, s31, 384
        s_add_u32 s28, s28, s31
        s_mul_i32 s31, s4, {3*1024}
        """)
        for grp in groups:
            a(f"s_add_u32 s5, s28, {grp*8*1152}")
            for q in range(3):
                a(f"s_add_u32 m0, s31, {L_WG + (grp*3+q)*1024}\n s_nop 0")
                a(f"buffer_load_dwordx4 v{vT+q}, s[{sT}:{sT+3}], s5 offen {wflags} lds")

    def weights_early():
        lab_wo, lab_done = a.label("L_wwo"), a.label("L_wdone")
        a(f"s_cmp_lg_u32 s{sROLE}, 0\n s_cbranch_scc1 {lab_wo}")
        if early:
            slice_idx()
            for m in early:
                dma_mat(m, sWAVE)
        a(f"s_branch {lab_done}")
        a(f"{lab_wo}:")
        a(f"s_cmp_eq_u32 s{sROLE}, 2\n s_cbranch_scc1 {lab_done}")
        if wo_e > 0:
            wo_dma(list(range(wo_e)), sWAVE)
        a(f"{lab_done}:")

    def weights_late():
        late = [m for m in "gud" if m not in early]
        if not late:
            return
        slice_idx()
        sQ = 73
        a(f"s_and_b32 s{sQ}, s{sWAVE}, 3")
        lo, hi = late[:(len(late) + 1) // 2], late[(len(late) + 1) // 2:]
        lh, le = a.label("L_lateh"), a.label("L_latee")
        a(f"s_cmp_ge_u32 s{sWAVE}, 4\n s_cbranch_scc1 {lh}")
        for m in lo:
            dma_mat(m, sQ)
        a(f"s_branch {le}\n {lh}:")
        for m in hi:
            dma_mat(m, sQ)
        a(f"{le}:")
        a("s_waitcnt vmcnt(0)\n s_barrier")

    a(f"s_cmp_ge_u32 s{sWAVE}, 4\n s_cbranch_scc1 L_now")
    a(f"""
    s_cmp_ge_u32 s{sWAVE}, 2
    s_cbranch_scc1 L_noxr
    s_cmp_eq_u32 s{sROLE}, 0
    s_cbranch_scc1 L_noxr
    s_mul_i32 s28, s{sWAVE}, 112
    s_add_u32 s28, s28, s{sIDX}
    s_cmp_ge_u32 s28, 144
    s_cbranch_scc1 L_noxr
    """)
    srd(a, sT, pX, 4608)
    a(f"""
    v_and_b32 v{vT}, 3, v{vLANE}
    v_lshlrev_b32 v{vT+1}, 1, v{vT}
    s_lshl_b32 s28, s28, 3
    """)
    for b in range(4):
        a(f"buffer_load_ushort v{160+b}, v{vT+1}, s[{sT}:{sT+3}], s28 offen offset:{1152*b} nt")
    a("L_noxr:")
    if not no_w:
        weights_early()
    if tlbw:
        lab = a.label("L_notlb")
        a(f"s_cmp_lg_u32 s{sWAVE}, 3\n s_cbranch_scc1 {lab}")
        tw = vT + 8
        a(f"v_lshlrev_b32 v{tw}, {tlbw}, v{vLANE}\n v_add_u32 v{tw}, 0x{(1 << tlbw) - 128:x}, v{tw}")
        n_ws = max(1, WS_STAMP // (64 << tlbw) + 1)
        for i in range(n_ws):
            a(f"s_mov_b32 s28, {i * (64 << tlbw)}")
            a(f"buffer_load_dword v{tw+1}, v{tw}, s[{sWS}:{sWS+3}], s28 offen")
        for (ptr, nbytes) in ((pWG, 576*9216), (pWU, 576*9216), (pWD, 4608*1152), (pOUT, 4608), (pX, 4608)):
            srd(a, sT, ptr, nbytes)
            n = max(1, (nbytes + (64 << tlbw) - 1) // (64 << tlbw))
            if nbytes < 65536:
                a(f"v_mov_b32 v{tw+2}, 0")
                a(f"buffer_load_dword v{tw+1}, v{tw+2}, s[{sT}:{sT+3}], 0 offen")
            else:
                for i in range(n):
                    a(f"s_mov_b32 s28, {i * (64 << tlbw)}")
                    a(f"buffer_load_dword v{tw+1}, v{tw}, s[{sT}:{sT+3}], s28 offen nt")
        a(f"{lab}:")
    if codepf:
        code_prefetch(4, "L_tail0", "L_code_end", vT + 8)
    if dry:
        a(f"""
        s_waitcnt vmcnt(0) lgkmcnt(0)
        s_mov_b32 s{sDRY}, 1
        s_mov_b32 s{sWS+2}, 0
        s_mov_b32 s{sOUTN}, 0
        s_branch L_tail_dry
        L_dry_done:
        s_mov_b32 s{sDRY}, 0
        s_mov_b32 s{sWS+2}, {WS_SIZE}
        s_mov_b32 s{sOUTN}, 4608
        s_mov_b64 exec, -1
        """)
    a("L_now:")
    a("L_tail0:")
    a("s_waitcnt vmcnt(0) lgkmcnt(0)\n s_barrier")
    a("L_tail_dry:")
    dbg_max(1)
    mark_tail = len(a.L)
    stamp(3)

    MO = P
    MM = P + 32
    a(f"s_cmp_lg_u32 s{sWAVE}, 0\n s_cbranch_scc1 L_nomerge")
    a(f"""
    v_and_b32 v{vT}, 31, v{vLANE}
    v_lshlrev_b32 v{vT}, 4, v{vT}
    v_mov_b32 v{vT+1}, 0
    """)
    for i in range(4):
        a(f"ds_read_b128 v[{MM+4*i}:{MM+4*i+3}], v{vT+1} offset:{L_ML + 16*i}")
    for w in range(8):
        a(f"ds_read_b128 v[{MO+4*w}:{MO+4*w+3}], v{vT} offset:{L_MRG + 512*w}")
    a("s_waitcnt lgkmcnt(8)")
    ms = [MM + 2 * w for w in range(8)]
    mstar = vT + 2
    a(f"v_max3_f32 v{mstar}, v{ms[0]}, v{ms[1]}, v{ms[2]}")
    a(f"v_max3_f32 v{mstar}, v{mstar}, v{ms[3]}, v{ms[4]}")
    a(f"v_max3_f32 v{mstar}, v{mstar}, v{ms[5]}, v{ms[6]}")
    a(f"v_max_f32 v{mstar}, v{mstar}, v{ms[7]}")
    for w in range(8):
        a(f"v_sub_f32 v{ms[w]}, v{ms[w]}, v{mstar}")
    for w in range(8):
        a(f"v_mul_f32 v{ms[w]}, s{sL2E}, v{ms[w]}")
    for w in range(8):
        a(f"v_exp_f32 v{ms[w]}, v{ms[w]}")
    Lt = vT + 3
    a(f"s_nop 0\n v_mul_f32 v{Lt}, v{ms[0]}, v{ms[0]+1}")
    for w in range(1, 8):
        a(f"v_fmac_f32 v{Lt}, v{ms[w]}, v{ms[w]+1}")
    a("s_waitcnt lgkmcnt(0)")
    R = vT + 6
    assert R % 2 == 0
    for r in range(4):
        a(f"v_mul_f32 v{R+r}, v{ms[0]}, v{MO+r}")
    for w in range(1, 8):
        for r in range(4):
            a(f"v_fmac_f32 v{R+r}, v{ms[w]}, v{MO+4*w+r}")
    a(f"""
    v_cmp_eq_u32 vcc, 32, v{vLANE}
    v_mov_b32 v{vT+4}, 0
    s_nop 0
    v_cndmask_b32 v{R}, v{R}, v{mstar}, vcc
    v_cndmask_b32 v{R+1}, v{R+1}, v{Lt}, vcc
    v_cndmask_b32 v{R+2}, v{R+2}, v{vT+4}, vcc
    v_cndmask_b32 v{R+3}, v{R+3}, v{vT+4}, vcc
    """)
    addtag(a, range(R, R + 4))
    a(f"""
    v_lshlrev_b32 v{vT}, 4, v{vLANE}
    s_mul_i32 s28, s{sW}, 640
    s_add_u32 s28, s28, {WS_AP}
    v_cmp_gt_u32 vcc, 33, v{vLANE}
    s_and_saveexec_b64 s[30:31], vcc
    buffer_store_dwordx4 v[{R}:{R+3}], v{vT}, s[{sWS}:{sWS+3}], s28 offen sc1
    s_mov_b64 exec, s[30:31]
    L_nomerge:
    """)
    stamp(4)
    if stop == "attn":
        a("s_branch L_fin")

    a(f"s_cmp_eq_u32 s{sROLE}, 0\n s_cbranch_scc1 L_stageB")
    a(f"s_cmp_eq_u32 s{sROLE}, 2\n s_cbranch_scc1 L_reduce")
    if wo_e < 4 and not no_w:
        rest = list(range(wo_e, 4))
        a(f"s_cmp_eq_u32 s{sDRY}, 1\n s_cbranch_scc1 L_wo_nolate")
        a(f"s_and_b32 s73, s{sWAVE}, 3")
        lo_, hi_ = rest[:(len(rest) + 1) // 2], rest[(len(rest) + 1) // 2:]
        a(f"s_cmp_ge_u32 s{sWAVE}, 4\n s_cbranch_scc1 L_wo_hi")
        wo_dma(lo_, 73)
        a("s_branch L_wo_lw\n L_wo_hi:")
        if hi_:
            wo_dma(hi_, 73)
        a("L_wo_lw:\n s_waitcnt vmcnt(0)\n s_barrier\n L_wo_nolate:")
    a(f"""
    s_mov_b32 s29, s{sIDX}
    s_mul_i32 s{sH}, s29, 21846
    s_lshr_b32 s{sH}, s{sH}, 16         ; h'
    s_mul_i32 s31, s{sH}, 3
    s_sub_u32 s{sJ}, s29, s31           ; c
    """)
    WB = 64
    a(f"""
    v_lshrrev_b32 v{vT}, 2, v{vN}                    ; r
    v_lshl_add_u32 v{vT}, v{vG}, 3, v{vT}            ; 8g + r
    v_mul_u32_u24 v{vT}, 384, v{vT}
    v_and_b32 v{vT+1}, 3, v{vLANE}
    v_lshl_add_u32 v{vT}, v{vT+1}, 3, v{vT}          ; + cc*8
    s_lshl_b32 s28, s{sWAVE}, 5
    s_add_u32 s28, s28, {L_WG}
    v_add_u32 v{vT}, s28, v{vT}                      ; + T*32 + base
    """)
    for ks in range(4):
        a(f"ds_read_b64_tr_b16 v[{WB+4*ks}:{WB+4*ks+1}], v{vT} offset:{ks*32*384}")
        a(f"ds_read_b64_tr_b16 v[{WB+4*ks+2}:{WB+4*ks+3}], v{vT} offset:{ks*32*384 + 4*384}")
    a(f"s_cmp_ge_u32 s{sWAVE}, 4\n s_cbranch_scc1 L_wo_gather_skip")
    a("s_waitcnt lgkmcnt(0)")
    for ks in range(4):
        a(f"ds_read_b64_tr_b16 v[{WB+16+4*ks}:{WB+16+4*ks+1}], v{vT} offset:{ks*32*384 + 256}")
        a(f"ds_read_b64_tr_b16 v[{WB+16+4*ks+2}:{WB+16+4*ks+3}], v{vT} offset:{ks*32*384 + 4*384 + 256}")
    GA = P
    a(f"""
    v_lshrrev_b32 v{vT+1}, 5, v{vLANE}               ; s
    v_mul_u32_u24 v{vT+2}, {640*8 if xmap else 640}, v{vT+1}
    v_and_b32 v{vT+3}, 31, v{vLANE}                  ; c4
    v_lshl_add_u32 v{vT+4}, v{vT+3}, 4, v{vT+2}      ; s*stride + c4*16
    v_add_u32 v{vT+5}, 512, v{vT+2}                  ; s*stride + 512
    """)
    if xmap:
        a(f"""
        s_and_b32 s28, s{sH}, 7
        s_lshl_b32 s29, s{sWAVE}, 4
        s_add_u32 s28, s28, s29
        s_lshr_b32 s29, s{sH}, 3
        s_lshl_b32 s29, s29, 6
        s_add_u32 s28, s28, s29
        """)
    else:
        a(f"""
        s_lshl_b32 s28, s{sWAVE}, 6
        s_lshl_b32 s29, s{sH}, 1
        s_add_u32 s28, s28, s29
        """)
    a(f"""
    s_mul_i32 s28, s28, 640
    s_add_u32 s28, s28, {WS_AP}
    """)
    GAs = [96 + 8 * k for k in range(3)]
    def ap_issue(k):
        a(f"buffer_load_dwordx4 v[{GAs[k]}:{GAs[k]+3}], v{vT+4}, s[{sWS}:{sWS+3}], s28 offen sc1")
        a(f"buffer_load_dwordx4 v[{GAs[k]+4}:{GAs[k]+7}], v{vT+5}, s[{sWS}:{sWS+3}], s28 offen sc1")
    def ap_consume(k):
        for r in range(6):
            a(f"v_mov_b32 v{GA+r}, v{GAs[k]+r}")
    ppoll(a, "L_apoll", ns[0], 2, ap_issue, lambda k: list(range(GAs[k], GAs[k] + 8)), vT + 6, ap_consume, pollsleep, stg)
    tstamp(9)
    mm, ll = GA + 4, GA + 5
    a(f"""
    v_and_b32 v{mm}, s{sHI}, v{mm}
    v_mov_b32 v{vT+6}, v{mm}
    v_mov_b32 v{vT+7}, v{mm}
    s_nop 1
    v_permlane32_swap_b32 v{vT+6}, v{vT+7}
    s_nop 1
    v_max_f32 v{vT+6}, v{vT+6}, v{vT+7}             ; m*
    v_sub_f32 v{mm}, v{mm}, v{vT+6}
    v_mul_f32 v{mm}, s{sL2E}, v{mm}
    v_exp_f32 v{mm}, v{mm}                           ; a
    s_nop 0
    v_mul_f32 v{ll}, v{ll}, v{mm}
    v_mul_f32 v{GA}, v{GA}, v{mm}
    v_mul_f32 v{GA+1}, v{GA+1}, v{mm}
    v_mul_f32 v{GA+2}, v{GA+2}, v{mm}
    v_mul_f32 v{GA+3}, v{GA+3}, v{mm}
    """)
    xrow(a, [GA, GA+1, GA+2, GA+3, ll], [GA+8, GA+9, GA+10, GA+11, GA+12], only32=True)
    a(f"v_rcp_f32 v{vT+6}, v{ll}\n s_nop 0")
    for r in range(4):
        fdiv(a, GA + 8 + r, GA + r, vT + 6, ll, vT + 7)
    a(f"""
    v_cvt_pk_bf16_f32 v{GA+12}, v{GA+8}, v{GA+9}
    v_cvt_pk_bf16_f32 v{GA+13}, v{GA+10}, v{GA+11}
    v_lshlrev_b32 v{vT+3}, 3, v{vT+3}
    s_lshl_b32 s28, s{sWAVE}, 8
    v_add_u32 v{vT+3}, s28, v{vT+3}
    ds_write_b64 v{vT+3}, v[{GA+12}:{GA+13}] offset:{L_OB}
    L_wo_gather_skip:
    s_waitcnt lgkmcnt(0)
    s_barrier
    """)
    AOP = P + 16
    a(f"""
    v_and_b32 v{vT}, 3, v{vN}
    v_lshlrev_b32 v{vT}, 8, v{vT}
    v_lshl_add_u32 v{vT}, v{vG}, 4, v{vT}           ; (m&3)*256 + g*16
    """)
    for ks in range(4):
        a(f"ds_read_b128 v[{AOP+4*ks}:{AOP+4*ks+3}], v{vT} offset:{L_OB + 64*ks}")
    YD = P + 32
    a("s_waitcnt lgkmcnt(0)")
    for ks in range(4):
        c = "0" if ks == 0 else f"v[{YD}:{YD+3}]"
        a(f"v_mfma_f32_16x16x32_bf16 v[{YD}:{YD+3}], v[{AOP+4*ks}:{AOP+4*ks+3}], v[{WB+4*ks}:{WB+4*ks+3}], {c}")
    a(f"s_cmp_ge_u32 s{sWAVE}, 4\n s_cbranch_scc1 L_wo_one")
    for ks in range(4):
        c = "0" if ks == 0 else f"v[{YD+4}:{YD+7}]"
        a(f"v_mfma_f32_16x16x32_bf16 v[{YD+4}:{YD+7}], v[{AOP+4*ks}:{AOP+4*ks+3}], v[{WB+16+4*ks}:{WB+16+4*ks+3}], {c}")
    a("L_wo_one:")
    if cmajY:
        a(f"""
        s_mul_i32 s28, s{sJ}, 48
        s_lshl_b32 s29, s{sWAVE}, 2
        s_add_u32 s28, s28, s29
        s_lshl_b32 s28, s28, 11
        s_lshl_b32 s29, s{sH}, 6
        s_add_u32 s28, s28, s29
        s_add_u32 s28, s28, {WS_Y}
        s_add_u32 s30, s28, {32*2048}
        v_lshrrev_b32 v{vT}, 2, v{vN}
        v_lshlrev_b32 v{vT}, 11, v{vT}
        v_and_b32 v{vT+1}, 3, v{vN}
        v_lshl_add_u32 v{vT}, v{vT+1}, 4, v{vT}
        s_nop 6
        """)
    else:
        a(f"""
        s_mul_i32 s28, s{sH}, 9216
        s_mul_i32 s29, s{sJ}, {192*16}
        s_add_u32 s28, s28, s29
        s_lshl_b32 s29, s{sWAVE}, 8
        s_add_u32 s28, s28, s29
        s_add_u32 s28, s28, {WS_Y}
        s_add_u32 s30, s28, 2048
        v_lshlrev_b32 v{vT}, 4, v{vN}
        s_nop 7
        """)
    addtag(a, range(YD, YD + 4))
    a(f"""
    s_mov_b64 exec, 0xffff
    buffer_store_dwordx4 v[{YD}:{YD+3}], v{vT}, s[{sWS}:{sWS+3}], s28 offen sc1
    s_mov_b64 exec, -1
    s_cmp_ge_u32 s{sWAVE}, 4
    s_cbranch_scc1 L_reduce
    """)
    addtag(a, range(YD + 4, YD + 8))
    a(f"""
    s_mov_b64 exec, 0xffff
    buffer_store_dwordx4 v[{YD+4}:{YD+7}], v{vT}, s[{sWS}:{sWS+3}], s30 offen sc1
    s_mov_b64 exec, -1
    """)
    a("L_reduce:")
    tstamp(10)
    sTASK = 72
    a(f"""
    s_mov_b32 s{sTASK}, s{sIDX}
    s_mul_i32 s28, s{sWAVE}, 112
    s_add_u32 s{sTASK}, s{sTASK}, s28
    s_cmp_ge_u32 s{sTASK}, 144
    s_cbranch_scc1 L_fin
    s_cmp_ge_u32 s{sWAVE}, 2
    s_cbranch_scc1 L_fin
    """)
    XR = 160
    a(f"""
    v_and_b32 v{vT}, 3, v{vLANE}                     ; col
    v_lshlrev_b32 v{vT+1}, 1, v{vT}
    v_lshrrev_b32 v{vT+2}, 2, v{vLANE}               ; hh
    v_mul_u32_u24 v{vT+2}, 9216, v{vT+2}
    v_lshl_add_u32 v{vT+2}, v{vT}, 4, v{vT+2}
    v_lshlrev_b32 v{vT+5}, 4, v{vLANE}               ; lane*16
    """)
    vY = vT + 5 if cmajY else vT + 2
    vZ = vT + 5 if cmajZ else vT + 2
    if cmajY:
        a(f"s_lshl_b32 s28, s{sTASK}, 11\n s_add_u32 s28, s28, {WS_Y}\n s_add_u32 s29, s28, 1024")
    else:
        a(f"s_lshl_b32 s28, s{sTASK}, 6\n s_add_u32 s28, s28, {WS_Y}\n s_add_u32 s29, s28, {16*9216}")
    YG = P + 4
    YGs = [P + 60 + 8 * k for k in range(3)]
    def y_issue(k):
        a(f"buffer_load_dwordx4 v[{YGs[k]}:{YGs[k]+3}], v{vY}, s[{sWS}:{sWS+3}], s28 offen sc1")
        a(f"buffer_load_dwordx4 v[{YGs[k]+4}:{YGs[k]+7}], v{vY}, s[{sWS}:{sWS+3}], s29 offen sc1")
    def y_consume(k):
        for r in range(4):
            a(f"v_add_f32 v{YG+r}, v{YGs[k]+r}, v{YGs[k]+4+r}")
    ppoll(a, "L_ypoll", ns[1], 2, y_issue, lambda k: list(range(YGs[k], YGs[k] + 8)), vT + 3, y_consume, pollsleep, stg,
          probe=((lambda: a(f"buffer_load_dword v{YGs[0]}, v{vY}, s[{sWS}:{sWS+3}], s28 offen sc1")), YGs[0], "1") if probe[1] else None, presleep=presl[1])
    tstamp(11)
    if canB:
        a(f"""
        s_lshl_b32 s30, s{sTASK}, 7
        s_add_u32 s30, s30, {WS_CANB}
        v_mov_b32 v{vT+4}, 0
        s_mov_b64 exec, 1
        buffer_store_dword v{vTAG}, v{vT+4}, s[{sWS}:{sWS+3}], s30 offen sc1
        s_mov_b64 exec, -1
        """)
    hs = [YG, YG + 1, YG + 2, YG + 3]
    row16(a, hs, ctrls=("row_ror:4", "row_ror:8"))
    xrow(a, hs, [YG + 4, YG + 5, YG + 6, YG + 7])
    rbf(a, [(YG, YG+1), (YG+2, YG+3)], [YG+4, YG+5])
    for b in range(4):
        a(f"v_lshlrev_b32 v{XR+b}, 16, v{XR+b}")
        a(f"v_add_f32 v{YG+b}, v{YG+b}, v{XR+b}")
    rbf(a, [(YG, YG+1), (YG+2, YG+3)], [YG+4, YG+5])
    HK = P + 16
    for b in range(4):
        a(f"v_mov_b32 v{HK+b}, v{YG+b}")
    addtag(a, hs)
    a(f"""
    s_lshl_b32 s28, s{sTASK}, 6
    s_add_u32 s28, s28, {WS_HB}
    v_lshlrev_b32 v{vT+3}, 4, v{vT}
    s_mov_b64 exec, 0xf
    buffer_store_dwordx4 v[{YG}:{YG+3}], v{vT+3}, s[{sWS}:{sWS+3}], s28 offen sc1
    s_mov_b64 exec, -1
    """)
    stamp(7)
    ZG = P + 20
    ZGs = [64, 100, 136]
    sPZ = 73
    ZS = [4, 5, 6, 7, 62, 63, 66, 67, 71]
    if cmajZ:
        a(f"s_mul_i32 s28, s{sTASK}, 9216\n s_add_u32 s28, s28, {WS_Z}")
        a(f"s_lshl_b32 s{sPZ}, s{sTASK}, 6\n s_add_u32 s{sPZ}, s{sPZ}, s28")
        for i in range(9):
            a(f"s_add_u32 s{ZS[i]}, s28, {i*1024}")
    else:
        a(f"s_lshl_b32 s28, s{sTASK}, 6\n s_add_u32 s28, s28, {WS_Z}")
        if canC:
            a(f"s_lshl_b32 s{sPZ}, s{sTASK}, 7\n s_add_u32 s{sPZ}, s{sPZ}, {WS_CANC}")
        else:
            a(f"s_mul_i32 s{sPZ}, s{sTASK}, 9216\n s_add_u32 s{sPZ}, s{sPZ}, s28")
        for i in range(9):
            a(f"s_add_u32 s{ZS[i]}, s28, {i*16*9216}")
    def z_issue(k):
        for i in range(9):
            a(f"buffer_load_dwordx4 v[{ZGs[k]+4*i}:{ZGs[k]+4*i+3}], v{vZ}, s[{sWS}:{sWS+3}], s{ZS[i]} offen sc1")
    def z_consume(k):
        z = ZGs[k]
        for (x, y) in ((0, 1), (2, 3), (4, 5), (6, 7), (0, 2), (4, 6), (0, 4)):
            for r in range(0, 4, 2):
                a(f"v_pk_add_f32 v[{z+4*x+r}:{z+4*x+r+1}], v[{z+4*x+r}:{z+4*x+r+1}], v[{z+4*y+r}:{z+4*y+r+1}]")
        for r in range(0, 4, 2):
            a(f"v_pk_add_f32 v[{ZG+r}:{ZG+r+1}], v[{z+r}:{z+r+1}], v[{z+32+r}:{z+32+r+1}]")
    ppoll(a, "L_zpoll", ns[3], 9, z_issue, lambda k: list(range(ZGs[k], ZGs[k] + 36)), vT + 3, z_consume, pollsleep, stg,
          probe=((lambda: a(f"buffer_load_dword v{ZGs[0]}, v{vZ}, s[{sWS}:{sWS+3}], s{sPZ} offen sc1")), ZGs[0], "1") if probe[3] else None, presleep=presl[3])
    tstamp(12)
    zs = [ZG, ZG + 1, ZG + 2, ZG + 3]
    row16(a, zs, ctrls=("row_ror:4", "row_ror:8"))
    xrow(a, zs, [ZG + 4, ZG + 5, ZG + 6, ZG + 7])
    rbf(a, [(ZG, ZG+1), (ZG+2, ZG+3)], [ZG+4, ZG+5])
    for b in range(4):
        a(f"v_add_f32 v{ZG+b}, v{ZG+b}, v{HK+b}")
    a(f"v_cvt_pk_bf16_f32 v{ZG+4}, v{ZG}, v{ZG+1}")
    a(f"v_cvt_pk_bf16_f32 v{ZG+5}, v{ZG+2}, v{ZG+3}")
    srd(a, sT, pOUT, f"s{sOUTN}")
    a(f"""
    s_lshl_b32 s28, s{sTASK}, 3
    s_mov_b64 exec, 0xf
    buffer_store_short v{ZG+4}, v{vT+1}, s[{sT}:{sT+3}], s28 offen {outfl}
    buffer_store_short_d16_hi v{ZG+4}, v{vT+1}, s[{sT}:{sT+3}], s28 offen offset:1152 {outfl}
    buffer_store_short v{ZG+5}, v{vT+1}, s[{sT}:{sT+3}], s28 offen offset:2304 {outfl}
    buffer_store_short_d16_hi v{ZG+5}, v{vT+1}, s[{sT}:{sT+3}], s28 offen offset:3456 {outfl}
    s_mov_b64 exec, -1
    s_cmp_lg_u32 s{sTASK}, 0
    s_cbranch_scc1 L_fin
    v_mov_b32 v{ZG+6}, s{sE}
    v_mov_b32 v{ZG+7}, 0
    s_mov_b64 exec, 1
    buffer_store_dword v{ZG+6}, v{ZG+7}, s[{sWS}:{sWS+3}], 0 offen sc1
    s_mov_b64 exec, -1
    s_branch L_fin
    """)

    a("L_stageB:")
    if gate == 'pair' or isinstance(gate, int) and not isinstance(gate, bool) and gate > 0:
        ns_ = 0 if gate == 'pair' else gate
        a(f"s_cmp_lg_u32 s{sWAVE}, 1\n s_cbranch_scc1 L_gate_done")
        a(f"""
        s_andn2_b32 s29, s{sW}, {16 if rmap else 8}
        v_mul_u32_u24 v{vT}, 37, v{vLANE}
        v_add_u32 v{vT}, s29, v{vT}
        v_and_b32 v{vT}, 255, v{vT}
        s_xor_b32 s28, s{sW}, {16 if rmap else 8}
        v_mov_b32 v{vT+1}, s28
        v_cmp_eq_u32 vcc, {ns_}, v{vLANE}
        s_mov_b32 s28, {WS_AP + 512}
        s_nop 0
        v_cndmask_b32 v{vT}, v{vT}, v{vT+1}, vcc
        v_mul_u32_u24 v{vT}, 640, v{vT}
        s_cmp_eq_u32 s{sDRY}, 1
        s_cbranch_scc1 L_gate_done
        s_mov_b64 exec, {hex((1 << (ns_ + 1)) - 1)}
        """)
        poll_head(a, "L_gpoll")
        if gsleep:
            a(f"s_sleep {gsleep}")
        a(f"buffer_load_dword v{vT+2}, v{vT}, s[{sWS}:{sWS+3}], s28 offen sc1")
        a("s_waitcnt vmcnt(0)")
        tagcheck(a, [vT+2], vT + 6, "L_gpoll")
        a("s_mov_b64 exec, -1")
        a("L_gate_done:\n s_barrier")
    elif gate:
        a(f"s_cmp_lg_u32 s{sWAVE}, 1\n s_cbranch_scc1 L_gate_done")
        a(f"""
        v_mul_u32_u24 v{vT}, 640, v{vLANE}
        s_mov_b32 s28, {WS_AP + 512}
        s_mov_b32 s29, {WS_AP + 512 + 64*640}
        s_mov_b32 s30, {WS_AP + 512 + 128*640}
        s_mov_b32 s31, {WS_AP + 512 + 192*640}
        """)
        poll_head(a, "L_gpoll")
        for i in range(4):
            a(f"buffer_load_dword v{vT+2+i}, v{vT}, s[{sWS}:{sWS+3}], s{28+i} offen sc1")
        a("s_waitcnt vmcnt(0)")
        tagcheck(a, [vT+2, vT+3, vT+4, vT+5], vT + 6, "L_gpoll")
        a("L_gate_done:\n s_barrier")
    a(f"""
    s_cmp_lg_u32 s{sWAVE}, 7
    s_cbranch_scc1 L_noones
    v_mov_b32 v{P}, 0x3f803f80
    v_mov_b32 v{P+1}, 0x3f803f80
    v_mov_b32 v{P+2}, 0x3f803f80
    v_mov_b32 v{P+3}, 0x3f803f80
    v_lshlrev_b32 v{vT}, 4, v{vLANE}
    ds_write_b128 v{vT}, v[{P}:{P+3}] offset:{L_HB + 4*1152}
    s_mov_b64 exec, 0xff
    ds_write_b128 v{vT}, v[{P}:{P+3}] offset:{L_HB + 4*1152 + 1024}
    s_mov_b64 exec, -1
    L_noones:
    """)
    BB = 64
    WDd = 100
    AB = P
    aH, aA, aG, aR, aF1, aF2, aF3, aW = (vT + 4 + i for i in range(8))
    aP = vT + 12
    aBB, aWD = vT + 14, vT + 15
    if bdec:
        late = [m for m in "gud" if m not in early]
        if not no_w and late:
            a(f"s_cmp_lt_u32 s{sWAVE}, 4\n s_cbranch_scc1 L_b_noload")
            a(f"s_cmp_eq_u32 s{sDRY}, 1\n s_cbranch_scc1 L_b_noload")
            slice_idx()
            a(f"s_and_b32 s73, s{sWAVE}, 3")
            for m in late:
                if wd_after and m == "d":
                    continue
                dma_mat(m, 73)
            a("L_b_noload:")
        a(f"""
        v_lshrrev_b32 v{vT}, 2, v{vN}
        v_lshl_add_u32 v{vT}, v{vG}, 3, v{vT}            ; 8g + r
        v_and_b32 v{vT+1}, 3, v{vLANE}                   ; cc
        v_lshlrev_b32 v{aBB}, 6, v{vT}
        v_lshl_add_u32 v{aBB}, v{vT+1}, 3, v{aBB}        ; (8g+r)*64 + cc*8
        s_and_b32 s28, s{sWAVE}, 1
        s_lshl_b32 s28, s28, 5                           ; t*32
        s_bfe_u32 s29, s{sWAVE}, 0x10001
        s_mul_i32 s29, s29, {L_WU - L_WG}
        s_add_u32 s28, s28, s29
        s_add_u32 s28, s28, {L_WG}
        s_lshr_b32 s29, s{sWAVE}, 2
        s_mul_i32 s29, s29, {9*2048}
        s_add_u32 s28, s28, s29
        v_add_u32 v{aBB}, s28, v{aBB}
        v_mul_u32_u24 v{aWD}, 1152, v{vT}
        v_lshl_add_u32 v{aWD}, v{vT+1}, 3, v{aWD}
        s_lshl_b32 s28, s{sWAVE}, {7 if zpack else 5}
        s_add_u32 s28, s28, {L_WD}
        v_add_u32 v{aWD}, s28, v{aWD}
        s_lshl_b32 s28, s{sWAVE}, 8
        v_lshlrev_b32 v{aH}, 1, v{vLANE}
        v_add_u32 v{aH}, s28, v{aH}
        v_and_b32 v{aA}, 3, v{vN}
        v_cmp_eq_u32 vcc, 4, v{vN}
        v_mov_b32 v{aG}, 4
        s_lshr_b32 s28, s{sWAVE}, 2
        v_cndmask_b32 v{aA}, v{aA}, v{aG}, vcc           ; row(m)
        v_mul_u32_u24 v{aA}, 1152, v{aA}
        s_mul_i32 s28, s28, {9*64}
        v_lshl_add_u32 v{aA}, v{vG}, 4, v{aA}
        v_add_u32 v{aA}, s28, v{aA}
        s_lshl_b32 s28, s{sWAVE}, 10
        v_lshlrev_b32 v{aG}, 4, v{vLANE}
        v_add_u32 v{aG}, s28, v{aG}
        s_lshl_b32 s28, s{sWAVE}, 8
        v_lshlrev_b32 v{aR}, 4, v{vN}
        v_add_u32 v{aR}, s28, v{aR}                      ; wave*256 + n*16
        v_lshrrev_b32 v{aW}, 2, v{vLANE}                 ; f'
        v_and_b32 v{aF3}, 3, v{vLANE}                    ; b
        s_lshl_b32 s28, s{sWAVE}, 10
        v_lshlrev_b32 v{aF2}, 4, v{aW}
        v_add_u32 v{aF2}, s28, v{aF2}                    ; tile*1024 + f'*16
        v_lshl_add_u32 v{aF1}, v{aF3}, 2, v{aF2}         ; + b*4
        s_lshl_b32 s28, s{sWAVE}, 5
        v_lshlrev_b32 v{aW}, 1, v{aW}
        v_add_u32 v{aW}, s28, v{aW}                      ; (tile*16 + f')*2
        v_lshl_add_u32 v{aW}, v{aF3}, 6, v{aW}           ; + b*64
        v_lshlrev_b32 v{vT}, 4, v{aF3}                   ; b*16
        v_mov_b32 v{vT+1}, 64
        v_and_b32 v{vT+2}, 4, v{vLANE}
        v_cmp_ne_u32 vcc, 0, v{vT+2}
        v_lshrrev_b32 v{vT+2}, 3, v{vLANE}
        v_lshlrev_b32 v{vT+2}, 8, v{vT+2}                ; (l>>3)*256
        v_cndmask_b32 v{vT}, v{vT}, v{vT+1}, vcc
        v_lshl_add_u32 v{aF3}, v{aF3}, 2, v{vT}
        v_add_u32 v{aF3}, v{aF3}, v{vT+2}
        s_mov_b32 s64, 0xf0f0f0f0
        s_mov_b32 s65, 0xf0f0f0f0
        v_lshlrev_b32 v{aP}, 4, v{vLANE}
        """)
        def bb_reads():
            for ks in range(9):
                a(f"ds_read_b64_tr_b16 v[{BB+4*ks}:{BB+4*ks+1}], v{aBB} offset:{ks*2048}")
                a(f"ds_read_b64_tr_b16 v[{BB+4*ks+2}:{BB+4*ks+3}], v{aBB} offset:{ks*2048+256}")
                if ks == 5:
                    a("s_waitcnt lgkmcnt(0)")
        pre_gate = "g" in early
        if pre_gate:
            a(f"s_bitcmp1_b32 s{sWAVE}, 1\n s_cbranch_scc1 L_b_nopre")
            bb_reads()
            a("L_b_nopre:")
        a(f"s_cmp_ge_u32 s{sWAVE}, 4\n s_cbranch_scc1 L_b_loadwait")
        HGs = [P + 48, P + 60, P + 72]
        a(f"""
        s_lshl_b32 s28, s{sWAVE}, 11
        s_add_u32 s28, s28, {WS_HB}
        s_add_u32 s29, s28, 1024
        s_mov_b32 s31, {WS_HB + 8192}
        """)
        for k in range(ns[2]):
            for r in range(4):
                a(f"v_mov_b32 v{HGs[k]+8+r}, v{vTAG}")
        def h_issue(k, third):
            a(f"buffer_load_dwordx4 v[{HGs[k]}:{HGs[k]+3}], v{aP}, s[{sWS}:{sWS+3}], s28 offen sc1")
            a(f"buffer_load_dwordx4 v[{HGs[k]+4}:{HGs[k]+7}], v{aP}, s[{sWS}:{sWS+3}], s29 offen sc1")
            if third:
                a(f"buffer_load_dwordx4 v[{HGs[k]+8}:{HGs[k]+11}], v{aP}, s[{sWS}:{sWS+3}], s31 offen sc1")
        def h_consume(k, third):
            for b in range(4):
                a(f"ds_write_b16_d16_hi v{aH}, v{HGs[k]+b} offset:{L_HB + 1152*b}")
                a(f"ds_write_b16_d16_hi v{aH}, v{HGs[k]+4+b} offset:{L_HB + 1152*b + 128}")
            if third:
                for b in range(4):
                    a(f"ds_write_b16_d16_hi v{aH}, v{HGs[k]+8+b} offset:{L_HB + 1152*b + 1024}")
        hp = ((lambda: a(f"buffer_load_dword v{HGs[0]}, v{aP}, s[{sWS}:{sWS+3}], s28 offen sc1")), HGs[0], "1") if probe[2] else None
        a(f"s_cmp_lg_u32 s{sWAVE}, 0\n s_cbranch_scc1 L_h1")
        ppoll(a, "L_hpoll2", ns[2], 3, lambda k: h_issue(k, True), lambda k: list(range(HGs[k], HGs[k] + 12)), vT + 13,
              lambda k: h_consume(k, True), pollsleep, stg, probe=hp, presleep=presl[2])
        a("s_branch L_h2\n L_h1:")
        ppoll(a, "L_hpoll1", ns[2], 2, lambda k: h_issue(k, False), lambda k: list(range(HGs[k], HGs[k] + 8)), vT + 13,
              lambda k: h_consume(k, False), pollsleep, stg, probe=hp, presleep=presl[2])
        a("s_branch L_h2")
        a("L_b_loadwait:\n s_waitcnt vmcnt(0)")
        if wd_after and "d" in late and not no_w:
            a(f"s_cmp_eq_u32 s{sDRY}, 1\n s_cbranch_scc1 L_b_nod")
            slice_idx()
            a(f"s_and_b32 s73, s{sWAVE}, 3")
            dma_mat("d", 73)
            a("L_b_nod:")
        stamp(15)
        a("L_h2:")
        stamp(5)
        a("s_waitcnt lgkmcnt(0)\n s_barrier")
        GD = P + 40
        def mm(ks):
            c = "0" if ks == 0 else f"v[{GD}:{GD+3}]"
            a(f"v_mfma_f32_16x16x32_bf16 v[{GD}:{GD+3}], v[{AB+4*ks}:{AB+4*ks+3}], v[{BB+4*ks}:{BB+4*ks+3}], {c}")
        def a_read(ks):
            a(f"ds_read_b128 v[{AB+4*ks}:{AB+4*ks+3}], v{aA} offset:{L_HB + 64*ks}")
        if pre_gate:
            a(f"s_bitcmp1_b32 s{sWAVE}, 1\n s_cbranch_scc1 L_b_full")
            for ks in range(9):
                a_read(ks)
            for ks in range(9):
                a(f"s_waitcnt lgkmcnt({8-ks})")
                mm(ks)
            a("s_branch L_b_mmdone\n L_b_full:")
        def trip(ks):
            a(f"ds_read_b64_tr_b16 v[{BB+4*ks}:{BB+4*ks+1}], v{aBB} offset:{ks*2048}")
            a(f"ds_read_b64_tr_b16 v[{BB+4*ks+2}:{BB+4*ks+3}], v{aBB} offset:{ks*2048+256}")
            a_read(ks)
        for ks in range(4):
            trip(ks)
        for ks in range(9):
            a(f"s_waitcnt lgkmcnt({3 * (min(ks + 3, 8) - ks)})")
            mm(ks)
            if ks + 4 <= 8:
                trip(ks + 4)
        a("L_b_mmdone:")
        def wd_read(i):
            if zpack and i == 4:
                a(f"s_mul_i32 s28, s{sWAVE}, 96\n s_sub_u32 s28, 1024, s28\n v_add_u32 v{vT+16}, s28, v{aWD}")
                a(f"ds_read_b64_tr_b16 v[{WDd+16}:{WDd+17}], v{vT+16} offset:0")
                a(f"ds_read_b64_tr_b16 v[{WDd+18}:{WDd+19}], v{vT+16} offset:{4*1152}")
                return
            st_ = 32 if zpack else 256
            a(f"ds_read_b64_tr_b16 v[{WDd+4*i}:{WDd+4*i+1}], v{aWD} offset:{i*st_}")
            a(f"ds_read_b64_tr_b16 v[{WDd+4*i+2}:{WDd+4*i+3}], v{aWD} offset:{i*st_ + 4*1152}")
        for i in range(5 if not wd_after else 0):
            if i == 4:
                a(f"s_cmp_ge_u32 s{sWAVE}, 4\n s_cbranch_scc1 L_no5th")
            wd_read(i)
        if not wd_after:
            a("L_no5th:")
    else:
        if not no_w:
            a(f"s_cmp_eq_u32 s{sDRY}, 1\n s_cbranch_scc1 L_skip_late")
            weights_late()
            a("L_skip_late:")
        stamp(15)
        BB = 64
        WDd = 100
        a(f"""
        v_lshrrev_b32 v{vT}, 2, v{vN}
        v_lshl_add_u32 v{vT}, v{vG}, 3, v{vT}            ; 8g + r
        v_and_b32 v{vT+1}, 3, v{vLANE}                   ; cc
        v_lshlrev_b32 v{vT+2}, 6, v{vT}
        v_lshl_add_u32 v{vT+2}, v{vT+1}, 3, v{vT+2}      ; (8g+r)*64 + cc*8
        s_and_b32 s28, s{sWAVE}, 1
        s_lshl_b32 s28, s28, 5                           ; t*32
        s_bfe_u32 s29, s{sWAVE}, 0x10001
        s_mul_i32 s29, s29, {L_WU - L_WG}
        s_add_u32 s28, s28, s29
        s_add_u32 s28, s28, {L_WG}
        s_lshr_b32 s29, s{sWAVE}, 2
        s_mul_i32 s29, s29, {9*2048}
        s_add_u32 s28, s28, s29
        v_add_u32 v{vT+2}, s28, v{vT+2}
        """)
        for ks in range(9):
            a(f"ds_read_b64_tr_b16 v[{BB+4*ks}:{BB+4*ks+1}], v{vT+2} offset:{ks*2048}")
            a(f"ds_read_b64_tr_b16 v[{BB+4*ks+2}:{BB+4*ks+3}], v{vT+2} offset:{ks*2048+256}")
            if ks == 5:
                a("s_waitcnt lgkmcnt(0)")
        a(f"""
        v_mul_u32_u24 v{vT+3}, 1152, v{vT}
        v_lshl_add_u32 v{vT+3}, v{vT+1}, 3, v{vT+3}
        s_lshl_b32 s28, s{sWAVE}, 5
        s_add_u32 s28, s28, {L_WD}
        v_add_u32 v{vT+3}, s28, v{vT+3}
        s_waitcnt lgkmcnt(0)
        """)
        for i in range(5):
            if i == 4:
                a(f"s_cmp_ge_u32 s{sWAVE}, 4\n s_cbranch_scc1 L_no5th")
            a(f"ds_read_b64_tr_b16 v[{WDd+4*i}:{WDd+4*i+1}], v{vT+3} offset:{i*256}")
            a(f"ds_read_b64_tr_b16 v[{WDd+4*i+2}:{WDd+4*i+3}], v{vT+3} offset:{i*256 + 4*1152}")
        a("L_no5th:")
        aH, aA, aG, aR, aF1, aF2, aF3, aW = (vT + 4 + i for i in range(8))
        aP = vT + 12
        a(f"""
        s_lshl_b32 s28, s{sWAVE}, 7
        v_lshlrev_b32 v{aH}, 1, v{vLANE}
        v_add_u32 v{aH}, s28, v{aH}
        v_and_b32 v{aA}, 3, v{vN}
        v_cmp_eq_u32 vcc, 4, v{vN}
        v_mov_b32 v{aG}, 4
        s_lshr_b32 s28, s{sWAVE}, 2
        v_cndmask_b32 v{aA}, v{aA}, v{aG}, vcc           ; row(m)
        v_mul_u32_u24 v{aA}, 1152, v{aA}
        s_mul_i32 s28, s28, {9*64}
        v_lshl_add_u32 v{aA}, v{vG}, 4, v{aA}
        v_add_u32 v{aA}, s28, v{aA}
        s_lshl_b32 s28, s{sWAVE}, 10
        v_lshlrev_b32 v{aG}, 4, v{vLANE}
        v_add_u32 v{aG}, s28, v{aG}
        s_lshl_b32 s28, s{sWAVE}, 8
        v_lshlrev_b32 v{aR}, 4, v{vN}
        v_add_u32 v{aR}, s28, v{aR}                      ; wave*256 + n*16
        v_lshrrev_b32 v{aW}, 2, v{vLANE}                 ; f'
        v_and_b32 v{aF3}, 3, v{vLANE}                    ; b
        s_lshl_b32 s28, s{sWAVE}, 10
        v_lshlrev_b32 v{aF2}, 4, v{aW}
        v_add_u32 v{aF2}, s28, v{aF2}                    ; tile*1024 + f'*16
        v_lshl_add_u32 v{aF1}, v{aF3}, 2, v{aF2}         ; + b*4
        s_lshl_b32 s28, s{sWAVE}, 5
        v_lshlrev_b32 v{aW}, 1, v{aW}
        v_add_u32 v{aW}, s28, v{aW}                      ; (tile*16 + f')*2
        v_lshl_add_u32 v{aW}, v{aF3}, 6, v{aW}           ; + b*64
        v_lshlrev_b32 v{vT}, 4, v{aF3}                   ; b*16
        v_mov_b32 v{vT+1}, 64
        v_and_b32 v{vT+2}, 4, v{vLANE}
        v_cmp_ne_u32 vcc, 0, v{vT+2}
        v_lshrrev_b32 v{vT+2}, 3, v{vLANE}
        v_lshlrev_b32 v{vT+2}, 8, v{vT+2}                ; (l>>3)*256
        v_cndmask_b32 v{vT}, v{vT}, v{vT+1}, vcc
        v_lshl_add_u32 v{aF3}, v{aF3}, 2, v{vT}
        v_add_u32 v{aF3}, v{aF3}, v{vT+2}
        s_mov_b32 s64, 0xf0f0f0f0
        s_mov_b32 s65, 0xf0f0f0f0
        v_lshlrev_b32 v{aP}, 4, v{vLANE}
        s_lshl_b32 s28, s{sWAVE}, 10
        s_add_u32 s28, s28, {WS_HB}
        s_mov_b32 s29, {WS_HB + 8192}
        s_lshl_b32 s30, s{sWAVE}, 11
        s_add_u32 s30, s30, {WS_CANB + 8*128}
        """)
        HGs = [P + 48 + 8 * k for k in range(3)]
        for k in range(3):
            for r in range(4):
                a(f"v_mov_b32 v{HGs[k]+4+r}, v{vTAG}")
        def h_issue2(k):
            a(f"buffer_load_dwordx4 v[{HGs[k]}:{HGs[k]+3}], v{aP}, s[{sWS}:{sWS+3}], s28 offen sc1")
            a(f"buffer_load_dwordx4 v[{HGs[k]+4}:{HGs[k]+7}], v{aP}, s[{sWS}:{sWS+3}], s29 offen sc1")
        def h_issue1(k):
            a(f"buffer_load_dwordx4 v[{HGs[k]}:{HGs[k]+3}], v{aP}, s[{sWS}:{sWS+3}], s28 offen sc1")
        def h_consume2(k):
            for b in range(4):
                a(f"ds_write_b16_d16_hi v{aH}, v{HGs[k]+b} offset:{L_HB + 1152*b}")
            for b in range(4):
                a(f"ds_write_b16_d16_hi v{aH}, v{HGs[k]+4+b} offset:{L_HB + 1152*b + 1024}")
        def h_consume1(k):
            for b in range(4):
                a(f"ds_write_b16_d16_hi v{aH}, v{HGs[k]+b} offset:{L_HB + 1152*b}")
        a(f"s_cmp_lg_u32 s{sWAVE}, 0\n s_cbranch_scc1 L_h1")
        ppoll(a, "L_hpoll2", ns[2], 2, h_issue2, lambda k: list(range(HGs[k], HGs[k] + 8)), vT + 13, h_consume2, pollsleep, stg,
              probe=((lambda: a(f"buffer_load_dword v{HGs[0]}, v{aP}, s[{sWS}:{sWS+3}], s{30 if canB else 28} offen sc1")), HGs[0], "1") if probe[2] else None, presleep=presl[2])
        a("s_branch L_h2\n L_h1:")
        ppoll(a, "L_hpoll1", ns[2], 1, h_issue1, lambda k: list(range(HGs[k], HGs[k] + 4)), vT + 13, h_consume1, pollsleep, stg,
              probe=((lambda: a(f"buffer_load_dword v{HGs[0]}, v{aP}, s[{sWS}:{sWS+3}], s{30 if canB else 28} offen sc1")), HGs[0], "1") if probe[2] else None, presleep=presl[2])
        a("L_h2:")
        stamp(5)
        a("s_waitcnt lgkmcnt(0)\n s_barrier")
        AB = P
        for ks in range(9):
            a(f"ds_read_b128 v[{AB+4*ks}:{AB+4*ks+3}], v{aA} offset:{L_HB + 64*ks}")
    GD = P + 40
    GRm = P + 44
    for ks in range(9 if not bdec else 0):
        a(f"s_waitcnt lgkmcnt({8-ks})")
        c = "0" if ks == 0 else f"v[{GD}:{GD+3}]"
        a(f"v_mfma_f32_16x16x32_bf16 v[{GD}:{GD+3}], v[{AB+4*ks}:{AB+4*ks+3}], v[{BB+4*ks}:{BB+4*ks+3}], {c}")
    a(f"s_and_b32 s28, s{sWAVE}, 3")
    lg = [a.label("L_gr") for _ in range(4)]; lge = a.label("L_gre")
    for t in range(1, 4):
        a(f"s_cmp_eq_u32 s28, {t}\n s_cbranch_scc1 {lg[t]}")
    for t in range(4):
        a(f"{lg[t]}:")
        kss = [t, t + 4] + ([8] if t == 0 else [])
        for i, ks in enumerate(kss):
            c = "0" if i == 0 else f"v[{GRm}:{GRm+3}]"
            a(f"v_mfma_f32_16x16x32_bf16 v[{GRm}:{GRm+3}], v[{AB+4*ks}:{AB+4*ks+3}], v[{AB+4*ks}:{AB+4*ks+3}], {c}")
        if t != 3:
            a(f"s_branch {lge}")
    a(f"""
    {lge}:
    s_nop 2
    ds_write_b128 v{aG}, v[{GD}:{GD+3}] offset:{L_GUF}
    s_nop 6
    s_mov_b64 exec, 0xffff
    ds_write_b128 v{aR}, v[{GRm}:{GRm+3}] offset:{L_GR}
    s_mov_b64 exec, -1
    s_waitcnt {"vmcnt(0) " if (bdec and wd_after) else ""}lgkmcnt(0)
    s_barrier
    """)
    def wd_reads(tag):
        for i in range(5):
            if i == 4:
                a(f"s_cmp_ge_u32 s{sWAVE}, 4\n s_cbranch_scc1 L_no5th{tag}")
            a(f"ds_read_b64_tr_b16 v[{WDd+4*i}:{WDd+4*i+1}], v{aWD} offset:{i*256}")
            a(f"ds_read_b64_tr_b16 v[{WDd+4*i+2}:{WDd+4*i+3}], v{aWD} offset:{i*256 + 4*1152}")
        a(f"L_no5th{tag}:")
    if bdec and wd_after:
        a(f"s_cmp_lt_u32 s{sWAVE}, 2\n s_cbranch_scc1 L_wd_later")
        wd_reads("a")
        a("L_wd_later:")
    stamp(6)
    def canc_store():
        lab = a.label("L_nocan")
        a(f"""
        s_cmp_lg_u32 s{sWAVE}, 7
        s_cbranch_scc1 {lab}
        s_lshl_b32 s30, s{sIDX}, 7
        s_add_u32 s30, s30, {WS_CANC}
        v_mov_b32 v{vT+14}, 0
        s_mov_b64 exec, 1
        buffer_store_dword v{vTAG}, v{vT+14}, s[{sWS}:{sWS+3}], s30 offen sc1
        s_mov_b64 exec, -1
        {lab}:
        """)
    if canC == 2:
        canc_store()
    a(f"s_cmp_ge_u32 s{sWAVE}, 2\n s_cbranch_scc1 L_nogelu")
    GE = P
    a(f"""
    ds_read_b32 v{GE+8}, v{aF3} offset:{L_GR}
    ds_read_b32 v{GE}, v{aF1} offset:{L_GUF}
    ds_read_b32 v{GE+1}, v{aF1} offset:{L_GUF+4096}
    ds_read_b32 v{GE+2}, v{aF1} offset:{L_GUF+2048}
    ds_read_b32 v{GE+3}, v{aF1} offset:{L_GUF+2048+4096}
    ds_read_b32 v{GE+4}, v{aF2} offset:{L_GUF+256}
    ds_read_b32 v{GE+5}, v{aF2} offset:{L_GUF+256+4096}
    ds_read_b32 v{GE+6}, v{aF2} offset:{L_GUF+256+2048}
    ds_read_b32 v{GE+7}, v{aF2} offset:{L_GUF+256+2048+4096}
    s_waitcnt lgkmcnt(8)
    """)
    X_, Y_, T_ = GE + 8, GE + 9, GE + 10
    a(f"""
    s_nop 1
    v_add_f32_dpp v{X_}, v{X_}, v{X_} row_ror:8 row_mask:0xf bank_mask:0xf
    """)
    xrow(a, [X_], [T_])
    a(f"""
    s_nop 1
    v_mov_b32_dpp v{Y_}, v{X_} row_ror:4 row_mask:0xf bank_mask:0xf
    s_nop 0
    v_cndmask_b32 v{T_}, v{Y_}, v{X_}, s[64:65]      ; sum
    v_cndmask_b32 v{Y_}, v{X_}, v{Y_}, s[64:65]      ; sumsq
    v_mul_f32 v{T_}, {INV576}, v{T_}                 ; mu
    v_mul_f32 v{Y_}, {INV576}, v{Y_}
    v_fma_f32 v{Y_}, -v{T_}, v{T_}, v{Y_}            ; var
    v_max_f32 v{Y_}, 0, v{Y_}
    """)
    rbf(a, [(T_, Y_)], [X_])
    a(f"v_add_f32 v{Y_}, {EPS}, v{Y_}")
    rbf(a, [(Y_, Y_)], [X_])
    a(f"v_sqrt_f32 v{Y_}, v{Y_}\n s_nop 0")
    rbf(a, [(Y_, Y_)], [X_])
    a(f"""
    v_rcp_f32 v{X_}, v{Y_}
    s_waitcnt lgkmcnt(0)
    """)
    if bdec and wd_after:
        wd_reads("b")
    a(f"""
    v_add_f32 v{GE}, v{GE}, v{GE+1}
    v_add_f32 v{GE+2}, v{GE+2}, v{GE+3}
    v_add_f32 v{GE+4}, v{GE+4}, v{GE+5}
    v_add_f32 v{GE+6}, v{GE+6}, v{GE+7}
    v_fma_f32 v{GE}, -v{T_}, v{GE+4}, v{GE}
    v_fma_f32 v{GE+2}, -v{T_}, v{GE+6}, v{GE+2}
    """)
    fdiv(a, GE + 1, GE, X_, Y_, GE + 4)
    fdiv(a, GE + 3, GE + 2, X_, Y_, GE + 5)
    rbf(a, [(GE + 1, GE + 3)], [GE + 4])
    C1, C2 = 0x3d372713, 0x3f4c422a
    TWO_L2E = 0x4038aa3b
    g, t = GE + 1, GE + 4
    a(f"""
    v_mul_f32 v{t}, v{g}, v{g}
    v_mul_f32 v{t}, v{t}, v{g}
    v_mov_b32 v{t+1}, {C1}
    v_fma_f32 v{t}, v{t}, v{t+1}, v{g}
    v_mul_f32 v{t}, {C2}, v{t}
    v_mul_f32 v{t}, {TWO_L2E}, v{t}
    v_exp_f32 v{t}, v{t}
    v_mul_f32 v{t+2}, 0.5, v{g}
    v_add_f32 v{t}, 1.0, v{t}
    v_rcp_f32 v{t}, v{t}
    s_nop 0
    v_fma_f32 v{t}, -2.0, v{t}, 1.0
    v_add_f32 v{t}, 1.0, v{t}
    v_mul_f32 v{g}, v{t+2}, v{t}
    """)
    rbf(a, [(g, g)], [t])
    a(f"""
    v_mul_f32 v{g}, v{g}, v{GE+3}
    v_cvt_pk_bf16_f32 v{t}, v{g}, v{g}
    ds_write_b16 v{aW}, v{t} offset:{L_HF}
    s_waitcnt lgkmcnt(0)
    L_nogelu:
    s_barrier
    """)
    tstamp(14)
    if canC == 1:
        canc_store()
    a(f"""
    v_and_b32 v{vT+5}, 3, v{vN}
    v_lshlrev_b32 v{vT+5}, 6, v{vT+5}
    v_lshl_add_u32 v{vT+5}, v{vG}, 4, v{vT+5}
    ds_read_b128 v[{P}:{P+3}], v{vT+5} offset:{L_HF}
    """)
    if cmajZ:
        a(f"""
        s_lshl_b32 s28, s{sIDX}, 6
        s_add_u32 s28, s28, {WS_Z}
        s_mul_i32 s29, s{sWAVE}, {4*9216}
        s_add_u32 s28, s28, s29
        v_lshrrev_b32 v{vT+6}, 2, v{vN}
        v_mul_u32_u24 v{vT+6}, 9216, v{vT+6}
        v_and_b32 v{vT+7}, 3, v{vN}
        v_lshl_add_u32 v{vT+6}, v{vT+7}, 4, v{vT+6}
        """)
        zstep = 8 * 4 * 9216
    else:
        a(f"""
        s_mul_i32 s28, s{sIDX}, 9216
        s_add_u32 s28, s28, {WS_Z}
        s_lshl_b32 s29, s{sWAVE}, 8
        s_add_u32 s28, s28, s29
        v_lshlrev_b32 v{vT+6}, 4, v{vN}
        """)
        zstep = 2048
    a("s_waitcnt lgkmcnt(0)")
    ZD = P + 8
    for i in range(5):
        if i == 4:
            a(f"s_cmp_ge_u32 s{sWAVE}, 4\n s_cbranch_scc1 L_z4")
        a(f"v_mfma_f32_16x16x32_bf16 v[{ZD+4*i}:{ZD+4*i+3}], v[{P}:{P+3}], v[{WDd+4*i}:{WDd+4*i+3}], 0")
    if zpack:
        assert not cmajZ and bdec and not wd_after
        a(f"""
        L_z4:
        s_mul_i32 s28, s{sIDX}, 9216
        s_add_u32 s28, s28, {WS_Z}
        s_lshl_b32 s29, s{sWAVE}, 10
        s_add_u32 s29, s29, s28                ; tiles 4w..4w+3: 1 KB contiguous
        v_lshlrev_b32 v{vT+6}, 4, v{vLANE}
        s_lshl_b32 s30, s{sWAVE}, 8
        s_add_u32 s30, s30, s28
        s_add_u32 s30, s30, 8192
        s_nop 1
        """)
        for r in range(4):
            a(f"v_permlane16_swap_b32 v{ZD+r}, v{ZD+4+r}")
        for r in range(4):
            a(f"v_permlane16_swap_b32 v{ZD+8+r}, v{ZD+12+r}")
        a("s_nop 1")
        for r in range(4):
            a(f"v_permlane32_swap_b32 v{ZD+r}, v{ZD+8+r}")
        a("s_nop 1")
        addtag(a, range(ZD, ZD + 4))
        a(f"buffer_store_dwordx4 v[{ZD}:{ZD+3}], v{vT+6}, s[{sWS}:{sWS+3}], s29 offen sc1")
        a(f"s_cmp_ge_u32 s{sWAVE}, 4\n s_cbranch_scc1 L_fin")
        addtag(a, range(ZD + 16, ZD + 20))
        a(f"""
        s_mov_b64 exec, 0xffff
        buffer_store_dwordx4 v[{ZD+16}:{ZD+19}], v{vT+6}, s[{sWS}:{sWS+3}], s30 offen sc1
        s_mov_b64 exec, -1
        """)
    else:
        a("L_z4:\n s_nop 7")
        for i in range(5):
            if i == 4:
                a(f"s_cmp_ge_u32 s{sWAVE}, 4\n s_cbranch_scc1 L_fin")
            addtag(a, range(ZD + 4*i, ZD + 4*i + 4))
            a(f"""
            s_add_u32 s29, s28, {zstep*i}
            s_mov_b64 exec, 0xffff
            buffer_store_dwordx4 v[{ZD+4*i}:{ZD+4*i+3}], v{vT+6}, s[{sWS}:{sWS+3}], s29 offen sc1
            s_mov_b64 exec, -1
            """)

    tstamp(13)
    a("L_fin:")
    for i in range(mark_tail, len(a.L) if dry else 0):
        if a.L[i].strip() == "s_barrier" and "noguard" not in a.L[i]:
            lab = a.label("L_nb")
            a.L[i] = f"    s_cmp_eq_u32 s{sDRY}, 1\n    s_cbranch_scc1 {lab}\n    s_barrier\n{lab}:"
    a(f"s_cmp_eq_u32 s{sDRY}, 1\n s_cbranch_scc1 L_dry_done" if dry else "")
    dbg_max(2)
    if stamps:
        a("s_waitcnt vmcnt(0)")
        stamp(8)
        a(f"""
        s_lshl_b32 s28, s{sW}, 3
        s_add_u32 s28, s28, s{sWAVE}
        s_lshl_b32 s28, s28, 6
        s_add_u32 s28, s28, {WS_STAMP}
        v_mov_b32 v{vT}, 0
        s_mov_b64 exec, 1
        """)
        for i in range(0, NSTAMP, 4):
            for r in range(4):
                a(f"v_mov_b32 v{vT+2+r}, s{sST+i+r}")
            a(f"buffer_store_dwordx4 v[{vT+2}:{vT+5}], v{vT}, s[{sWS}:{sWS+3}], s28 offen offset:{4*i}")
            a("s_nop 1")
        a("s_waitcnt vmcnt(0)")
    a("L_end:\n s_endpgm\n L_code_end:")

    if not dry:
        L2 = []; i = 0
        flat = "\n".join(a.L).split("\n")
        while i < len(flat):
            if flat[i].strip() == f"s_cmp_eq_u32 s{sDRY}, 1" and flat[i+1].strip().startswith("s_cbranch_scc1"):
                i += 2; continue
            if flat[i].strip() in (f"s_mov_b32 s{sDRY}, 0",):
                i += 1; continue
            L2.append(flat[i]); i += 1
        a.L = L2
    hdr = HEADER + f"; @launch grid=(256,1,1) block=(512,1,1) lds={LDS_BYTES}\n"
    hdr += '.amdgcn_target "amdgcn-amd-amdhsa--gfx950"\n.text\n'
    return hdr + kernel_begin(KNAME) + a.text() + kernel_desc(KNAME, 256, 102, 256)


HEADER = """;
;  prologue : LN(x[b]) and q[b,h] = LN(x) Wq[:, h] per workgroup (MFMA, natural-layout weights with a delta-masked A
;             attention partials -> 96 Wo workgroups (merge, o Wo) -> 144 column reducers (h = x + attn) ->
"""

if __name__ == "__main__":
    import sys
    kw = eval(sys.argv[2]) if len(sys.argv) > 2 else {}
    open(sys.argv[1], "w").write(gen(**kw))
```
